```python
import torch

def _softmax(x, axis=-1):
    return torch.softmax(x, dim=axis)
def _gelu(x):
    return torch.nn.functional.gelu(x, approximate="tanh")
def _silu(x):
    return torch.nn.functional.silu(x)
def _sigmoid(x):
    return torch.sigmoid(x)
def _layernorm(x, axis=-1, eps=1e-5):
    m = x.mean(dim=axis, keepdim=True)
    v = x.var(dim=axis, keepdim=True, unbiased=False)
    return (x - m) / torch.sqrt(v + eps)
def _scatter_add(tgt, idx, src, axis=0):
    return tgt.clone().index_add_(axis, idx, src)
def _segment_sum(src, seg, n):
    out = torch.zeros((n,) + src.shape[1:], dtype=src.dtype)
    return out.index_add_(0, seg, src)
def _pad(x, pw):
    flat = tuple(v for pair in reversed(pw) for v in pair)
    return torch.nn.functional.pad(x, flat)

kernel_name = 'parallel_sum__linear_kernel_hedgehog__dense_activation_mish__prompt'

def setup_inputs():

    _w = (lambda a: (lambda t: t.to(torch.bfloat16) if t.is_floating_point() else t)(torch.as_tensor(a)))
    def _A_setup():
        B, S, D, H = 1, 2048, 640, 32
        Dh = D // H
        return {
            "x": _w((lambda *s: torch.randn(*s, dtype=torch.bfloat16) * 0.05)(B, S, D)),
            "wqkv": _w((lambda *s: torch.randn(*s, dtype=torch.bfloat16) * 0.2)(D, 3 * D)),
            "w_phi": _w((lambda *s: torch.randn(*s, dtype=torch.bfloat16) * 0.2)(H, Dh, Dh) * (Dh ** -0.5)),
            "wo": _w((lambda *s: torch.randn(*s, dtype=torch.bfloat16) * 0.05)(D, D)),
        }
    _A_in = _A_setup()

    def _B_setup():
        B, S, D, F = 1, 2048, 640, 1728
        return {
            "x": _w((lambda *s: torch.randn(*s, dtype=torch.bfloat16) * 0.05)(B, S, D)),
            "w1": _w((lambda *s: torch.randn(*s, dtype=torch.bfloat16) * 0.8)(D, F) * (D ** -0.5)),
            "b1": _w((lambda *s: torch.randn(*s, dtype=torch.bfloat16) * 0.4)(F)),
            "w2": _w((lambda *s: torch.randn(*s, dtype=torch.bfloat16) * 0.1)(F, D) * (F ** -0.5)),
        }
    _B_in = _B_setup()

    return {
        "A_x": _A_in["x"],
        "A_wqkv": _A_in["wqkv"],
        "A_w_phi": _A_in["w_phi"],
        "A_wo": _A_in["wo"],
        "B_x": _B_in["x"],
        "B_w1": _B_in["w1"],
        "B_b1": _B_in["b1"],
        "B_w2": _B_in["w2"],
    }

def reference(A_x, A_wqkv, A_w_phi, A_wo, B_x, B_w1, B_b1, B_w2):
    def _A_ref(x, wqkv, w_phi, wo):
        B, S, D = x.shape
        H = 32; Dh = D // H
        qkv = (lambda x, *d: x.permute(*d))((x @ wqkv).reshape(B, S, 3, H, Dh), 2, 0, 3, 1, 4)
        q, k, v = qkv[0], qkv[1], qkv[2]
        pq = torch.einsum("bhsd,hdf->bhsf", q, w_phi)
        pk = torch.einsum("bhsd,hdf->bhsf", k, w_phi)
        phi_q = torch.concatenate([_softmax(pq, axis=-1), _softmax(-pq, axis=-1)], axis=-1)
        phi_k = torch.concatenate([_softmax(pk, axis=-1), _softmax(-pk, axis=-1)], axis=-1)
        kv = torch.einsum("bhsf,bhsd->bhfd", phi_k, v)
        z  = torch.einsum("bhsf->bhf", phi_k)
        num = torch.einsum("bhqf,bhfd->bhqd", phi_q, kv)
        den = torch.einsum("bhqf,bhf->bhq", phi_q, z)[..., None] + 1e-6
        o = num / den
        return (lambda x, *d: x.permute(*d))(o, 0, 2, 1, 3).reshape(B, S, D) @ wo

    def _B_ref(x, w1, b1, w2):
        h = torch.einsum("bsd,df->bsf", x, w1) + b1
        sp = torch.log1p(torch.exp(-torch.abs(h))) + torch.where(h > 0, h, torch.zeros_like(h))
        act = h * torch.tanh(sp)
        return torch.einsum("bsf,fd->bsd", act, w2)

    x = A_x
    xn = _layernorm(x, axis=-1)
    return x + _A_ref(xn, A_wqkv, A_w_phi, A_wo) + _B_ref(xn, B_w1, B_b1, B_w2)
```

```python
import re

TRANS = ("v_exp_f32", "v_log_f32", "v_rcp_f32", "v_rsq_f32", "v_sqrt_f32", "v_sin_f32", "v_cos_f32",
         "v_rcp_iflag_f32")


def R(kind, lo, n=1):
    if n == 1:
        return f"{kind}{lo}"
    return f"{kind}[{lo}:{lo + n - 1}]"


def v(lo, n=1): return R("v", lo, n)
def a(lo, n=1): return R("a", lo, n)
def s(lo, n=1): return R("s", lo, n)


_reg_re = re.compile(r"^(-|abs\(|-abs\(|\|)?([vas])(\d+|\[(\d+):(\d+)\])\)?\|?$")


def regs_of(op):
    op = op.strip()
    if op in ("vcc", "vcc_lo", "vcc_hi"):
        return {("vcc", 0)}
    if op in ("exec", "exec_lo", "exec_hi"):
        return {("exec", 0)}
    if op == "m0":
        return {("m0", 0)}
    m = _reg_re.match(op)
    if not m:
        return set()
    k = m.group(2)
    if m.group(4) is not None:
        return {(k, i) for i in range(int(m.group(4)), int(m.group(5)) + 1)}
    return {(k, int(m.group(3)))}


class I:
    __slots__ = ("text", "op", "ops", "mods", "rd", "wr", "cls", "tag", "waitfor", "passes", "srcC", "cost",
                 "label", "target", "manual")

    def __init__(self, text, tag=None):
        self.text = text
        self.tag = tag
        self.waitfor = None
        self.label = None
        self.target = None
        self.manual = False
        self.passes = 0
        self.srcC = set()
        t = text.split(";")[0].strip()
        if t.endswith(":"):
            self.label = t[:-1]
            self.op = ""; self.ops = []; self.mods = []; self.rd = set(); self.wr = set(); self.cls = "label"
            self.cost = 0
            return
        if t == "" or t.startswith("."):
            self.op = ""; self.ops = []; self.mods = []; self.rd = set(); self.wr = set(); self.cls = "none"
            self.cost = 0
            return
        sp = t.split(None, 1)
        op = sp[0]
        rest = sp[1] if len(sp) > 1 else ""
        parts = [p.strip() for p in rest.split(",")] if rest else []
        mods = []
        if parts:
            last = parts[-1].split()
            if len(last) > 1:
                parts[-1] = last[0]
                mods = last[1:]
        self.op = op.replace("_e32", "").replace("_e64", "")
        self.ops = parts
        self.mods = mods
        self.classify()

    def classify(self):
        op, ops, mods = self.op, self.ops, self.mods
        rd, wr = set(), set()
        cls = None
        cost = 1
        RS = lambda lst: set().union(*[regs_of(x) for x in lst]) if lst else set()
        if op.startswith("v_mfma"):
            cls = "mfma"
            wr = regs_of(ops[0]); rd = RS(ops[1:4]); self.srcC = regs_of(ops[3])
            self.passes = 8 if "32x32x16" in op or "32x32x8" in op else (2 if "4x4x4" in op else 4)
            rd |= {("exec", 0)}
        elif op.startswith("v_"):
            cls = "valu"
            if op.startswith("v_cmpx"):
                wr = regs_of(ops[0]) | {("exec", 0)}; rd = RS(ops[1:])
            elif op.startswith(("v_add_co", "v_sub_co", "v_addc_co", "v_subb_co", "v_subrev_co", "v_div_scale",
                                "v_mad_u64_u32")):
                wr = RS(ops[:2]); rd = RS(ops[2:])
            elif op.startswith(("v_permlane32_swap", "v_permlane16_swap", "v_swap")):
                wr = RS(ops[:2]); rd = RS(ops[:2])
            elif op.startswith(("v_fmac", "v_pk_fmac", "v_dot2c", "v_writelane")):
                wr = regs_of(ops[0]); rd = RS(ops)
            elif op == "v_nop":
                pass
            else:
                wr = regs_of(ops[0]); rd = RS(ops[1:])
                if any(m.startswith(("row_", "quad_perm", "wave_")) for m in mods) and "bound_ctrl:0" not in mods \
                        and "bound_ctrl:1" not in mods:
                    rd |= regs_of(ops[0])
                if any(m.startswith("dst_sel") for m in mods):
                    rd |= regs_of(ops[0])
            if op in TRANS:
                cost = 2
        elif op.startswith("ds_"):
            cls = "ds"
            if op.startswith(("ds_read", "ds_bpermute", "ds_permute", "ds_swizzle")):
                wr = regs_of(ops[0]); rd = RS(ops[1:])
            else:
                rd = RS(ops)
        elif op.startswith(("buffer_", "global_")):
            cls = "vmem"
            if op in ("buffer_wbl2", "buffer_inv"):
                pass
            elif "lds" in mods or "_lds_" in op:
                rd = RS(ops) | {("m0", 0)}
            elif "_load" in op:
                wr = regs_of(ops[0]); rd = RS(ops[1:])
            elif "_atomic" in op and "sc0" in mods:
                wr = regs_of(ops[0]); rd = RS(ops)
            else:
                rd = RS(ops)
        elif op.startswith(("s_load", "s_buffer_load", "s_memtime", "s_memrealtime")):
            cls = "smem"
            wr = regs_of(ops[0]); rd = RS(ops[1:])
        elif op.startswith("s_"):
            cls = "salu"
            if op.startswith(("s_branch", "s_cbranch")):
                self.target = ops[0]
                if "vcc" in op: rd = {("vcc", 0)}
                if "exec" in op: rd = {("exec", 0)}
            elif op.startswith(("s_cmp", "s_bitcmp")):
                rd = RS(ops)
            elif op in ("s_waitcnt", "s_barrier", "s_nop", "s_endpgm", "s_setprio", "s_sleep"):
                if op == "s_nop":
                    cost = int(ops[0], 0) + 1
            elif "saveexec" in op:
                wr = regs_of(ops[0]) | {("exec", 0)}; rd = RS(ops[1:]) | {("exec", 0)}
            elif op in ("s_addk_i32", "s_mulk_i32"):
                wr = regs_of(ops[0]); rd = regs_of(ops[0])
            else:
                wr = regs_of(ops[0]); rd = RS(ops[1:])
        else:
            raise ValueError("unknown instruction: " + self.text)
        self.rd, self.wr, self.cls, self.cost = rd, wr, cls, cost

    def states(self):
        if self.cls in ("label", "none"):
            return 0
        if self.op == "s_nop":
            return int(self.ops[0], 0) + 1
        return 1

    def __repr__(self):
        return self.text


class WaitTag(I):
    def __init__(self, vm=None, lgkm=None):
        I.__init__(self, "s_waitcnt vmcnt(0)")
        self.waitfor = (vm, lgkm)
        self.manual = True


class Asm:
    def __init__(self):
        self.ins = []

    def __call__(self, text, tag=None):
        for line in text.split("\n"):
            if line.strip() == "":
                continue
            self.ins.append(I(line.strip(), tag))
        return self

    def wait(self, vm=None, lgkm=None):
        self.ins.append(WaitTag(vm, lgkm))

    def extend(self, other):
        self.ins.extend(other.ins if isinstance(other, Asm) else other)

    def label(self, name):
        self.ins.append(I(name + ":"))


def _blocks(ins):
    starts = {0}
    lab = {}
    for i, x in enumerate(ins):
        if x.label:
            starts.add(i); lab[x.label] = i
        if x.target or x.op == "s_endpgm":
            starts.add(i + 1)
    st = sorted(k for k in starts if k < len(ins))
    blocks = [(st[j], st[j + 1] if j + 1 < len(st) else len(ins)) for j in range(len(st))]
    idx = {b[0]: j for j, b in enumerate(blocks)}
    succ = []
    for j, (b, e) in enumerate(blocks):
        last = None
        for k in range(e - 1, b - 1, -1):
            if ins[k].cls not in ("label", "none"):
                last = ins[k]; break
        sc = []
        if last is not None and last.op == "s_endpgm":
            pass
        elif last is not None and last.target:
            sc.append(idx[lab[last.target]])
            if last.op != "s_branch" and j + 1 < len(blocks):
                sc.append(j + 1)
        elif j + 1 < len(blocks):
            sc.append(j + 1)
        succ.append(sc)
    return blocks, succ


def insert_waits(ins):
    blocks, succ = _blocks(ins)
    need = {}

    def merge(A, B):
        out = dict(A)
        ch = False
        for k, x in B.items():
            if k not in out or x < out[k]:
                out[k] = x; ch = True
        return out, ch

    def run(bi, vm, lg):
        vm = dict(vm); lg = dict(lg)
        b, e = blocks[bi]
        for i in range(b, e):
            x = ins[i]
            if x.cls in ("label", "none"):
                continue
            wv, wl = None, None

            def req(d, keys, cur):
                for k in keys:
                    if k in d:
                        cur = d[k] if cur is None else min(cur, d[k])
                return cur
            if x.waitfor is not None:
                tv, tl = x.waitfor
                if tv == "all":
                    wv = 0
                elif tv is not None:
                    tv = tv if isinstance(tv, (list, tuple, set)) else [tv]
                    wv = req(vm, [("tag", t) for t in tv], None)
                if tl == "all":
                    wl = 0
                elif tl is not None:
                    tl = tl if isinstance(tl, (list, tuple, set)) else [tl]
                    wl = req(lg, [("tag", t) for t in tl], None)
            elif x.op == "s_waitcnt":
                m = re.search(r"vmcnt\((\d+)\)", x.text)
                if m:
                    n = int(m.group(1)); vm = {k: g for k, g in vm.items() if g < n}
                m = re.search(r"lgkmcnt\((\d+)\)", x.text)
                if m:
                    n = int(m.group(1)); lg = {k: g for k, g in lg.items() if g < n and (n == 0 or True)}
                    if n == 0: lg = {}
                continue
            else:
                rdk = x.rd
                wrk = x.wr
                wv = req(vm, rdk, None)
                wl = req(lg, rdk, None)
                if not (x.cls == "vmem"):
                    wv = req(vm, wrk, wv)
                if not (x.cls == "ds" and ("smem", 0) not in lg):
                    wl = req(lg, wrk, wl)
            if wl is not None and ("smem", 0) in lg:
                wl = 0
            if wv is not None: wv = min(wv, 63)
            if wl is not None: wl = min(wl, 15)
            old = need.get(i, [None, None])
            mn = lambda p, q: q if p is None else (p if q is None else min(p, q))
            cur = [mn(old[0], wv), mn(old[1], wl)]
            need[i] = cur
            if cur[0] is not None:
                vm = {k: g for k, g in vm.items() if g < cur[0]}
            if cur[1] is not None:
                lg = {k: g for k, g in lg.items() if g < cur[1]}
                if cur[1] == 0: lg = {}
            if x.waitfor is not None:
                continue
            if x.cls == "vmem":
                vm = {k: g + 1 for k, g in vm.items() if g < 70}
                for r in x.wr: vm[r] = 0
                vm[("tag", x.tag)] = 0
            elif x.cls == "ds":
                lg = {k: g + 1 for k, g in lg.items() if g < 40 or k == ("smem", 0)}
                for r in x.wr: lg[r] = 0
                lg[("tag", x.tag)] = 0
            elif x.cls == "smem":
                lg = {k: g + 1 for k, g in lg.items()}
                for r in x.wr: lg[r] = 0
                lg[("smem", 0)] = 0
        return vm, lg

    instate = {0: ({}, {})}
    work = [0]
    it = 0
    while work:
        it += 1
        assert it < 20000
        bi = work.pop(0)
        vm, lg = run(bi, *instate[bi])
        for sj in succ[bi]:
            if sj not in instate:
                instate[sj] = (vm, lg); work.append(sj)
            else:
                m1, c1 = merge(instate[sj][0], vm)
                m2, c2 = merge(instate[sj][1], lg)
                if c1 or c2:
                    instate[sj] = (m1, m2)
                    if sj not in work: work.append(sj)
    out = []
    for i, x in enumerate(ins):
        n = need.get(i, [None, None])
        if n[0] is not None or n[1] is not None:
            t = "s_waitcnt"
            if n[0] is not None: t += f" vmcnt({n[0]})"
            if n[1] is not None: t += f" lgkmcnt({n[1]})"
            out.append(I(t))
        if x.waitfor is None:
            out.append(x)
    return out


def _required(p, c):
    need = 0
    vg = lambda st: {r for r in st if r[0] in ("v", "a")}
    sg = lambda st: {r for r in st if r[0] in ("s", "vcc")}
    if p.cls == "mfma":
        P = p.passes
        big = {2: 5, 4: 8, 8: 12}[P]
        if c.cls == "mfma":
            ab = regs_of(c.ops[1]) | regs_of(c.ops[2])
            if p.wr & ab: need = max(need, big)
            if p.wr & c.srcC:
                if p.wr == c.srcC and p.passes == c.passes:
                    need = max(need, 2 if P == 2 else 0)
                else:
                    need = max(need, {2: 4, 4: 6, 8: 10}[P])
            elif p.wr & c.wr:
                need = max(need, {2: 4, 4: 6, 8: 10}[P])
        elif c.cls in ("valu", "vmem", "ds"):
            if p.wr & (c.rd | c.wr): need = max(need, big)
            if c.cls == "valu" and (p.srcC & c.wr): need = max(need, {2: 1, 4: 3, 8: 7}[P])
    elif p.cls == "valu":
        w = vg(p.wr)
        isdot = p.op.startswith("v_dot")
        if c.cls == "mfma":
            if w & c.rd: need = max(need, 3 if isdot else 2)
            if ("exec", 0) in p.wr: need = max(need, 4)
        if c.cls == "valu":
            if p.op in TRANS and (w & c.rd) and c.op not in TRANS: need = max(need, 1)
            if p.op in TRANS and (w & c.rd): need = max(need, 1)
            if c.op.startswith(("v_readlane", "v_readfirstlane")) and (w & c.rd): need = max(need, 1)
            if c.op.startswith("v_permlane") and (w & c.rd): need = max(need, 2)
            if any(m.startswith(("row_", "quad_perm", "wave_")) for m in c.mods):
                if w & c.rd: need = max(need, 2)
                if ("exec", 0) in p.wr: need = max(need, 5)
            if sg(p.wr) & c.rd:
                need = max(need, 4 if c.op.startswith(("v_readlane", "v_writelane", "v_div_fmas")) else 2)
            if ("exec", 0) in p.wr and c.op.startswith(("v_readlane", "v_readfirstlane", "v_writelane", "v_permlane")):
                need = max(need, 4)
            if isdot and (w & (c.rd | c.wr)):
                if c.op == p.op and (w & regs_of(c.ops[-1] if not c.op.startswith("v_dot2c") else c.ops[0])) \
                        and not (w & (regs_of(c.ops[1]) | regs_of(c.ops[2]))):
                    pass
                else:
                    need = max(need, 3)
            if any(m.startswith(("dst_sel", "op_sel")) for m in p.mods) and (w & (c.rd | c.wr)): need = max(need, 1)
        if c.cls == "vmem" and (sg(p.wr) & c.rd): need = max(need, 5)
        if c.cls in ("vmem", "ds") and isdot and (w & c.rd): need = max(need, 3)
        if c.cls == "salu" and (sg(p.wr) & c.rd): need = max(need, 1)
        if c.cls == "salu" and c.target and "vcc" in c.op and ("vcc", 0) in p.wr: need = max(need, 1)
    elif p.cls == "salu":
        if ("m0", 0) in p.wr and c.cls == "vmem" and ("m0", 0) in c.rd: need = max(need, 1)
    elif p.cls == "vmem":
        if ("store" in p.op or "atomic" in p.op) and re.search(r"x3|x4", p.op):
            data = regs_of(p.ops[0]) if p.op.startswith("buffer_") else regs_of(p.ops[1])
            if data & c.wr: need = max(need, 2 if c.cls == "valu" else 1)
    return need


def fix_hazards(ins, W=22):
    for _ in range(50):
        blocks, succ = _blocks(ins)
        pred = [[] for _ in blocks]
        for j, sc in enumerate(succ):
            for k in sc: pred[k].append(j)
        ins_add = {}

        def history(bi, pos, dist, seen, acc):
            b, e = blocks[bi]
            i = pos - 1
            while i >= b and dist < W:
                x = ins[i]
                if x.cls not in ("label", "none"):
                    acc.append((x, dist))
                    dist += x.states()
                dist += ins_add.get(i, 0)
                i -= 1
            if dist < W:
                for pj in pred[bi]:
                    key = (pj, dist)
                    if key in seen: continue
                    seen.add(key)
                    history(pj, blocks[pj][1], dist, seen, acc)

        for bi, (b, e) in enumerate(blocks):
            for i in range(b, e):
                c = ins[i]
                if c.cls in ("label", "none") or c.op in ("s_nop", "s_waitcnt", "s_barrier"):
                    continue
                acc = []
                history(bi, i, 0, set(), acc)
                add = 0
                for p, d in acc:
                    r = _required(p, c)
                    if r > d: add = max(add, r - d)
                if add: ins_add[i] = add
        if not ins_add:
            return ins
        out = []
        for i, x in enumerate(ins):
            n = ins_add.get(i, 0)
            while n > 0:
                k = min(n, 16)
                out.append(I(f"s_nop {k - 1}"))
                n -= k
            out.append(x)
        ins = out
    raise RuntimeError("hazard fixing did not converge")


def finalize(asm):
    ins = insert_waits(asm.ins)
    ins = fix_hazards(ins)
    return ins


def render(ins):
    o = []
    for x in ins:
        o.append(x.text if x.label else "  " + x.text)
    return "\n".join(o) + "\n"


def interleave(main, fill, per=None, start=0, budget=5.0):
    main = list(main.ins if isinstance(main, Asm) else main)
    fill = list(fill.ins if isinstance(fill, Asm) else fill)
    idx = [i for i, x in enumerate(main) if x.cls == "mfma"]
    out = []
    fi = 0
    debt = 0.0
    for n, i in enumerate(idx):
        lo = idx[n - 1] + 1 if n else 0
        out.extend(main[lo:i + 1])
        if n < start: continue
        hi = idx[n + 1] if n + 1 < len(idx) else len(main)
        own = sum(x.cost for x in main[i + 1:hi])
        room = (per if per is not None else budget - own) + debt
        while fi < len(fill) and room >= fill[fi].cost - 0.01:
            room -= fill[fi].cost
            out.append(fill[fi]); fi += 1
        debt = max(min(room, 1.5), -2)
    out.extend(main[idx[-1] + 1:] if idx else main)
    return out, fill[fi:]


def kernel_desc(name, vgpr, accum, sgpr=102):
    return f""".amdhsa_kernel {name}
  .amdhsa_next_free_vgpr {vgpr}
  .amdhsa_next_free_sgpr {sgpr}
  .amdhsa_accum_offset {accum}
  .amdhsa_group_segment_fixed_size 0
  .amdhsa_kernarg_size 88
  .amdhsa_user_sgpr_count 2
  .amdhsa_user_sgpr_kernarg_segment_ptr 1
  .amdhsa_system_sgpr_workgroup_id_x 1
.end_amdhsa_kernel
"""
```

```python
from asmgen import *

MAIN = "parallel_sum__linear_kernel_hedgehog__dense_activation_mish__prompt_kernel"
W2P_OFF = 0x000000
ACT_OFF = 0x300000
ACT_BLK = 74 * 1024
QB_OFF = 0xC40000
KV_OFF = 0xEC0000
ST_OFF = 0xEE0000
CS_OFF = 0xEF0000
WS_SIZE = 0x10000000
OOB = 0x40000000
LOG2E = 0x3fb8aa3b
LN2 = 0x3f317218

def srd(A, sreg, ptr_lo, nbytes):
    A(f"s_mov_b32 s{sreg}, s{ptr_lo}")
    A(f"s_and_b32 s{sreg+1}, s{ptr_lo+1}, 0xffff")
    A(f"s_mov_b32 s{sreg+2}, {hex(nbytes)}")
    A(f"s_mov_b32 s{sreg+3}, 0x20000")

def sdiv(A, dst, src, d, tmp):
    m = (2**32 + d - 1) // d
    A(f"s_mov_b32 s{tmp}, {hex(m)}")
    A(f"s_mul_hi_u32 s{dst}, s{src}, s{tmp}")

HEADER = open("parallel_sum__linear_kernel_hedgehog__dense_activation_mish__prompt.s.ref").read().split("; Override launch")[0]

def build_file(kernels):
    o = HEADER
    if len(kernels) == 1:
        k = kernels[0]
        o += f"; @launch grid=({k['grid']},1,1) block=({k['block']},1,1) lds={k['lds']}\n"
    else:
        for k in kernels:
            o += f"; @launch kernel={k['name']} grid=({k['grid']},1,1) block=({k['block']},1,1) lds={k['lds']}\n"
    o += '.amdgcn_target "amdgcn-amd-amdhsa--gfx950"\n.text\n'
    done = []
    for k in kernels:
        if k['name'] in done: continue
        done.append(k['name'])
        o += f".globl {k['name']}\n.p2align 8\n.type {k['name']},@function\n{k['name']}:\n" + k['ins']
    o += '.section .rodata,"a"\n'
    done = []
    for k in kernels:
        if k['name'] in done: continue
        done.append(k['name'])
        o += ".p2align 6\n" + kernel_desc(k['name'], k['vgpr'], k['accum'], k.get('sgpr', 102))
    return o
```

```python
from common import *

def gen_k0(name="k0_kernel"):
    A = Asm()
    A("s_cmp_ge_u32 s2, 256")
    A(f"s_cbranch_scc1 {name}_end")
    A("s_load_dwordx16 s[4:19], s[0:1], 0")
    A("s_load_dwordx2 s[20:21], s[0:1], 80")
    A("v_lshrrev_b32 v1, 6, v0")
    A("v_and_b32 v0, 63, v0")
    A("v_readfirstlane_b32 s3, v1")
    A("s_waitcnt lgkmcnt(0)")
    SX, SWS, SA = 24, 28, 32
    srd(A, SX, 4, 2048 * 1280)
    srd(A, SWS, 20, WS_SIZE)
    A("v_and_b32 v2, 15, v0")
    A("v_lshrrev_b32 v3, 4, v0")
    A("v_lshlrev_b32 v4, 4, v0")
    for j in range(3):
        F, c, rem, T, nt, t0, t1 = 40, 41, 42, 43, 44, 45, 46
        base, qs, hi = 47, 48, 49
        A(f"s_mul_i32 s{F}, s2, 12")
        A(f"s_mul_i32 s{t0}, s3, 3")
        A(f"s_add_u32 s{F}, s{F}, s{t0}")
        A(f"s_add_u32 s{F}, s{F}, {j}")
        A(f"s_cmp_ge_u32 s{F}, 2960")
        A(f"s_cbranch_scc1 {name}_pk{j}")
        sdiv(A, c, F, 370, t0)
        A(f"s_mul_i32 s{t0}, s{c}, 370")
        A(f"s_sub_u32 s{rem}, s{F}, s{t0}")
        sdiv(A, T, rem, 5, t0)
        A(f"s_mul_i32 s{t0}, s{T}, 5")
        A(f"s_sub_u32 s{nt}, s{rem}, s{t0}")
        A(f"s_lshl_b32 s{base}, s{T}, 5")
        A(f"s_mov_b32 s{qs}, 8")
        A(f"s_mov_b32 s{hi}, {4*1280}")
        srd(A, SA, 18, 1728 * 1280)
        A(f"s_cmp_lt_u32 s{T}, 54")
        A(f"s_cbranch_scc1 {name}_w2_{j}")
        srd(A, SA, 10, 640 * 1280)
        A(f"s_sub_u32 s{t1}, s{T}, 54")
        sdiv(A, T, t1, 5, t0)
        A(f"s_mul_i32 s{t0}, s{T}, 5")
        A(f"s_sub_u32 s{t1}, s{t1}, s{t0}")
        A(f"s_mul_i32 s{base}, s{T}, 160")
        A(f"s_lshr_b32 s{t0}, s{t1}, 1")
        A(f"s_mul_i32 s{t0}, s{t0}, 80")
        A(f"s_add_u32 s{base}, s{base}, s{t0}")
        A(f"s_and_b32 s{t0}, s{t1}, 1")
        A(f"s_lshl_b32 s{t0}, s{t0}, 3")
        A(f"s_add_u32 s{base}, s{base}, s{t0}")
        A(f"s_mov_b32 s{qs}, 20")
        A(f"s_cmp_lt_u32 s{t1}, 4")
        A(f"s_cbranch_scc1 {name}_w2_{j}")
        A(f"s_sub_u32 s{base}, s{base}, {160-16}")
        A(f"s_mov_b32 s{qs}, 40")
        A(f"s_mov_b32 s{hi}, {20*1280}")
        A.label(f"{name}_w2_{j}")
        A(f"s_mul_i32 s{t0}, s{c}, 160")
        A(f"s_lshl_b32 s{t1}, s{nt}, 5")
        A(f"s_add_u32 s{t0}, s{t0}, s{t1}")
        A(f"s_mul_i32 s{base}, s{base}, 1280")
        A(f"s_add_u32 s{t0}, s{t0}, s{base}")
        A(f"s_mul_i32 s{qs}, s{qs}, 1280")
        A(f"v_mul_lo_u32 v5, v3, s{qs}")
        A(f"v_lshl_add_u32 v5, v2, 1, v5")
        A(f"v_add_u32 v6, s{hi}, v5")
        d = 8 + 4 * j
        for r in range(4):
            vo = "v5" if r < 2 else "v6"
            o0 = (2 * (r & 1)) * 1280
            A(f"buffer_load_ushort v{d+r}, {vo}, s[{SA}:{SA+3}], s{t0} offen offset:{o0}")
            A(f"buffer_load_ushort v{20+r}, {vo}, s[{SA}:{SA+3}], s{t0} offen offset:{o0+1280}")
        for r in range(4):
            A(f"v_lshl_or_b32 v{d+r}, v{20+r}, 16, v{d+r}")
        A(f"s_lshl_b32 s{F}, s{F}, 10")
        A(f"s_add_u32 s{F}, s{F}, {W2P_OFF}")
        A(f"buffer_store_dwordx4 v[{d}:{d+3}], v4, s[{SWS}:{SWS+3}], s{F} offen")
        A.label(f"{name}_pk{j}")
    A("s_cmp_eq_u32 s3, 2")
    A(f"s_cbranch_scc1 {name}_cs")
    A("s_cmp_eq_u32 s3, 3")
    A(f"s_cbranch_scc1 {name}_zero")
    A("s_lshl_b32 s40, s2, 3")
    A("s_lshl_b32 s41, s3, 2")
    A("s_add_u32 s40, s40, s41")
    A("v_add_u32 v5, s40, v3")
    A("v_mul_u32_u24 v6, 1280, v5")
    A("v_lshl_add_u32 v6, v2, 4, v6")
    for j in range(5):
        A(f"buffer_load_dwordx4 v[{24+4*j}:{27+4*j}], v6, s[{SX}:{SX+3}], 0 offen offset:{256*j}")
    for r in range(20):
        A(f"v_lshlrev_b32 v{48+2*r}, 16, v{24+r}")
        A(f"v_and_b32 v{49+2*r}, 0xffff0000, v{24+r}")
    A("v_add_f32 v7, v48, v49")
    for r in range(2, 40):
        A(f"v_add_f32 v7, v7, v{48+r}")
    def rowsum(reg):
        for sh in (8, 4, 2, 1):
            A(f"v_add_f32_dpp v{reg}, v{reg}, v{reg} row_ror:{sh} row_mask:0xf bank_mask:0xf")
    rowsum(7)
    A("v_mul_f32 v20, 0x3acccccd, v7")
    for r in range(40):
        A(f"v_sub_f32 v{48+r}, v{48+r}, v20")
    A("v_mul_f32 v7, v48, v48")
    for r in range(1, 40):
        A(f"v_fmac_f32 v7, v{48+r}, v{48+r}")
    rowsum(7)
    A("v_mov_b32 v21, 0x3727c5ac")
    A("v_fmac_f32 v21, 0x3acccccd, v7")
    A("v_lshlrev_b32 v5, 3, v5")
    A("v_cmp_eq_u32 vcc, 0, v2")
    A("s_and_saveexec_b64 s[42:43], vcc")
    A(f"s_mov_b32 s40, {ST_OFF}")
    A(f"buffer_store_dwordx2 v[20:21], v5, s[{SWS}:{SWS+3}], s40 offen")
    A("s_endpgm")
    A.label(f"{name}_cs")
    A("s_cmp_ge_u32 s2, 228")
    A(f"s_cbranch_scc1 {name}_end")
    A("s_lshr_b32 s40, s2, 2")
    A("s_and_b32 s41, s2, 3")
    srd(A, SA, 6, 640 * 3840)
    A("s_mov_b32 s42, 3840")
    A("s_mov_b32 s43, s40")
    A("s_cmp_lt_u32 s40, 30")
    A(f"s_cbranch_scc1 {name}_cs1")
    srd(A, SA, 14, 640 * 3456)
    A("s_mov_b32 s42, 3456")
    A("s_sub_u32 s43, s40, 30")
    A.label(f"{name}_cs1")
    A("s_mul_i32 s44, s41, 160")
    A("s_mul_i32 s44, s44, s42")
    A("s_lshl_b32 s43, s43, 7")
    A("s_add_u32 s44, s44, s43")
    A("s_lshl_b32 s45, s42, 3")
    A("v_lshrrev_b32 v5, 3, v0")
    A("v_and_b32 v6, 7, v0")
    A("v_mul_lo_u32 v5, v5, s42")
    A("v_lshl_add_u32 v5, v6, 4, v5")
    for j in range(20):
        A(f"buffer_load_dwordx4 v[{24+4*j}:{27+4*j}], v5, s[{SA}:{SA+3}], s44 offen")
        if j < 19: A("s_add_u32 s44, s44, s45")
    acc = 104
    for j in range(20):
        for r in range(4):
            src = 24 + 4 * j + r
            if j == 0:
                A(f"v_lshlrev_b32 v{acc+2*r}, 16, v{src}")
                A(f"v_and_b32 v{acc+2*r+1}, 0xffff0000, v{src}")
            else:
                A(f"v_lshlrev_b32 v7, 16, v{src}")
                A(f"v_and_b32 v{src}, 0xffff0000, v{src}")
                A(f"v_add_f32 v{acc+2*r}, v{acc+2*r}, v7")
                A(f"v_add_f32 v{acc+2*r+1}, v{acc+2*r+1}, v{src}")
    for r in range(4):
        A(f"v_permlane32_swap_b32 v{acc+r}, v{acc+4+r}")
        A(f"v_add_f32 v{acc+r}, v{acc+r}, v{acc+4+r}")
    for r in range(2):
        A(f"v_permlane16_swap_b32 v{acc+r}, v{acc+2+r}")
        A(f"v_add_f32 v{acc+r}, v{acc+r}, v{acc+2+r}")
    for r in range(2):
        A(f"v_add_f32_dpp v{acc+r}, v{acc+r}, v{acc+r} row_ror:8 row_mask:0xf bank_mask:0xf")
    A("v_and_b32 v7, 8, v0")
    A("v_cmp_ne_u32 vcc, 0, v7")
    A(f"v_cndmask_b32 v{acc}, v{acc}, v{acc+1}, vcc")
    A("v_lshrrev_b32 v5, 3, v0")
    A("v_lshl_add_u32 v5, v6, 3, v5")
    A("v_lshlrev_b32 v5, 4, v5")
    A("s_lshl_b32 s40, s40, 10")
    A("s_lshl_b32 s41, s41, 2")
    A("s_add_u32 s40, s40, s41")
    A(f"s_add_u32 s40, s40, {CS_OFF}")
    A(f"buffer_store_dword v{acc}, v5, s[{SWS}:{SWS+3}], s40 offen")
    A("s_endpgm")
    A.label(f"{name}_zero")
    for r in range(4):
        A(f"v_mov_b32 v{24+r}, 0")
    A("s_mul_i32 s40, s2, 480")
    A(f"s_add_u32 s40, s40, {KV_OFF}")
    A("v_cmp_gt_u32 vcc, 30, v0")
    A("s_and_saveexec_b64 s[42:43], vcc")
    A(f"buffer_store_dwordx4 v[24:27], v4, s[{SWS}:{SWS+3}], s40 offen")
    A.label(f"{name}_end")
    A("s_endpgm")
    return dict(name=name, ins=render(finalize(A)), grid=256, block=256, lds=0, vgpr=128, accum=128)

if __name__ == "__main__":
    open("k0_test.s", "w").write(build_file([gen_k0(MAIN)]))
```

```python
from common import *

WR = 0; SLOT = 20480
XR = 4 * SLOT
PHIK = XR
VIM = XR + 40960
PHI = XR + 65536
PZERO = PHI + 3840
LDS1 = PZERO + 1920

SX, SWQ, SW1, SWS, SB1, SPH = 24, 28, 32, 36, 40, 44
sWAVE = 3; sM = 48; sTYPE = 49; sU = 50; sPAIR = 51; sNP = 52; sWB = 53; sMP = 54
sXO = 58; sXM = 59; sT0 = 60; sPC = 61; sPN = 62; sT1 = 63; sT2 = 64; sACT = 65; sT3 = 66
vLANE = 0; vT = 1
vXD = 8
vXRD = 12
vAD = 16
vPD = 21
vAR = 26
vPR = 28
vCA = 36
vCP = 39
vS1 = 40; vRS = 41
vCB = 44
vAST = 48
vST = 50
vPH = 52
vCP2 = 56
ACC_A = 64
ACC_P = 144
TMP = 176
aX = 0; aW = 160

def srdr(n): return f"s[{n}:{n+3}]"

def dma5(vbase, srdn, soff, m0expr, tag):
    o = [(m0expr, None)]
    for i in range(4):
        o.append((f"buffer_load_dwordx4 v{vbase+i}, {srdr(srdn)}, s{soff} offen offset:{1024*i} lds", tag))
    o.append(("s_add_u32 m0, m0, 4096", None))
    o.append((f"buffer_load_dwordx4 v{vbase+4}, {srdr(srdn)}, s{soff} offen lds", tag))
    return o

def x_dma(j):
    o = [(f"s_add_u32 m0, s{sXM}, {(j % 4) * 4096}", None), (f"s_add_u32 s{sT1}, s{sXO}, {j*128}", None)]
    for i in range(4):
        o.append((f"buffer_load_dwordx4 v{vXD+i}, {srdr(SX)}, s{sT1} offen offset:{1024*i} lds", f"x{j}"))
    return o

def att_dma(i):
    return [(f"s_mov_b32 s{sT0}, {i*64*3840}", None)] + \
        dma5(vAD, SWQ, sT0, f"s_add_u32 m0, s{sWB}, {(i % 4) * SLOT}", f"w{i%4}")

def pair_dma(c, nxt):
    return [(f"s_add_u32 s{sT0}, s{sPN if nxt else sPC}, {c*160*3456}", None)] + \
        dma5(vPD, SW1, sT0, f"s_mov_b32 m0, s{sMP+c}", f"p{c}")

def emit(A, lst):
    for t, tag in lst: A(t, tag)

def unit(A, kind, with_x, acc):
    nt = 5 if kind == "att" else 2
    cks = 4 if kind == "att" else 10
    def reads(s):
        o = []
        c, sp = divmod(s, cks)
        for t in range(nt):
            for rho in range(2):
                dst = a(aW + 20 * (s & 1) + 4 * t + 2 * rho, 2)
                if kind == "att":
                    slot = c % 4
                    base = vAR + (1 if slot == 3 else 0)
                    off = (0 if slot == 3 else slot * SLOT) + sp * 5120 + rho * 1280 + t * 32
                else:
                    base = vPR + 2 * c + t
                    off = sp * 2048 + rho * 512
                o.append((f"ds_read_b64_tr_b16 {dst}, v{base} offset:{off}", None))
        return o
    pend = []
    for s in range(41):
        if s < 40:
            c, sp = divmod(s, cks)
            if sp == 0:
                tags = [f"w{c%4}" if kind == "att" else f"p{c}"]
                if with_x and s % 4 == 0: tags.append(f"x{s//4}")
                A.wait(vm=tags, lgkm="all")
                A("s_barrier")
            if with_x and s % 4 == 0:
                j = s // 4
                A.wait(vm=f"x{j}")
                for q in range(4):
                    A(f"ds_read_b128 {a(aX + 16*j + 4*q, 4)}, v{vXRD+q} offset:{(j % 4) * 4096}", f"xr")
            rd = reads(s)
            wd = []
            if sp == 0:
                if kind == "att":
                    wd = att_dma(c + 3) if c + 3 < 10 else pair_dma(c + 3 - 10, False)
                else:
                    wd = pair_dma(3, False) if c == 0 else pair_dma(c - 1, True)
        else:
            rd, wd = [], []
        xd = []
        if with_x and s >= 1 and (s - 1) % 4 == 0 and (s - 1) // 4 + 4 < 10:
            xd = x_dma((s - 1) // 4 + 4)
        if s == 0:
            emit(A, rd)
            pend = wd
            continue
        fill = rd
        extra = xd + pend + wd
        pend = []
        nf = (len(fill) + nt - 1) // nt
        ne = (len(extra) + nt - 1) // nt
        for t in range(nt):
            cin = "0" if s == 1 else v(acc + 16 * t, 16)
            A(f"v_mfma_f32_32x32x16_bf16 {v(acc+16*t,16)}, {a(aW+20*((s-1)&1)+4*t,4)}, {a(aX+4*(s-1),4)}, {cin}")
            if t == 0 and xd: A.wait(lgkm="xr")
            emit(A, fill[t * nf:(t + 1) * nf])
            emit(A, extra[t * ne:(t + 1) * ne])

def corr_frag(A, raw, bias, tmp):
    A(f"v_add_f32 v{tmp}, v{raw}, v{raw+1}")
    A(f"v_add_f32 v{raw+2}, v{raw+2}, v{raw+3}")
    A(f"v_add_f32 v{tmp}, v{tmp}, v{raw+2}")
    A(f"v_cvt_pk_bf16_f32 v{raw}, v{tmp}, v{tmp}")
    A(f"v_and_b32 v{raw+1}, 0xffff0000, v{raw}")
    A(f"v_sub_f32 v{tmp}, v{tmp}, v{raw+1}")
    if bias is None:
        A(f"v_cvt_pk_bf16_f32 v{raw+1}, v{tmp}, 0")
        A(f"v_mov_b32 v{raw+2}, 0")
    else:
        A(f"v_lshlrev_b32 v{raw+3}, 16, v{bias}")
        A(f"v_cvt_pk_bf16_f32 v{raw+1}, v{tmp}, v{raw+3}")
        A(f"v_mov_b32 v{raw+2}, v{bias}")
    A(f"v_mov_b32 v{raw+3}, 0")

def pair_corr_loads(A):
    A(f"s_lshl_b32 s{sT1}, s{sPAIR}, 10")
    A(f"s_add_u32 s{sT1}, s{sT1}, {CS_OFF + 1920*16}")
    A(f"s_lshl_b32 s{sT2}, s{sPAIR}, 7")
    for t in range(2):
        A(f"buffer_load_dwordx4 {v(TMP+4*t,4)}, v{vCP}, {srdr(SWS)}, s{sT1} offen offset:{512*t}")
        A(f"buffer_load_ushort v{TMP+8+t}, v{vCP2}, {srdr(SB1)}, s{sT2} offen offset:{64*t}")

def mish(A, acc, n, t0, out):
    for i in range(n):
        A(f"v_mul_f32 v{t0+i}, v{acc+i}, v{vS1}")
    G = 4
    for g0 in range(0, n, G):
        e = t0 + n
        for i in range(G): A(f"v_exp_f32 v{e+i}, v{t0+g0+i}")
        for i in range(G): A(f"v_fma_f32 v{e+G+i}, v{e+i}, 0.5, 1.0")
        for i in range(G): A(f"v_fma_f32 v{e+i}, v{e+i}, v{e+G+i}, 1.0")
        for i in range(G): A(f"v_rcp_f32 v{e+i}, v{e+i}")
        for i in range(G): A(f"v_fma_f32 v{e+i}, -v{t0+g0+i}, v{e+i}, v{t0+g0+i}")
        for i in range(0, G, 2): A(f"v_cvt_pk_bf16_f32 v{out+(g0+i)//2}, v{e+i}, v{e+i+1}")

def pair_tail(A):
    for t in range(2):
        corr_frag(A, TMP + 4 * t, TMP + 8 + t, TMP + 10)
    for t in range(2):
        A(f"v_mfma_f32_32x32x16_bf16 {v(ACC_P+16*t,16)}, {v(TMP+4*t,4)}, {v(vCB,4)}, {v(ACC_P+16*t,16)}")
    mish(A, ACC_P, 32, TMP + 16, TMP)
    A(f"s_lshl_b32 s{sT1}, s{sPAIR}, 11")
    A(f"s_add_u32 s{sT1}, s{sT1}, s{sACT}")
    for t in range(2):
        for p in range(2):
            A(f"buffer_store_dwordx4 {v(TMP+8*t+4*p,4)}, v{vAST}, {srdr(SWS)}, s{sT1} offen offset:{1024*t+512*p}")

def stats_frag(A):
    m, ve = vST, vST + 1
    A(f"v_rsq_f32 v{vRS}, v{ve}")
    A(f"v_sub_f32 v1, 0, v{m}")
    A(f"v_mul_f32 v2, v{ve}, v{vRS}")
    A(f"v_mul_f32 v{vS1}, {hex(LOG2E)}, v{vRS}")
    A(f"v_cvt_pk_bf16_f32 v{vCB+1}, v1, v2")
    A(f"v_lshlrev_b32 v3, 16, v{vCB+1}")
    A(f"v_and_b32 v4, 0xffff0000, v{vCB+1}")
    A(f"v_sub_f32 v3, v1, v3")
    A(f"v_sub_f32 v4, v2, v4")
    A(f"v_cvt_pk_bf16_f32 v{vCB}, v1, v3")
    A(f"v_cvt_pk_bf16_f32 v{vCB+2}, v4, 0")
    A(f"v_mov_b32 v{vCB+3}, 0")
    A(f"v_cmp_gt_u32 vcc, 32, v{vLANE}")
    for i in range(3):
        A(f"v_cndmask_b32 v{vCB+i}, 0, v{vCB+i}, vcc")

def gen_k1(name="k1_kernel"):
    A = Asm()
    L = lambda x: f"{name}_{x}"
    A("s_cmp_ge_u32 s2, 256")
    A(f"s_cbranch_scc1 {L('end')}")
    A("s_load_dwordx16 s[4:19], s[0:1], 0")
    A("s_load_dwordx2 s[20:21], s[0:1], 80")
    A("v_lshrrev_b32 v1, 6, v0")
    A("v_and_b32 v0, 63, v0")
    A(f"v_readfirstlane_b32 s{sWAVE}, v1")
    A(f"s_and_b32 s{sT0}, s2, 7")
    A(f"s_lshr_b32 s{sT1}, s2, 3")
    A(f"s_lshr_b32 s{sM}, s{sT0}, 1")
    A(f"s_lshl_b32 s{sM}, s{sM}, 2")
    A(f"s_and_b32 s{sT2}, s{sT1}, 3")
    A(f"s_add_u32 s{sM}, s{sM}, s{sT2}")
    A(f"s_and_b32 s{sT0}, s{sT0}, 1")
    A(f"s_lshr_b32 s{sT1}, s{sT1}, 2")
    A(f"s_lshl_b32 s{sU}, s{sT0}, 1")
    A(f"s_add_u32 s{sU}, s{sU}, s{sT1}")
    A(f"s_mov_b32 s{sTYPE}, 0")
    A(f"s_lshl_b32 s{sPAIR}, s{sU}, 1")
    A(f"s_mov_b32 s{sNP}, 2")
    A(f"s_cmp_lt_u32 s{sT1}, 2")
    A(f"s_cbranch_scc1 {L('role')}")
    A(f"s_mov_b32 s{sTYPE}, 2")
    A(f"s_sub_u32 s{sU}, s{sU}, 6")
    A(f"s_mul_i32 s{sPAIR}, s{sU}, 3")
    A(f"s_add_u32 s{sPAIR}, s{sPAIR}, 16")
    A(f"s_cmp_eq_u32 s{sU}, 3")
    A(f"s_cselect_b32 s{sNP}, 2, 3")
    A(f"s_cmp_ge_u32 s{sT1}, 6")
    A(f"s_cbranch_scc1 {L('role')}")
    A(f"s_mov_b32 s{sTYPE}, 1")
    A(f"s_lshl_b32 s{sU}, s{sT0}, 2")
    A(f"s_add_u32 s{sU}, s{sU}, s{sT1}")
    A(f"s_sub_u32 s{sU}, s{sU}, 2")
    A(f"s_add_u32 s{sPAIR}, s{sU}, 8")
    A(f"s_mov_b32 s{sNP}, 1")
    A.label(L("role"))
    A("v_lshrrev_b32 v1, 3, v0")
    A("v_and_b32 v2, 7, v0")
    A(f"s_lshl_b32 s{sT0}, s{sWAVE}, 5")
    for i in range(4):
        A(f"v_add_u32 v3, {8*i}, v1")
        A("v_lshrrev_b32 v4, 1, v3")
        A("v_and_b32 v4, 7, v4")
        A("v_xor_b32 v4, v4, v2")
        A(f"v_add_u32 v3, s{sT0}, v3")
        A("v_mul_u32_u24 v3, 1280, v3")
        A(f"v_lshl_add_u32 v{vXD+i}, v4, 4, v3")
        if i: A(f"v_subrev_u32 v{vXD+i}, {1024*i}, v{vXD+i}")
    A(f"s_mul_i32 s{sXO}, s{sM}, {128*1280}")
    A(f"s_lshl_b32 s{sXM}, s{sWAVE}, 14")
    A(f"s_add_u32 s{sXM}, s{sXM}, {XR}")
    A(f"s_mul_i32 s{sWB}, s{sWAVE}, 5120")
    A("s_waitcnt lgkmcnt(0)")
    srd(A, SX, 4, 2048 * 1280)
    srd(A, SWQ, 6, 640 * 3840)
    srd(A, SW1, 14, 640 * 3456)
    srd(A, SWS, 20, WS_SIZE)
    srd(A, SB1, 16, 1728 * 2)
    srd(A, SPH, 8, 32 * 800)
    emit(A, x_dma(0))
    A("v_lshrrev_b32 v3, 4, v0")
    A("v_and_b32 v3, 1, v3")
    A("v_lshlrev_b32 v3, 2, v3")
    A("v_xor_b32 v3, v3, v2")
    A(f"s_mul_i32 s{sT0}, s{sWAVE}, 40")
    A(f"v_add_u32 v4, s{sT0}, v1")
    A("v_mul_u32_u24 v4, 3456, v4")
    A(f"v_lshl_add_u32 v{vPD}, v3, 4, v4")
    for i in range(1, 5):
        A(f"v_add_u32 v{vPD+i}, {8*3456*i - (1024*i if i < 4 else 0)}, v{vPD}")
    A(f"s_lshl_b32 s{sPC}, s{sPAIR}, 7")
    A(f"s_add_u32 s{sPN}, s{sPC}, 128")
    A(f"s_cmp_eq_u32 s{sNP}, 1")
    A(f"s_cselect_b32 s{sPN}, {hex(OOB)}, s{sPN}")
    A(f"s_cmp_eq_u32 s{sTYPE}, 2")
    A(f"s_cselect_b32 s{sT3}, 0, 2")
    for c in range(4):
        A(f"s_add_u32 s{sT0}, s{sT3}, {c}")
        A(f"s_and_b32 s{sT0}, s{sT0}, 3")
        A(f"s_mul_i32 s{sT0}, s{sT0}, {SLOT}")
        A(f"s_add_u32 s{sMP+c}, s{sT0}, s{sWB}")
    def common_lane():
        A("v_lshrrev_b32 v1, 5, v0")
        A("v_bfe_u32 v2, v0, 2, 2")
        A("v_and_b32 v3, 1, v0")
        A("v_bfe_u32 v4, v0, 1, 1")
        A("v_bfe_u32 v5, v0, 4, 1")
        A("v_lshl_add_u32 v4, v5, 1, v4")
        A("v_lshl_add_u32 v6, v1, 3, v2")
    A(f"s_cmp_eq_u32 s{sTYPE}, 2")
    A(f"s_cbranch_scc1 {L('hpro')}")
    A(f"s_lshl_b32 s{sT0}, s{sWAVE}, 4")
    A(f"s_cmp_eq_u32 s{sTYPE}, 1")
    A(f"s_cselect_b32 s{sT1}, 1, 2")
    A(f"s_mul_i32 s{sT1}, s{sT1}, 160")
    A(f"s_mul_i32 s{sT1}, s{sT1}, s{sU}")
    A(f"s_cselect_b32 s{sT2}, 1280, 0")
    A(f"s_add_u32 s{sT1}, s{sT1}, s{sT2}")
    A(f"s_cmp_eq_u32 s{sTYPE}, 1")
    A(f"s_cselect_b32 s{sT2}, {1280-80}, 0")
    A(f"s_cselect_b32 s{sT3}, {-80 & 0xffffffff}, 0")
    for i in range(5):
        A(f"v_add_u32 v1, {64*i}, v0")
        A("v_mul_u32_u24 v2, 3277, v1")
        A("v_lshrrev_b32 v2, 16, v2")
        A("v_mul_u32_u24 v3, 20, v2")
        A("v_sub_u32 v3, v1, v3")
        A("v_mul_u32_u24 v4, 13108, v3")
        A("v_lshrrev_b32 v4, 16, v4")
        A("v_and_b32 v5, 1, v4")
        A("v_lshrrev_b32 v4, 1, v4")
        A(f"v_mul_lo_u32 v5, v5, s{sT2}")
        A(f"v_mul_lo_u32 v4, v4, s{sT3}")
        A(f"v_add_u32 v2, s{sT0}, v2")
        A("v_mul_u32_u24 v2, 3840, v2")
        A("v_lshl_add_u32 v2, v3, 4, v2")
        A("v_add3_u32 v2, v2, v4, v5")
        A(f"v_add_u32 v{vAD+i}, s{sT1}, v2")
        if 0 < i < 4: A(f"v_subrev_u32 v{vAD+i}, {1024*i}, v{vAD+i}")
    emit(A, att_dma(0))
    emit(A, x_dma(1))
    A.label(L("hpro"))
    A(f"s_cmp_eq_u32 s{sTYPE}, 2")
    A(f"s_cbranch_scc0 {L('pro2')}")
    emit(A, pair_dma(0, False))
    emit(A, x_dma(1))
    A.label(L("pro2"))
    A("v_and_b32 v1, 31, v0")
    A(f"s_lshl_b32 s{sT0}, s{sM}, 7")
    A(f"s_lshl_b32 s{sT1}, s{sWAVE}, 5")
    A(f"s_add_u32 s{sT0}, s{sT0}, s{sT1}")
    A(f"s_lshl_b32 s{sT0}, s{sT0}, 3")
    A(f"s_add_u32 s{sT0}, s{sT0}, {ST_OFF}")
    A("v_lshlrev_b32 v2, 3, v1")
    A(f"buffer_load_dwordx2 {v(vST,2)}, v2, {srdr(SWS)}, s{sT0} offen")
    A("v_lshrrev_b32 v2, 5, v0")
    A("v_bfe_u32 v3, v0, 1, 3")
    A("v_lshlrev_b32 v4, 7, v1")
    A(f"v_add_u32 v4, s{sXM}, v4")
    for q in range(4):
        A(f"v_add_u32 v5, {2*q}, v2")
        A("v_xor_b32 v5, v5, v3")
        A(f"v_lshl_add_u32 v{vXRD+q}, v5, 4, v4")
    A("v_lshrrev_b32 v3, 4, v1")
    A(f"v_mul_u32_u24 v3, {ACT_BLK}, v3")
    A("v_lshl_add_u32 v3, v2, 8, v3")
    A("v_and_b32 v4, 15, v0")
    A(f"v_lshl_add_u32 v{vAST}, v4, 4, v3")
    A(f"s_lshl_b32 s{sT0}, s{sM}, 3")
    A(f"s_lshl_b32 s{sT1}, s{sWAVE}, 1")
    A(f"s_add_u32 s{sT0}, s{sT0}, s{sT1}")
    A(f"s_mul_i32 s{sACT}, s{sT0}, {ACT_BLK}")
    A(f"s_add_u32 s{sACT}, s{sACT}, {ACT_OFF}")
    common_lane()
    A("v_mul_u32_u24 v7, 320, v6")
    A(f"v_mul_u32_u24 v{vAR}, 160, v3")
    A(f"v_add_u32 v{vAR}, v{vAR}, v7")
    A(f"v_lshl_add_u32 v{vAR}, v4, 3, v{vAR}")
    A(f"v_add_u32 v{vAR+1}, {3*SLOT}, v{vAR}")
    A("v_lshrrev_b32 v7, 1, v4")
    A("v_lshlrev_b32 v7, 2, v7")
    A("v_lshl_add_u32 v7, v3, 1, v7")
    A("v_and_b32 v5, 1, v4")
    A("v_add_u32 v7, v7, v5")
    A("v_lshlrev_b32 v7, 3, v7")
    A("v_lshl_add_u32 v7, v6, 7, v7")
    A("v_bfe_u32 v5, v0, 3, 1")
    A("v_lshl_add_u32 v7, v5, 6, v7")
    for c in range(4):
        A(f"s_sub_u32 s{sT0}, s{sMP+c}, s{sWB}")
        A(f"v_add_u32 v{vPR+2*c}, s{sT0}, v7")
        A(f"v_xor_b32 v{vPR+2*c+1}, 64, v{vPR+2*c}")
    A("v_and_b32 v1, 3, v0")
    A("v_bfe_u32 v2, v0, 2, 1")
    A("v_bfe_u32 v3, v0, 3, 2")
    A("v_lshrrev_b32 v4, 1, v3")
    A("v_lshl_add_u32 v4, v4, 1, v2")
    A("v_and_b32 v5, 1, v3")
    A("v_lshl_add_u32 v5, v5, 2, v1")
    A("v_lshl_add_u32 v4, v4, 3, v5")
    A(f"v_lshlrev_b32 v{vCP}, 4, v4")
    A(f"v_lshlrev_b32 v{vCP2}, 1, v4")
    A(f"s_cmp_eq_u32 s{sTYPE}, 2")
    A(f"s_cbranch_scc1 {L('hfirst')}")
    A(f"s_cmp_eq_u32 s{sTYPE}, 1")
    A(f"s_cselect_b32 s{sT0}, 40, 80")
    A(f"s_cselect_b32 s{sT1}, {600*16}, 0")
    A(f"v_mul_lo_u32 v4, v2, s{sT0}")
    A("v_lshl_add_u32 v4, v3, 2, v4")
    A("v_add_u32 v4, v4, v1")
    A(f"v_lshlrev_b32 v{vCA}, 4, v4")
    A(f"v_add_u32 v{vCA+2}, s{sT1}, v{vCA}")
    A("v_cmp_lt_u32 vcc, 1, v3")
    A(f"v_cndmask_b32 v{vCA+1}, v{vCA}, v{vCA+2}, vcc")
    A(f"s_cselect_b32 s{sT0}, 1, 2")
    A(f"s_mul_i32 s{sT0}, s{sT0}, {80*16}")
    A(f"s_mul_i32 s{sT0}, s{sT0}, s{sU}")
    A(f"s_cselect_b32 s{sT1}, {640*16}, 0")
    A(f"s_add_u32 s{sT0}, s{sT0}, s{sT1}")
    A(f"s_add_u32 s{sT0}, s{sT0}, {CS_OFF}")
    for t in range(5):
        A(f"buffer_load_dwordx4 {v(TMP+4*t,4)}, v{vCA+[0,0,1,2,2][t]}, {srdr(SWS)}, s{sT0} offen offset:{256*t}")
    A(f"s_lshl_b32 s{sT0}, s{sU}, 2")
    A(f"s_add_u32 s{sT0}, s{sT0}, s{sWAVE}")
    A(f"s_mul_i32 s{sT0}, s{sT0}, 800")
    A("v_lshlrev_b32 v1, 4, v0")
    A(f"v_mov_b32 v2, {hex(OOB)}")
    A("v_cmp_gt_u32 vcc, 50, v0")
    A("v_cndmask_b32 v2, v2, v1, vcc")
    A(f"buffer_load_dwordx4 {v(vPH,4)}, v2, {srdr(SPH)}, s{sT0} offen")
    emit(A, att_dma(1))
    emit(A, x_dma(2))
    emit(A, att_dma(2))
    emit(A, x_dma(3))
    A(f"s_mul_i32 s{sT0}, s{sWAVE}, 960")
    A(f"s_add_u32 s{sT0}, s{sT0}, {PHI}")
    A(f"v_add_u32 v2, s{sT0}, v1")
    A(f"s_mul_i32 s{sT0}, s{sWAVE}, 480")
    A(f"s_add_u32 s{sT0}, s{sT0}, {PZERO}")
    A(f"v_lshl_add_u32 v3, v0, 3, s{sT0}")
    A("v_mov_b32 v4, 0")
    A("v_mov_b32 v5, 0")
    A("v_cmp_gt_u32 vcc, 60, v0")
    A("s_and_saveexec_b64 s[68:69], vcc")
    A(f"ds_write_b128 v2, {v(vPH,4)}")
    A("ds_write_b64 v3, v[4:5]")
    A("s_mov_b64 exec, s[68:69]")
    unit(A, "att", True, ACC_A)
    stats_frag(A)
    for t in range(5):
        corr_frag(A, TMP + 4 * t, None, TMP + 20)
    for t in range(5):
        A(f"v_mfma_f32_32x32x16_bf16 {v(ACC_A+16*t,16)}, {v(TMP+4*t,4)}, {v(vCB,4)}, {v(ACC_A+16*t,16)}")
    A(f"s_cmp_eq_u32 s{sTYPE}, 1")
    A(f"s_cbranch_scc1 {L('kvepi')}")
    for i in range(40):
        A(f"v_cvt_pk_bf16_f32 v{TMP+i}, v{ACC_A+2*i}, v{ACC_A+2*i+1}")
    A("v_bfe_u32 v1, v0, 4, 1")
    A("v_mul_u32_u24 v1, 20480, v1")
    A("v_lshrrev_b32 v2, 5, v0")
    A("v_mul_u32_u24 v2, 2560, v2")
    A("v_add_u32 v1, v1, v2")
    A("v_and_b32 v2, 15, v0")
    A("v_lshl_add_u32 v3, v2, 3, v1")
    A("v_lshl_add_u32 v1, v2, 4, v1")
    A(f"s_lshl_b32 s{sT0}, s{sM}, 3")
    A(f"s_lshl_b32 s{sT1}, s{sWAVE}, 1")
    A(f"s_add_u32 s{sT0}, s{sT0}, s{sT1}")
    A(f"s_mul_i32 s{sT0}, s{sT0}, 20480")
    A(f"s_mul_i32 s{sT1}, s{sU}, 5120")
    A(f"s_add_u32 s{sT0}, s{sT0}, s{sT1}")
    A(f"s_add_u32 s{sT0}, s{sT0}, {QB_OFF}")
    for j in range(4):
        A(f"buffer_store_dwordx4 {v(TMP+10*j,4)}, v1, {srdr(SWS)}, s{sT0} offen offset:{256*j}")
        A(f"buffer_store_dwordx4 {v(TMP+10*j+4,4)}, v1, {srdr(SWS)}, s{sT0} offen offset:{1024+256*j}")
        A(f"buffer_store_dwordx2 {v(TMP+10*j+8,2)}, v3, {srdr(SWS)}, s{sT0} offen offset:{2048+128*j}")
    A(f"s_branch {L('ploop')}")
    A.label(L("kvepi"))
    KP = ACC_P
    for i in range(20):
        A(f"v_cvt_pk_bf16_f32 v{KP+i}, v{ACC_A+2*i}, v{ACC_A+2*i+1}")
    A(f"v_mov_b32 v{KP+20}, 0")
    A(f"v_mov_b32 v{KP+21}, 0")
    common_lane()
    A("v_mul_u32_u24 v7, 1920, v3")
    A(f"v_add_u32 v7, {PHI}, v7")
    A(f"v_mov_b32 v5, {PZERO}")
    A("v_cmp_eq_u32 vcc, v1, v3")
    A("v_cndmask_b32 v7, v5, v7, vcc")
    A("v_mul_u32_u24 v5, 40, v2")
    A("v_add_u32 v7, v7, v5")
    A("v_lshl_add_u32 v6, v4, 3, v7")
    A("v_add_u32 v7, 32, v7")
    PA = TMP
    n = 0
    for sg in range(2):
        for tau in range(2):
            for st in range(3):
                fr = aW + 4 * (n % 10); n += 1
                for rho in range(2):
                    A(f"ds_read_b64_tr_b16 {a(fr+2*rho,2)}, v{6+tau} offset:{sg*960+(8*st+4*rho)*40}")
                cin = "0" if st == 0 else v(PA + 32 * sg + 16 * tau, 16)
                A(f"v_mfma_f32_32x32x16_bf16 {v(PA+32*sg+16*tau,16)}, {a(fr,4)}, {v(KP+10*sg+4*st,4)}, {cin}")
    VP = ACC_A
    for i in range(40):
        A(f"v_mul_f32 v{ACC_A+40+i}, v{ACC_A+40+i}, v{vRS}")
    for sg in range(2):
        for i in range(10):
            A(f"v_cvt_pk_bf16_f32 v{VP+12*sg+i}, v{ACC_A+40+20*sg+2*i}, v{ACC_A+41+20*sg+2*i}")
        A(f"v_mov_b32 v{VP+12*sg+10}, 0x3f80")
        A(f"v_mov_b32 v{VP+12*sg+11}, 0")
    A("v_and_b32 v1, 31, v0")
    A(f"s_lshl_b32 s{sT0}, s{sWAVE}, 5")
    A(f"v_add_u32 v1, s{sT0}, v1")
    A("v_lshrrev_b32 v2, 5, v0")
    A("v_mul_u32_u24 v3, 80, v1")
    A("v_mul_u32_u24 v4, 20480, v2")
    A(f"v_add_u32 v3, v3, v4")
    A(f"v_add_u32 v3, {PHIK}, v3")
    A("v_mul_u32_u24 v4, 48, v1")
    A("v_mul_u32_u24 v5, 12288, v2")
    A(f"v_add_u32 v4, v4, v5")
    A(f"v_add_u32 v4, {VIM}, v4")
    A("s_barrier")
    for sg in range(2):
        for i in range(3):
            A(f"ds_write_b128 v4, {v(VP+12*sg+4*i,4)} offset:{6144*sg+16*i}")
    EP = ACC_A + 40
    PK = ACC_P
    for sg in range(2):
        p = lambda i: PA + 32 * sg + i
        A(f"v_max3_f32 v1, v{p(0)}, v{p(1)}, v{p(2)}")
        A(f"v_min3_f32 v2, v{p(0)}, v{p(1)}, v{p(2)}")
        for i in range(3, 19, 2):
            A(f"v_max3_f32 v1, v1, v{p(i)}, v{p(i+1)}")
            A(f"v_min3_f32 v2, v2, v{p(i)}, v{p(i+1)}")
        A(f"v_max_f32 v1, v1, v{p(19)}")
        A(f"v_min_f32 v2, v2, v{p(19)}")
        A(f"v_mul_f32 v1, v1, v{vS1}")
        A(f"v_mul_f32 v2, v2, v{vS1}")
        for i in range(20):
            A(f"v_fma_f32 v{EP+i}, v{p(i)}, v{vS1}, -v1")
            A(f"v_fma_f32 v{EP+20+i}, -v{p(i)}, v{vS1}, v2")
        for i in range(40):
            A(f"v_exp_f32 v{EP+i}, v{EP+i}")
        A(f"v_add_f32 v1, v{EP}, v{EP+1}")
        A(f"v_add_f32 v2, v{EP+20}, v{EP+21}")
        for i in range(2, 20):
            A(f"v_add_f32 v1, v1, v{EP+i}")
            A(f"v_add_f32 v2, v2, v{EP+20+i}")
        A("v_rcp_f32 v1, v1")
        A("v_rcp_f32 v2, v2")
        for i in range(40):
            A(f"v_mul_f32 v{EP+i}, v{EP+i}, v{1 + i // 20}")
        for i in range(20):
            A(f"v_cvt_pk_bf16_f32 v{PK+i}, v{EP+2*i}, v{EP+2*i+1}")
        for i in range(5):
            A(f"ds_write_b128 v3, {v(PK+4*i,4)} offset:{10240*sg+16*i}")
    A("v_lshrrev_b32 v1, 5, v0")
    A("v_bfe_u32 v2, v0, 2, 2")
    A("v_lshlrev_b32 v2, 2, v2")
    A("v_lshl_add_u32 v2, v1, 1, v2")
    A("v_and_b32 v3, 3, v0")
    A("v_bfe_u32 v4, v0, 4, 1")
    A("v_lshl_add_u32 v3, v4, 2, v3")
    A(f"s_mul_i32 s{sT0}, s{sWAVE}, 10240")
    A(f"s_add_u32 s{sT0}, s{sT0}, {PHIK}")
    A("v_mul_u32_u24 v4, 80, v2")
    A(f"v_add_u32 v4, s{sT0}, v4")
    A("v_lshl_add_u32 v5, v3, 3, v4")
    A("v_and_b32 v6, 1, v3")
    A("v_lshl_add_u32 v6, v6, 3, v4")
    A("v_add_u32 v6, 64, v6")
    A(f"s_mul_i32 s{sT0}, s{sWAVE}, 6144")
    A(f"s_add_u32 s{sT0}, s{sT0}, {VIM}")
    A("v_mul_u32_u24 v4, 48, v2")
    A(f"v_add_u32 v4, s{sT0}, v4")
    A("v_min_u32 v7, 5, v3")
    A("v_lshl_add_u32 v7, v7, 3, v4")
    A.wait(lgkm="all")
    A("s_barrier")
    KVA = TMP
    for st in range(8):
        fr = aW + 12 * (st % 3)
        for rho in range(2):
            A(f"ds_read_b64_tr_b16 {a(fr+2*rho,2)}, v5 offset:{(16*st+rho)*80}")
            A(f"ds_read_b64_tr_b16 {a(fr+4+2*rho,2)}, v6 offset:{(16*st+rho)*80}")
            A(f"ds_read_b64_tr_b16 {a(fr+8+2*rho,2)}, v7 offset:{(16*st+rho)*48}")
        for tau in range(2):
            cin = "0" if st == 0 else v(KVA + 16 * tau, 16)
            A(f"v_mfma_f32_32x32x16_bf16 {v(KVA+16*tau,16)}, {a(fr+4*tau,4)}, {a(fr+8,4)}, {cin}")
    A("v_and_b32 v1, 31, v0")
    A("v_lshrrev_b32 v2, 5, v0")
    A("v_mul_u32_u24 v2, 384, v2")
    A("v_lshl_add_u32 v2, v1, 2, v2")
    A(f"s_lshl_b32 s{sT0}, s{sU}, 2")
    A(f"s_add_u32 s{sT0}, s{sT0}, s{sWAVE}")
    A(f"s_mul_i32 s{sT0}, s{sT0}, 3840")
    A(f"s_add_u32 s{sT0}, s{sT0}, {KV_OFF}")
    A("v_cmp_gt_u32 vcc, 21, v1")
    A("s_and_saveexec_b64 s[68:69], vcc")
    for r in range(20):
        f = 8 * (r >> 2) + (r & 3)
        A(f"buffer_atomic_add_f32 v{KVA+r}, v2, {srdr(SWS)}, s{sT0} offen offset:{f*96}")
    A("s_mov_b64 exec, s[68:69]")
    A(f"s_branch {L('ploop')}")
    A.label(L("hfirst"))
    pair_corr_loads(A)
    emit(A, x_dma(2))
    emit(A, pair_dma(1, False))
    emit(A, x_dma(3))
    emit(A, pair_dma(2, False))
    unit(A, "pair", True, ACC_P)
    stats_frag(A)
    A(f"s_branch {L('ptail')}")
    A.label(L("ploop"))
    pair_corr_loads(A)
    unit(A, "pair", False, ACC_P)
    A.label(L("ptail"))
    pair_tail(A)
    A(f"s_add_u32 s{sPAIR}, s{sPAIR}, 1")
    A(f"s_sub_u32 s{sNP}, s{sNP}, 1")
    A(f"s_mov_b32 s{sPC}, s{sPN}")
    A(f"s_add_u32 s{sPN}, s{sPC}, 128")
    A(f"s_cmp_eq_u32 s{sNP}, 1")
    A(f"s_cselect_b32 s{sPN}, {hex(OOB)}, s{sPN}")
    A(f"s_cmp_lg_u32 s{sNP}, 0")
    A(f"s_cbranch_scc1 {L('ploop')}")
    A.label(L("end"))
    A("s_endpgm")
    return dict(name=name, ins=render(finalize(A)), grid=256, block=256, lds=LDS1, vgpr=512, accum=256)

if __name__ == "__main__":
    from k0 import gen_k0
    for P in range(320): assert (P * 3277) >> 16 == P // 20
    for P in range(20): assert (P * 13108) >> 16 == P // 5
    open("k1_test.s", "w").write(build_file([gen_k0(), gen_k1(MAIN)]))
```

```python
from common import *

RED = 0; RPITCH = 336; RWAVE = 64 * RPITCH
PHI = 4 * RWAVE
PZERO = PHI + 3840
KVI = PZERO + 1920
LDS2 = KVI + 7680

SX, SOUT, SWS, SPH, SDB = 24, 28, 32, 36, 40
sWAVE = 3; sR = 44; sC = 45; sA = 46; sW = 47; sT0 = 48; sT1 = 49; sT2 = 50; sAB = 51; sCNT = 52; sXO = 53
vA = 8
vW = 12
vXO = 14
vRA = 19
vXR = 24
vPOLL = 34
ACC = 64
T = 144
NB = 6

def srdr(n): return f"s[{n}:{n+3}]"

def loads(A, n, part="both", sc=""):
    b = 36 * (n % NB)
    if part in ("both", "w"):
        for nt in range(5):
            A(f"buffer_load_dwordx4 {a(b+4*nt,4)}, v{vW+(nt>>2)}, {srdr(SWS)}, s{sW} offen offset:{1024*(nt&3)}")
    if part in ("both", "a"):
        for k in range(4):
            A(f"buffer_load_dwordx4 {a(b+20+4*k,4)}, v{vA+k}, {srdr(SWS)}, s{sA} offen{sc}")

def advance(A, n):
    if n == 0: return
    if n < 13:
        A(f"s_add_u32 s{sA}, s{sA}, 4096"); A(f"s_add_u32 s{sW}, s{sW}, 20480")
    elif n == 13:
        A(f"s_add_u32 s{sA}, s{sA}, 4096"); A(f"s_add_u32 s{sW}, s{sW}, 20480")
        A(f"s_cmp_lt_u32 s{sWAVE}, 2")
        A(f"s_cselect_b32 s{sA}, s{sA}, {hex(OOB)}")
        A(f"s_cselect_b32 s{sW}, s{sW}, {hex(OOB)}")
    elif n == 14:
        A(f"s_mul_i32 s{sW}, s{sC}, 74")
        A(f"s_mul_i32 s{sT0}, s{sWAVE}, 5")
        A(f"s_add_u32 s{sW}, s{sW}, s{sT0}")
        A(f"s_add_u32 s{sW}, s{sW}, 54")
        A(f"s_mul_i32 s{sW}, s{sW}, 5120")
    else:
        A(f"s_add_u32 s{sW}, s{sW}, 5120")

def consume(A, n):
    b = 36 * (n % NB)
    for k in range(4):
        for nt in range(5):
            d = v(ACC + 4 * (5 * k + nt), 4)
            A(f"v_mfma_f32_16x16x32_bf16 {d}, {a(b+4*nt,4)}, {a(b+20+4*k,4)}, {'0' if n == 0 else d}")

def gen_k2(name="k2_kernel"):
    A = Asm()
    L = lambda x: f"{name}_{x}"
    A("s_cmp_ge_u32 s2, 256")
    A(f"s_cbranch_scc1 {L('end')}")
    A("s_load_dwordx2 s[4:5], s[0:1], 0")
    A("s_load_dwordx2 s[8:9], s[0:1], 16")
    A("s_load_dwordx4 s[12:15], s[0:1], 64")
    A("s_load_dwordx2 s[20:21], s[0:1], 80")
    A("v_lshrrev_b32 v1, 6, v0")
    A("v_mov_b32 v7, v0")
    A("v_and_b32 v0, 63, v0")
    A(f"v_readfirstlane_b32 s{sWAVE}, v1")
    A(f"s_and_b32 s{sT0}, s2, 7")
    A(f"s_lshr_b32 s{sT1}, s2, 3")
    A(f"s_lshr_b32 s{sR}, s{sT0}, 1")
    A(f"s_lshl_b32 s{sR}, s{sR}, 3")
    A(f"s_lshr_b32 s{sT2}, s{sT1}, 2")
    A(f"s_add_u32 s{sR}, s{sR}, s{sT2}")
    A(f"s_and_b32 s{sC}, s{sT0}, 1")
    A(f"s_lshl_b32 s{sC}, s{sC}, 2")
    A(f"s_and_b32 s{sT2}, s{sT1}, 3")
    A(f"s_add_u32 s{sC}, s{sC}, s{sT2}")
    A(f"v_lshlrev_b32 v{vW}, 4, v0")
    A(f"v_add_u32 v{vW+1}, 4096, v{vW}")
    A(f"v_mov_b32 v{vA}, v{vW}")
    for k in range(1, 4):
        A(f"v_add_u32 v{vA+k}, {ACT_BLK*k}, v{vW}")
    A(f"s_mul_i32 s{sAB}, s{sR}, {4*ACT_BLK}")
    A(f"s_add_u32 s{sAB}, s{sAB}, {ACT_OFF}")
    A(f"s_lshl_b32 s{sT0}, s{sWAVE}, 10")
    A(f"s_add_u32 s{sA}, s{sAB}, s{sT0}")
    A(f"s_mul_i32 s{sW}, s{sC}, 74")
    A(f"s_add_u32 s{sW}, s{sW}, s{sWAVE}")
    A(f"s_mul_i32 s{sW}, s{sW}, 5120")
    A("s_waitcnt lgkmcnt(0)")
    srd(A, SWS, 20, WS_SIZE)
    srd(A, SPH, 8, 32 * 800)
    srd(A, SX, 4, 2048 * 1280)
    srd(A, SOUT, 12, 2048 * 1280)
    srd(A, SDB, 14, 256)
    QR = T
    ST = T + 12
    PH = T + 16
    KVR = T + 20
    A(f"s_lshl_b32 s{sT0}, s{sR}, 2")
    A(f"s_add_u32 s{sT0}, s{sT0}, s{sWAVE}")
    A(f"s_lshl_b32 s{sT1}, s{sT0}, 3")
    A(f"s_add_u32 s{sT1}, s{sT1}, s{sC}")
    A(f"s_mul_i32 s{sT1}, s{sT1}, 2560")
    A(f"s_add_u32 s{sT1}, s{sT1}, {QB_OFF}")
    A("v_lshlrev_b32 v1, 3, v0")
    A(f"buffer_load_dwordx4 {v(QR,4)}, v{vW}, {srdr(SWS)}, s{sT1} offen")
    A(f"buffer_load_dwordx4 {v(QR+4,4)}, v{vW}, {srdr(SWS)}, s{sT1} offen offset:1024")
    A(f"buffer_load_dwordx2 {v(QR+8,2)}, v1, {srdr(SWS)}, s{sT1} offen offset:2048")
    A(f"s_lshl_b32 s{sT1}, s{sT0}, 7")
    A(f"s_add_u32 s{sT1}, s{sT1}, {ST_OFF}")
    A("v_and_b32 v2, 15, v0")
    A("v_lshlrev_b32 v2, 3, v2")
    A(f"buffer_load_dwordx2 {v(ST,2)}, v2, {srdr(SWS)}, s{sT1} offen")
    A(f"s_lshl_b32 s{sT1}, s{sC}, 2")
    A(f"s_add_u32 s{sT1}, s{sT1}, s{sWAVE}")
    A(f"s_mul_i32 s{sT1}, s{sT1}, 800")
    A(f"v_mov_b32 v2, {hex(OOB)}")
    A("v_cmp_gt_u32 vcc, 50, v0")
    A(f"v_cndmask_b32 v2, v2, v{vW}, vcc")
    A(f"buffer_load_dwordx4 {v(PH,4)}, v2, {srdr(SPH)}, s{sT1} offen")
    A(f"s_mul_i32 s{sT1}, s{sC}, {4*3840}")
    A(f"s_add_u32 s{sT1}, s{sT1}, {KV_OFF}")
    A("v_lshlrev_b32 v2, 4, v7")
    A("v_add_u32 v3, 4096, v2")
    A("v_add_u32 v4, 8192, v2")
    A("v_add_u32 v5, 12288, v2")
    for i in range(4):
        A(f"buffer_load_dwordx4 {v(KVR+4*i,4)}, v{2+i}, {srdr(SWS)}, s{sT1} offen")
    for n in range(5):
        advance(A, n); loads(A, n)
    A(f"s_mul_i32 s{sT0}, s{sWAVE}, 960")
    A(f"s_add_u32 s{sT0}, s{sT0}, {PHI}")
    A(f"v_add_u32 v2, s{sT0}, v{vW}")
    A(f"s_mul_i32 s{sT0}, s{sWAVE}, 480")
    A(f"s_add_u32 s{sT0}, s{sT0}, {PZERO}")
    A(f"v_add_u32 v3, s{sT0}, v1")
    A("v_mov_b32 v4, 0")
    A("v_mov_b32 v5, 0")
    A(f"v_mov_b32 v{QR+10}, 0")
    A(f"v_mov_b32 v{QR+11}, 0")
    A("v_cmp_gt_u32 vcc, 60, v0")
    A("s_and_saveexec_b64 s[54:55], vcc")
    A(f"ds_write_b128 v2, {v(PH,4)}")
    A("ds_write_b64 v3, v[4:5]")
    A("s_mov_b64 exec, s[54:55]")
    A("v_lshlrev_b32 v2, 3, v7")
    A(f"v_add_u32 v2, {KVI}, v2")
    for i in range(4):
        A(f"v_cvt_pk_bf16_f32 v{KVR+4*i}, v{KVR+4*i}, v{KVR+4*i+1}")
        A(f"v_cvt_pk_bf16_f32 v{KVR+4*i+1}, v{KVR+4*i+2}, v{KVR+4*i+3}")
        if i == 3:
            A("v_cmp_gt_u32 vcc, 192, v7")
            A("s_and_saveexec_b64 s[54:55], vcc")
        A(f"ds_write_b64 v2, {v(KVR+4*i,2)} offset:{2048*i}")
        if i == 3:
            A("s_mov_b64 exec, s[54:55]")
    advance(A, 5); loads(A, 5)
    A("v_lshrrev_b32 v1, 4, v0")
    A("v_and_b32 v2, 3, v0")
    A("v_bfe_u32 v3, v0, 2, 2")
    A("v_cmp_eq_u32 vcc, v1, v2")
    A("v_mul_u32_u24 v4, 960, v1")
    A(f"v_add_u32 v4, {PHI}, v4")
    A("v_mul_u32_u24 v5, 1920, v1")
    A(f"v_add_u32 v5, {KVI}, v5")
    A(f"v_mov_b32 v6, {PZERO}")
    A("v_cndmask_b32 v4, v6, v4, vcc")
    A("v_cndmask_b32 v5, v6, v5, vcc")
    A("v_mul_u32_u24 v6, 40, v3")
    A("v_add_u32 v4, v4, v6")
    A("v_mul_u32_u24 v6, 48, v3")
    A("v_add_u32 v5, v5, v6")
    S1 = ST
    A(f"v_rsq_f32 v{S1}, v{ST+1}")
    A(f"v_mul_f32 v{S1}, {hex(LOG2E)}, v{S1}")
    A.wait(lgkm="all")
    A("s_barrier")
    PA = T + 16
    FR = T + 80
    n = 0
    for st in range(3):
        for ch in range(5):
            fr = FR + 4 * (n % 8); n += 1
            for rho in range(2):
                A(f"ds_read_b64_tr_b16 {v(fr+2*rho,2)}, v4 offset:{(8*st+4*rho)*40+ch*8}")
            A(f"v_mfma_f32_16x16x32_bf16 {v(PA+4*ch,4)}, {v(fr,4)}, {v(QR+4*st,4)}, {'0' if st == 0 else v(PA+4*ch,4)}")
    EP = T + 36
    PK = T + 16
    p = lambda i: PA + i
    A(f"v_max3_f32 v1, v{p(0)}, v{p(1)}, v{p(2)}")
    A(f"v_min3_f32 v2, v{p(0)}, v{p(1)}, v{p(2)}")
    for i in range(3, 19, 2):
        A(f"v_max3_f32 v1, v1, v{p(i)}, v{p(i+1)}")
        A(f"v_min3_f32 v2, v2, v{p(i)}, v{p(i+1)}")
    A(f"v_max_f32 v1, v1, v{p(19)}")
    A(f"v_min_f32 v2, v2, v{p(19)}")
    A(f"v_mul_f32 v1, v1, v{S1}")
    A(f"v_mul_f32 v2, v2, v{S1}")
    for i in range(20):
        A(f"v_fma_f32 v{EP+i}, v{p(i)}, v{S1}, -v1")
        A(f"v_fma_f32 v{EP+20+i}, -v{p(i)}, v{S1}, v2")
    for i in range(40):
        A(f"v_exp_f32 v{EP+i}, v{EP+i}")
    A(f"v_add_f32 v1, v{EP}, v{EP+1}")
    A(f"v_add_f32 v2, v{EP+20}, v{EP+21}")
    for i in range(2, 20):
        A(f"v_add_f32 v1, v1, v{EP+i}")
        A(f"v_add_f32 v2, v2, v{EP+20+i}")
    A("v_rcp_f32 v1, v1")
    A("v_rcp_f32 v2, v2")
    for i in range(40):
        A(f"v_mul_f32 v{EP+i}, v{EP+i}, v{1 + i // 20}")
    for i in range(20):
        A(f"v_cvt_pk_bf16_f32 v{PK+i}, v{EP+2*i}, v{EP+2*i+1}")
    NU = T + 36
    n = 0
    for st in range(5):
        for ch in range(6):
            fr = FR + 4 * (n % 8); n += 1
            for rho in range(2):
                A(f"ds_read_b64_tr_b16 {v(fr+2*rho,2)}, v5 offset:{(8*st+4*rho)*48+ch*8}")
            A(f"v_mfma_f32_16x16x32_bf16 {v(NU+4*ch,4)}, {v(fr,4)}, {v(PK+4*st,4)}, {'0' if st == 0 else v(NU+4*ch,4)}")
    A(f"s_lshr_b32 s{sT0}, s{sC}, 1")
    A(f"s_mul_i32 s{sT0}, s{sT0}, 5")
    A(f"s_add_u32 s{sT0}, s{sT0}, 54")
    A(f"s_lshl_b32 s{sT0}, s{sT0}, 10")
    A(f"s_mul_i32 s{sT1}, s{sWAVE}, {ACT_BLK}")
    A(f"s_add_u32 s{sT0}, s{sT0}, s{sT1}")
    A(f"s_add_u32 s{sT0}, s{sT0}, s{sAB}")
    A(f"s_and_b32 s{sT1}, s{sC}, 1")
    A(f"s_lshl_b32 s{sT2}, s{sT1}, 11")
    A(f"s_add_u32 s{sT2}, s{sT2}, s{sT0}")
    A(f"s_lshl_b32 s{sT1}, s{sT1}, 9")
    A(f"s_add_u32 s{sT1}, s{sT1}, s{sT0}")
    A(f"s_add_u32 s{sT1}, s{sT1}, 4096")
    A("v_lshrrev_b32 v3, 5, v0")
    A("v_lshlrev_b32 v3, 8, v3")
    A("v_and_b32 v4, 15, v0")
    A("v_lshl_add_u32 v3, v4, 4, v3")
    A("v_bfe_u32 v4, v0, 4, 1")
    A("v_lshl_add_u32 v3, v4, 3, v3")
    A(f"v_add_f32 v1, 0x358637bd, v{NU+20}")
    A("v_rcp_f32 v1, v1")
    A(f"v_mul_f32 v1, {hex(LOG2E)}, v1")
    for i in range(20):
        A(f"v_mul_f32 v{NU+i}, v{NU+i}, v1")
    OP = T
    for i in range(10):
        A(f"v_cvt_pk_bf16_f32 v{OP+i}, v{NU+2*i}, v{NU+2*i+1}")
    A(f"buffer_store_dwordx4 {v(OP,4)}, v{vW}, {srdr(SWS)}, s{sT2} offen sc1", "ost")
    A(f"buffer_store_dwordx4 {v(OP+4,4)}, v{vW}, {srdr(SWS)}, s{sT2} offen offset:1024 sc1", "ost")
    A(f"buffer_store_dwordx2 {v(OP+8,2)}, v3, {srdr(SWS)}, s{sT1} offen sc1", "ost")
    for j in range(5):
        A(f"v_add_u32 v1, {256*j}, v7")
        A("v_mul_u32_u24 v2, 3277, v1")
        A("v_lshrrev_b32 v2, 16, v2")
        A("v_mul_u32_u24 v3, 20, v2")
        A("v_sub_u32 v3, v1, v3")
        A("v_mul_u32_u24 v4, 1280, v2")
        A(f"v_lshl_add_u32 v{vXO+j}, v3, 3, v4")
        A(f"v_mul_u32_u24 v4, {RPITCH}, v2")
        A(f"v_lshl_add_u32 v{vRA+j}, v3, 4, v4")
    A(f"s_mul_i32 s{sXO}, s{sR}, {64*1280}")
    A(f"s_mul_i32 s{sT0}, s{sC}, 160")
    A(f"s_add_u32 s{sXO}, s{sXO}, s{sT0}")
    A(f"s_lshl_b32 s{sCNT}, s{sR}, 2")
    A(f"v_mov_b32 v{vPOLL+1}, 0")
    A(f"v_mov_b32 v{vPOLL+2}, 1")
    for n in range(19):
        if n == 13:
            A(f"s_mov_b32 s{sT1}, 0")
            A(f"v_readfirstlane_b32 s{sT0}, v{vPOLL}")
            A(f"s_cmp_eq_u32 s{sT0}, 8")
            A(f"s_cbranch_scc1 {L('go')}")
            A.label(L("spin"))
            A(f"buffer_load_dword v{vPOLL}, v{vPOLL+1}, {srdr(SDB)}, s{sCNT} offen sc1")
            A(f"s_add_u32 s{sT1}, s{sT1}, 1")
            A(f"s_cmp_gt_u32 s{sT1}, 0x40000")
            A(f"s_cbranch_scc1 {L('go')}")
            A(f"v_readfirstlane_b32 s{sT0}, v{vPOLL}")
            A(f"s_cmp_eq_u32 s{sT0}, 8")
            A(f"s_cbranch_scc0 {L('spin')}")
            A.label(L("go"))
            A(f"s_mul_i32 s{sA}, s{sWAVE}, 5")
            A(f"s_add_u32 s{sA}, s{sA}, 54")
            A(f"s_lshl_b32 s{sA}, s{sA}, 10")
            A(f"s_add_u32 s{sA}, s{sA}, s{sAB}")
            for m in range(14, 19):
                loads(A, m, "a", " sc1")
                if m < 18: A(f"s_add_u32 s{sA}, s{sA}, 1024")
            for j in range(5):
                A(f"buffer_load_dwordx2 {v(vXR+2*j,2)}, v{vXO+j}, {srdr(SX)}, s{sXO} offen")
        consume(A, n)
        m = n + NB
        if m < 14:
            advance(A, m); loads(A, m)
            if m == 13:
                A(f"buffer_load_dword v{vPOLL}, v{vPOLL+1}, {srdr(SDB)}, s{sCNT} offen sc1")
        elif m < 19:
            advance(A, m); loads(A, m, "w")
        if n == 1:
            A.wait(vm="ost")
            A("s_barrier")
            A(f"s_cmp_eq_u32 s{sWAVE}, 0")
            A(f"s_cbranch_scc0 {L('nosig')}")
            A("s_mov_b64 exec, 1")
            A(f"buffer_atomic_add v{vPOLL+2}, v{vPOLL+1}, {srdr(SDB)}, s{sCNT} offen sc1")
            A("s_mov_b64 exec, -1")
            A.label(L("nosig"))
    A("v_and_b32 v1, 15, v0")
    A(f"v_mul_u32_u24 v1, {RPITCH}, v1")
    A("v_lshrrev_b32 v2, 4, v0")
    A("v_lshl_add_u32 v1, v2, 4, v1")
    A(f"s_mul_i32 s{sT0}, s{sWAVE}, {RWAVE}")
    A(f"v_add_u32 v1, s{sT0}, v1")
    for k in range(4):
        for nt in range(5):
            A(f"ds_write_b128 v1, {v(ACC+4*(5*k+nt),4)} offset:{16*k*RPITCH+64*nt}")
    A.wait(lgkm="all")
    A("s_barrier")
    for j in range(5):
        for w in range(3):
            A(f"ds_read_b128 {v(T+16*j+4*w,4)}, v{vRA+j} offset:{RWAVE*w}")
        A(f"v_add_u32 v{vRA+j}, {RWAVE*3}, v{vRA+j}")
        A(f"ds_read_b128 {v(T+16*j+12,4)}, v{vRA+j}")
    A(f"s_mov_b32 s{sT0}, {hex(LN2)}")
    for j in range(5):
        b = T + 16 * j
        for e in range(4):
            A(f"v_add_f32 v{b+e}, v{b+e}, v{b+4+e}")
            A(f"v_add_f32 v{b+8+e}, v{b+8+e}, v{b+12+e}")
        for e in range(4):
            A(f"v_add_f32 v{b+e}, v{b+e}, v{b+8+e}")
        for h in range(2):
            A(f"v_lshlrev_b32 v{b+4+2*h}, 16, v{vXR+2*j+h}")
            A(f"v_and_b32 v{b+5+2*h}, 0xffff0000, v{vXR+2*j+h}")
        for e in range(4):
            A(f"v_fma_f32 v{b+e}, v{b+e}, s{sT0}, v{b+4+e}")
        A(f"v_cvt_pk_bf16_f32 v{b}, v{b}, v{b+1}")
        A(f"v_cvt_pk_bf16_f32 v{b+1}, v{b+2}, v{b+3}")
        A(f"buffer_store_dwordx2 {v(b,2)}, v{vXO+j}, {srdr(SOUT)}, s{sXO} offen")
    A.label(L("end"))
    A("s_endpgm")
    return dict(name=name, ins=render(finalize(A)), grid=256, block=256, lds=LDS2, vgpr=512, accum=256)

if __name__ == "__main__":
    from k0 import gen_k0
    from k1 import gen_k1
    for P in range(1280): assert (P * 3277) >> 16 == P // 20
    src = build_file([gen_k0(), gen_k1(), gen_k2(MAIN)])
    open("k2_test.s", "w").write(src)
```

```python
from common import *
from k0 import gen_k0
from k1 import gen_k1
from k2 import gen_k2
e = dict(name="empty_kernel", ins="  s_endpgm\n", grid=256, block=256, lds=0, vgpr=8, accum=8)
k0, k1, k2 = gen_k0(), gen_k1(), gen_k2(MAIN)
open("v_a.s", "w").write(build_file([k0, k1, k2]))
open("v_b.s", "w").write(build_file([k0, k1, k2, e, e, e, e]))
open("v_c.s", "w").write(build_file([e, e, e, e, k0, k1, k2]))
open("v_d.s", "w").write(build_file([k0, k1, k2, k2]))
open("v_e.s", "w").write(build_file([k0, k0, k1, k2]))
```

```python
from asmgen import *

MAIN = "parallel_sum__linear_kernel_hedgehog__dense_activation_mish__prompt_kernel"
W2P_OFF = 0x000000
ACT_OFF = 0x300000
ACT_BLK = 74 * 1024
QB_OFF = 0xC40000
KV_OFF = 0xEC0000
ST_OFF = 0xEE0000
CS_OFF = 0xEF0000
WS_SIZE = 0x10000000
OOB = 0x40000000
LOG2E = 0x3fb8aa3b
LN2 = 0x3f317218

def srd(A, sreg, ptr_lo, nbytes):
    A(f"s_mov_b32 s{sreg}, s{ptr_lo}")
    A(f"s_and_b32 s{sreg+1}, s{ptr_lo+1}, 0xffff")
    A(f"s_mov_b32 s{sreg+2}, {hex(nbytes)}")
    A(f"s_mov_b32 s{sreg+3}, 0x20000")

def sdiv(A, dst, src, d, tmp):
    m = (2**32 + d - 1) // d
    A(f"s_mov_b32 s{tmp}, {hex(m)}")
    A(f"s_mul_hi_u32 s{dst}, s{src}, s{tmp}")

HEADER = open("parallel_sum__linear_kernel_hedgehog__dense_activation_mish__prompt.s.ref").read().split("; Override launch")[0]

def build_file(kernels):
    o = HEADER
    if len(kernels) == 1:
        k = kernels[0]
        o += f"; @launch grid=({k['grid']},1,1) block=({k['block']},1,1) lds={k['lds']}\n"
    else:
        for k in kernels:
            o += f"; @launch kernel={k['name']} grid=({k['grid']},1,1) block=({k['block']},1,1) lds={k['lds']}\n"
    o += '.amdgcn_target "amdgcn-amd-amdhsa--gfx950"\n.text\n'
    done = []
    for k in kernels:
        if k['name'] in done: continue
        done.append(k['name'])
        o += f".globl {k['name']}\n.p2align 8\n.type {k['name']},@function\n{k['name']}:\n" + k['ins']
    o += '.section .rodata,"a"\n'
    done = []
    for k in kernels:
        if k['name'] in done: continue
        done.append(k['name'])
        o += ".p2align 6\n" + kernel_desc(k['name'], k['vgpr'], k['accum'], k.get('sgpr', 102))
    return o

PROF_OFF = 0xF00000
PROF = {"on": False}
sPB = 72

def stamp(A, i, real=False):
    if not PROF["on"]: return
    A(f"{'s_memrealtime' if real else 's_memtime'} s[{sPB+2*i}:{sPB+2*i+1}]")

def prof_flush(A, kidx, srdn, swave, n=14):
    if not PROF["on"]: return
    A("s_waitcnt vmcnt(0) lgkmcnt(0)")
    A(f"s_memrealtime s[{sPB+26}:{sPB+27}]")
    A(f"s_memtime s[{sPB+24}:{sPB+25}]")
    A("s_waitcnt lgkmcnt(0)")
    A("s_mov_b64 exec, 1")
    A(f"s_lshl_b32 s70, s2, 2")
    A(f"s_add_u32 s70, s70, s{swave}")
    A(f"s_lshl_b32 s70, s70, 6")
    A(f"s_add_u32 s70, s70, {PROF_OFF + kidx * 65536}")
    A("v_mov_b32 v1, 0")
    for i in range(n):
        A(f"v_mov_b32 v2, s{sPB+2*i}")
        A(f"buffer_store_dword v2, v1, s[{srdn}:{srdn+3}], s70 offen offset:{4*i}")
    A("s_getreg_b32 s71, hwreg(HW_REG_XCC_ID)")
    A("v_mov_b32 v2, s71")
    A(f"buffer_store_dword v2, v1, s[{srdn}:{srdn+3}], s70 offen offset:56")
```

```python
from common import *

def gen_k0(name="k0_kernel"):
    A = Asm()
    A("s_cmp_ge_u32 s2, 256")
    A(f"s_cbranch_scc1 {name}_end")
    stamp(A, 0, True); stamp(A, 1)
    A("s_load_dwordx16 s[4:19], s[0:1], 0")
    A("s_load_dwordx2 s[20:21], s[0:1], 80")
    A("v_lshrrev_b32 v1, 6, v0")
    A("v_and_b32 v0, 63, v0")
    A("v_readfirstlane_b32 s3, v1")
    A("s_waitcnt lgkmcnt(0)")
    SX, SWS, SA = 24, 28, 32
    srd(A, SX, 4, 2048 * 1280)
    srd(A, SWS, 20, WS_SIZE)
    A("v_and_b32 v2, 15, v0")
    A("v_lshrrev_b32 v3, 4, v0")
    A("v_lshlrev_b32 v4, 4, v0")
    for j in range(3):
        F, c, rem, T, nt, t0, t1 = 40, 41, 42, 43, 44, 45, 46
        base, qs, hi = 47, 48, 49
        A(f"s_mul_i32 s{F}, s2, 12")
        A(f"s_mul_i32 s{t0}, s3, 3")
        A(f"s_add_u32 s{F}, s{F}, s{t0}")
        A(f"s_add_u32 s{F}, s{F}, {j}")
        A(f"s_cmp_ge_u32 s{F}, 2960")
        A(f"s_cbranch_scc1 {name}_pk{j}")
        sdiv(A, c, F, 370, t0)
        A(f"s_mul_i32 s{t0}, s{c}, 370")
        A(f"s_sub_u32 s{rem}, s{F}, s{t0}")
        sdiv(A, T, rem, 5, t0)
        A(f"s_mul_i32 s{t0}, s{T}, 5")
        A(f"s_sub_u32 s{nt}, s{rem}, s{t0}")
        A(f"s_lshl_b32 s{base}, s{T}, 5")
        A(f"s_mov_b32 s{qs}, 8")
        A(f"s_mov_b32 s{hi}, {4*1280}")
        srd(A, SA, 18, 1728 * 1280)
        A(f"s_cmp_lt_u32 s{T}, 54")
        A(f"s_cbranch_scc1 {name}_w2_{j}")
        srd(A, SA, 10, 640 * 1280)
        A(f"s_sub_u32 s{t1}, s{T}, 54")
        sdiv(A, T, t1, 5, t0)
        A(f"s_mul_i32 s{t0}, s{T}, 5")
        A(f"s_sub_u32 s{t1}, s{t1}, s{t0}")
        A(f"s_mul_i32 s{base}, s{T}, 160")
        A(f"s_lshr_b32 s{t0}, s{t1}, 1")
        A(f"s_mul_i32 s{t0}, s{t0}, 80")
        A(f"s_add_u32 s{base}, s{base}, s{t0}")
        A(f"s_and_b32 s{t0}, s{t1}, 1")
        A(f"s_lshl_b32 s{t0}, s{t0}, 3")
        A(f"s_add_u32 s{base}, s{base}, s{t0}")
        A(f"s_mov_b32 s{qs}, 20")
        A(f"s_cmp_lt_u32 s{t1}, 4")
        A(f"s_cbranch_scc1 {name}_w2_{j}")
        A(f"s_sub_u32 s{base}, s{base}, {160-16}")
        A(f"s_mov_b32 s{qs}, 40")
        A(f"s_mov_b32 s{hi}, {20*1280}")
        A.label(f"{name}_w2_{j}")
        A(f"s_mul_i32 s{t0}, s{c}, 160")
        A(f"s_lshl_b32 s{t1}, s{nt}, 5")
        A(f"s_add_u32 s{t0}, s{t0}, s{t1}")
        A(f"s_mul_i32 s{base}, s{base}, 1280")
        A(f"s_add_u32 s{t0}, s{t0}, s{base}")
        A(f"s_mul_i32 s{qs}, s{qs}, 1280")
        A(f"v_mul_lo_u32 v5, v3, s{qs}")
        A(f"v_lshl_add_u32 v5, v2, 1, v5")
        A(f"v_add_u32 v6, s{hi}, v5")
        d = 8 + 4 * j
        for r in range(4):
            vo = "v5" if r < 2 else "v6"
            o0 = (2 * (r & 1)) * 1280
            A(f"buffer_load_ushort v{d+r}, {vo}, s[{SA}:{SA+3}], s{t0} offen offset:{o0}")
            A(f"buffer_load_ushort v{20+r}, {vo}, s[{SA}:{SA+3}], s{t0} offen offset:{o0+1280}")
        for r in range(4):
            A(f"v_lshl_or_b32 v{d+r}, v{20+r}, 16, v{d+r}")
        A(f"s_lshl_b32 s{F}, s{F}, 10")
        A(f"s_add_u32 s{F}, s{F}, {W2P_OFF}")
        A(f"buffer_store_dwordx4 v[{d}:{d+3}], v4, s[{SWS}:{SWS+3}], s{F} offen")
        A.label(f"{name}_pk{j}")
    A("s_cmp_eq_u32 s3, 2")
    A(f"s_cbranch_scc1 {name}_cs")
    A("s_cmp_eq_u32 s3, 3")
    A(f"s_cbranch_scc1 {name}_zero")
    A("s_lshl_b32 s40, s2, 3")
    A("s_lshl_b32 s41, s3, 2")
    A("s_add_u32 s40, s40, s41")
    A("v_add_u32 v5, s40, v3")
    A("v_mul_u32_u24 v6, 1280, v5")
    A("v_lshl_add_u32 v6, v2, 4, v6")
    for j in range(5):
        A(f"buffer_load_dwordx4 v[{24+4*j}:{27+4*j}], v6, s[{SX}:{SX+3}], 0 offen offset:{256*j}")
    for r in range(20):
        A(f"v_lshlrev_b32 v{48+2*r}, 16, v{24+r}")
        A(f"v_and_b32 v{49+2*r}, 0xffff0000, v{24+r}")
    A("v_add_f32 v7, v48, v49")
    for r in range(2, 40):
        A(f"v_add_f32 v7, v7, v{48+r}")
    def rowsum(reg):
        for sh in (8, 4, 2, 1):
            A(f"v_add_f32_dpp v{reg}, v{reg}, v{reg} row_ror:{sh} row_mask:0xf bank_mask:0xf")
    rowsum(7)
    A("v_mul_f32 v20, 0x3acccccd, v7")
    for r in range(40):
        A(f"v_sub_f32 v{48+r}, v{48+r}, v20")
    A("v_mul_f32 v7, v48, v48")
    for r in range(1, 40):
        A(f"v_fmac_f32 v7, v{48+r}, v{48+r}")
    rowsum(7)
    A("v_mov_b32 v21, 0x3727c5ac")
    A("v_fmac_f32 v21, 0x3acccccd, v7")
    A("v_lshlrev_b32 v5, 3, v5")
    A("v_cmp_eq_u32 vcc, 0, v2")
    A("s_and_saveexec_b64 s[42:43], vcc")
    A(f"s_mov_b32 s40, {ST_OFF}")
    A(f"buffer_store_dwordx2 v[20:21], v5, s[{SWS}:{SWS+3}], s40 offen")
    prof_flush(A, 0, SWS, 3)
    A("s_endpgm")
    A.label(f"{name}_cs")
    A("s_cmp_ge_u32 s2, 228")
    A(f"s_cbranch_scc1 {name}_end")
    A("s_lshr_b32 s40, s2, 2")
    A("s_and_b32 s41, s2, 3")
    srd(A, SA, 6, 640 * 3840)
    A("s_mov_b32 s42, 3840")
    A("s_mov_b32 s43, s40")
    A("s_cmp_lt_u32 s40, 30")
    A(f"s_cbranch_scc1 {name}_cs1")
    srd(A, SA, 14, 640 * 3456)
    A("s_mov_b32 s42, 3456")
    A("s_sub_u32 s43, s40, 30")
    A.label(f"{name}_cs1")
    A("s_mul_i32 s44, s41, 160")
    A("s_mul_i32 s44, s44, s42")
    A("s_lshl_b32 s43, s43, 7")
    A("s_add_u32 s44, s44, s43")
    A("s_lshl_b32 s45, s42, 3")
    A("v_lshrrev_b32 v5, 3, v0")
    A("v_and_b32 v6, 7, v0")
    A("v_mul_lo_u32 v5, v5, s42")
    A("v_lshl_add_u32 v5, v6, 4, v5")
    for j in range(20):
        A(f"buffer_load_dwordx4 v[{24+4*j}:{27+4*j}], v5, s[{SA}:{SA+3}], s44 offen")
        if j < 19: A("s_add_u32 s44, s44, s45")
    acc = 104
    for j in range(20):
        for r in range(4):
            src = 24 + 4 * j + r
            if j == 0:
                A(f"v_lshlrev_b32 v{acc+2*r}, 16, v{src}")
                A(f"v_and_b32 v{acc+2*r+1}, 0xffff0000, v{src}")
            else:
                A(f"v_lshlrev_b32 v7, 16, v{src}")
                A(f"v_and_b32 v{src}, 0xffff0000, v{src}")
                A(f"v_add_f32 v{acc+2*r}, v{acc+2*r}, v7")
                A(f"v_add_f32 v{acc+2*r+1}, v{acc+2*r+1}, v{src}")
    for r in range(4):
        A(f"v_permlane32_swap_b32 v{acc+r}, v{acc+4+r}")
        A(f"v_add_f32 v{acc+r}, v{acc+r}, v{acc+4+r}")
    for r in range(2):
        A(f"v_permlane16_swap_b32 v{acc+r}, v{acc+2+r}")
        A(f"v_add_f32 v{acc+r}, v{acc+r}, v{acc+2+r}")
    for r in range(2):
        A(f"v_add_f32_dpp v{acc+r}, v{acc+r}, v{acc+r} row_ror:8 row_mask:0xf bank_mask:0xf")
    A("v_and_b32 v7, 8, v0")
    A("v_cmp_ne_u32 vcc, 0, v7")
    A(f"v_cndmask_b32 v{acc}, v{acc}, v{acc+1}, vcc")
    A("v_lshrrev_b32 v5, 3, v0")
    A("v_lshl_add_u32 v5, v6, 3, v5")
    A("v_lshlrev_b32 v5, 4, v5")
    A("s_lshl_b32 s40, s40, 10")
    A("s_lshl_b32 s41, s41, 2")
    A("s_add_u32 s40, s40, s41")
    A(f"s_add_u32 s40, s40, {CS_OFF}")
    A(f"buffer_store_dword v{acc}, v5, s[{SWS}:{SWS+3}], s40 offen")
    prof_flush(A, 0, SWS, 3)
    A("s_endpgm")
    A.label(f"{name}_zero")
    for r in range(4):
        A(f"v_mov_b32 v{24+r}, 0")
    A("s_mul_i32 s40, s2, 480")
    A(f"s_add_u32 s40, s40, {KV_OFF}")
    A("v_cmp_gt_u32 vcc, 30, v0")
    A("s_and_saveexec_b64 s[42:43], vcc")
    A(f"buffer_store_dwordx4 v[24:27], v4, s[{SWS}:{SWS+3}], s40 offen")
    prof_flush(A, 0, SWS, 3)
    A.label(f"{name}_end")
    A("s_endpgm")
    return dict(name=name, ins=render(finalize(A)), grid=256, block=256, lds=0, vgpr=128, accum=128)

if __name__ == "__main__":
    open("k0_test.s", "w").write(build_file([gen_k0(MAIN)]))
```

```python
from common import *

WR = 0; SLOT = 20480
XR = 4 * SLOT
PHIK = XR
VIM = XR + 40960
PHI = XR + 65536
PZERO = PHI + 3840
LDS1 = PZERO + 1920

SX, SWQ, SW1, SWS, SB1, SPH = 24, 28, 32, 36, 40, 44
sWAVE = 3; sM = 48; sTYPE = 49; sU = 50; sPAIR = 51; sNP = 52; sWB = 53; sMP = 54
sXO = 58; sXM = 59; sT0 = 60; sPC = 61; sPN = 62; sT1 = 63; sT2 = 64; sACT = 65; sT3 = 66
vLANE = 0; vT = 1
vXD = 8
vXRD = 12
vAD = 16
vPD = 21
vAR = 26
vPR = 28
vCA = 36
vCP = 39
vS1 = 40; vRS = 41
vCB = 44
vAST = 48
vST = 50
vPH = 52
vCP2 = 56
ACC_A = 64
ACC_P = 144
TMP = 176
aX = 0; aW = 160

def srdr(n): return f"s[{n}:{n+3}]"

def dma5(vbase, srdn, soff, m0expr, tag):
    o = [(m0expr, None)]
    for i in range(4):
        o.append((f"buffer_load_dwordx4 v{vbase+i}, {srdr(srdn)}, s{soff} offen offset:{1024*i} lds", tag))
    o.append(("s_add_u32 m0, m0, 4096", None))
    o.append((f"buffer_load_dwordx4 v{vbase+4}, {srdr(srdn)}, s{soff} offen lds", tag))
    return o

def x_dma(j):
    o = [(f"s_add_u32 m0, s{sXM}, {(j % 4) * 4096}", None), (f"s_add_u32 s{sT1}, s{sXO}, {j*128}", None)]
    for i in range(4):
        o.append((f"buffer_load_dwordx4 v{vXD+i}, {srdr(SX)}, s{sT1} offen offset:{1024*i} lds", f"x{j}"))
    return o

def att_dma(i):
    return [(f"s_mov_b32 s{sT0}, {i*64*3840}", None)] + \
        dma5(vAD, SWQ, sT0, f"s_add_u32 m0, s{sWB}, {(i % 4) * SLOT}", f"w{i%4}")

def pair_dma(c, nxt):
    return [(f"s_add_u32 s{sT0}, s{sPN if nxt else sPC}, {c*160*3456}", None)] + \
        dma5(vPD, SW1, sT0, f"s_mov_b32 m0, s{sMP+c}", f"p{c}")

def emit(A, lst):
    for t, tag in lst: A(t, tag)

def unit(A, kind, with_x, acc):
    nt = 5 if kind == "att" else 2
    cks = 4 if kind == "att" else 10
    def reads(s):
        o = []
        c, sp = divmod(s, cks)
        for t in range(nt):
            for rho in range(2):
                dst = a(aW + 20 * (s & 1) + 4 * t + 2 * rho, 2)
                if kind == "att":
                    slot = c % 4
                    base = vAR + (1 if slot == 3 else 0)
                    off = (0 if slot == 3 else slot * SLOT) + sp * 5120 + rho * 1280 + t * 32
                else:
                    base = vPR + 2 * c + t
                    off = sp * 2048 + rho * 512
                o.append((f"ds_read_b64_tr_b16 {dst}, v{base} offset:{off}", None))
        return o
    pend = []
    for s in range(41):
        if s < 40:
            c, sp = divmod(s, cks)
            if sp == 0:
                tags = [f"w{c%4}" if kind == "att" else f"p{c}"]
                if with_x and s % 4 == 0: tags.append(f"x{s//4}")
                A.wait(vm=tags, lgkm="all")
                A("s_barrier")
                if with_x and c == 0: stamp(A, 3)
                if with_x and c == 1: stamp(A, 4)
            if with_x and s % 4 == 0:
                j = s // 4
                A.wait(vm=f"x{j}")
                for q in range(4):
                    A(f"ds_read_b128 {a(aX + 16*j + 4*q, 4)}, v{vXRD+q} offset:{(j % 4) * 4096}", f"xr")
            rd = reads(s)
            wd = []
            if sp == 0:
                if kind == "att":
                    wd = att_dma(c + 3) if c + 3 < 10 else pair_dma(c + 3 - 10, False)
                else:
                    wd = pair_dma(3, False) if c == 0 else pair_dma(c - 1, True)
        else:
            rd, wd = [], []
        xd = []
        if with_x and s >= 1 and (s - 1) % 4 == 0 and (s - 1) // 4 + 4 < 10:
            xd = x_dma((s - 1) // 4 + 4)
        if s == 0:
            emit(A, rd)
            pend = wd
            continue
        fill = rd
        extra = xd + pend + wd
        pend = []
        nf = (len(fill) + nt - 1) // nt
        ne = (len(extra) + nt - 1) // nt
        for t in range(nt):
            cin = "0" if s == 1 else v(acc + 16 * t, 16)
            A(f"v_mfma_f32_32x32x16_bf16 {v(acc+16*t,16)}, {a(aW+20*((s-1)&1)+4*t,4)}, {a(aX+4*(s-1),4)}, {cin}")
            if t == 0 and xd: A.wait(lgkm="xr")
            emit(A, fill[t * nf:(t + 1) * nf])
            emit(A, extra[t * ne:(t + 1) * ne])

def corr_frag(A, raw, bias, tmp):
    A(f"v_add_f32 v{tmp}, v{raw}, v{raw+1}")
    A(f"v_add_f32 v{raw+2}, v{raw+2}, v{raw+3}")
    A(f"v_add_f32 v{tmp}, v{tmp}, v{raw+2}")
    A(f"v_cvt_pk_bf16_f32 v{raw}, v{tmp}, v{tmp}")
    A(f"v_and_b32 v{raw+1}, 0xffff0000, v{raw}")
    A(f"v_sub_f32 v{tmp}, v{tmp}, v{raw+1}")
    if bias is None:
        A(f"v_cvt_pk_bf16_f32 v{raw+1}, v{tmp}, 0")
        A(f"v_mov_b32 v{raw+2}, 0")
    else:
        A(f"v_lshlrev_b32 v{raw+3}, 16, v{bias}")
        A(f"v_cvt_pk_bf16_f32 v{raw+1}, v{tmp}, v{raw+3}")
        A(f"v_mov_b32 v{raw+2}, v{bias}")
    A(f"v_mov_b32 v{raw+3}, 0")

def pair_corr_loads(A):
    A(f"s_lshl_b32 s{sT1}, s{sPAIR}, 10")
    A(f"s_add_u32 s{sT1}, s{sT1}, {CS_OFF + 1920*16}")
    A(f"s_lshl_b32 s{sT2}, s{sPAIR}, 7")
    for t in range(2):
        A(f"buffer_load_dwordx4 {v(TMP+4*t,4)}, v{vCP}, {srdr(SWS)}, s{sT1} offen offset:{512*t}")
        A(f"buffer_load_ushort v{TMP+8+t}, v{vCP2}, {srdr(SB1)}, s{sT2} offen offset:{64*t}")

def mish(A, acc, n, t0, out):
    for i in range(n):
        A(f"v_mul_f32 v{t0+i}, v{acc+i}, v{vS1}")
    G = 4
    for g0 in range(0, n, G):
        e = t0 + n
        for i in range(G): A(f"v_exp_f32 v{e+i}, v{t0+g0+i}")
        for i in range(G): A(f"v_fma_f32 v{e+G+i}, v{e+i}, 0.5, 1.0")
        for i in range(G): A(f"v_fma_f32 v{e+i}, v{e+i}, v{e+G+i}, 1.0")
        for i in range(G): A(f"v_rcp_f32 v{e+i}, v{e+i}")
        for i in range(G): A(f"v_fma_f32 v{e+i}, -v{t0+g0+i}, v{e+i}, v{t0+g0+i}")
        for i in range(0, G, 2): A(f"v_cvt_pk_bf16_f32 v{out+(g0+i)//2}, v{e+i}, v{e+i+1}")

def pair_tail(A):
    for t in range(2):
        corr_frag(A, TMP + 4 * t, TMP + 8 + t, TMP + 10)
    for t in range(2):
        A(f"v_mfma_f32_32x32x16_bf16 {v(ACC_P+16*t,16)}, {v(TMP+4*t,4)}, {v(vCB,4)}, {v(ACC_P+16*t,16)}")
    mish(A, ACC_P, 32, TMP + 16, TMP)
    A(f"s_lshl_b32 s{sT1}, s{sPAIR}, 11")
    A(f"s_add_u32 s{sT1}, s{sT1}, s{sACT}")
    for t in range(2):
        for p in range(2):
            A(f"buffer_store_dwordx4 {v(TMP+8*t+4*p,4)}, v{vAST}, {srdr(SWS)}, s{sT1} offen offset:{1024*t+512*p}")

def stats_frag(A):
    m, ve = vST, vST + 1
    A(f"v_rsq_f32 v{vRS}, v{ve}")
    A(f"v_sub_f32 v1, 0, v{m}")
    A(f"v_mul_f32 v2, v{ve}, v{vRS}")
    A(f"v_mul_f32 v{vS1}, {hex(LOG2E)}, v{vRS}")
    A(f"v_cvt_pk_bf16_f32 v{vCB+1}, v1, v2")
    A(f"v_lshlrev_b32 v3, 16, v{vCB+1}")
    A(f"v_and_b32 v4, 0xffff0000, v{vCB+1}")
    A(f"v_sub_f32 v3, v1, v3")
    A(f"v_sub_f32 v4, v2, v4")
    A(f"v_cvt_pk_bf16_f32 v{vCB}, v1, v3")
    A(f"v_cvt_pk_bf16_f32 v{vCB+2}, v4, 0")
    A(f"v_mov_b32 v{vCB+3}, 0")
    A(f"v_cmp_gt_u32 vcc, 32, v{vLANE}")
    for i in range(3):
        A(f"v_cndmask_b32 v{vCB+i}, 0, v{vCB+i}, vcc")

def gen_k1(name="k1_kernel"):
    A = Asm()
    L = lambda x: f"{name}_{x}"
    A("s_cmp_ge_u32 s2, 256")
    A(f"s_cbranch_scc1 {L('end')}")
    stamp(A, 0, True); stamp(A, 1)
    A("s_load_dwordx16 s[4:19], s[0:1], 0")
    A("s_load_dwordx2 s[20:21], s[0:1], 80")
    A("v_lshrrev_b32 v1, 6, v0")
    A("v_and_b32 v0, 63, v0")
    A(f"v_readfirstlane_b32 s{sWAVE}, v1")
    A(f"s_and_b32 s{sT0}, s2, 7")
    A(f"s_lshr_b32 s{sT1}, s2, 3")
    A(f"s_lshr_b32 s{sM}, s{sT0}, 1")
    A(f"s_lshl_b32 s{sM}, s{sM}, 2")
    A(f"s_and_b32 s{sT2}, s{sT1}, 3")
    A(f"s_add_u32 s{sM}, s{sM}, s{sT2}")
    A(f"s_and_b32 s{sT0}, s{sT0}, 1")
    A(f"s_lshr_b32 s{sT1}, s{sT1}, 2")
    A(f"s_lshl_b32 s{sU}, s{sT0}, 1")
    A(f"s_add_u32 s{sU}, s{sU}, s{sT1}")
    A(f"s_mov_b32 s{sTYPE}, 0")
    A(f"s_lshl_b32 s{sPAIR}, s{sU}, 1")
    A(f"s_mov_b32 s{sNP}, 2")
    A(f"s_cmp_lt_u32 s{sT1}, 2")
    A(f"s_cbranch_scc1 {L('role')}")
    A(f"s_mov_b32 s{sTYPE}, 2")
    A(f"s_sub_u32 s{sU}, s{sU}, 6")
    A(f"s_mul_i32 s{sPAIR}, s{sU}, 3")
    A(f"s_add_u32 s{sPAIR}, s{sPAIR}, 16")
    A(f"s_cmp_eq_u32 s{sU}, 3")
    A(f"s_cselect_b32 s{sNP}, 2, 3")
    A(f"s_cmp_ge_u32 s{sT1}, 6")
    A(f"s_cbranch_scc1 {L('role')}")
    A(f"s_mov_b32 s{sTYPE}, 1")
    A(f"s_lshl_b32 s{sU}, s{sT0}, 2")
    A(f"s_add_u32 s{sU}, s{sU}, s{sT1}")
    A(f"s_sub_u32 s{sU}, s{sU}, 2")
    A(f"s_add_u32 s{sPAIR}, s{sU}, 8")
    A(f"s_mov_b32 s{sNP}, 1")
    A.label(L("role"))
    A("v_lshrrev_b32 v1, 3, v0")
    A("v_and_b32 v2, 7, v0")
    A(f"s_lshl_b32 s{sT0}, s{sWAVE}, 5")
    for i in range(4):
        A(f"v_add_u32 v3, {8*i}, v1")
        A("v_lshrrev_b32 v4, 1, v3")
        A("v_and_b32 v4, 7, v4")
        A("v_xor_b32 v4, v4, v2")
        A(f"v_add_u32 v3, s{sT0}, v3")
        A("v_mul_u32_u24 v3, 1280, v3")
        A(f"v_lshl_add_u32 v{vXD+i}, v4, 4, v3")
        if i: A(f"v_subrev_u32 v{vXD+i}, {1024*i}, v{vXD+i}")
    A(f"s_mul_i32 s{sXO}, s{sM}, {128*1280}")
    A(f"s_lshl_b32 s{sXM}, s{sWAVE}, 14")
    A(f"s_add_u32 s{sXM}, s{sXM}, {XR}")
    A(f"s_mul_i32 s{sWB}, s{sWAVE}, 5120")
    A("s_waitcnt lgkmcnt(0)")
    srd(A, SX, 4, 2048 * 1280)
    srd(A, SWQ, 6, 640 * 3840)
    srd(A, SW1, 14, 640 * 3456)
    srd(A, SWS, 20, WS_SIZE)
    srd(A, SB1, 16, 1728 * 2)
    srd(A, SPH, 8, 32 * 800)
    emit(A, x_dma(0))
    A("v_lshrrev_b32 v3, 4, v0")
    A("v_and_b32 v3, 1, v3")
    A("v_lshlrev_b32 v3, 2, v3")
    A("v_xor_b32 v3, v3, v2")
    A(f"s_mul_i32 s{sT0}, s{sWAVE}, 40")
    A(f"v_add_u32 v4, s{sT0}, v1")
    A("v_mul_u32_u24 v4, 3456, v4")
    A(f"v_lshl_add_u32 v{vPD}, v3, 4, v4")
    for i in range(1, 5):
        A(f"v_add_u32 v{vPD+i}, {8*3456*i - (1024*i if i < 4 else 0)}, v{vPD}")
    A(f"s_lshl_b32 s{sPC}, s{sPAIR}, 7")
    A(f"s_add_u32 s{sPN}, s{sPC}, 128")
    A(f"s_cmp_eq_u32 s{sNP}, 1")
    A(f"s_cselect_b32 s{sPN}, {hex(OOB)}, s{sPN}")
    A(f"s_cmp_eq_u32 s{sTYPE}, 2")
    A(f"s_cselect_b32 s{sT3}, 0, 2")
    for c in range(4):
        A(f"s_add_u32 s{sT0}, s{sT3}, {c}")
        A(f"s_and_b32 s{sT0}, s{sT0}, 3")
        A(f"s_mul_i32 s{sT0}, s{sT0}, {SLOT}")
        A(f"s_add_u32 s{sMP+c}, s{sT0}, s{sWB}")
    def common_lane():
        A("v_lshrrev_b32 v1, 5, v0")
        A("v_bfe_u32 v2, v0, 2, 2")
        A("v_and_b32 v3, 1, v0")
        A("v_bfe_u32 v4, v0, 1, 1")
        A("v_bfe_u32 v5, v0, 4, 1")
        A("v_lshl_add_u32 v4, v5, 1, v4")
        A("v_lshl_add_u32 v6, v1, 3, v2")
    A(f"s_cmp_eq_u32 s{sTYPE}, 2")
    A(f"s_cbranch_scc1 {L('hpro')}")
    A(f"s_lshl_b32 s{sT0}, s{sWAVE}, 4")
    A(f"s_cmp_eq_u32 s{sTYPE}, 1")
    A(f"s_cselect_b32 s{sT1}, 1, 2")
    A(f"s_mul_i32 s{sT1}, s{sT1}, 160")
    A(f"s_mul_i32 s{sT1}, s{sT1}, s{sU}")
    A(f"s_cselect_b32 s{sT2}, 1280, 0")
    A(f"s_add_u32 s{sT1}, s{sT1}, s{sT2}")
    A(f"s_cmp_eq_u32 s{sTYPE}, 1")
    A(f"s_cselect_b32 s{sT2}, {1280-80}, 0")
    A(f"s_cselect_b32 s{sT3}, {-80 & 0xffffffff}, 0")
    for i in range(5):
        A(f"v_add_u32 v1, {64*i}, v0")
        A("v_mul_u32_u24 v2, 3277, v1")
        A("v_lshrrev_b32 v2, 16, v2")
        A("v_mul_u32_u24 v3, 20, v2")
        A("v_sub_u32 v3, v1, v3")
        A("v_mul_u32_u24 v4, 13108, v3")
        A("v_lshrrev_b32 v4, 16, v4")
        A("v_and_b32 v5, 1, v4")
        A("v_lshrrev_b32 v4, 1, v4")
        A(f"v_mul_lo_u32 v5, v5, s{sT2}")
        A(f"v_mul_lo_u32 v4, v4, s{sT3}")
        A(f"v_add_u32 v2, s{sT0}, v2")
        A("v_mul_u32_u24 v2, 3840, v2")
        A("v_lshl_add_u32 v2, v3, 4, v2")
        A("v_add3_u32 v2, v2, v4, v5")
        A(f"v_add_u32 v{vAD+i}, s{sT1}, v2")
        if 0 < i < 4: A(f"v_subrev_u32 v{vAD+i}, {1024*i}, v{vAD+i}")
    emit(A, att_dma(0))
    emit(A, x_dma(1))
    A.label(L("hpro"))
    A(f"s_cmp_eq_u32 s{sTYPE}, 2")
    A(f"s_cbranch_scc0 {L('pro2')}")
    emit(A, pair_dma(0, False))
    emit(A, x_dma(1))
    A.label(L("pro2"))
    A("v_and_b32 v1, 31, v0")
    A(f"s_lshl_b32 s{sT0}, s{sM}, 7")
    A(f"s_lshl_b32 s{sT1}, s{sWAVE}, 5")
    A(f"s_add_u32 s{sT0}, s{sT0}, s{sT1}")
    A(f"s_lshl_b32 s{sT0}, s{sT0}, 3")
    A(f"s_add_u32 s{sT0}, s{sT0}, {ST_OFF}")
    A("v_lshlrev_b32 v2, 3, v1")
    A(f"buffer_load_dwordx2 {v(vST,2)}, v2, {srdr(SWS)}, s{sT0} offen")
    A("v_lshrrev_b32 v2, 5, v0")
    A("v_bfe_u32 v3, v0, 1, 3")
    A("v_lshlrev_b32 v4, 7, v1")
    A(f"v_add_u32 v4, s{sXM}, v4")
    for q in range(4):
        A(f"v_add_u32 v5, {2*q}, v2")
        A("v_xor_b32 v5, v5, v3")
        A(f"v_lshl_add_u32 v{vXRD+q}, v5, 4, v4")
    A("v_lshrrev_b32 v3, 4, v1")
    A(f"v_mul_u32_u24 v3, {ACT_BLK}, v3")
    A("v_lshl_add_u32 v3, v2, 8, v3")
    A("v_and_b32 v4, 15, v0")
    A(f"v_lshl_add_u32 v{vAST}, v4, 4, v3")
    A(f"s_lshl_b32 s{sT0}, s{sM}, 3")
    A(f"s_lshl_b32 s{sT1}, s{sWAVE}, 1")
    A(f"s_add_u32 s{sT0}, s{sT0}, s{sT1}")
    A(f"s_mul_i32 s{sACT}, s{sT0}, {ACT_BLK}")
    A(f"s_add_u32 s{sACT}, s{sACT}, {ACT_OFF}")
    common_lane()
    A("v_mul_u32_u24 v7, 320, v6")
    A(f"v_mul_u32_u24 v{vAR}, 160, v3")
    A(f"v_add_u32 v{vAR}, v{vAR}, v7")
    A(f"v_lshl_add_u32 v{vAR}, v4, 3, v{vAR}")
    A(f"v_add_u32 v{vAR+1}, {3*SLOT}, v{vAR}")
    A("v_lshrrev_b32 v7, 1, v4")
    A("v_lshlrev_b32 v7, 2, v7")
    A("v_lshl_add_u32 v7, v3, 1, v7")
    A("v_and_b32 v5, 1, v4")
    A("v_add_u32 v7, v7, v5")
    A("v_lshlrev_b32 v7, 3, v7")
    A("v_lshl_add_u32 v7, v6, 7, v7")
    A("v_bfe_u32 v5, v0, 3, 1")
    A("v_lshl_add_u32 v7, v5, 6, v7")
    for c in range(4):
        A(f"s_sub_u32 s{sT0}, s{sMP+c}, s{sWB}")
        A(f"v_add_u32 v{vPR+2*c}, s{sT0}, v7")
        A(f"v_xor_b32 v{vPR+2*c+1}, 64, v{vPR+2*c}")
    A("v_and_b32 v1, 3, v0")
    A("v_bfe_u32 v2, v0, 2, 1")
    A("v_bfe_u32 v3, v0, 3, 2")
    A("v_lshrrev_b32 v4, 1, v3")
    A("v_lshl_add_u32 v4, v4, 1, v2")
    A("v_and_b32 v5, 1, v3")
    A("v_lshl_add_u32 v5, v5, 2, v1")
    A("v_lshl_add_u32 v4, v4, 3, v5")
    A(f"v_lshlrev_b32 v{vCP}, 4, v4")
    A(f"v_lshlrev_b32 v{vCP2}, 1, v4")
    A(f"s_cmp_eq_u32 s{sTYPE}, 2")
    A(f"s_cbranch_scc1 {L('hfirst')}")
    A(f"s_cmp_eq_u32 s{sTYPE}, 1")
    A(f"s_cselect_b32 s{sT0}, 40, 80")
    A(f"s_cselect_b32 s{sT1}, {600*16}, 0")
    A(f"v_mul_lo_u32 v4, v2, s{sT0}")
    A("v_lshl_add_u32 v4, v3, 2, v4")
    A("v_add_u32 v4, v4, v1")
    A(f"v_lshlrev_b32 v{vCA}, 4, v4")
    A(f"v_add_u32 v{vCA+2}, s{sT1}, v{vCA}")
    A("v_cmp_lt_u32 vcc, 1, v3")
    A(f"v_cndmask_b32 v{vCA+1}, v{vCA}, v{vCA+2}, vcc")
    A(f"s_cselect_b32 s{sT0}, 1, 2")
    A(f"s_mul_i32 s{sT0}, s{sT0}, {80*16}")
    A(f"s_mul_i32 s{sT0}, s{sT0}, s{sU}")
    A(f"s_cselect_b32 s{sT1}, {640*16}, 0")
    A(f"s_add_u32 s{sT0}, s{sT0}, s{sT1}")
    A(f"s_add_u32 s{sT0}, s{sT0}, {CS_OFF}")
    for t in range(5):
        A(f"buffer_load_dwordx4 {v(TMP+4*t,4)}, v{vCA+[0,0,1,2,2][t]}, {srdr(SWS)}, s{sT0} offen offset:{256*t}")
    A(f"s_lshl_b32 s{sT0}, s{sU}, 2")
    A(f"s_add_u32 s{sT0}, s{sT0}, s{sWAVE}")
    A(f"s_mul_i32 s{sT0}, s{sT0}, 800")
    A("v_lshlrev_b32 v1, 4, v0")
    A(f"v_mov_b32 v2, {hex(OOB)}")
    A("v_cmp_gt_u32 vcc, 50, v0")
    A("v_cndmask_b32 v2, v2, v1, vcc")
    A(f"buffer_load_dwordx4 {v(vPH,4)}, v2, {srdr(SPH)}, s{sT0} offen")
    emit(A, att_dma(1))
    emit(A, x_dma(2))
    emit(A, att_dma(2))
    emit(A, x_dma(3))
    A(f"s_mul_i32 s{sT0}, s{sWAVE}, 960")
    A(f"s_add_u32 s{sT0}, s{sT0}, {PHI}")
    A(f"v_add_u32 v2, s{sT0}, v1")
    A(f"s_mul_i32 s{sT0}, s{sWAVE}, 480")
    A(f"s_add_u32 s{sT0}, s{sT0}, {PZERO}")
    A(f"v_lshl_add_u32 v3, v0, 3, s{sT0}")
    A("v_mov_b32 v4, 0")
    A("v_mov_b32 v5, 0")
    A("v_cmp_gt_u32 vcc, 60, v0")
    A("s_and_saveexec_b64 s[68:69], vcc")
    A(f"ds_write_b128 v2, {v(vPH,4)}")
    A("ds_write_b64 v3, v[4:5]")
    A("s_mov_b64 exec, s[68:69]")
    stamp(A, 2)
    unit(A, "att", True, ACC_A)
    stamp(A, 5)
    stats_frag(A)
    for t in range(5):
        corr_frag(A, TMP + 4 * t, None, TMP + 20)
    for t in range(5):
        A(f"v_mfma_f32_32x32x16_bf16 {v(ACC_A+16*t,16)}, {v(TMP+4*t,4)}, {v(vCB,4)}, {v(ACC_A+16*t,16)}")
    A(f"s_cmp_eq_u32 s{sTYPE}, 1")
    A(f"s_cbranch_scc1 {L('kvepi')}")
    for i in range(40):
        A(f"v_cvt_pk_bf16_f32 v{TMP+i}, v{ACC_A+2*i}, v{ACC_A+2*i+1}")
    A("v_bfe_u32 v1, v0, 4, 1")
    A("v_mul_u32_u24 v1, 20480, v1")
    A("v_lshrrev_b32 v2, 5, v0")
    A("v_mul_u32_u24 v2, 2560, v2")
    A("v_add_u32 v1, v1, v2")
    A("v_and_b32 v2, 15, v0")
    A("v_lshl_add_u32 v3, v2, 3, v1")
    A("v_lshl_add_u32 v1, v2, 4, v1")
    A(f"s_lshl_b32 s{sT0}, s{sM}, 3")
    A(f"s_lshl_b32 s{sT1}, s{sWAVE}, 1")
    A(f"s_add_u32 s{sT0}, s{sT0}, s{sT1}")
    A(f"s_mul_i32 s{sT0}, s{sT0}, 20480")
    A(f"s_mul_i32 s{sT1}, s{sU}, 5120")
    A(f"s_add_u32 s{sT0}, s{sT0}, s{sT1}")
    A(f"s_add_u32 s{sT0}, s{sT0}, {QB_OFF}")
    for j in range(4):
        A(f"buffer_store_dwordx4 {v(TMP+10*j,4)}, v1, {srdr(SWS)}, s{sT0} offen offset:{256*j}")
        A(f"buffer_store_dwordx4 {v(TMP+10*j+4,4)}, v1, {srdr(SWS)}, s{sT0} offen offset:{1024+256*j}")
        A(f"buffer_store_dwordx2 {v(TMP+10*j+8,2)}, v3, {srdr(SWS)}, s{sT0} offen offset:{2048+128*j}")
    A(f"s_branch {L('ploop')}")
    A.label(L("kvepi"))
    KP = ACC_P
    for i in range(20):
        A(f"v_cvt_pk_bf16_f32 v{KP+i}, v{ACC_A+2*i}, v{ACC_A+2*i+1}")
    A(f"v_mov_b32 v{KP+20}, 0")
    A(f"v_mov_b32 v{KP+21}, 0")
    common_lane()
    A("v_mul_u32_u24 v7, 1920, v3")
    A(f"v_add_u32 v7, {PHI}, v7")
    A(f"v_mov_b32 v5, {PZERO}")
    A("v_cmp_eq_u32 vcc, v1, v3")
    A("v_cndmask_b32 v7, v5, v7, vcc")
    A("v_mul_u32_u24 v5, 40, v2")
    A("v_add_u32 v7, v7, v5")
    A("v_lshl_add_u32 v6, v4, 3, v7")
    A("v_add_u32 v7, 32, v7")
    PA = TMP
    n = 0
    for sg in range(2):
        for tau in range(2):
            for st in range(3):
                fr = aW + 4 * (n % 10); n += 1
                for rho in range(2):
                    A(f"ds_read_b64_tr_b16 {a(fr+2*rho,2)}, v{6+tau} offset:{sg*960+(8*st+4*rho)*40}")
                cin = "0" if st == 0 else v(PA + 32 * sg + 16 * tau, 16)
                A(f"v_mfma_f32_32x32x16_bf16 {v(PA+32*sg+16*tau,16)}, {a(fr,4)}, {v(KP+10*sg+4*st,4)}, {cin}")
    VP = ACC_A
    for i in range(40):
        A(f"v_mul_f32 v{ACC_A+40+i}, v{ACC_A+40+i}, v{vRS}")
    for sg in range(2):
        for i in range(10):
            A(f"v_cvt_pk_bf16_f32 v{VP+12*sg+i}, v{ACC_A+40+20*sg+2*i}, v{ACC_A+41+20*sg+2*i}")
        A(f"v_mov_b32 v{VP+12*sg+10}, 0x3f80")
        A(f"v_mov_b32 v{VP+12*sg+11}, 0")
    A("v_and_b32 v1, 31, v0")
    A(f"s_lshl_b32 s{sT0}, s{sWAVE}, 5")
    A(f"v_add_u32 v1, s{sT0}, v1")
    A("v_lshrrev_b32 v2, 5, v0")
    A("v_mul_u32_u24 v3, 80, v1")
    A("v_mul_u32_u24 v4, 20480, v2")
    A(f"v_add_u32 v3, v3, v4")
    A(f"v_add_u32 v3, {PHIK}, v3")
    A("v_mul_u32_u24 v4, 48, v1")
    A("v_mul_u32_u24 v5, 12288, v2")
    A(f"v_add_u32 v4, v4, v5")
    A(f"v_add_u32 v4, {VIM}, v4")
    A("s_barrier")
    for sg in range(2):
        for i in range(3):
            A(f"ds_write_b128 v4, {v(VP+12*sg+4*i,4)} offset:{6144*sg+16*i}")
    EP = ACC_A + 40
    PK = ACC_P
    for sg in range(2):
        p = lambda i: PA + 32 * sg + i
        A(f"v_max3_f32 v1, v{p(0)}, v{p(1)}, v{p(2)}")
        A(f"v_min3_f32 v2, v{p(0)}, v{p(1)}, v{p(2)}")
        for i in range(3, 19, 2):
            A(f"v_max3_f32 v1, v1, v{p(i)}, v{p(i+1)}")
            A(f"v_min3_f32 v2, v2, v{p(i)}, v{p(i+1)}")
        A(f"v_max_f32 v1, v1, v{p(19)}")
        A(f"v_min_f32 v2, v2, v{p(19)}")
        A(f"v_mul_f32 v1, v1, v{vS1}")
        A(f"v_mul_f32 v2, v2, v{vS1}")
        for i in range(20):
            A(f"v_fma_f32 v{EP+i}, v{p(i)}, v{vS1}, -v1")
            A(f"v_fma_f32 v{EP+20+i}, -v{p(i)}, v{vS1}, v2")
        for i in range(40):
            A(f"v_exp_f32 v{EP+i}, v{EP+i}")
        A(f"v_add_f32 v1, v{EP}, v{EP+1}")
        A(f"v_add_f32 v2, v{EP+20}, v{EP+21}")
        for i in range(2, 20):
            A(f"v_add_f32 v1, v1, v{EP+i}")
            A(f"v_add_f32 v2, v2, v{EP+20+i}")
        A("v_rcp_f32 v1, v1")
        A("v_rcp_f32 v2, v2")
        for i in range(40):
            A(f"v_mul_f32 v{EP+i}, v{EP+i}, v{1 + i // 20}")
        for i in range(20):
            A(f"v_cvt_pk_bf16_f32 v{PK+i}, v{EP+2*i}, v{EP+2*i+1}")
        for i in range(5):
            A(f"ds_write_b128 v3, {v(PK+4*i,4)} offset:{10240*sg+16*i}")
    A("v_lshrrev_b32 v1, 5, v0")
    A("v_bfe_u32 v2, v0, 2, 2")
    A("v_lshlrev_b32 v2, 2, v2")
    A("v_lshl_add_u32 v2, v1, 1, v2")
    A("v_and_b32 v3, 3, v0")
    A("v_bfe_u32 v4, v0, 4, 1")
    A("v_lshl_add_u32 v3, v4, 2, v3")
    A(f"s_mul_i32 s{sT0}, s{sWAVE}, 10240")
    A(f"s_add_u32 s{sT0}, s{sT0}, {PHIK}")
    A("v_mul_u32_u24 v4, 80, v2")
    A(f"v_add_u32 v4, s{sT0}, v4")
    A("v_lshl_add_u32 v5, v3, 3, v4")
    A("v_and_b32 v6, 1, v3")
    A("v_lshl_add_u32 v6, v6, 3, v4")
    A("v_add_u32 v6, 64, v6")
    A(f"s_mul_i32 s{sT0}, s{sWAVE}, 6144")
    A(f"s_add_u32 s{sT0}, s{sT0}, {VIM}")
    A("v_mul_u32_u24 v4, 48, v2")
    A(f"v_add_u32 v4, s{sT0}, v4")
    A("v_min_u32 v7, 5, v3")
    A("v_lshl_add_u32 v7, v7, 3, v4")
    A.wait(lgkm="all")
    A("s_barrier")
    KVA = TMP
    for st in range(8):
        fr = aW + 12 * (st % 3)
        for rho in range(2):
            A(f"ds_read_b64_tr_b16 {a(fr+2*rho,2)}, v5 offset:{(16*st+rho)*80}")
            A(f"ds_read_b64_tr_b16 {a(fr+4+2*rho,2)}, v6 offset:{(16*st+rho)*80}")
            A(f"ds_read_b64_tr_b16 {a(fr+8+2*rho,2)}, v7 offset:{(16*st+rho)*48}")
        for tau in range(2):
            cin = "0" if st == 0 else v(KVA + 16 * tau, 16)
            A(f"v_mfma_f32_32x32x16_bf16 {v(KVA+16*tau,16)}, {a(fr+4*tau,4)}, {a(fr+8,4)}, {cin}")
    A("v_and_b32 v1, 31, v0")
    A("v_lshrrev_b32 v2, 5, v0")
    A("v_mul_u32_u24 v2, 384, v2")
    A("v_lshl_add_u32 v2, v1, 2, v2")
    A(f"s_lshl_b32 s{sT0}, s{sU}, 2")
    A(f"s_add_u32 s{sT0}, s{sT0}, s{sWAVE}")
    A(f"s_mul_i32 s{sT0}, s{sT0}, 3840")
    A(f"s_add_u32 s{sT0}, s{sT0}, {KV_OFF}")
    A("v_cmp_gt_u32 vcc, 21, v1")
    A("s_and_saveexec_b64 s[68:69], vcc")
    for r in range(20):
        f = 8 * (r >> 2) + (r & 3)
        A(f"buffer_atomic_add_f32 v{KVA+r}, v2, {srdr(SWS)}, s{sT0} offen offset:{f*96}")
    A("s_mov_b64 exec, s[68:69]")
    A(f"s_branch {L('ploop')}")
    A.label(L("hfirst"))
    pair_corr_loads(A)
    emit(A, x_dma(2))
    emit(A, pair_dma(1, False))
    emit(A, x_dma(3))
    emit(A, pair_dma(2, False))
    stamp(A, 2)
    unit(A, "pair", True, ACC_P)
    stamp(A, 5)
    stats_frag(A)
    A(f"s_branch {L('ptail')}")
    A.label(L("ploop"))
    stamp(A, 6)
    pair_corr_loads(A)
    unit(A, "pair", False, ACC_P)
    A.label(L("ptail"))
    stamp(A, 7)
    pair_tail(A)
    A(f"s_add_u32 s{sPAIR}, s{sPAIR}, 1")
    A(f"s_sub_u32 s{sNP}, s{sNP}, 1")
    A(f"s_mov_b32 s{sPC}, s{sPN}")
    A(f"s_add_u32 s{sPN}, s{sPC}, 128")
    A(f"s_cmp_eq_u32 s{sNP}, 1")
    A(f"s_cselect_b32 s{sPN}, {hex(OOB)}, s{sPN}")
    A(f"s_cmp_lg_u32 s{sNP}, 0")
    A(f"s_cbranch_scc1 {L('ploop')}")
    stamp(A, 8)
    prof_flush(A, 1, SWS, sWAVE)
    A.label(L("end"))
    A("s_endpgm")
    return dict(name=name, ins=render(finalize(A)), grid=256, block=256, lds=LDS1, vgpr=512, accum=256)

if __name__ == "__main__":
    from k0 import gen_k0
    for P in range(320): assert (P * 3277) >> 16 == P // 20
    for P in range(20): assert (P * 13108) >> 16 == P // 5
    open("k1_test.s", "w").write(build_file([gen_k0(), gen_k1(MAIN)]))
```

```python
from common import *

RED = 0; RPITCH = 336; RWAVE = 64 * RPITCH
PHI = 4 * RWAVE
PZERO = PHI + 3840
KVI = PZERO + 1920
LDS2 = KVI + 7680

SX, SOUT, SWS, SPH, SDB = 24, 28, 32, 36, 40
sWAVE = 3; sR = 44; sC = 45; sA = 46; sW = 47; sT0 = 48; sT1 = 49; sT2 = 50; sAB = 51; sCNT = 52; sXO = 53
vA = 8
vW = 12
vXO = 14
vRA = 19
vXR = 24
vPOLL = 34
ACC = 64
T = 144
NB = 6

def srdr(n): return f"s[{n}:{n+3}]"

def loads(A, n, part="both", sc=""):
    b = 36 * (n % NB)
    if part in ("both", "w"):
        for nt in range(5):
            A(f"buffer_load_dwordx4 {a(b+4*nt,4)}, v{vW+(nt>>2)}, {srdr(SWS)}, s{sW} offen offset:{1024*(nt&3)}")
    if part in ("both", "a"):
        for k in range(4):
            A(f"buffer_load_dwordx4 {a(b+20+4*k,4)}, v{vA+k}, {srdr(SWS)}, s{sA} offen{sc}")

def advance(A, n):
    if n == 0: return
    if n < 13:
        A(f"s_add_u32 s{sA}, s{sA}, 4096"); A(f"s_add_u32 s{sW}, s{sW}, 20480")
    elif n == 13:
        A(f"s_add_u32 s{sA}, s{sA}, 4096"); A(f"s_add_u32 s{sW}, s{sW}, 20480")
        A(f"s_cmp_lt_u32 s{sWAVE}, 2")
        A(f"s_cselect_b32 s{sA}, s{sA}, {hex(OOB)}")
        A(f"s_cselect_b32 s{sW}, s{sW}, {hex(OOB)}")
    elif n == 14:
        A(f"s_mul_i32 s{sW}, s{sC}, 74")
        A(f"s_mul_i32 s{sT0}, s{sWAVE}, 5")
        A(f"s_add_u32 s{sW}, s{sW}, s{sT0}")
        A(f"s_add_u32 s{sW}, s{sW}, 54")
        A(f"s_mul_i32 s{sW}, s{sW}, 5120")
    else:
        A(f"s_add_u32 s{sW}, s{sW}, 5120")

def consume(A, n):
    b = 36 * (n % NB)
    for k in range(4):
        for nt in range(5):
            d = v(ACC + 4 * (5 * k + nt), 4)
            A(f"v_mfma_f32_16x16x32_bf16 {d}, {a(b+4*nt,4)}, {a(b+20+4*k,4)}, {'0' if n == 0 else d}")

def gen_k2(name="k2_kernel"):
    A = Asm()
    L = lambda x: f"{name}_{x}"
    A("s_cmp_ge_u32 s2, 256")
    A(f"s_cbranch_scc1 {L('end')}")
    stamp(A, 0, True); stamp(A, 1)
    A("s_load_dwordx2 s[4:5], s[0:1], 0")
    A("s_load_dwordx2 s[8:9], s[0:1], 16")
    A("s_load_dwordx4 s[12:15], s[0:1], 64")
    A("s_load_dwordx2 s[20:21], s[0:1], 80")
    A("v_lshrrev_b32 v1, 6, v0")
    A("v_mov_b32 v7, v0")
    A("v_and_b32 v0, 63, v0")
    A(f"v_readfirstlane_b32 s{sWAVE}, v1")
    A(f"s_and_b32 s{sT0}, s2, 7")
    A(f"s_lshr_b32 s{sT1}, s2, 3")
    A(f"s_lshr_b32 s{sR}, s{sT0}, 1")
    A(f"s_lshl_b32 s{sR}, s{sR}, 3")
    A(f"s_lshr_b32 s{sT2}, s{sT1}, 2")
    A(f"s_add_u32 s{sR}, s{sR}, s{sT2}")
    A(f"s_and_b32 s{sC}, s{sT0}, 1")
    A(f"s_lshl_b32 s{sC}, s{sC}, 2")
    A(f"s_and_b32 s{sT2}, s{sT1}, 3")
    A(f"s_add_u32 s{sC}, s{sC}, s{sT2}")
    A(f"v_lshlrev_b32 v{vW}, 4, v0")
    A(f"v_add_u32 v{vW+1}, 4096, v{vW}")
    A(f"v_mov_b32 v{vA}, v{vW}")
    for k in range(1, 4):
        A(f"v_add_u32 v{vA+k}, {ACT_BLK*k}, v{vW}")
    A(f"s_mul_i32 s{sAB}, s{sR}, {4*ACT_BLK}")
    A(f"s_add_u32 s{sAB}, s{sAB}, {ACT_OFF}")
    A(f"s_lshl_b32 s{sT0}, s{sWAVE}, 10")
    A(f"s_add_u32 s{sA}, s{sAB}, s{sT0}")
    A(f"s_mul_i32 s{sW}, s{sC}, 74")
    A(f"s_add_u32 s{sW}, s{sW}, s{sWAVE}")
    A(f"s_mul_i32 s{sW}, s{sW}, 5120")
    A("s_waitcnt lgkmcnt(0)")
    srd(A, SWS, 20, WS_SIZE)
    srd(A, SPH, 8, 32 * 800)
    srd(A, SX, 4, 2048 * 1280)
    srd(A, SOUT, 12, 2048 * 1280)
    srd(A, SDB, 14, 256)
    QR = T
    ST = T + 12
    PH = T + 16
    KVR = T + 20
    A(f"s_lshl_b32 s{sT0}, s{sR}, 2")
    A(f"s_add_u32 s{sT0}, s{sT0}, s{sWAVE}")
    A(f"s_lshl_b32 s{sT1}, s{sT0}, 3")
    A(f"s_add_u32 s{sT1}, s{sT1}, s{sC}")
    A(f"s_mul_i32 s{sT1}, s{sT1}, 2560")
    A(f"s_add_u32 s{sT1}, s{sT1}, {QB_OFF}")
    A("v_lshlrev_b32 v1, 3, v0")
    A(f"buffer_load_dwordx4 {v(QR,4)}, v{vW}, {srdr(SWS)}, s{sT1} offen")
    A(f"buffer_load_dwordx4 {v(QR+4,4)}, v{vW}, {srdr(SWS)}, s{sT1} offen offset:1024")
    A(f"buffer_load_dwordx2 {v(QR+8,2)}, v1, {srdr(SWS)}, s{sT1} offen offset:2048")
    A(f"s_lshl_b32 s{sT1}, s{sT0}, 7")
    A(f"s_add_u32 s{sT1}, s{sT1}, {ST_OFF}")
    A("v_and_b32 v2, 15, v0")
    A("v_lshlrev_b32 v2, 3, v2")
    A(f"buffer_load_dwordx2 {v(ST,2)}, v2, {srdr(SWS)}, s{sT1} offen")
    A(f"s_lshl_b32 s{sT1}, s{sC}, 2")
    A(f"s_add_u32 s{sT1}, s{sT1}, s{sWAVE}")
    A(f"s_mul_i32 s{sT1}, s{sT1}, 800")
    A(f"v_mov_b32 v2, {hex(OOB)}")
    A("v_cmp_gt_u32 vcc, 50, v0")
    A(f"v_cndmask_b32 v2, v2, v{vW}, vcc")
    A(f"buffer_load_dwordx4 {v(PH,4)}, v2, {srdr(SPH)}, s{sT1} offen")
    A(f"s_mul_i32 s{sT1}, s{sC}, {4*3840}")
    A(f"s_add_u32 s{sT1}, s{sT1}, {KV_OFF}")
    A("v_lshlrev_b32 v2, 4, v7")
    A("v_add_u32 v3, 4096, v2")
    A("v_add_u32 v4, 8192, v2")
    A("v_add_u32 v5, 12288, v2")
    for i in range(4):
        A(f"buffer_load_dwordx4 {v(KVR+4*i,4)}, v{2+i}, {srdr(SWS)}, s{sT1} offen")
    for n in range(5):
        advance(A, n); loads(A, n)
    stamp(A, 2)
    A(f"s_mul_i32 s{sT0}, s{sWAVE}, 960")
    A(f"s_add_u32 s{sT0}, s{sT0}, {PHI}")
    A(f"v_add_u32 v2, s{sT0}, v{vW}")
    A(f"s_mul_i32 s{sT0}, s{sWAVE}, 480")
    A(f"s_add_u32 s{sT0}, s{sT0}, {PZERO}")
    A(f"v_add_u32 v3, s{sT0}, v1")
    A("v_mov_b32 v4, 0")
    A("v_mov_b32 v5, 0")
    A(f"v_mov_b32 v{QR+10}, 0")
    A(f"v_mov_b32 v{QR+11}, 0")
    A("v_cmp_gt_u32 vcc, 60, v0")
    A("s_and_saveexec_b64 s[54:55], vcc")
    A(f"ds_write_b128 v2, {v(PH,4)}")
    A("ds_write_b64 v3, v[4:5]")
    A("s_mov_b64 exec, s[54:55]")
    A("v_lshlrev_b32 v2, 3, v7")
    A(f"v_add_u32 v2, {KVI}, v2")
    for i in range(4):
        A(f"v_cvt_pk_bf16_f32 v{KVR+4*i}, v{KVR+4*i}, v{KVR+4*i+1}")
        A(f"v_cvt_pk_bf16_f32 v{KVR+4*i+1}, v{KVR+4*i+2}, v{KVR+4*i+3}")
        if i == 3:
            A("v_cmp_gt_u32 vcc, 192, v7")
            A("s_and_saveexec_b64 s[54:55], vcc")
        A(f"ds_write_b64 v2, {v(KVR+4*i,2)} offset:{2048*i}")
        if i == 3:
            A("s_mov_b64 exec, s[54:55]")
    advance(A, 5); loads(A, 5)
    A("v_lshrrev_b32 v1, 4, v0")
    A("v_and_b32 v2, 3, v0")
    A("v_bfe_u32 v3, v0, 2, 2")
    A("v_cmp_eq_u32 vcc, v1, v2")
    A("v_mul_u32_u24 v4, 960, v1")
    A(f"v_add_u32 v4, {PHI}, v4")
    A("v_mul_u32_u24 v5, 1920, v1")
    A(f"v_add_u32 v5, {KVI}, v5")
    A(f"v_mov_b32 v6, {PZERO}")
    A("v_cndmask_b32 v4, v6, v4, vcc")
    A("v_cndmask_b32 v5, v6, v5, vcc")
    A("v_mul_u32_u24 v6, 40, v3")
    A("v_add_u32 v4, v4, v6")
    A("v_mul_u32_u24 v6, 48, v3")
    A("v_add_u32 v5, v5, v6")
    S1 = ST
    A(f"v_rsq_f32 v{S1}, v{ST+1}")
    A(f"v_mul_f32 v{S1}, {hex(LOG2E)}, v{S1}")
    A.wait(lgkm="all")
    A("s_barrier")
    stamp(A, 3)
    PA = T + 16
    FR = T + 80
    n = 0
    for st in range(3):
        for ch in range(5):
            fr = FR + 4 * (n % 8); n += 1
            for rho in range(2):
                A(f"ds_read_b64_tr_b16 {v(fr+2*rho,2)}, v4 offset:{(8*st+4*rho)*40+ch*8}")
            A(f"v_mfma_f32_16x16x32_bf16 {v(PA+4*ch,4)}, {v(fr,4)}, {v(QR+4*st,4)}, {'0' if st == 0 else v(PA+4*ch,4)}")
    EP = T + 36
    PK = T + 16
    p = lambda i: PA + i
    A(f"v_max3_f32 v1, v{p(0)}, v{p(1)}, v{p(2)}")
    A(f"v_min3_f32 v2, v{p(0)}, v{p(1)}, v{p(2)}")
    for i in range(3, 19, 2):
        A(f"v_max3_f32 v1, v1, v{p(i)}, v{p(i+1)}")
        A(f"v_min3_f32 v2, v2, v{p(i)}, v{p(i+1)}")
    A(f"v_max_f32 v1, v1, v{p(19)}")
    A(f"v_min_f32 v2, v2, v{p(19)}")
    A(f"v_mul_f32 v1, v1, v{S1}")
    A(f"v_mul_f32 v2, v2, v{S1}")
    for i in range(20):
        A(f"v_fma_f32 v{EP+i}, v{p(i)}, v{S1}, -v1")
        A(f"v_fma_f32 v{EP+20+i}, -v{p(i)}, v{S1}, v2")
    for i in range(40):
        A(f"v_exp_f32 v{EP+i}, v{EP+i}")
    A(f"v_add_f32 v1, v{EP}, v{EP+1}")
    A(f"v_add_f32 v2, v{EP+20}, v{EP+21}")
    for i in range(2, 20):
        A(f"v_add_f32 v1, v1, v{EP+i}")
        A(f"v_add_f32 v2, v2, v{EP+20+i}")
    A("v_rcp_f32 v1, v1")
    A("v_rcp_f32 v2, v2")
    for i in range(40):
        A(f"v_mul_f32 v{EP+i}, v{EP+i}, v{1 + i // 20}")
    for i in range(20):
        A(f"v_cvt_pk_bf16_f32 v{PK+i}, v{EP+2*i}, v{EP+2*i+1}")
    NU = T + 36
    n = 0
    for st in range(5):
        for ch in range(6):
            fr = FR + 4 * (n % 8); n += 1
            for rho in range(2):
                A(f"ds_read_b64_tr_b16 {v(fr+2*rho,2)}, v5 offset:{(8*st+4*rho)*48+ch*8}")
            A(f"v_mfma_f32_16x16x32_bf16 {v(NU+4*ch,4)}, {v(fr,4)}, {v(PK+4*st,4)}, {'0' if st == 0 else v(NU+4*ch,4)}")
    A(f"s_lshr_b32 s{sT0}, s{sC}, 1")
    A(f"s_mul_i32 s{sT0}, s{sT0}, 5")
    A(f"s_add_u32 s{sT0}, s{sT0}, 54")
    A(f"s_lshl_b32 s{sT0}, s{sT0}, 10")
    A(f"s_mul_i32 s{sT1}, s{sWAVE}, {ACT_BLK}")
    A(f"s_add_u32 s{sT0}, s{sT0}, s{sT1}")
    A(f"s_add_u32 s{sT0}, s{sT0}, s{sAB}")
    A(f"s_and_b32 s{sT1}, s{sC}, 1")
    A(f"s_lshl_b32 s{sT2}, s{sT1}, 11")
    A(f"s_add_u32 s{sT2}, s{sT2}, s{sT0}")
    A(f"s_lshl_b32 s{sT1}, s{sT1}, 9")
    A(f"s_add_u32 s{sT1}, s{sT1}, s{sT0}")
    A(f"s_add_u32 s{sT1}, s{sT1}, 4096")
    A("v_lshrrev_b32 v3, 5, v0")
    A("v_lshlrev_b32 v3, 8, v3")
    A("v_and_b32 v4, 15, v0")
    A("v_lshl_add_u32 v3, v4, 4, v3")
    A("v_bfe_u32 v4, v0, 4, 1")
    A("v_lshl_add_u32 v3, v4, 3, v3")
    A(f"v_add_f32 v1, 0x358637bd, v{NU+20}")
    A("v_rcp_f32 v1, v1")
    A(f"v_mul_f32 v1, {hex(LOG2E)}, v1")
    for i in range(20):
        A(f"v_mul_f32 v{NU+i}, v{NU+i}, v1")
    OP = T
    for i in range(10):
        A(f"v_cvt_pk_bf16_f32 v{OP+i}, v{NU+2*i}, v{NU+2*i+1}")
    A(f"buffer_store_dwordx4 {v(OP,4)}, v{vW}, {srdr(SWS)}, s{sT2} offen sc1", "ost")
    A(f"buffer_store_dwordx4 {v(OP+4,4)}, v{vW}, {srdr(SWS)}, s{sT2} offen offset:1024 sc1", "ost")
    A(f"buffer_store_dwordx2 {v(OP+8,2)}, v3, {srdr(SWS)}, s{sT1} offen sc1", "ost")
    for j in range(5):
        A(f"v_add_u32 v1, {256*j}, v7")
        A("v_mul_u32_u24 v2, 3277, v1")
        A("v_lshrrev_b32 v2, 16, v2")
        A("v_mul_u32_u24 v3, 20, v2")
        A("v_sub_u32 v3, v1, v3")
        A("v_mul_u32_u24 v4, 1280, v2")
        A(f"v_lshl_add_u32 v{vXO+j}, v3, 3, v4")
        A(f"v_mul_u32_u24 v4, {RPITCH}, v2")
        A(f"v_lshl_add_u32 v{vRA+j}, v3, 4, v4")
    A(f"s_mul_i32 s{sXO}, s{sR}, {64*1280}")
    A(f"s_mul_i32 s{sT0}, s{sC}, 160")
    A(f"s_add_u32 s{sXO}, s{sXO}, s{sT0}")
    A(f"s_lshl_b32 s{sCNT}, s{sR}, 2")
    A(f"v_mov_b32 v{vPOLL+1}, 0")
    A(f"v_mov_b32 v{vPOLL+2}, 1")
    stamp(A, 4)
    for n in range(19):
        if n == 13:
            A(f"s_mov_b32 s{sT1}, 0")
            A(f"v_readfirstlane_b32 s{sT0}, v{vPOLL}")
            A(f"s_cmp_eq_u32 s{sT0}, 8")
            A(f"s_cbranch_scc1 {L('go')}")
            A.label(L("spin"))
            A(f"buffer_load_dword v{vPOLL}, v{vPOLL+1}, {srdr(SDB)}, s{sCNT} offen sc1")
            A(f"s_add_u32 s{sT1}, s{sT1}, 1")
            A(f"s_cmp_gt_u32 s{sT1}, 0x40000")
            A(f"s_cbranch_scc1 {L('go')}")
            A(f"v_readfirstlane_b32 s{sT0}, v{vPOLL}")
            A(f"s_cmp_eq_u32 s{sT0}, 8")
            A(f"s_cbranch_scc0 {L('spin')}")
            A.label(L("go"))
            A(f"s_mul_i32 s{sA}, s{sWAVE}, 5")
            A(f"s_add_u32 s{sA}, s{sA}, 54")
            A(f"s_lshl_b32 s{sA}, s{sA}, 10")
            A(f"s_add_u32 s{sA}, s{sA}, s{sAB}")
            for m in range(14, 19):
                loads(A, m, "a", " sc1")
                if m < 18: A(f"s_add_u32 s{sA}, s{sA}, 1024")
            for j in range(5):
                A(f"buffer_load_dwordx2 {v(vXR+2*j,2)}, v{vXO+j}, {srdr(SX)}, s{sXO} offen")
        if n == 13: stamp(A, 8)
        consume(A, n)
        if n == 0: stamp(A, 5)
        if n == 6: stamp(A, 6)
        if n == 12: stamp(A, 7)
        m = n + NB
        if m < 14:
            advance(A, m); loads(A, m)
            if m == 13:
                A(f"buffer_load_dword v{vPOLL}, v{vPOLL+1}, {srdr(SDB)}, s{sCNT} offen sc1")
        elif m < 19:
            advance(A, m); loads(A, m, "w")
        if n == 1:
            A.wait(vm="ost")
            A("s_barrier")
            A(f"s_cmp_eq_u32 s{sWAVE}, 0")
            A(f"s_cbranch_scc0 {L('nosig')}")
            A("s_mov_b64 exec, 1")
            A(f"buffer_atomic_add v{vPOLL+2}, v{vPOLL+1}, {srdr(SDB)}, s{sCNT} offen sc1")
            A("s_mov_b64 exec, -1")
            A.label(L("nosig"))
    stamp(A, 9)
    A("v_and_b32 v1, 15, v0")
    A(f"v_mul_u32_u24 v1, {RPITCH}, v1")
    A("v_lshrrev_b32 v2, 4, v0")
    A("v_lshl_add_u32 v1, v2, 4, v1")
    A(f"s_mul_i32 s{sT0}, s{sWAVE}, {RWAVE}")
    A(f"v_add_u32 v1, s{sT0}, v1")
    for k in range(4):
        for nt in range(5):
            A(f"ds_write_b128 v1, {v(ACC+4*(5*k+nt),4)} offset:{16*k*RPITCH+64*nt}")
    A.wait(lgkm="all")
    A("s_barrier")
    for j in range(5):
        for w in range(3):
            A(f"ds_read_b128 {v(T+16*j+4*w,4)}, v{vRA+j} offset:{RWAVE*w}")
        A(f"v_add_u32 v{vRA+j}, {RWAVE*3}, v{vRA+j}")
        A(f"ds_read_b128 {v(T+16*j+12,4)}, v{vRA+j}")
    A(f"s_mov_b32 s{sT0}, {hex(LN2)}")
    for j in range(5):
        b = T + 16 * j
        for e in range(4):
            A(f"v_add_f32 v{b+e}, v{b+e}, v{b+4+e}")
            A(f"v_add_f32 v{b+8+e}, v{b+8+e}, v{b+12+e}")
        for e in range(4):
            A(f"v_add_f32 v{b+e}, v{b+e}, v{b+8+e}")
        for h in range(2):
            A(f"v_lshlrev_b32 v{b+4+2*h}, 16, v{vXR+2*j+h}")
            A(f"v_and_b32 v{b+5+2*h}, 0xffff0000, v{vXR+2*j+h}")
        for e in range(4):
            A(f"v_fma_f32 v{b+e}, v{b+e}, s{sT0}, v{b+4+e}")
        A(f"v_cvt_pk_bf16_f32 v{b}, v{b}, v{b+1}")
        A(f"v_cvt_pk_bf16_f32 v{b+1}, v{b+2}, v{b+3}")
        A(f"buffer_store_dwordx2 {v(b,2)}, v{vXO+j}, {srdr(SOUT)}, s{sXO} offen")
    stamp(A, 10)
    prof_flush(A, 2, SWS, sWAVE)
    A.label(L("end"))
    A("s_endpgm")
    return dict(name=name, ins=render(finalize(A)), grid=256, block=256, lds=LDS2, vgpr=512, accum=256)

if __name__ == "__main__":
    from k0 import gen_k0
    from k1 import gen_k1
    for P in range(1280): assert (P * 3277) >> 16 == P // 20
    src = build_file([gen_k0(), gen_k1(), gen_k2(MAIN)])
    open("k2_test.s", "w").write(src)
```

```python
from common import *
from k0 import gen_k0
from k1 import gen_k1
from k2 import gen_k2
k0, k1, k2 = gen_k0(), gen_k1(), gen_k2(MAIN)
def pad(n, loop):
    body = "".join(f"  v_fma_f32 v{20+i%16}, v{40+i%8}, v{50+i%8}, v{60+i%4}\n" for i in range(n))
    return f"  s_mov_b32 s30, {loop}\npadl:\n" + body + "  s_sub_u32 s30, s30, 1\n  s_cmp_lg_u32 s30, 0\n  s_cbranch_scc1 padl\n  s_endpgm\n"
e1 = dict(name="pad_kernel", ins=pad(4096, 1), grid=256, block=256, lds=0, vgpr=128, accum=128)
e2 = dict(name="pad_kernel", ins=pad(256, 16), grid=256, block=256, lds=0, vgpr=128, accum=128)
e3 = dict(name="pad_kernel", ins="  s_endpgm\n", grid=256, block=256, lds=0, vgpr=128, accum=128)
open("v_a.s", "w").write(build_file([k0, k1, k2, e1]))
open("v_b.s", "w").write(build_file([k0, k1, k2, e2]))
open("v_c.s", "w").write(build_file([k0, k1, k2, e3]))
```

```python
from common import *
from k0 import gen_k0
from k1 import gen_k1
from k2 import gen_k2
k0, k1, k2 = gen_k0(), gen_k1(), gen_k2(MAIN)
def pad(n, pre, wait):
    body = "".join(f"  v_fma_f32 v{20+i%16}, v{40+i%8}, v{50+i%8}, v{60+i%4}\n" for i in range(n))
    p = ""
    if pre:
        p += "  s_getpc_b64 s[4:5]\n  v_lshlrev_b32 v2, 7, v0\n  v_mov_b32 v3, s5\n  v_add_co_u32 v2, vcc, s4, v2\n  v_addc_co_u32 v3, vcc, 0, v3, vcc\n"
        p += "  global_load_dword v4, v[2:3], off\n"
        if wait: p += "  s_waitcnt vmcnt(0)\n"
    return p + body + "  s_endpgm\n"
e1 = dict(name="pad_kernel", ins=pad(4096, 0, 0), grid=256, block=256, lds=0, vgpr=128, accum=128)
e2 = dict(name="pad_kernel", ins=pad(4096, 1, 0), grid=256, block=256, lds=0, vgpr=128, accum=128)
e3 = dict(name="pad_kernel", ins=pad(4096, 1, 1), grid=256, block=256, lds=0, vgpr=128, accum=128)
open("v_a.s", "w").write(build_file([k0, k1, k2, e1]))
open("v_b.s", "w").write(build_file([k0, k1, k2, e2]))
open("v_c.s", "w").write(build_file([k0, k1, k2, e3]))
```

```python
import re

TRANS = ("v_exp_f32", "v_log_f32", "v_rcp_f32", "v_rsq_f32", "v_sqrt_f32", "v_sin_f32", "v_cos_f32",
         "v_rcp_iflag_f32")


def R(kind, lo, n=1):
    if n == 1:
        return f"{kind}{lo}"
    return f"{kind}[{lo}:{lo + n - 1}]"


def v(lo, n=1): return R("v", lo, n)
def a(lo, n=1): return R("a", lo, n)
def s(lo, n=1): return R("s", lo, n)


_reg_re = re.compile(r"^(-|abs\(|-abs\(|\|)?([vas])(\d+|\[(\d+):(\d+)\])\)?\|?$")


def regs_of(op):
    op = op.strip()
    if op in ("vcc", "vcc_lo", "vcc_hi"):
        return {("vcc", 0)}
    if op in ("exec", "exec_lo", "exec_hi"):
        return {("exec", 0)}
    if op == "m0":
        return {("m0", 0)}
    m = _reg_re.match(op)
    if not m:
        return set()
    k = m.group(2)
    if m.group(4) is not None:
        return {(k, i) for i in range(int(m.group(4)), int(m.group(5)) + 1)}
    return {(k, int(m.group(3)))}


class I:
    __slots__ = ("text", "op", "ops", "mods", "rd", "wr", "cls", "tag", "waitfor", "passes", "srcC", "cost",
                 "label", "target", "manual", "glue")

    def __init__(self, text, tag=None):
        self.text = text
        self.tag = tag
        self.waitfor = None
        self.label = None
        self.target = None
        self.manual = False
        self.glue = False
        self.passes = 0
        self.srcC = set()
        t = text.split(";")[0].strip()
        if t.endswith(":"):
            self.label = t[:-1]
            self.op = ""; self.ops = []; self.mods = []; self.rd = set(); self.wr = set(); self.cls = "label"
            self.cost = 0
            return
        if t == "" or t.startswith("."):
            self.op = ""; self.ops = []; self.mods = []; self.rd = set(); self.wr = set(); self.cls = "none"
            self.cost = 0
            return
        sp = t.split(None, 1)
        op = sp[0]
        rest = sp[1] if len(sp) > 1 else ""
        parts = [p.strip() for p in re.split(r",(?![^\[]*\])", rest)] if rest else []
        mods = []
        if parts:
            last = parts[-1].split()
            if len(last) > 1:
                parts[-1] = last[0]
                mods = last[1:]
        self.op = op.replace("_e32", "").replace("_e64", "")
        self.ops = parts
        self.mods = mods
        self.classify()

    def classify(self):
        op, ops, mods = self.op, self.ops, self.mods
        rd, wr = set(), set()
        cls = None
        cost = 1
        RS = lambda lst: set().union(*[regs_of(x) for x in lst]) if lst else set()
        if op.startswith("v_mfma"):
            cls = "mfma"
            wr = regs_of(ops[0]); rd = RS(ops[1:4]); self.srcC = regs_of(ops[3])
            self.passes = 8 if "32x32x16" in op or "32x32x8" in op else (2 if "4x4x4" in op else 4)
            rd |= {("exec", 0)}
        elif op.startswith("v_"):
            cls = "valu"
            if op.startswith("v_cmpx"):
                wr = regs_of(ops[0]) | {("exec", 0)}; rd = RS(ops[1:])
            elif op.startswith(("v_add_co", "v_sub_co", "v_addc_co", "v_subb_co", "v_subrev_co", "v_div_scale",
                                "v_mad_u64_u32")):
                wr = RS(ops[:2]); rd = RS(ops[2:])
            elif op.startswith(("v_permlane32_swap", "v_permlane16_swap", "v_swap")):
                wr = RS(ops[:2]); rd = RS(ops[:2])
            elif op.startswith(("v_fmac", "v_pk_fmac", "v_dot2c", "v_writelane")):
                wr = regs_of(ops[0]); rd = RS(ops)
            elif op == "v_nop":
                pass
            else:
                wr = regs_of(ops[0]); rd = RS(ops[1:])
                if any(m.startswith(("row_", "quad_perm", "wave_")) for m in mods) and "bound_ctrl:0" not in mods \
                        and "bound_ctrl:1" not in mods:
                    rd |= regs_of(ops[0])
                if any(m.startswith("dst_sel") for m in mods):
                    rd |= regs_of(ops[0])
            if op in TRANS:
                cost = 2
        elif op.startswith("ds_"):
            cls = "ds"
            if op.startswith(("ds_read", "ds_bpermute", "ds_permute", "ds_swizzle")):
                wr = regs_of(ops[0]); rd = RS(ops[1:])
            else:
                rd = RS(ops)
        elif op.startswith(("buffer_", "global_")):
            cls = "vmem"
            if op in ("buffer_wbl2", "buffer_inv"):
                pass
            elif "lds" in mods or "_lds_" in op:
                rd = RS(ops) | {("m0", 0)}
            elif "_load" in op:
                wr = regs_of(ops[0]); rd = RS(ops[1:])
            elif "_atomic" in op and "sc0" in mods:
                wr = regs_of(ops[0]); rd = RS(ops)
            else:
                rd = RS(ops)
        elif op.startswith(("s_load", "s_buffer_load", "s_memtime", "s_memrealtime")):
            cls = "smem"
            wr = regs_of(ops[0]); rd = RS(ops[1:])
        elif op.startswith("s_"):
            cls = "salu"
            if op.startswith(("s_branch", "s_cbranch")):
                self.target = ops[0]
                if "vcc" in op: rd = {("vcc", 0)}
                if "exec" in op: rd = {("exec", 0)}
            elif op.startswith(("s_cmp", "s_bitcmp")):
                rd = RS(ops)
            elif op in ("s_waitcnt", "s_barrier", "s_nop", "s_endpgm", "s_setprio", "s_sleep"):
                if op == "s_nop":
                    cost = int(ops[0], 0) + 1
            elif "saveexec" in op:
                wr = regs_of(ops[0]) | {("exec", 0)}; rd = RS(ops[1:]) | {("exec", 0)}
            elif op in ("s_addk_i32", "s_mulk_i32"):
                wr = regs_of(ops[0]); rd = regs_of(ops[0])
            else:
                wr = regs_of(ops[0]); rd = RS(ops[1:])
        else:
            raise ValueError("unknown instruction: " + self.text)
        self.rd, self.wr, self.cls, self.cost = rd, wr, cls, cost

    def states(self):
        if self.cls in ("label", "none"):
            return 0
        if self.op == "s_nop":
            return int(self.ops[0], 0) + 1
        return 1

    def __repr__(self):
        return self.text


class WaitTag(I):
    def __init__(self, vm=None, lgkm=None):
        I.__init__(self, "s_waitcnt vmcnt(0)")
        self.waitfor = (vm, lgkm)
        self.manual = True


class Asm:
    def __init__(self):
        self.ins = []

    def __call__(self, text, tag=None):
        for line in text.split("\n"):
            if line.strip() == "":
                continue
            self.ins.append(I(line.strip(), tag))
        return self

    def g(self, text, tag=None):
        n = len(self.ins)
        self(text, tag)
        for x in self.ins[n:]: x.glue = True
        return self

    def wait(self, vm=None, lgkm=None):
        self.ins.append(WaitTag(vm, lgkm))

    def extend(self, other):
        self.ins.extend(other.ins if isinstance(other, Asm) else other)

    def label(self, name):
        self.ins.append(I(name + ":"))


def _blocks(ins):
    starts = {0}
    lab = {}
    for i, x in enumerate(ins):
        if x.label:
            starts.add(i); lab[x.label] = i
        if x.target or x.op == "s_endpgm":
            starts.add(i + 1)
    st = sorted(k for k in starts if k < len(ins))
    blocks = [(st[j], st[j + 1] if j + 1 < len(st) else len(ins)) for j in range(len(st))]
    idx = {b[0]: j for j, b in enumerate(blocks)}
    succ = []
    for j, (b, e) in enumerate(blocks):
        last = None
        for k in range(e - 1, b - 1, -1):
            if ins[k].cls not in ("label", "none"):
                last = ins[k]; break
        sc = []
        if last is not None and last.op == "s_endpgm":
            pass
        elif last is not None and last.target:
            sc.append(idx[lab[last.target]])
            if last.op != "s_branch" and j + 1 < len(blocks):
                sc.append(j + 1)
        elif j + 1 < len(blocks):
            sc.append(j + 1)
        succ.append(sc)
    return blocks, succ


def insert_waits(ins):
    blocks, succ = _blocks(ins)
    need = {}

    def merge(A, B):
        out = dict(A)
        ch = False
        for k, x in B.items():
            if k not in out or x < out[k]:
                out[k] = x; ch = True
        return out, ch

    def run(bi, vm, lg):
        vm = dict(vm); lg = dict(lg)
        b, e = blocks[bi]
        for i in range(b, e):
            x = ins[i]
            if x.cls in ("label", "none"):
                continue
            wv, wl = None, None

            def req(d, keys, cur):
                for k in keys:
                    if k in d:
                        cur = d[k] if cur is None else min(cur, d[k])
                return cur
            if x.waitfor is not None:
                tv, tl = x.waitfor
                if tv == "all":
                    wv = 0
                elif tv is not None:
                    tv = tv if isinstance(tv, (list, tuple, set)) else [tv]
                    wv = req(vm, [("tag", t) for t in tv], None)
                if tl == "all":
                    wl = 0
                elif tl is not None:
                    tl = tl if isinstance(tl, (list, tuple, set)) else [tl]
                    wl = req(lg, [("tag", t) for t in tl], None)
            elif x.op == "s_waitcnt":
                m = re.search(r"vmcnt\((\d+)\)", x.text)
                if m:
                    n = int(m.group(1)); vm = {k: g for k, g in vm.items() if g < n}
                m = re.search(r"lgkmcnt\((\d+)\)", x.text)
                if m:
                    n = int(m.group(1)); lg = {k: g for k, g in lg.items() if g < n and (n == 0 or True)}
                    if n == 0: lg = {}
                continue
            else:
                rdk = x.rd
                wrk = x.wr
                wv = req(vm, rdk, None)
                wl = req(lg, rdk, None)
                if not (x.cls == "vmem"):
                    wv = req(vm, wrk, wv)
                if not (x.cls == "ds" and ("smem", 0) not in lg):
                    wl = req(lg, wrk, wl)
            if wl is not None and ("smem", 0) in lg:
                wl = 0
            if wv is not None: wv = min(wv, 63)
            if wl is not None: wl = min(wl, 15)
            old = need.get(i, [None, None])
            mn = lambda p, q: q if p is None else (p if q is None else min(p, q))
            cur = [mn(old[0], wv), mn(old[1], wl)]
            need[i] = cur
            if cur[0] is not None:
                vm = {k: g for k, g in vm.items() if g < cur[0]}
            if cur[1] is not None:
                lg = {k: g for k, g in lg.items() if g < cur[1]}
                if cur[1] == 0: lg = {}
            if x.waitfor is not None:
                continue
            if x.cls == "vmem":
                vm = {k: g + 1 for k, g in vm.items() if g < 70}
                for r in x.wr: vm[r] = 0
                vm[("tag", x.tag)] = 0
            elif x.cls == "ds":
                lg = {k: g + 1 for k, g in lg.items() if g < 40 or k == ("smem", 0)}
                for r in x.wr: lg[r] = 0
                lg[("tag", x.tag)] = 0
            elif x.cls == "smem":
                lg = {k: g + 1 for k, g in lg.items()}
                for r in x.wr: lg[r] = 0
                lg[("smem", 0)] = 0
        return vm, lg

    instate = {0: ({}, {})}
    work = [0]
    it = 0
    while work:
        it += 1
        assert it < 20000
        bi = work.pop(0)
        vm, lg = run(bi, *instate[bi])
        for sj in succ[bi]:
            if sj not in instate:
                instate[sj] = (vm, lg); work.append(sj)
            else:
                m1, c1 = merge(instate[sj][0], vm)
                m2, c2 = merge(instate[sj][1], lg)
                if c1 or c2:
                    instate[sj] = (m1, m2)
                    if sj not in work: work.append(sj)
    out = []
    for i, x in enumerate(ins):
        n = need.get(i, [None, None])
        if n[0] is not None or n[1] is not None:
            t = "s_waitcnt"
            if n[0] is not None: t += f" vmcnt({n[0]})"
            if n[1] is not None: t += f" lgkmcnt({n[1]})"
            out.append(I(t))
        if x.waitfor is None:
            out.append(x)
    return out


def _required(p, c):
    need = 0
    vg = lambda st: {r for r in st if r[0] in ("v", "a")}
    sg = lambda st: {r for r in st if r[0] in ("s", "vcc")}
    if p.cls == "mfma":
        P = p.passes
        big = {2: 5, 4: 8, 8: 12}[P]
        if c.cls == "mfma":
            ab = regs_of(c.ops[1]) | regs_of(c.ops[2])
            if p.wr & ab: need = max(need, big)
            if p.wr & c.srcC:
                if p.wr == c.srcC and p.passes == c.passes:
                    need = max(need, 2 if P == 2 else 0)
                else:
                    need = max(need, {2: 4, 4: 6, 8: 10}[P])
            elif p.wr & c.wr:
                need = max(need, {2: 4, 4: 6, 8: 10}[P])
        elif c.cls in ("valu", "vmem", "ds"):
            if p.wr & (c.rd | c.wr): need = max(need, big)
            if c.cls == "valu" and (p.srcC & c.wr): need = max(need, {2: 1, 4: 3, 8: 7}[P])
    elif p.cls == "valu":
        w = vg(p.wr)
        isdot = p.op.startswith("v_dot")
        if c.cls == "mfma":
            if w & c.rd: need = max(need, 3 if isdot else 2)
            if ("exec", 0) in p.wr: need = max(need, 4)
        if c.cls == "valu":
            if p.op in TRANS and (w & c.rd) and c.op not in TRANS: need = max(need, 1)
            if p.op in TRANS and (w & c.rd): need = max(need, 1)
            if c.op.startswith(("v_readlane", "v_readfirstlane")) and (w & c.rd): need = max(need, 1)
            if c.op.startswith("v_permlane") and (w & c.rd): need = max(need, 2)
            if any(m.startswith(("row_", "quad_perm", "wave_")) for m in c.mods):
                if w & c.rd: need = max(need, 2)
                if ("exec", 0) in p.wr: need = max(need, 5)
            if sg(p.wr) & c.rd:
                need = max(need, 4 if c.op.startswith(("v_readlane", "v_writelane", "v_div_fmas")) else 2)
            if ("exec", 0) in p.wr and c.op.startswith(("v_readlane", "v_readfirstlane", "v_writelane", "v_permlane")):
                need = max(need, 4)
            if isdot and (w & (c.rd | c.wr)):
                if c.op == p.op and (w & regs_of(c.ops[-1] if not c.op.startswith("v_dot2c") else c.ops[0])) \
                        and not (w & (regs_of(c.ops[1]) | regs_of(c.ops[2]))):
                    pass
                else:
                    need = max(need, 3)
            if any(m.startswith(("dst_sel", "op_sel:")) for m in p.mods) and not p.op.startswith("v_pk_") \
                    and (w & (c.rd | c.wr)): need = max(need, 1)
        if c.cls == "vmem" and (sg(p.wr) & c.rd): need = max(need, 5)
        if c.cls in ("vmem", "ds") and isdot and (w & c.rd): need = max(need, 3)
        if c.cls == "salu" and (sg(p.wr) & c.rd): need = max(need, 1)
        if c.cls == "salu" and c.target and "vcc" in c.op and ("vcc", 0) in p.wr: need = max(need, 1)
    elif p.cls == "salu":
        if ("m0", 0) in p.wr and c.cls == "vmem" and ("m0", 0) in c.rd: need = max(need, 1)
    elif p.cls == "vmem":
        if ("store" in p.op or "atomic" in p.op) and re.search(r"x3|x4", p.op):
            data = regs_of(p.ops[0]) if p.op.startswith("buffer_") else regs_of(p.ops[1])
            if data & c.wr: need = max(need, 2 if c.cls == "valu" else 1)
    return need


def fix_hazards(ins, W=22):
    for _ in range(50):
        blocks, succ = _blocks(ins)
        pred = [[] for _ in blocks]
        for j, sc in enumerate(succ):
            for k in sc: pred[k].append(j)
        ins_add = {}

        def history(bi, pos, dist, seen, acc):
            b, e = blocks[bi]
            i = pos - 1
            while i >= b and dist < W:
                x = ins[i]
                if x.cls not in ("label", "none"):
                    acc.append((x, dist))
                    dist += x.states()
                dist += ins_add.get(i, 0)
                i -= 1
            if dist < W:
                for pj in pred[bi]:
                    key = (pj, dist)
                    if key in seen: continue
                    seen.add(key)
                    history(pj, blocks[pj][1], dist, seen, acc)

        for bi, (b, e) in enumerate(blocks):
            for i in range(b, e):
                c = ins[i]
                if c.cls in ("label", "none") or c.op in ("s_nop", "s_waitcnt", "s_barrier"):
                    continue
                acc = []
                history(bi, i, 0, set(), acc)
                add = 0
                for p, d in acc:
                    r = _required(p, c)
                    if r > d: add = max(add, r - d)
                if add: ins_add[i] = add
        if not ins_add:
            return ins
        out = []
        for i, x in enumerate(ins):
            n = ins_add.get(i, 0)
            while n > 0:
                k = min(n, 16)
                out.append(I(f"s_nop {k - 1}"))
                n -= k
            out.append(x)
        ins = out
    raise RuntimeError("hazard fixing did not converge")


def finalize(asm):
    ins = insert_waits(asm.ins)
    ins = fix_hazards(ins)
    return ins


def render(ins):
    o = []
    for x in ins:
        o.append(x.text if x.label else "  " + x.text)
    return "\n".join(o) + "\n"


def interleave(main, fill, per=None, start=0, budget=5.0):
    main = list(main.ins if isinstance(main, Asm) else main)
    fill = list(fill.ins if isinstance(fill, Asm) else fill)
    idx = [i for i, x in enumerate(main) if x.cls == "mfma"]
    out = []
    fi = 0
    debt = 0.0
    for n, i in enumerate(idx):
        lo = idx[n - 1] + 1 if n else 0
        out.extend(main[lo:i + 1])
        if n < start: continue
        hi = idx[n + 1] if n + 1 < len(idx) else len(main)
        own = sum(x.cost for x in main[i + 1:hi])
        room = (per if per is not None else budget - own) + debt
        while fi < len(fill) and room >= fill[fi].cost - 0.01:
            room -= fill[fi].cost
            out.append(fill[fi]); fi += 1
        debt = max(min(room, 1.5), -2)
    out.extend(main[idx[-1] + 1:] if idx else main)
    return out, fill[fi:]


def weave(main, fill, budget=6.0, start=0, stop=None, per=None):
    main = list(main.ins if isinstance(main, Asm) else main)
    fill = list(fill.ins if isinstance(fill, Asm) else fill)
    idx = [i for i, x in enumerate(main) if x.cls == "mfma"]
    out = list(main[:idx[0]])
    fi = 0
    debt = 0.0
    def cost(x):
        if x.waitfor is not None: return 0
        if x.cls == "mfma": return 2
        return x.cost
    for n, i in enumerate(idx):
        hi = idx[n + 1] if n + 1 < len(idx) else len(main)
        own = main[i + 1:hi]
        k = 0
        while k < len(own) and own[k].waitfor is None and own[k].op != "s_barrier" and not own[k].label \
                and not own[k].target:
            k += 1
        while 0 < k < len(own) and own[k].glue: k -= 1
        if k < len(own) and k > 0 and k + 1 <= len(own) - 1 and own[k].glue: k = 0
        out.append(main[i]); out.extend(own[:k])
        if n >= start and (stop is None or n < stop):
            room = (per if per is not None else budget - sum(cost(x) for x in own)) + debt
            while fi < len(fill) and (room >= cost(fill[fi]) - 0.01 or fill[fi].glue):
                room -= cost(fill[fi])
                out.append(fill[fi]); fi += 1
            debt = max(min(room, 1.0), -4)
        out.extend(own[k:])
    return out, fill[fi:]


def kernel_desc(name, vgpr, accum, sgpr=102):
    return f""".amdhsa_kernel {name}
  .amdhsa_next_free_vgpr {vgpr}
  .amdhsa_next_free_sgpr {sgpr}
  .amdhsa_accum_offset {accum}
  .amdhsa_group_segment_fixed_size 0
  .amdhsa_kernarg_size 88
  .amdhsa_user_sgpr_count 2
  .amdhsa_user_sgpr_kernarg_segment_ptr 1
  .amdhsa_system_sgpr_workgroup_id_x 1
.end_amdhsa_kernel
"""
```

```python
from common import *
import common, sys

E_OFF = 0; FLG_OFF = 0x1000; W2P_OFF = 0x20000; ACT_OFF = 0x320000; ACT_BLK = 94 * 1024
KV_OFF = 0xEE0000; ST_OFF = 0xF10000; CS_OFF = 0xF20000
common.PROF_OFF = 0xF80000
WR = 0; XR = 81920; SPARE = 147456
PHI1 = SPARE; PHI2 = SPARE + 3840; PZERO = SPARE + 7680; PKS = SPARE
PHIK = XR; VIM = XR + 40960; KVI = XR; RED = 0
LDSZ = 163840
sWAVE = 3
SX, SWA, SWB, SWS, SB1, SPH, SOUT, SPK, SCS = 24, 28, 32, 36, 40, 44, 48, 52, 56
sM, sU, sR, sC, sE, sXO, sXM, sWB = 60, 61, 62, 63, 64, 65, 66, 67
sT0, sT1, sT2, sT3 = 68, 69, 70, 71
sWO, sWS, sACT, sA, sW, sAB = 4, 5, 6, 7, 8, 9
sEX = 10
sPKO, sPKD, sQF, sCS3, sB3, sACT3, sP0, sP1 = 12, 13, 14, 15, 16, 17, 18, 19
sPC = 100
sX1, sXD = 20, 21
sWO2 = 22; sPV = 23
sF0, sF1 = 0, 1
vTID, vFL, vPOLL, vPA, vW = 8, 9, 10, 11, 12
vPT = 14
vXD = 16; vXRD = 20
vAD = 24; vPD = 29; vAR = 34; vPR = 36
vP1 = 24; vP2 = 28; vPRP = 32
vAST = 44; vS1 = 45; vRS = 46; vCP = 47; vCB = 48; vST = 52; vCP2 = 54; vEP = 55
vQC = 56
aX = 0; aW = 160; aF = 240

def srdr(n): return f"s[{n}:{n+3}]"
def slot(n): return 20 * ((n + 10) % 12)

def csel(A, dst, x, y):
    A(f"s_mov_b32 s{dst}, {y}"); A(f"s_cselect_b32 s{dst}, {x}, s{dst}")

class Ctx:
    def __init__(self, name):
        self.name = name; self.spins = Asm(); self.n = 0
    def L(self, x): return f"{self.name}_{x}"

def signal(A, level):
    A(f"s_add_u32 s{sP0}, s{sE}, {level}")
    A(f"v_mov_b32 v{vPT}, s{sP0}")
    A(f"buffer_store_dword v{vPT}, v{vFL}, {srdr(SWS)}, 0 offen sc1", "flag")

def poll_issue(A):
    A(f"buffer_load_dword v{vPOLL}, v{vPA}, {srdr(SWS)}, 0 offen sc1", "poll")

def poll_check(A, C, level):
    C.n += 1
    k = C.n
    A(f"s_add_u32 s{sP0}, s{sE}, {level}")
    A.g(f"v_subrev_u32 v{vPT}, s{sP0}, v{vPOLL}")
    A.g(f"v_cmp_gt_u32_e64 s[{sPC}:{sPC+1}], 8, v{vPT}")
    A.g(f"s_cmp_eq_u64 s[{sPC}:{sPC+1}], -1")
    A.g(f"s_cbranch_scc0 {C.L(f'spin{k}')}")
    A.label(C.L(f"back{k}")); A.ins[-1].glue = True
    S = C.spins
    S.label(C.L(f"spin{k}"))
    S(f"s_mov_b32 s{sP1}, 0")
    S.label(C.L(f"loop{k}"))
    poll_issue(S)
    S(f"s_add_u32 s{sP1}, s{sP1}, 1")
    S(f"s_cmp_gt_u32 s{sP1}, 0x8000")
    S(f"s_cbranch_scc1 {C.L(f'back{k}')}")
    S(f"v_subrev_u32 v{vPT}, s{sP0}, v{vPOLL}")
    S(f"v_cmp_gt_u32_e64 s[{sPC}:{sPC+1}], 8, v{vPT}")
    S(f"s_cmp_eq_u64 s[{sPC}:{sPC+1}], -1")
    S(f"s_cbranch_scc0 {C.L(f'loop{k}')}")
    S(f"s_branch {C.L(f'back{k}')}")

def poll_addr(A, kind, t0, t1):
    if kind == "all":
        A(f"v_lshlrev_b32 v{vPA}, 8, v{vTID}")
        A(f"v_add_u32 v{vPA}, {FLG_OFF}, v{vPA}")
        return
    if kind == "grp":
        A(f"s_lshr_b32 s{sF0}, s{sR}, 3"); A(f"s_lshl_b32 s{sF0}, s{sF0}, 1")
        A(f"s_bfe_u32 s{sF1}, s{sR}, 0x20001"); A(f"s_lshl_b32 s{sF1}, s{sF1}, 3")
        A(f"v_bfe_u32 v{t0}, v0, 1, 3"); A(f"v_and_b32 v{t1}, 1, v0")
        A(f"v_lshl_add_u32 v{t0}, v{t0}, 5, v{t1}")
    elif kind == "kv":
        A(f"s_and_b32 s{sF0}, s{sC}, 3"); A(f"s_lshl_b32 s{sF0}, s{sF0}, 5")
        A(f"s_lshr_b32 s{sF1}, s{sC}, 2")
        A(f"v_and_b32 v{t0}, 3, v0"); A(f"v_bfe_u32 v{t1}, v0, 2, 2")
        A(f"v_lshlrev_b32 v{t1}, 1, v{t1}")
        A(f"v_lshl_add_u32 v{t0}, v{t0}, 3, v{t1}")
    elif kind == "o":
        A(f"s_and_b32 s{sF0}, s{sR}, 7"); A(f"s_lshl_b32 s{sF0}, s{sF0}, 5")
        A(f"s_lshr_b32 s{sF1}, s{sR}, 3"); A(f"s_lshl_b32 s{sF1}, s{sF1}, 1")
        A(f"v_bfe_u32 v{t0}, v0, 1, 2"); A(f"v_and_b32 v{t1}, 1, v0")
        A(f"v_lshl_add_u32 v{t0}, v{t0}, 3, v{t1}")
    A(f"s_add_u32 s{sF0}, s{sF0}, s{sF1}")
    A(f"s_lshl_b32 s{sF0}, s{sF0}, 8")
    A(f"s_add_u32 s{sF0}, s{sF0}, {FLG_OFF}")
    A(f"v_lshl_add_u32 v{vPA}, v{t0}, 8, s{sF0}")

def x_dma(j):
    o = [(f"s_add_u32 m0, s{sXM}, {(j % 4) * 4096}", None, 0), (f"s_add_u32 s{sXD}, s{sXO}, {j*128}", None, 0)]
    for i in range(4):
        o.append((f"buffer_load_dwordx4 v{vXD+i}, {srdr(SX)}, s{sXD} offen offset:{1024*i} lds", f"x{j}", 1))
    return o

def dma5(vbase, srdn, soff, ldsoff, tag):
    o = [(f"s_add_u32 m0, s{sWB}, {ldsoff}", None, 0)]
    for i in range(4):
        o.append((f"buffer_load_dwordx4 v{vbase+i}, {srdr(srdn)}, s{soff} offen offset:{1024*i} lds", tag, 1))
    o.append(("s_add_u32 m0, m0, 4096", None, 0))
    o.append((f"buffer_load_dwordx4 v{vbase+4}, {srdr(srdn)}, s{soff} offen lds", tag, 1))
    return o

def kv_dma(g):
    if g < 10:
        return [(f"s_mov_b32 s{sWO}, {g*64*3840}", None, 0)] + dma5(vAD, SWA, sWO, (g % 4) * 20480, f"w{g}")
    if g < 14:
        return [(f"s_add_u32 s{sWO}, s{sWO2}, {(g-10)*160*3840}", None, 0)] + dma5(vPD, SWA, sWO, (g % 4) * 20480, f"w{g}")
    return []

def p_dma(g):
    if g >= 20: return []
    o = [(f"s_add_u32 m0, s{sWB}, {(g % 5) * 16384}", None, 0)]
    if g < 10:
        vb, sr, so = vP1, SWA, sWO
        if g: o.append((f"s_add_u32 s{sWO}, s{sWO}, {64*3456}", None, 0))
    else:
        vb, sr, so = vP2, SWB, sWO2
        if g > 10: o.append((f"s_add_u32 s{sWO2}, s{sWO2}, s{sWS}", None, 0))
    for i in range(4):
        o.append((f"buffer_load_dwordx4 v{vb+i}, {srdr(sr)}, s{so} offen offset:{1024*i} lds", f"w{g}", 1))
    return o

def w2p_loads(n):
    o = []
    if n == 13:
        so = sX1
    else:
        so = sW
    if n > 0 and n not in (13, 14):
        o.append((f"s_add_u32 s{sW}, s{sW}, {20480 if n < 13 else 5120}", None, 0))
    if n == 14:
        o.append((f"s_add_u32 s{sW}, s{sW}, s{sPV}", None, 0))
    for nt in range(5):
        o.append((f"buffer_load_dwordx4 {a(slot(n)+4*nt,4)}, v{vW+(nt>>2)}, {srdr(SWS)}, s{so} offen offset:{1024*(nt&3)} sc1", f"W2{n}", 1))
    return o

def emit(A, lst):
    for e in lst: A(e[0], e[1])

class DQ:
    def __init__(self): self.q = []; self.credit = 0.5
    def add(self, lst): self.q += list(lst)
    def pop(self, A, n=1):
        while self.q and n > 0:
            e = self.q.pop(0)
            if e[0] == "WAITX": A.wait(lgkm="xr"); continue
            A(e[0], e[1]); n -= e[2]
    def count(self): return sum(e[2] for e in self.q)

def gemm_steps(A, steps, D, dq, pre_barrier=None, post_barrier=None, hooks=None):
    n = len(steps)
    hooks = hooks or {}
    for s in range(n + D):
        rd = []
        if s < n:
            st = steps[s]
            if st["chunk"] is not None:
                if pre_barrier: pre_barrier(A, st["chunk"])
                tags = [f"w{st['chunk']}"]
                if st["xj"] is not None: tags.append(f"x{st['xj']}")
                tags += st.get("tags", [])
                A.wait(vm=tags, lgkm="all")
                A("s_barrier")
                if post_barrier: post_barrier(A, st["chunk"])
            if st["xj"] is not None:
                j = st["xj"]
                A.wait(vm=f"x{j}")
                rd += [(f"ds_read_b128 {a(aX + 16*j + 4*q, 4)}, v{vXRD+q} offset:{(j % 4) * 4096}", "xr") for q in range(4)]
            rd = rd[:1] + [(t, None) for t in st["reads"][:2]] + rd[1:] + [(t, None) for t in st["reads"][2:]]
            dq.add(st.get("queue", []))
        if s < D:
            for t, tag in rd: A(t, tag)
            continue
        m = steps[s - D]
        nt = m["nt"]
        if s - D in hooks: hooks[s - D](A)
        left = 0
        k = s
        while True:
            left += steps[min(k - D, n - 1)]["nt"]
            k += 1
            if k >= n + D or (k < n and steps[k]["chunk"] is not None): break
        per = 5
        for t in range(nt):
            cin = "0" if m["first"] else v(m["acc"] + 16 * t, 16)
            A(f"v_mfma_f32_32x32x16_bf16 {v(m['acc']+16*t,16)}, {a(m['frag']+4*t,4)}, {a(m['xreg'],4)}, {cin}")
            take = rd[:per]; rd = rd[per:]
            if t == nt - 1: take += rd; rd = []
            for tx, tag in take: A(tx, tag)
            c = dq.count()
            rem = max(left - t, 1)
            if c:
                dq.credit += c / rem
                if len(take) < 4 or rem <= c:
                    k2 = int(dq.credit + 1e-6)
                    if k2: dq.pop(A, k2); dq.credit -= k2
            else:
                dq.credit = 0.5

def corr_frag(A, raw, bias, tmp):
    A(f"v_add_f32 v{tmp}, v{raw}, v{raw+1}")
    A(f"v_add_f32 v{raw+2}, v{raw+2}, v{raw+3}")
    A(f"v_add_f32 v{tmp}, v{tmp}, v{raw+2}")
    A(f"v_cvt_pk_bf16_f32 v{raw}, v{tmp}, v{tmp}")
    A(f"v_and_b32 v{raw+1}, 0xffff0000, v{raw}")
    A(f"v_sub_f32 v{tmp}, v{tmp}, v{raw+1}")
    if bias is None:
        A(f"v_cvt_pk_bf16_f32 v{raw+1}, v{tmp}, 0")
        A(f"v_mov_b32 v{raw+2}, 0")
    else:
        A(f"v_lshlrev_b32 v{raw+3}, 16, v{bias}")
        A(f"v_cvt_pk_bf16_f32 v{raw+1}, v{tmp}, v{raw+3}")
        A(f"v_mov_b32 v{raw+2}, v{bias}")
    A(f"v_mov_b32 v{raw+3}, 0")

def stats_frag(A, t):
    m, ve = vST, vST + 1
    A(f"v_rsq_f32 v{vRS}, v{ve}")
    A(f"v_sub_f32 v{t}, 0, v{m}")
    A(f"v_mul_f32 v{t+1}, v{ve}, v{vRS}")
    A(f"v_mul_f32 v{vS1}, {hex(LOG2E)}, v{vRS}")
    A(f"v_cvt_pk_bf16_f32 v{vCB+1}, v{t}, v{t+1}")
    A(f"v_lshlrev_b32 v{t+2}, 16, v{vCB+1}")
    A(f"v_and_b32 v{t+3}, 0xffff0000, v{vCB+1}")
    A(f"v_sub_f32 v{t+2}, v{t}, v{t+2}")
    A(f"v_sub_f32 v{t+3}, v{t+1}, v{t+3}")
    A(f"v_cvt_pk_bf16_f32 v{vCB}, v{t}, v{t+2}")
    A(f"v_cvt_pk_bf16_f32 v{vCB+2}, v{t+3}, 0")
    A(f"v_mov_b32 v{vCB+3}, 0")
    A(f"v_cmp_gt_u32 vcc, 32, v0")
    for i in range(3):
        A.g(f"v_cndmask_b32 v{vCB+i}, 0, v{vCB+i}, vcc")

def mish(A, acc, n, e, G=4):
    for g0 in range(0, n, G):
        t = acc + g0
        for i in range(G): A(f"v_mul_f32 v{t+i}, v{t+i}, v{vS1}")
        for i in range(G): A(f"v_exp_f32 v{e+i}, v{t+i}")
        for i in range(G): A(f"v_fma_f32 v{e+G+i}, v{e+i}, 0.5, 1.0")
        for i in range(G): A(f"v_fma_f32 v{e+i}, v{e+i}, v{e+G+i}, 1.0")
        for i in range(G): A(f"v_rcp_f32 v{e+i}, v{e+i}")
        for i in range(G): A(f"v_fma_f32 v{e+i}, -v{t+i}, v{e+i}, v{t+i}")
        o = acc + (g0 & ~7) + (g0 & 7) // 2
        for i in range(0, G, 2): A(f"v_cvt_pk_bf16_f32 v{o+i//2}, v{e+i}, v{e+i+1}")

def mish_pk(A, acc, n, e):
    G = 8
    s1 = f"v[{vS1-1}:{vS1}]"
    for g0 in range(0, n, G):
        t = acc + g0
        for i in range(0, G, 2): A(f"v_pk_mul_f32 {v(t+i,2)}, {v(t+i,2)}, {s1} op_sel:[0,1] op_sel_hi:[1,1]")
        for i in range(G): A(f"v_exp_f32 v{e+i}, v{t+i}")
        for i in range(0, G, 2): A(f"v_pk_fma_f32 {v(e+G+i,2)}, {v(e+i,2)}, 0.5, 1.0 op_sel_hi:[1,0,0]")
        for i in range(0, G, 2): A(f"v_pk_fma_f32 {v(e+i,2)}, {v(e+i,2)}, {v(e+G+i,2)}, 1.0 op_sel_hi:[1,1,0]")
        for i in range(G): A(f"v_rcp_f32 v{e+i}, v{e+i}")
        for i in range(0, G, 2): A(f"v_pk_fma_f32 {v(e+i,2)}, {v(t+i,2)}, {v(e+i,2)}, {v(t+i,2)} neg_lo:[1,0,0] neg_hi:[1,0,0]")
        for i in range(0, G, 2): A(f"v_cvt_pk_bf16_f32 v{t+i//2}, v{e+i}, v{e+i+1}")

def pair_store(A, acc, soff, tag, t, p):
    A(f"buffer_store_dwordx4 {v(acc+16*t+8*p,4)}, v{vAST}, {srdr(SWS)}, s{soff} offen offset:{1024*t+512*p} sc1", tag)

def softmax_pair(A, p, EP, EN, PK, s1, t0):
    a0, a1 = t0, t0 + 1
    A(f"v_max3_f32 v{a0}, v{p}, v{p+1}, v{p+2}")
    A(f"v_min3_f32 v{a1}, v{p}, v{p+1}, v{p+2}")
    for i in range(3, 19, 2):
        A(f"v_max3_f32 v{a0}, v{a0}, v{p+i}, v{p+i+1}")
        A(f"v_min3_f32 v{a1}, v{a1}, v{p+i}, v{p+i+1}")
    A(f"v_max_f32 v{a0}, v{a0}, v{p+19}")
    A(f"v_min_f32 v{a1}, v{a1}, v{p+19}")
    A(f"v_mul_f32 v{a0}, v{a0}, v{s1}")
    A(f"v_mul_f32 v{a1}, v{a1}, v{s1}")
    for i in range(20):
        A(f"v_fma_f32 v{EP+i}, v{p+i}, v{s1}, -v{a0}")
        A(f"v_fma_f32 v{EN+i}, -v{p+i}, v{s1}, v{a1}")
        A(f"v_exp_f32 v{EP+i}, v{EP+i}")
        A(f"v_exp_f32 v{EN+i}, v{EN+i}")
    A(f"v_add_f32 v{a0}, v{EP}, v{EP+1}")
    A(f"v_add_f32 v{a1}, v{EN}, v{EN+1}")
    for i in range(2, 20):
        A(f"v_add_f32 v{a0}, v{a0}, v{EP+i}")
        A(f"v_add_f32 v{a1}, v{a1}, v{EN+i}")
    A(f"v_rcp_f32 v{a0}, v{a0}")
    A(f"v_rcp_f32 v{a1}, v{a1}")
    for i in range(10):
        A(f"v_mul_f32 v{EP+2*i}, v{EP+2*i}, v{a0}")
        A(f"v_mul_f32 v{EP+2*i+1}, v{EP+2*i+1}, v{a0}")
        A(f"v_cvt_pk_bf16_f32 v{PK+i}, v{EP+2*i}, v{EP+2*i+1}")
    for i in range(10):
        A(f"v_mul_f32 v{EN+2*i}, v{EN+2*i}, v{a1}")
        A(f"v_mul_f32 v{EN+2*i+1}, v{EN+2*i+1}, v{a1}")
        A(f"v_cvt_pk_bf16_f32 v{PK+10+i}, v{EN+2*i}, v{EN+2*i+1}")

def common_lane(A):
    A("v_lshrrev_b32 v1, 5, v0")
    A("v_bfe_u32 v2, v0, 2, 2")
    A("v_and_b32 v3, 1, v0")
    A("v_bfe_u32 v4, v0, 1, 1")
    A("v_bfe_u32 v5, v0, 4, 1")
    A("v_lshl_add_u32 v4, v5, 1, v4")
    A("v_lshl_add_u32 v6, v1, 3, v2")

PR0 = 64

def prep_loads(A, C, tagp):
    L = lambda x: C.L(tagp + x)
    A(f"s_cmp_ge_u32 s{sWAVE}, 2")
    A(f"s_cbranch_scc1 {L('pl2')}")
    A(f"s_lshl_b32 s{sT0}, s2, 3"); A(f"s_lshl_b32 s{sT1}, s{sWAVE}, 2"); A(f"s_add_u32 s{sT0}, s{sT0}, s{sT1}")
    A(f"s_mul_i32 s{sT0}, s{sT0}, 1280")
    A("v_lshrrev_b32 v1, 4, v0"); A("v_and_b32 v2, 15, v0")
    A("v_mul_u32_u24 v1, 1280, v1"); A("v_lshl_add_u32 v1, v2, 4, v1")
    for j in range(5):
        A(f"buffer_load_dwordx4 {v(PR0+4*j,4)}, v1, {srdr(SX)}, s{sT0} offen offset:{256*j}", "prepl")
    A(f"s_branch {L('pl9')}")
    A.label(L("pl2"))
    A(f"s_cmp_eq_u32 s{sWAVE}, 3")
    A(f"s_cbranch_scc1 {L('pl3')}")
    A(f"s_lshr_b32 s{sT0}, s2, 2")
    A(f"s_cmp_lt_u32 s{sT0}, 30")
    csel(A, sT2, 3840, 3456)
    A(f"s_cselect_b32 s{sT3}, 0, 30")
    A(f"s_sub_u32 s{sT0}, s{sT0}, s{sT3}")
    A(f"s_lshl_b32 s{sT0}, s{sT0}, 7")
    A(f"s_and_b32 s{sT1}, s2, 3"); A(f"s_mul_i32 s{sT1}, s{sT1}, 160"); A(f"s_mul_i32 s{sT1}, s{sT1}, s{sT2}")
    A(f"s_add_u32 s{sT0}, s{sT0}, s{sT1}")
    A(f"s_cmp_lt_u32 s2, 228")
    A(f"s_cselect_b32 s{sT0}, s{sT0}, {hex(OOB)}")
    A("v_lshrrev_b32 v1, 3, v0"); A("v_and_b32 v2, 7, v0")
    A(f"v_mul_lo_u32 v1, v1, s{sT2}")
    A("v_lshl_add_u32 v1, v2, 4, v1")
    A(f"s_lshl_b32 s{sT2}, s{sT2}, 3")
    for j in range(20):
        A(f"buffer_load_dwordx4 {v(PR0+4*j,4)}, v1, {srdr(SCS)}, s{sT0} offen", "prepl")
        if j < 19: A(f"s_add_u32 s{sT0}, s{sT0}, s{sT2}")
    A(f"s_branch {L('pl9')}")
    A.label(L("pl3"))
    for r in range(4): A(f"v_mov_b32 v{PR0+r}, 0")
    A(f"s_mul_i32 s{sT0}, s2, 640"); A(f"s_add_u32 s{sT0}, s{sT0}, {KV_OFF}")
    A(f"v_mov_b32 v1, {hex(OOB)}")
    A("v_cmp_gt_u32 vcc, 40, v0")
    A(f"v_cndmask_b32 v1, v1, v{vW}, vcc")
    A(f"buffer_store_dwordx4 {v(PR0,4)}, v1, {srdr(SWS)}, s{sT0} offen sc1", "prep")
    A.label(L("pl9"))

def prep_compute(A, C, tagp):
    L = lambda x: C.L(tagp + x)
    A(f"s_cmp_ge_u32 s{sWAVE}, 2")
    A(f"s_cbranch_scc1 {L('pc2')}")
    U = PR0 + 20
    A(f"s_mov_b32 s{sT0}, 0x3f803f80")
    A("v_mov_b32 v2, 0"); A("v_mov_b32 v3, 0")
    for r in range(20):
        A(f"v_dot2c_f32_bf16 v{2+(r&1)}, s{sT0}, v{PR0+r}")
        A(f"v_lshlrev_b32 v{U+2*r}, 16, v{PR0+r}")
        A(f"v_and_b32 v{U+2*r+1}, 0xffff0000, v{PR0+r}")
    A("v_add_f32 v2, v2, v3")
    def rowsum(reg):
        for sh in (8, 4, 2, 1):
            A(f"v_add_f32_dpp v{reg}, v{reg}, v{reg} row_ror:{sh} row_mask:0xf bank_mask:0xf")
    rowsum(2)
    A("v_mul_f32 v4, 0x3acccccd, v2")
    for r in range(20):
        A(f"v_pk_add_f32 {v(U+2*r,2)}, {v(U+2*r,2)}, v[4:5] op_sel_hi:[1,0] neg_lo:[0,1] neg_hi:[0,1]")
    A(f"v_pk_mul_f32 v[2:3], {v(U,2)}, {v(U,2)}")
    A(f"v_pk_mul_f32 v[6:7], {v(U+2,2)}, {v(U+2,2)}")
    for r in range(2, 20):
        d = "v[2:3]" if r % 2 == 0 else "v[6:7]"
        A(f"v_pk_fma_f32 {d}, {v(U+2*r,2)}, {v(U+2*r,2)}, {d}")
    A("v_pk_add_f32 v[2:3], v[2:3], v[6:7]")
    A("v_add_f32 v2, v2, v3")
    rowsum(2)
    A("v_mov_b32 v5, 0x3727c5ac")
    A("v_fmac_f32 v5, 0x3acccccd, v2")
    A(f"s_lshl_b32 s{sT0}, s2, 6"); A(f"s_lshl_b32 s{sT1}, s{sWAVE}, 5"); A(f"s_add_u32 s{sT0}, s{sT0}, s{sT1}")
    A(f"s_add_u32 s{sT0}, s{sT0}, {ST_OFF}")
    A("v_lshrrev_b32 v1, 4, v0"); A("v_lshlrev_b32 v1, 3, v1")
    A("v_and_b32 v2, 15, v0")
    A(f"v_mov_b32 v3, {hex(OOB)}")
    A("v_cmp_eq_u32 vcc, 0, v2")
    A("v_cndmask_b32 v1, v3, v1, vcc")
    A(f"buffer_store_dwordx2 v[4:5], v1, {srdr(SWS)}, s{sT0} offen sc1", "prep")
    A(f"s_branch {L('pc9')}")
    A.label(L("pc2"))
    A(f"s_cmp_eq_u32 s{sWAVE}, 3")
    A(f"s_cbranch_scc1 {L('pc9')}")
    acc = PR0 + 80
    A(f"s_mov_b32 s{sT0}, 0x3f80"); A(f"s_mov_b32 s{sT1}, 0x3f800000")
    for r in range(8): A(f"v_mov_b32 v{acc+r}, 0")
    for j in range(20):
        for r in range(4):
            A(f"v_dot2c_f32_bf16 v{acc+2*r}, s{sT0}, v{PR0+4*j+r}")
            A(f"v_dot2c_f32_bf16 v{acc+2*r+1}, s{sT1}, v{PR0+4*j+r}")
    for r in range(4):
        A(f"v_permlane32_swap_b32 v{acc+r}, v{acc+4+r}")
    for r in range(4):
        A(f"v_add_f32 v{acc+r}, v{acc+r}, v{acc+4+r}")
    for r in range(2):
        A(f"v_permlane16_swap_b32 v{acc+r}, v{acc+2+r}")
    for r in range(2):
        A(f"v_add_f32 v{acc+r}, v{acc+r}, v{acc+2+r}")
    for r in range(2):
        A(f"v_add_f32_dpp v{acc+r}, v{acc+r}, v{acc+r} row_ror:8 row_mask:0xf bank_mask:0xf")
    A("v_and_b32 v7, 8, v0")
    A("v_cmp_ne_u32 vcc, 0, v7")
    A(f"v_cndmask_b32 v{acc}, v{acc}, v{acc+1}, vcc")
    A("v_lshrrev_b32 v1, 3, v0"); A("v_and_b32 v2, 7, v0")
    A("v_lshl_add_u32 v1, v2, 3, v1"); A("v_lshlrev_b32 v1, 4, v1")
    A(f"s_lshr_b32 s{sT0}, s2, 2"); A(f"s_lshl_b32 s{sT0}, s{sT0}, 10")
    A(f"s_and_b32 s{sT1}, s2, 3"); A(f"s_lshl_b32 s{sT1}, s{sT1}, 2")
    A(f"s_add_u32 s{sT0}, s{sT0}, s{sT1}"); A(f"s_add_u32 s{sT0}, s{sT0}, {CS_OFF}")
    A(f"s_cmp_lt_u32 s2, 228")
    A(f"s_cselect_b32 s{sT0}, s{sT0}, {hex(OOB)}")
    A(f"buffer_store_dword v{acc}, v1, {srdr(SWS)}, s{sT0} offen sc1", "prep")
    A.label(L("pc9"))

def pack_setup(A):
    T, b, qs, hi = sT0, sT1, sT2, sT3
    A(f"s_lshr_b32 s{T}, s2, 3"); A(f"s_lshl_b32 s{b}, s{sWAVE}, 5"); A(f"s_add_u32 s{T}, s{T}, s{b}")
    A(f"s_and_b32 s{sPKO}, s2, 7")
    A(f"s_mul_i32 s{sPKD}, s{sPKO}, 74"); A(f"s_add_u32 s{sPKD}, s{sPKD}, s{T}")
    A(f"s_mul_i32 s{sPKD}, s{sPKD}, 5120"); A(f"s_add_u32 s{sPKD}, s{sPKD}, {W2P_OFF}")
    A(f"s_cmp_lt_u32 s{T}, 74")
    A(f"s_cselect_b32 s{sPKD}, s{sPKD}, {hex(OOB)}")
    A(f"s_cselect_b64 s[{sEX}:{sEX+1}], -1, 0")
    A(f"s_sub_u32 s{sP0}, s{T}, 54")
    A(f"s_mul_i32 s{sP1}, s{sP0}, 52"); A(f"s_lshr_b32 s{sP1}, s{sP1}, 8")
    A(f"s_mul_i32 s{b}, s{sP1}, 5"); A(f"s_sub_u32 s{sP0}, s{sP0}, s{b}")
    A(f"s_mul_i32 s{b}, s{sP1}, 160")
    A(f"s_lshr_b32 s{sP1}, s{sP0}, 1"); A(f"s_mul_i32 s{sP1}, s{sP1}, 80")
    A(f"s_and_b32 s{qs}, s{sP0}, 1"); A(f"s_lshl_b32 s{qs}, s{qs}, 3"); A(f"s_add_u32 s{sP1}, s{sP1}, s{qs}")
    A(f"s_cmp_eq_u32 s{sP0}, 4")
    A(f"s_cselect_b32 s{sP1}, 16, s{sP1}")
    A(f"s_cselect_b32 s{qs}, 40, 20")
    A(f"s_cselect_b32 s{hi}, 20, 4")
    A(f"s_add_u32 s{b}, s{b}, s{sP1}")
    A(f"s_lshl_b32 s{sP1}, s{T}, 5")
    A(f"s_cmp_lt_u32 s{T}, 54")
    A(f"s_cselect_b32 s{b}, s{sP1}, s{b}")
    A(f"s_cselect_b32 s{qs}, 8, s{qs}")
    A(f"s_cselect_b32 s{hi}, 4, s{hi}")
    A(f"s_mul_i32 s{b}, s{b}, 1280")
    A(f"s_mul_i32 s{sPKO}, s{sPKO}, 160"); A(f"s_add_u32 s{sPKO}, s{sPKO}, s{b}")
    for i in range(5):
        A(f"v_add_u32 v1, {64*i}, v0")
        A("v_mul_u32_u24 v2, 6554, v1"); A("v_lshrrev_b32 v2, 16, v2")
        A("v_mul_u32_u24 v3, 10, v2"); A("v_sub_u32 v3, v1, v3")
        A("v_lshrrev_b32 v4, 3, v2"); A(f"v_mul_u32_u24 v4, s{qs}, v4")
        A("v_bfe_u32 v5, v2, 2, 1"); A(f"v_mad_u32_u24 v4, v5, s{hi}, v4")
        A("v_and_b32 v5, 3, v2"); A("v_add_u32 v4, v4, v5")
        A("v_mul_u32_u24 v4, 1280, v4")
        A(f"v_lshl_add_u32 v{vQC+i}, v3, 4, v4")
        if 0 < i < 4: A(f"v_subrev_u32 v{vQC+i}, {1024*i}, v{vQC+i}")
    A(f"s_mul_i32 s{sT0}, s{sWAVE}, 5120"); A(f"s_add_u32 m0, s{sT0}, {PKS}")
    A(f"s_mov_b64 exec, s[{sEX}:{sEX+1}]")
    for i in range(4):
        A(f"buffer_load_dwordx4 v{vQC+i}, {srdr(SPK)}, s{sPKO} offen offset:{1024*i} lds", "pk")
    A("s_add_u32 m0, m0, 4096")
    A(f"buffer_load_dwordx4 v{vQC+4}, {srdr(SPK)}, s{sPKO} offen lds", "pk")
    A("s_mov_b64 exec, -1")
    A("v_lshrrev_b32 v1, 4, v0"); A("v_bfe_u32 v2, v0, 2, 2"); A("v_lshl_add_u32 v1, v1, 3, v2")
    A("v_mul_u32_u24 v1, 160, v1")
    A(f"s_min_u32 s{sT0}, s{sWAVE}, 2"); A(f"s_mul_i32 s{sT0}, s{sT0}, 5120"); A(f"s_add_u32 s{sT0}, s{sT0}, {PKS}")
    A(f"v_add_u32 v1, s{sT0}, v1")
    A("v_and_b32 v2, 3, v0")
    A(f"v_lshl_add_u32 v{vQC+5}, v2, 4, v1")
    A(f"v_lshl_add_u32 v{vQC+6}, v2, 3, v1")

def pack_finish(A, R):
    A.wait(vm="pk")
    for nt in range(5):
        for rho in range(2):
            if nt < 4: A(f"ds_read_b64_tr_b16 {v(R+4*nt+2*rho,2)}, v{vQC+5} offset:{rho*640 + 64*(nt>>1) + 8*(nt&1)}")
            else: A(f"ds_read_b64_tr_b16 {v(R+4*nt+2*rho,2)}, v{vQC+6} offset:{rho*640 + 128}")
    for nt in range(5):
        A(f"buffer_store_dwordx4 {v(R+4*nt,4)}, v{vW+(nt>>2)}, {srdr(SWS)}, s{sPKD} offen offset:{1024*(nt&3)} sc1", "prep")

def phi_loads(A, kv, R):
    A(f"s_lshl_b32 s{sF0}, s{sC}, 2"); A(f"s_add_u32 s{sF0}, s{sF0}, s{sWAVE}"); A(f"s_mul_i32 s{sF0}, s{sF0}, 800")
    A(f"s_and_b32 s{sF1}, s{sWAVE}, 1"); A(f"s_mul_i32 s{sF1}, s{sF1}, 10")
    A(f"v_add_u32 v1, s{sF1}, v0"); A("v_subrev_u32 v2, 50, v1"); A("v_min_u32 v1, v1, v2")
    A("v_lshlrev_b32 v1, 4, v1")
    A(f"v_mov_b32 v2, {hex(OOB)}")
    A("v_cmp_gt_u32 vcc, 50, v0")
    A.g("v_cndmask_b32 v1, v2, v1, vcc")
    A.g(f"v_cndmask_b32 v3, v2, v{vW}, vcc")
    A(f"buffer_load_dwordx4 {v(R,4)}, v1, {srdr(SPH)}, s{sF0} offen")
    if kv:
        A(f"s_lshl_b32 s{sF0}, s{sU}, 2"); A(f"s_add_u32 s{sF0}, s{sF0}, s{sWAVE}"); A(f"s_mul_i32 s{sF0}, s{sF0}, 800")
        A(f"buffer_load_dwordx4 {v(R+4,4)}, v3, {srdr(SPH)}, s{sF0} offen")

def phi_writes(A, kv, R):
    A(f"s_mul_i32 s{sF0}, s{sWAVE}, 960"); A(f"s_add_u32 s{sF0}, s{sF0}, {PHI1}")
    A(f"v_add_u32 v1, s{sF0}, v{vW}")
    A(f"s_mul_i32 s{sF0}, s{sWAVE}, 480"); A(f"s_add_u32 s{sF0}, s{sF0}, {PZERO}")
    A(f"v_lshl_add_u32 v2, v0, 3, s{sF0}")
    A("v_mov_b32 v4, 0"); A("v_mov_b32 v5, 0")
    A(f"s_bfm_b64 exec, 60, 0")
    A.g(f"ds_write_b128 v1, {v(R,4)} offset:3840")
    if kv: A.g(f"ds_write_b128 v1, {v(R+4,4)}")
    A.g("ds_write_b64 v2, v[4:5]")
    A.g("s_mov_b64 exec, -1")

vA = 16; vQA = 20; vOA = 23; vF1 = 24; vF2 = 25; vXO = 26; vRW = 28; vRR = 31; vKA = 32
QR = 84; ST2 = 96; PA2 = 64; PK2 = 44; NU = 64; KVR = 88; XRS = 88
ACT = 112; ACCO = 176; aO = 100

def p2_addr_early(A):
    for k in range(4):
        A(f"s_add_u32 s{sF0}, s{sWAVE}, {k}"); A(f"s_and_b32 s{sF0}, s{sF0}, 3"); A(f"s_mul_i32 s{sF0}, s{sF0}, {ACT_BLK}")
        A(f"v_add_u32 v{vA+k}, s{sF0}, v{vW}")
    A("v_lshrrev_b32 v1, 4, v0")
    A("v_and_b32 v2, 1, v1")
    A("v_lshrrev_b32 v3, 1, v1"); A("v_mul_u32_u24 v3, 5, v3")
    A(f"s_mul_i32 s{sF0}, s{sC}, 10")
    A(f"v_add_u32 v3, s{sF0}, v3")
    A("v_and_b32 v4, 15, v0"); A("v_lshlrev_b32 v4, 4, v4")
    A("v_lshl_add_u32 v4, v3, 8, v4")
    A("v_mul_u32_u24 v5, 768, v2")
    A(f"v_add_u32 v{vQA}, v4, v5")
    A(f"v_lshl_add_u32 v{vQA+1}, v2, 3, v4")
    A("v_and_b32 v4, 15, v0"); A(f"v_lshlrev_b32 v{vQA+2}, 3, v4")
    A(f"s_mul_i32 s{sAB}, s{sR}, {4*ACT_BLK}"); A(f"s_add_u32 s{sAB}, s{sAB}, {ACT_OFF}")
    A(f"s_lshl_b32 s{sF0}, s{sWAVE}, 10"); A(f"s_add_u32 s{sA}, s{sAB}, s{sF0}")

def act_load(n, k):
    o = []
    if k == 0 and n > 0:
        o.append((f"s_add_u32 s{sA}, s{sA}, 4096", None, 0))
        if n == 13:
            o.append((f"s_cmp_lt_u32 s{sWAVE}, 2\ns_cselect_b32 s{sA}, s{sA}, {hex(OOB)}", None, 0))
    o.append((f"buffer_load_dwordx4 {v(ACT+16*(n%4)+4*k,4)}, v{vA+k}, {srdr(SWS)}, s{sA} offen sc1", f"A{n}", 1))
    return o

def p2_first_loads(A):
    A(f"s_mul_i32 s{sP0}, s{sWAVE}, {ACT_BLK}"); A(f"s_add_u32 s{sP0}, s{sP0}, s{sAB}")
    A(f"s_add_u32 s{sP0}, s{sP0}, {74*1024}")
    A(f"buffer_load_dwordx4 {v(QR,4)}, v{vQA}, {srdr(SWS)}, s{sP0} offen sc1")
    A(f"buffer_load_dwordx4 {v(QR+4,4)}, v{vQA}, {srdr(SWS)}, s{sP0} offen offset:256 sc1")
    A(f"buffer_load_dwordx2 {v(QR+8,2)}, v{vQA+1}, {srdr(SWS)}, s{sP0} offen offset:512 sc1")
    A(f"s_lshl_b32 s{sP0}, s{sR}, 2"); A(f"s_add_u32 s{sP0}, s{sP0}, s{sWAVE}"); A(f"s_lshl_b32 s{sP0}, s{sP0}, 7")
    A(f"s_add_u32 s{sP0}, s{sP0}, {ST_OFF}")
    A(f"buffer_load_dwordx2 {v(ST2,2)}, v{vQA+2}, {srdr(SWS)}, s{sP0} offen sc1")
    for n in range(4):
        for k in range(4): emit(A, act_load(n, k))

def prologue(A, C):
    L = C.L
    A.label(L("start"))
    A(f"s_getpc_b64 s[{sT0}:{sT0+1}]")
    A("s_cmp_ge_u32 s2, 256")
    A(f"s_cbranch_scc1 {L('end')}")
    A("s_load_dwordx16 s[4:19], s[0:1], 0")
    A("s_load_dwordx2 s[20:21], s[0:1], 80")
    A("s_load_dwordx2 s[22:23], s[0:1], 64")
    stamp(A, 0, True); stamp(A, 1)
    A(f"s_bfe_u32 s{sT2}, s2, 0x30003"); A(f"s_lshl_b32 s{sT2}, s{sT2}, 13")
    A("v_lshrrev_b32 v1, 6, v0"); A("v_and_b32 v2, 15, v0"); A("v_lshl_add_u32 v2, v1, 4, v2")
    A(f"v_lshl_add_u32 v2, v2, 7, s{sT2}")
    A(f"v_min_u32 v2, {L('end')}-{L('start')}-8, v2")
    A(f"v_mov_b32 v3, s{sT0+1}")
    A(f"v_add_co_u32 v2, vcc, s{sT0}, v2")
    A("v_addc_co_u32 v3, vcc, 0, v3, vcc")
    A("global_load_dword v255, v[2:3], off")
    A(f"v_readfirstlane_b32 s{sWAVE}, v1")
    A(f"v_mov_b32 v{vTID}, v0")
    A("v_and_b32 v0, 63, v0")
    A(f"s_and_b32 s{sT0}, s2, 7"); A(f"s_lshr_b32 s{sT1}, s2, 3")
    A(f"s_lshr_b32 s{sM}, s{sT0}, 1"); A(f"s_lshl_b32 s{sR}, s{sM}, 3"); A(f"s_lshl_b32 s{sM}, s{sM}, 2")
    A(f"s_and_b32 s{sT2}, s{sT1}, 3"); A(f"s_add_u32 s{sM}, s{sM}, s{sT2}")
    A(f"s_and_b32 s{sT0}, s{sT0}, 1"); A(f"s_lshl_b32 s{sT0}, s{sT0}, 2")
    A(f"s_add_u32 s{sC}, s{sT0}, s{sT2}")
    A(f"s_lshr_b32 s{sT1}, s{sT1}, 2")
    A(f"s_add_u32 s{sR}, s{sR}, s{sT1}")
    A(f"s_and_b32 s{sU}, s{sT1}, 3"); A(f"s_add_u32 s{sU}, s{sU}, s{sT0}")
    A("v_lshrrev_b32 v1, 3, v0"); A("v_and_b32 v2, 7, v0")
    A(f"s_lshl_b32 s{sT0}, s{sWAVE}, 5")
    A("v_lshrrev_b32 v4, 4, v0"); A("v_xor_b32 v4, v4, v2")
    A(f"v_add_u32 v3, s{sT0}, v1"); A("v_mul_u32_u24 v3, 1280, v3")
    A(f"v_lshl_add_u32 v{vXD}, v4, 4, v3")
    A(f"v_xor_b32 v5, 64, v{vXD}")
    A(f"v_add_u32 v{vXD+1}, {8*1280-1024}, v5")
    A(f"v_add_u32 v{vXD+2}, {16*1280-2048}, v{vXD}")
    A(f"v_add_u32 v{vXD+3}, {24*1280-3072}, v5")
    A(f"s_mul_i32 s{sXO}, s{sM}, {128*1280}")
    A(f"s_lshl_b32 s{sXM}, s{sWAVE}, 14"); A(f"s_add_u32 s{sXM}, s{sXM}, {XR}")
    A(f"v_lshlrev_b32 v{vW}, 4, v0"); A(f"v_add_u32 v{vW+1}, 4096, v{vW}")
    A(f"s_cmp_ge_u32 s{sT1}, 4")
    A(f"s_cbranch_scc1 {L('prole')}")

def pair_lane(A):
    A("v_lshrrev_b32 v1, 3, v0"); A("v_and_b32 v2, 7, v0")
    A("v_bfe_u32 v3, v0, 4, 1"); A("v_lshlrev_b32 v3, 2, v3"); A("v_xor_b32 v3, v3, v2")

def build_srds(A):
    srd(A, SWS, 20, WS_SIZE)
    A(f"s_lshr_b32 s{sT0}, s2, 2"); A(f"s_cmp_lt_u32 s{sT0}, 30")
    A(f"s_cselect_b64 s[{SCS}:{SCS+1}], s[6:7], s[14:15]")
    csel(A, SCS + 2, 640*3840, 640*3456)
    A(f"s_and_b32 s{SCS+1}, s{SCS+1}, 0xffff"); A(f"s_mov_b32 s{SCS+3}, 0x20000")
    A(f"s_lshr_b32 s{sT0}, s2, 3"); A(f"s_lshl_b32 s{sT1}, s{sWAVE}, 5"); A(f"s_add_u32 s{sT0}, s{sT0}, s{sT1}")
    A(f"s_cmp_lt_u32 s{sT0}, 54")
    A(f"s_cselect_b64 s[{SPK}:{SPK+1}], s[18:19], s[10:11]")
    csel(A, SPK + 2, 1728*1280, 640*1280)
    A(f"s_and_b32 s{SPK+1}, s{SPK+1}, 0xffff"); A(f"s_mov_b32 s{SPK+3}, 0x20000")
    srd(A, SB1, 16, 1728 * 2)
    srd(A, SPH, 8, 32 * 800)
    srd(A, SOUT, 22, 2048 * 1280)

def common_addr(A):
    A("v_and_b32 v1, 31, v0"); A("v_lshrrev_b32 v2, 5, v0"); A("v_bfe_u32 v3, v0, 1, 3")
    A("v_lshlrev_b32 v4, 7, v1"); A(f"v_add_u32 v4, s{sXM}, v4")
    for q in range(4):
        A(f"v_add_u32 v5, {2*q}, v2"); A("v_xor_b32 v5, v5, v3")
        A(f"v_lshl_add_u32 v{vXRD+q}, v5, 4, v4")
    A("v_lshrrev_b32 v3, 4, v1"); A(f"v_mul_u32_u24 v3, {ACT_BLK}, v3"); A("v_lshl_add_u32 v3, v2, 8, v3")
    A("v_and_b32 v4, 15, v0"); A(f"v_lshl_add_u32 v{vAST}, v4, 4, v3")
    A(f"s_lshl_b32 s{sT0}, s{sM}, 3"); A(f"s_lshl_b32 s{sT1}, s{sWAVE}, 1"); A(f"s_add_u32 s{sT0}, s{sT0}, s{sT1}")
    A(f"s_mul_i32 s{sACT}, s{sT0}, {ACT_BLK}"); A(f"s_add_u32 s{sACT}, s{sACT}, {ACT_OFF}")
    A(f"s_lshl_b32 s{sT0}, s2, 8"); A(f"s_add_u32 s{sT0}, s{sT0}, {FLG_OFF}")
    A(f"v_mov_b32 v3, s{sT0}"); A(f"v_mov_b32 v4, {hex(OOB)}")
    A(f"v_cmp_eq_u32 vcc, 0, v{vTID}"); A(f"v_cndmask_b32 v{vFL}, v4, v3, vcc")
    poll_addr(A, "all", 3, 4)
    A(f"s_mul_i32 s{sW}, s{sC}, 74"); A(f"s_add_u32 s{sW}, s{sW}, s{sWAVE}"); A(f"s_mul_i32 s{sW}, s{sW}, 5120")
    A(f"s_add_u32 s{sW}, s{sW}, {W2P_OFF}")
    A(f"s_add_u32 s{sX1}, s{sW}, {13*20480}")
    A(f"s_cmp_lt_u32 s{sWAVE}, 2"); A(f"s_cselect_b32 s{sX1}, s{sX1}, {hex(OOB)}")
    A(f"s_mul_i32 s{sPV}, s{sWAVE}, {4*5120}"); A(f"s_add_u32 s{sPV}, s{sPV}, {6*5120}")
    A("v_and_b32 v1, 3, v0"); A("v_bfe_u32 v2, v0, 2, 1"); A("v_bfe_u32 v3, v0, 3, 2")
    A("v_lshrrev_b32 v4, 1, v3"); A("v_lshl_add_u32 v4, v4, 1, v2")
    A("v_and_b32 v5, 1, v3"); A("v_lshl_add_u32 v5, v5, 2, v1"); A("v_lshl_add_u32 v4, v4, 3, v5")
    A(f"v_lshlrev_b32 v{vCP}, 4, v4"); A(f"v_lshlrev_b32 v{vCP2}, 1, v4")

def pair_read_base(A, dst):
    A("v_lshrrev_b32 v7, 1, v4"); A("v_lshlrev_b32 v7, 2, v7"); A("v_lshl_add_u32 v7, v3, 1, v7")
    A("v_and_b32 v5, 1, v4"); A("v_add_u32 v7, v7, v5"); A("v_lshlrev_b32 v7, 3, v7")
    A("v_lshl_add_u32 v7, v6, 7, v7"); A("v_bfe_u32 v5, v0, 3, 1"); A(f"v_lshl_add_u32 v{dst}, v5, 6, v7")

def stats_load(A):
    A(f"s_lshl_b32 s{sP0}, s{sM}, 2"); A(f"s_add_u32 s{sP0}, s{sP0}, s{sWAVE}"); A(f"s_lshl_b32 s{sP0}, s{sP0}, 8")
    A(f"s_add_u32 s{sP0}, s{sP0}, {ST_OFF}")
    A(f"v_and_b32 v{vPT}, 31, v0"); A(f"v_lshlrev_b32 v{vPT}, 3, v{vPT}")
    A(f"buffer_load_dwordx2 {v(vST,2)}, v{vPT}, {srdr(SWS)}, s{sP0} offen sc1")

def epoch_load(A):
    A(f"v_mov_b32 v{vEP}, 0")
    A(f"buffer_load_dword v{vEP}, v{vEP}, {srdr(SWS)}, 0 offen sc1")

def role_kv(A, C):
    L = C.L
    ACC_A = 176; ACC_Q = 64; KP = 96; PAK = 120; VP = 184; EP = 216; PK = 184; KVA = 184; CR = 120
    A(f"s_lshl_b32 s{sT0}, s{sWAVE}, 4")
    A(f"s_mul_i32 s{sT1}, s{sU}, 160"); A(f"s_add_u32 s{sT1}, s{sT1}, 1280")
    for i in range(5):
        A(f"v_add_u32 v1, {64*i}, v0")
        A("v_mul_u32_u24 v2, 3277, v1"); A("v_lshrrev_b32 v2, 16, v2")
        A("v_mul_u32_u24 v3, 20, v2"); A("v_sub_u32 v3, v1, v3")
        A("v_mul_u32_u24 v4, 13108, v3"); A("v_lshrrev_b32 v4, 16, v4")
        A("v_and_b32 v5, 1, v4"); A("v_lshrrev_b32 v4, 1, v4")
        A("v_mul_u32_u24 v5, 1200, v5"); A("v_mul_u32_u24 v4, 80, v4")
        A(f"v_add_u32 v2, s{sT0}, v2"); A("v_mul_u32_u24 v2, 3840, v2"); A("v_lshl_add_u32 v2, v3, 4, v2")
        A("v_add_u32 v2, v2, v5"); A("v_sub_u32 v2, v2, v4")
        A(f"v_add_u32 v{vAD+i}, s{sT1}, v2")
        if 0 < i < 4: A(f"v_subrev_u32 v{vAD+i}, {1024*i}, v{vAD+i}")
    A(f"s_mul_i32 s{sWB}, s{sWAVE}, 5120")
    A("s_waitcnt lgkmcnt(0)")
    srd(A, SX, 4, 2048 * 1280)
    srd(A, SWA, 6, 640 * 3840)
    build_srds(A)
    emit(A, x_dma(0)); emit(A, kv_dma(0))
    prep_loads(A, C, "kv")
    epoch_load(A)
    emit(A, x_dma(1)); emit(A, kv_dma(1))
    pack_setup(A)
    emit(A, x_dma(2)); emit(A, kv_dma(2)); emit(A, x_dma(3))
    pair_lane(A)
    A(f"s_mul_i32 s{sT0}, s{sWAVE}, 40"); A(f"v_add_u32 v4, s{sT0}, v1"); A("v_mul_u32_u24 v4, 3840, v4")
    A(f"v_lshl_add_u32 v{vPD}, v3, 4, v4")
    for i in range(1, 5):
        A(f"v_add_u32 v{vPD+i}, {8*3840*i - (1024*i if i < 4 else 0)}, v{vPD}")
    A(f"s_lshl_b32 s{sWO2}, s{sU}, 7")
    common_addr(A)
    vCA = 40
    A("v_mul_u32_u24 v4, 40, v2"); A("v_lshl_add_u32 v4, v3, 2, v4"); A("v_add_u32 v4, v4, v1")
    A(f"v_lshlrev_b32 v{vCA}, 4, v4"); A(f"v_add_u32 v{vCA+2}, {600*16}, v{vCA}")
    A("v_cmp_lt_u32 vcc, 1, v3"); A(f"v_cndmask_b32 v{vCA+1}, v{vCA}, v{vCA+2}, vcc")
    common_lane(A)
    A("v_mul_u32_u24 v7, 320, v6"); A(f"v_mul_u32_u24 v{vAR}, 160, v3"); A(f"v_add_u32 v{vAR}, v{vAR}, v7")
    A(f"v_lshl_add_u32 v{vAR}, v4, 3, v{vAR}"); A(f"v_add_u32 v{vAR+1}, {3*20480}, v{vAR}")
    pair_read_base(A, vPR)
    A(f"v_xor_b32 v{vPR+1}, 64, v{vPR}")
    A(f"v_add_u32 v{vPR+2}, {3*20480}, v{vPR}"); A(f"v_add_u32 v{vPR+3}, {3*20480}, v{vPR+1}")
    prep_compute(A, C, "kv")
    A(f"v_readfirstlane_b32 s{sE}, v{vEP}")
    stamp(A, 2)
    steps = []
    for s in range(40):
        c, sp = divmod(s, 4)
        rd = []
        for t in range(5):
            for rho in range(2):
                sl = c % 4
                off = (0 if sl == 3 else sl * 20480) + sp * 5120 + rho * 1280 + t * 32
                rd.append(f"ds_read_b64_tr_b16 {a(aW + 20*(s&1) + 4*t + 2*rho, 2)}, v{vAR + (sl == 3)} offset:{off}")
        q = []
        if sp == 0: q += kv_dma(c + 3)
        if sp == 1 and c + 4 < 10: q += [("WAITX", None, 0)] + x_dma(c + 4)
        steps.append(dict(nt=5, acc=ACC_A, first=(s == 0), xreg=aX + 4 * s, frag=aW + 20 * (s & 1), reads=rd,
                          chunk=c if sp == 0 else None, xj=c if sp == 0 else None, queue=q,
                          tags=["prep"] if s == 16 else []))
    def pre(A, c):
        if c == 9: poll_check(A, C, 1)
    def post(A, c):
        if c == 0: stamp(A, 3)
        if c == 4: signal(A, 1)
        if c == 8: poll_issue(A)
        if c == 9:
            stats_load(A)
            A(f"s_mul_i32 s{sP0}, s{sU}, {80*16}"); A(f"s_add_u32 s{sP0}, s{sP0}, {CS_OFF + 640*16}")
            for t in range(5):
                A(f"buffer_load_dwordx4 {v(CR+4*t,4)}, v{vCA+[0,0,1,2,2][t]}, {srdr(SWS)}, s{sP0} offen offset:{256*t} sc1")
            A(f"s_lshl_b32 s{sP0}, s{sU}, 10"); A(f"s_add_u32 s{sP0}, s{sP0}, {CS_OFF}")
            for t in range(2):
                A(f"buffer_load_dwordx4 {v(vQC+4*t,4)}, v{vCP}, {srdr(SWS)}, s{sP0} offen offset:{512*t} sc1")
    M = Asm(); dq = DQ()
    gemm_steps(M, steps, 1, dq, pre, post)
    assert not dq.q
    F = Asm(); pack_finish(F, 64)
    ins, left = weave(M, F, start=42, per=2)
    assert not left
    F = Asm(); phi_loads(F, True, 64)
    ins, left = weave(ins, F, start=105, per=2); assert not left
    F = Asm(); phi_writes(F, True, 64)
    ins, left = weave(ins, F, start=150, per=2); assert not left
    A.extend(ins)
    stamp(A, 4)
    steps = []
    for s in range(40):
        c, sp = divmod(s, 10)
        g = 10 + c
        rd = []
        for t in range(2):
            for rho in range(2):
                sl = g % 4
                off = (0 if sl == 3 else sl * 20480) + sp * 2048 + rho * 512
                rd.append(f"ds_read_b64_tr_b16 {a(aW + 8*(s%3) + 4*t + 2*rho, 2)}, v{vPR + t + 2*(sl == 3)} offset:{off}")
        q = []
        if s == 0: q += kv_dma(13) + w2p_loads(0) + w2p_loads(1)
        if s >= 8 and (s - 8) % 5 == 0: q += w2p_loads(2 + (s - 8) // 5)
        steps.append(dict(nt=2, acc=ACC_Q, first=(s == 0), xreg=aX + 4 * s, frag=aW + 8 * (s % 3), reads=rd,
                          chunk=g if sp == 0 else None, xj=None, queue=q))
    M = Asm(); dq = DQ()
    gemm_steps(M, steps, 2, dq)
    dq.pop(M, 99)
    F = Asm()
    stats_frag(F, 1)
    for t in range(5):
        corr_frag(F, CR + 4 * t, None, 1 + (t & 1))
    for t in range(5):
        F(f"v_mfma_f32_32x32x16_bf16 {v(ACC_A+16*t,16)}, {v(CR+4*t,4)}, {v(vCB,4)}, {v(ACC_A+16*t,16)}")
    for t in range(2):
        corr_frag(F, vQC + 4 * t, None, 1 + (t & 1))
    common_lane(F)
    F("v_mul_u32_u24 v7, 1920, v3"); F(f"v_add_u32 v7, {PHI1}, v7"); F(f"v_mov_b32 v5, {PZERO}")
    F("v_cmp_eq_u32 vcc, v1, v3"); F.g("v_cndmask_b32 v7, v5, v7, vcc")
    F("v_mul_u32_u24 v5, 40, v2"); F("v_add_u32 v7, v7, v5"); F("v_lshl_add_u32 v6, v4, 3, v7"); F("v_add_u32 v7, 32, v7")
    bufs = [184, 188, 192, 196, 240, 244, 248, 252]
    seq = [(sg, tau, st) for sg in range(2) for st in range(3) for tau in range(2)]
    def prd(n):
        sg, tau, st = seq[n]
        for rho in range(2):
            F(f"ds_read_b64_tr_b16 {a(bufs[n%8]+2*rho,2)}, v{6+tau} offset:{sg*960+(8*st+4*rho)*40}")
    for n in range(8): prd(n)
    for i in range(20):
        F(f"v_cvt_pk_bf16_f32 v{KP+i}, v{ACC_A+2*i}, v{ACC_A+2*i+1}")
    F(f"v_mov_b32 v{KP+20}, 0"); F(f"v_mov_b32 v{KP+21}, 0")
    vs = Asm()
    for sg in range(2):
        for i in range(10):
            r = ACC_A + 40 + 20 * sg + 2 * i
            vs(f"v_mul_f32 v{r}, v{r}, v{vRS}"); vs(f"v_mul_f32 v{r+1}, v{r+1}, v{vRS}")
            vs(f"v_cvt_pk_bf16_f32 v{VP+12*sg+i}, v{r}, v{r+1}")
        vs(f"v_mov_b32 v{VP+12*sg+10}, 0x3f80"); vs(f"v_mov_b32 v{VP+12*sg+11}, 0")
    vs("v_and_b32 v1, 31, v0"); vs(f"s_lshl_b32 s{sF0}, s{sWAVE}, 5"); vs(f"v_add_u32 v1, s{sF0}, v1")
    vs("v_lshrrev_b32 v2, 5, v0")
    vs("v_mul_u32_u24 v3, 80, v1"); vs("v_mul_u32_u24 v4, 20480, v2"); vs("v_add_u32 v3, v3, v4"); vs(f"v_add_u32 v3, {PHIK}, v3")
    vs("v_mul_u32_u24 v4, 48, v1"); vs("v_mul_u32_u24 v5, 12288, v2"); vs("v_add_u32 v4, v4, v5"); vs(f"v_add_u32 v4, {VIM}, v4")
    vsl = list(vs.ins)
    for n in range(12):
        sg, tau, st = seq[n]
        d = v(PAK + 32 * sg + 16 * tau, 16)
        F(f"v_mfma_f32_32x32x16_bf16 {d}, {a(bufs[n%8],4)}, {v(KP+10*sg+4*st,4)}, {'0' if st == 0 else d}")
        if n + 8 < 12: prd(n + 8)
        F.extend(vsl[:6]); vsl = vsl[6:]
    F.extend(vsl)
    for sg in range(2):
        for i in range(3):
            F(f"ds_write_b128 v4, {v(VP+12*sg+4*i,4)} offset:{6144*sg+16*i}")
    for sg in range(2):
        softmax_pair(F, PAK + 32 * sg, EP, EP + 20, PK, vS1, 1)
        for i in range(5):
            F(f"ds_write_b128 v3, {v(PK+4*i,4)} offset:{10240*sg+16*i}")
    F("v_lshrrev_b32 v1, 5, v0"); F("v_bfe_u32 v2, v0, 2, 2"); F("v_lshlrev_b32 v2, 2, v2"); F("v_lshl_add_u32 v2, v1, 1, v2")
    F("v_and_b32 v3, 3, v0"); F("v_bfe_u32 v4, v0, 4, 1"); F("v_lshl_add_u32 v3, v4, 2, v3")
    F(f"s_mul_i32 s{sF0}, s{sWAVE}, 10240"); F(f"s_add_u32 s{sF0}, s{sF0}, {PHIK}")
    F("v_mul_u32_u24 v4, 80, v2"); F(f"v_add_u32 v4, s{sF0}, v4"); F("v_lshl_add_u32 v5, v3, 3, v4")
    F("v_and_b32 v6, 1, v3"); F("v_lshl_add_u32 v6, v6, 3, v4"); F("v_add_u32 v6, 64, v6")
    F(f"s_mul_i32 s{sF0}, s{sWAVE}, 6144"); F(f"s_add_u32 s{sF0}, s{sF0}, {VIM}")
    F("v_mul_u32_u24 v4, 48, v2"); F(f"v_add_u32 v4, s{sF0}, v4"); F("v_min_u32 v7, 5, v3"); F("v_lshl_add_u32 v7, v7, 3, v4")
    k0 = next(i for i, x in enumerate(M.ins) if x.cls == "mfma")
    head = 30
    A.extend(M.ins[:k0]); A.extend(F.ins[:head])
    assert not F.ins[head].glue
    ins, left = weave(M.ins[k0:], F.ins[head:], per=OPT.get("kvper", 9))
    A.extend(ins); A.extend(left)
    stamp(A, 5)
    emit(A, w2p_loads(9))
    for t in range(2):
        A(f"v_mfma_f32_32x32x16_bf16 {v(ACC_Q+16*t,16)}, {v(vQC+4*t,4)}, {v(vCB,4)}, {v(ACC_Q+16*t,16)}")
    A.wait(lgkm="all")
    A("s_barrier")
    fb = [160, 172, 184, 240]
    def krd(st):
        fr = fb[st % 4]
        for rho in range(2):
            A(f"ds_read_b64_tr_b16 {a(fr+2*rho,2)}, v5 offset:{(16*st+rho)*80}")
            A(f"ds_read_b64_tr_b16 {a(fr+8+2*rho,2)}, v7 offset:{(16*st+rho)*48}")
            A(f"ds_read_b64_tr_b16 {a(fr+4+2*rho,2)}, v6 offset:{(16*st+rho)*80}")
    for st in range(4): krd(st)
    A(f"s_lshl_b32 s{sP0}, s{sU}, 11"); A(f"s_add_u32 s{sP0}, s{sP0}, s{sACT}"); A(f"s_add_u32 s{sP0}, s{sP0}, {74*1024}")
    for t in range(2):
        for p in range(2):
            for i in range(4):
                r = ACC_Q + 16 * t + 8 * p
                A(f"v_cvt_pk_bf16_f32 v{r+i}, v{r+2*i}, v{r+2*i+1}")
            pair_store(A, ACC_Q, sP0, "qst", t, p)
    G = Asm()
    poll_addr(G, "grp", 1, 2)
    p2_addr_early(G)
    G("v_and_b32 v1, 31, v0"); G("v_lshrrev_b32 v2, 5, v0"); G("v_lshlrev_b32 v2, 9, v2"); G("v_lshl_add_u32 v2, v1, 2, v2")
    G(f"v_mov_b32 v3, {hex(OOB)}"); G("v_cmp_gt_u32 vcc, 21, v1"); G.g(f"v_cndmask_b32 v{vKA}, v3, v2, vcc")
    G(f"s_lshl_b32 s{sT0}, s{sU}, 2"); G(f"s_add_u32 s{sT0}, s{sT0}, s{sWAVE}"); G(f"s_mul_i32 s{sT0}, s{sT0}, 5120")
    G(f"s_add_u32 s{sT0}, s{sT0}, {KV_OFF}"); G(f"s_add_u32 s{sT1}, s{sT0}, 4096")
    K = Asm()
    sv = A.ins; A.ins = K.ins
    for st in range(8):
        fr = fb[st % 4]
        for tau in range(2):
            d = v(KVA + 16 * tau, 16)
            A(f"v_mfma_f32_32x32x16_bf16 {d}, {a(fr+4*tau,4)}, {a(fr+8,4)}, {'0' if st == 0 else d}")
        if st + 4 < 8: krd(st + 4)
    A.ins = sv
    ins, left = weave(K, G, start=8, per=6)
    A.extend(ins); A.extend(left)
    emit(A, w2p_loads(10)); emit(A, w2p_loads(11))
    for r in range(20):
        f = 8 * (r >> 2) + (r & 3)
        A(f"buffer_atomic_add_f32 v{KVA+r}, v{vKA}, {srdr(SWS)}, s{sT0 if f < 32 else sT1} offen offset:{(f & 31)*128} sc1", "fin")
    A.wait(vm="qst")
    A("s_barrier")
    signal(A, 2)
    poll_issue(A)
    stamp(A, 6)
    A.wait(vm="fin")
    A("s_barrier")
    signal(A, 3)
    poll_check(A, C, 2)
    p2_first_loads(A)
    stamp(A, 7)
    A(f"s_branch {L('tail')}")

def role_p(A, C):
    L = C.L
    ACC1 = 112; ACC2 = 176; CR1 = 64; CR2 = 84; MT = 240
    A.label(L("prole"))
    pair_lane(A)
    A(f"s_and_b32 s{sT0}, s{sWAVE}, 1"); A(f"s_lshl_b32 s{sT0}, s{sT0}, 5"); A(f"v_add_u32 v4, s{sT0}, v1")
    A("v_mul_u32_u24 v5, 3456, v4"); A(f"v_lshl_add_u32 v{vP1}, v3, 4, v5")
    for i in range(1, 4):
        A(f"v_add_u32 v{vP1+i}, {8*3456*i - 1024*i}, v{vP1}")
    A(f"s_lshl_b32 s{sWB}, s{sWAVE}, 12")
    A(f"s_cmp_lt_u32 s{sU}, 2"); A(f"s_cselect_b32 s{sT2}, 1, 0")
    A(f"s_lshr_b32 s{sT1}, s{sWAVE}, 1"); A(f"s_and_b32 s{sT2}, s{sT2}, s{sT1}")
    A("s_waitcnt lgkmcnt(0)")
    srd(A, SX, 4, 2048 * 1280)
    srd(A, SWA, 14, 640 * 3456)
    A(f"s_cmp_eq_u32 s{sT2}, 1")
    A(f"s_cselect_b64 s[{SWB}:{SWB+1}], s[6:7], s[14:15]")
    csel(A, SWB + 2, 640*3840, 640*3456)
    csel(A, sT3, 3840, 3456)
    A(f"s_and_b32 s{SWB+1}, s{SWB+1}, 0xffff"); A(f"s_mov_b32 s{SWB+3}, 0x20000")
    A(f"v_mul_u32_u24 v5, s{sT3}, v4"); A(f"v_lshl_add_u32 v{vP2}, v3, 4, v5")
    build_srds(A)
    A(f"s_lshl_b32 s{sWS}, s{sT3}, 6")
    A(f"s_lshl_b32 s{sT3}, s{sT3}, 3"); A(f"s_sub_u32 s{sT3}, s{sT3}, 1024")
    A(f"s_lshl_b32 s{sWO}, s{sU}, 1"); A(f"s_lshr_b32 s{sT1}, s{sWAVE}, 1"); A(f"s_add_u32 s{sWO}, s{sWO}, s{sT1}")
    A(f"s_lshl_b32 s{sWO}, s{sWO}, 7")
    emit(A, x_dma(0)); emit(A, p_dma(0))
    for i in range(1, 4):
        A(f"v_add_u32 v{vP2+i}, s{sT3}, v{vP2+i-1}")
    prep_loads(A, C, "p")
    epoch_load(A)
    emit(A, x_dma(1)); emit(A, p_dma(1))
    pack_setup(A)
    emit(A, x_dma(2)); emit(A, p_dma(2)); emit(A, x_dma(3)); emit(A, p_dma(3))
    common_addr(A)
    A(f"s_cmp_lt_u32 s{sU}, 5"); A(f"s_cselect_b32 s{sQF}, 0, 2")
    A(f"s_cmp_lt_u32 s{sU}, 2"); A(f"s_cselect_b32 s{sQF}, 1, s{sQF}")
    A(f"s_cselect_b32 s{sT0}, 8, 22"); A(f"s_add_u32 s{sT0}, s{sT0}, s{sU}")
    A(f"s_cmp_eq_u32 s{sQF}, 1")
    A(f"s_cselect_b32 s{sT1}, 0, {1920*16}"); A(f"s_cselect_b32 s{sT2}, {74*1024}, 0")
    A(f"s_lshl_b32 s{sCS3}, s{sT0}, 10"); A(f"s_add_u32 s{sCS3}, s{sCS3}, s{sT1}"); A(f"s_add_u32 s{sCS3}, s{sCS3}, {CS_OFF}")
    A(f"s_lshl_b32 s{sACT3}, s{sT0}, 11"); A(f"s_add_u32 s{sACT3}, s{sACT3}, s{sT2}"); A(f"s_add_u32 s{sACT3}, s{sACT3}, s{sACT}")
    A(f"s_lshl_b32 s{sT1}, s{sT0}, 7")
    A(f"s_cmp_eq_u32 s{sQF}, 0"); A(f"s_cselect_b32 s{sB3}, s{sT1}, {hex(OOB)}")
    A(f"s_cmp_eq_u32 s{sQF}, 2"); A(f"s_cselect_b32 s{sT1}, {hex(OOB)}, s{sT1}")
    A(f"s_add_u32 s{sT2}, s{sU}, 16"); A(f"s_lshl_b32 s{sT2}, s{sT2}, 7")
    A(f"s_cmp_lt_u32 s{sWAVE}, 2"); A(f"s_cselect_b32 s{sWO2}, s{sT2}, s{sT1}")
    common_lane(A)
    pair_read_base(A, vPRP)
    A(f"v_xor_b32 v{vPRP+1}, 64, v{vPRP}")
    A(f"v_add_u32 v{vPRP+2}, 65536, v{vPRP}"); A(f"v_add_u32 v{vPRP+3}, 65536, v{vPRP+1}")
    prep_compute(A, C, "p")
    A(f"v_readfirstlane_b32 s{sE}, v{vEP}")
    stamp(A, 2)
    steps = []
    for s in range(80):
        g, sp = divmod(s, 4)
        rd = []
        for t in range(4):
            for rho in range(2):
                sl = g % 5
                off = (0 if sl == 4 else sl * 16384) + (t >> 1) * 8192 + sp * 2048 + rho * 512
                rd.append(f"ds_read_b64_tr_b16 {a(aW + 16*(s&1) + 4*t + 2*rho, 2)}, v{vPRP + (t & 1) + 2*(sl == 4)} offset:{off}")
        q = []
        if sp == 0: q += p_dma(g + 4)
        if sp == 1 and g + 4 < 10: q += [("WAITX", None, 0)] + x_dma(g + 4)
        if s == 41: q += w2p_loads(0)
        if s == 43: q += w2p_loads(1)
        if s >= 47 and (s - 47) % 5 == 0: q += w2p_loads(2 + (s - 47) // 5)
        steps.append(dict(nt=4, acc=ACC1 if s < 40 else ACC2, first=(s % 40 == 0), xreg=aX + 4 * (s % 40), frag=aW + 16 * (s & 1),
                          reads=rd, chunk=g if sp == 0 else None, xj=g if (sp == 0 and g < 10) else None, queue=q,
                          tags=["prep"] if s == 16 else []))
    def cloads(A, R, cs0, b0, cs1, b1):
        for t in range(4):
            A(f"buffer_load_dwordx4 {v(R+4*t,4)}, v{vCP}, {srdr(SWS)}, s{cs0 if t < 2 else cs1} offen offset:{512*(t&1)} sc1")
            A(f"buffer_load_ushort v{R+16+t}, v{vCP2}, {srdr(SB1)}, s{b0 if t < 2 else b1} offen offset:{64*(t&1)}")
    def pre(A, c):
        if c == 9: poll_check(A, C, 1)
    def post(A, c):
        if c == 0: stamp(A, 3)
        if c == 4: signal(A, 1)
        if c == 8: poll_issue(A)
        if c == 9:
            stats_load(A)
            A(f"s_lshl_b32 s{sT0}, s{sU}, 11"); A(f"s_add_u32 s{sT0}, s{sT0}, {CS_OFF + 1920*16}"); A(f"s_add_u32 s{sT1}, s{sT0}, 1024")
            A(f"s_lshl_b32 s{sT2}, s{sU}, 8"); A(f"s_add_u32 s{sT3}, s{sT2}, 128")
            cloads(A, CR1, sT0, sT2, sT1, sT3)
        if c == 10: stamp(A, 4)
        if c == 13:
            A(f"s_add_u32 s{sT2}, s{sU}, 16"); A(f"s_lshl_b32 s{sT0}, s{sT2}, 10"); A(f"s_add_u32 s{sT0}, s{sT0}, {CS_OFF + 1920*16}")
            A(f"s_lshl_b32 s{sT2}, s{sT2}, 7")
            cloads(A, CR2, sT0, sT2, sCS3, sB3)
    M = Asm(); dq = DQ()
    gemm_steps(M, steps, 1, dq, pre, post)
    dq.pop(M, 99)
    F = Asm(); pack_finish(F, 64)
    ins, left = weave(M, F, start=34, per=2); assert not left
    F = Asm(); phi_loads(F, False, 64)
    ins, left = weave(ins, F, start=84, per=2); assert not left
    F = Asm(); phi_writes(F, False, 64)
    ins, left = weave(ins, F, start=120, per=2); assert not left
    F = Asm()
    for t in range(4): corr_frag(F, CR2 + 4 * t, CR2 + 16 + t, 5 + (t & 1))
    ins, left = weave(ins, F, start=240, per=1); assert not left
    F = Asm()
    stats_frag(F, 1)
    for t in range(4): corr_frag(F, CR1 + 4 * t, CR1 + 16 + t, 1 + (t & 1))
    for t in range(4):
        F(f"v_mfma_f32_32x32x16_bf16 {v(ACC1+16*t,16)}, {v(CR1+4*t,4)}, {v(vCB,4)}, {v(ACC1+16*t,16)}")
    F(f"s_lshl_b32 s{sPKO}, s{sU}, 12"); F(f"s_add_u32 s{sPKO}, s{sPKO}, s{sACT}"); F(f"s_add_u32 s{sPKD}, s{sPKO}, 2048")
    for sl in range(2):
        for t in range(2):
            for p in range(2):
                mish(F, ACC1 + 32 * sl + 16 * t + 8 * p, 8, MT + 8 * (p & 1))
                pair_store(F, ACC1 + 32 * sl, sPKO if sl == 0 else sPKD, "stA", t, p)
    ins, left = weave(ins, F, start=OPT.get("pstart", 172), budget=OPT.get("pbudget", 6))
    A.extend(ins)
    stamp(A, 5)
    for t in range(4):
        A(f"v_mfma_f32_32x32x16_bf16 {v(ACC2+16*t,16)}, {v(CR2+4*t,4)}, {v(vCB,4)}, {v(ACC2+16*t,16)}")
        if t == 0: emit(A, w2p_loads(9))
    A.extend(left)
    emit(A, w2p_loads(10)); emit(A, w2p_loads(11))
    A(f"s_cmp_eq_u32 s{sQF}, 1")
    A(f"s_cbranch_scc0 {L('noq')}")
    for t in range(2):
        for p in range(2):
            r = ACC2 + 32 + 16 * t + 8 * p
            for i in range(4): A(f"v_cvt_pk_bf16_f32 v{r+i}, v{r+2*i}, v{r+2*i+1}")
            pair_store(A, ACC2 + 32, sACT3, "stA", t, p)
    A.label(L("noq"))
    poll_addr(A, "grp", 1, 2)
    p2_addr_early(A)
    A(f"s_add_u32 s{sT0}, s{sU}, 16"); A(f"s_lshl_b32 s{sT0}, s{sT0}, 11"); A(f"s_add_u32 s{sT0}, s{sT0}, s{sACT}")
    mish_pk(A, ACC2, 8, 64)
    A.wait(vm="stA")
    A("s_barrier")
    signal(A, 2)
    pair_store(A, ACC2, sT0, "fin", 0, 0)
    for t, p in ((0, 1), (1, 0), (1, 1)):
        mish_pk(A, ACC2 + 16 * t + 8 * p, 8, 64)
        pair_store(A, ACC2, sT0, "fin", t, p)
    poll_issue(A)
    stamp(A, 6)
    A(f"s_cmp_eq_u32 s{sQF}, 0")
    A(f"s_cbranch_scc0 {L('noh3')}")
    mish_pk(A, ACC2 + 32, 32, 64)
    A.label(L("noh3"))
    A(f"s_cmp_eq_u32 s{sQF}, 0"); A(f"s_cselect_b32 s{sACT3}, s{sACT3}, {hex(OOB)}")
    poll_check(A, C, 2)
    p2_first_loads(A)
    for t in range(2):
        for p in range(2):
            pair_store(A, ACC2 + 32, sACT3, "fin", t, p)
    stamp(A, 7)

def phase2(A, C):
    L = C.L
    A.label(L("tail"))
    def step(M, n, extra):
        for k in range(4):
            b = v(ACT + 16 * (n % 4) + 4 * k, 4) if n < 14 else a(aO + 16 * (n - 14) + 4 * k, 4)
            for nt in range(5):
                d = v(ACCO + 4 * (5 * k + nt), 4)
                M(f"v_mfma_f32_16x16x32_bf16 {d}, {a(slot(n)+4*nt,4)}, {b}, {'0' if n == 0 else d}")
                emit(M, extra.get(5 * k + nt, []))
            if n + 4 < 14 and (n + 4 < 8 or n > OPT.get("p1steps", 5)): emit(M, act_load(n + 4, k))
    def wext(n):
        e = {}
        if 1 <= n and n + 11 <= 18:
            lst = w2p_loads(n + 11)
            k = 0
            for x in lst:
                e.setdefault(1 + 4 * k, []).append(x)
                k += x[2]
        return e
    F = Asm()
    F("v_lshrrev_b32 v1, 4, v0"); F("v_and_b32 v2, 3, v0"); F("v_bfe_u32 v3, v0, 2, 2")
    F("v_mul_u32_u24 v4, 960, v1"); F(f"v_add_u32 v4, {PHI2}, v4")
    F("v_mul_u32_u24 v5, 1920, v1"); F(f"v_add_u32 v5, {KVI}, v5"); F(f"v_mov_b32 v6, {PZERO}")
    F("v_cmp_eq_u32 vcc, v1, v2"); F.g("v_cndmask_b32 v4, v6, v4, vcc"); F.g("v_cndmask_b32 v5, v6, v5, vcc")
    F(f"v_mad_u32_u24 v{vF1}, v3, 40, v4"); F(f"v_mad_u32_u24 v{vF2}, v3, 48, v5")
    F(f"v_mov_b32 v{QR+10}, 0"); F(f"v_mov_b32 v{QR+11}, 0")
    fb = [("a", 240), ("a", 244), ("a", 248), ("a", 252), ("v", 100), ("v", 104), ("v", 108)]
    def reg(n, off, cnt):
        k, r = fb[n % 7]
        return R(k, r + off, cnt)
    seq = [(st, ch) for st in range(3) for ch in range(5)]
    def prd(n):
        st, ch = seq[n]
        for rho in range(2):
            F(f"ds_read_b64_tr_b16 {reg(n,2*rho,2)}, v{vF1} offset:{(8*st+4*rho)*40+ch*8}")
    for n in range(7): prd(n)
    head1 = len(F.ins)
    for n in range(15):
        st, ch = seq[n]
        d = v(PA2 + 4 * ch, 4)
        F(f"v_mfma_f32_16x16x32_bf16 {d}, {reg(n,0,4)}, {v(QR+4*st,4)}, {'0' if st == 0 else d}")
        if n + 7 < 15: prd(n + 7)
    F(f"v_rsq_f32 v{ST2}, v{ST2+1}")
    poll_addr(F, "kv", 1, 2)
    F(f"v_mul_f32 v{ST2}, {hex(LOG2E)}, v{ST2}")
    for j in range(4):
        F(f"v_add_u32 v1, {256*j}, v{vTID}"); F("v_mul_u32_u24 v2, 10923, v1"); F("v_lshrrev_b32 v2, 16, v2")
        F("v_mul_u32_u24 v3, 6, v2"); F("v_sub_u32 v3, v1, v3"); F("v_lshlrev_b32 v2, 7, v2")
        F(f"v_lshl_add_u32 v{vKA+j}, v3, 4, v2")
    softmax_pair(F, PA2, PK2, PA2, PK2, ST2, 1)
    poll_issue(F)
    P1 = OPT.get("p1steps", 5)
    M = Asm()
    for n in range(P1):
        step(M, n, wext(n))
        if n == 1:
            M.wait(vm="fin"); M("s_barrier"); signal(M, 3)
    A.extend(F.ins[:head1])
    tot = sum((2 if x.cls == "mfma" else x.cost) for x in F.ins[head1:])
    ins, left = weave(M, F.ins[head1:], per=tot / (20 * P1 - 4) + 0.05, start=2)
    A.extend(ins); A.extend(left)
    stamp(A, 8)
    poll_check(A, C, 3)
    A(f"s_mul_i32 s{sP0}, s{sC}, 20480"); A(f"s_add_u32 s{sP0}, s{sP0}, {KV_OFF}")
    for j in range(4):
        A(f"buffer_load_dwordx4 {v(KVR+4*j,4)}, v{vKA+j}, {srdr(SWS)}, s{sP0} offen sc1")
    F = Asm()
    poll_addr(F, "grp", 1, 2)
    F(f"s_lshr_b32 s{sT0}, s{sC}, 1"); F(f"s_mul_i32 s{sT0}, s{sT0}, 5"); F(f"s_add_u32 s{sT0}, s{sT0}, 54"); F(f"s_lshl_b32 s{sT0}, s{sT0}, 10")
    F(f"s_mul_i32 s{sT1}, s{sWAVE}, {ACT_BLK}"); F(f"s_add_u32 s{sT0}, s{sT0}, s{sT1}"); F(f"s_add_u32 s{sT0}, s{sT0}, s{sAB}")
    F(f"s_and_b32 s{sT1}, s{sC}, 1"); F(f"s_lshl_b32 s{sT2}, s{sT1}, 11"); F(f"s_add_u32 s{sT2}, s{sT2}, s{sT0}")
    F(f"s_lshl_b32 s{sT1}, s{sT1}, 9"); F(f"s_add_u32 s{sT1}, s{sT1}, s{sT0}"); F(f"s_add_u32 s{sT1}, s{sT1}, 4096")
    F("v_lshrrev_b32 v3, 5, v0"); F("v_lshlrev_b32 v3, 8, v3"); F("v_and_b32 v4, 15, v0"); F("v_lshl_add_u32 v3, v4, 4, v3")
    F("v_bfe_u32 v4, v0, 4, 1"); F(f"v_lshl_add_u32 v{vOA}, v4, 3, v3")
    poll_issue(F)
    F(f"v_lshlrev_b32 v2, 3, v{vTID}"); F(f"v_add_u32 v2, {KVI}, v2")
    n0 = P1
    M = Asm(); step(M, n0, wext(n0))
    ins, left = weave(M, F, per=2); A.extend(ins); A.extend(left)
    for j in range(4):
        A(f"v_cvt_pk_bf16_f32 v{KVR+4*j}, v{KVR+4*j}, v{KVR+4*j+1}")
        A(f"v_cvt_pk_bf16_f32 v{KVR+4*j+1}, v{KVR+4*j+2}, v{KVR+4*j+3}")
        A(f"ds_write_b64 v2, {v(KVR+4*j,2)} offset:{2048*j}")
    A.wait(lgkm="all")
    A("s_barrier")
    poll_check(A, C, 3)
    for m in range(8, n0 + 5):
        for k in range(4): emit(A, act_load(m, k))
    F = Asm()
    seq2 = [(st, ch) for st in range(5) for ch in range(6)]
    def krd(n):
        st, ch = seq2[n]
        for rho in range(2):
            F(f"ds_read_b64_tr_b16 {reg(n,2*rho,2)}, v{vF2} offset:{(8*st+4*rho)*48+ch*8}")
    for n in range(7): krd(n)
    for n in range(30):
        st, ch = seq2[n]
        d = v(NU + 4 * ch, 4)
        F(f"v_mfma_f32_16x16x32_bf16 {d}, {reg(n,0,4)}, {v(PK2+4*st,4)}, {'0' if st == 0 else d}")
        if n + 7 < 30: krd(n + 7)
    F(f"v_add_f32 v1, 0x358637bd, v{NU+20}"); F("v_rcp_f32 v1, v1"); F(f"v_mul_f32 v1, {hex(LOG2E)}, v1")
    for i in range(10):
        F(f"v_mul_f32 v{NU+2*i}, v{NU+2*i}, v1"); F(f"v_mul_f32 v{NU+2*i+1}, v{NU+2*i+1}, v1")
        F(f"v_cvt_pk_bf16_f32 v{NU+i}, v{NU+2*i}, v{NU+2*i+1}")
    F(f"buffer_store_dwordx4 {v(NU,4)}, v{vW}, {srdr(SWS)}, s{sT2} offen sc1", "ost")
    F(f"buffer_store_dwordx4 {v(NU+4,4)}, v{vW}, {srdr(SWS)}, s{sT2} offen offset:1024 sc1", "ost")
    F(f"buffer_store_dwordx2 {v(NU+8,2)}, v{vOA}, {srdr(SWS)}, s{sT1} offen sc1", "ost")
    M = Asm()
    P2 = OPT.get("p2steps", 1)
    for n in range(n0 + 1, n0 + 1 + P2): step(M, n, wext(n))
    tot = sum((2 if x.cls == "mfma" else x.cost) for x in F.ins)
    ins, left = weave(M, F, per=tot / (20 * P2) + 0.05); A.extend(ins); A.extend(left)
    stamp(A, 9)
    n1 = n0 + 1 + P2
    F = Asm()
    poll_addr(F, "o", 1, 2)
    F("v_and_b32 v1, 15, v0"); F(f"s_lshl_b32 s{sT0}, s{sWAVE}, 4"); F(f"v_add_u32 v1, s{sT0}, v1"); F("v_mul_u32_u24 v1, 1280, v1")
    F("v_lshrrev_b32 v2, 4, v0"); F(f"v_lshl_add_u32 v{vXO}, v2, 4, v1"); F(f"v_lshl_add_u32 v{vXO+1}, v2, 3, v1")
    F(f"s_mul_i32 s{sXO}, s{sR}, {64*1280}"); F(f"s_mul_i32 s{sT0}, s{sC}, 160"); F(f"s_add_u32 s{sXO}, s{sXO}, s{sT0}")
    for k in range(1, 4):
        F(f"s_add_u32 s{sT0}, s{sWAVE}, {k}"); F(f"s_and_b32 s{sT0}, s{sT0}, 3"); F(f"s_mul_i32 s{sT0}, s{sT0}, 15360")
        F(f"s_add_u32 s{sT0}, s{sT0}, {RED + (k-1)*5120}"); F(f"v_add_u32 v{vRW+k-1}, s{sT0}, v{vW}")
    F(f"s_mul_i32 s{sT0}, s{sWAVE}, 15360"); F(f"v_add_u32 v{vRR}, s{sT0}, v{vW}")
    F(f"buffer_load_dwordx4 {v(XRS,4)}, v{vXO}, {srdr(SX)}, s{sXO} offen")
    F(f"buffer_load_dwordx4 {v(XRS+4,4)}, v{vXO}, {srdr(SX)}, s{sXO} offen offset:64")
    F(f"buffer_load_dwordx2 {v(XRS+8,2)}, v{vXO+1}, {srdr(SX)}, s{sXO} offen offset:128")
    M = Asm()
    SIG = n1 + OPT.get("osig", 1); POLL = OPT.get("opoll", 12)
    for n in range(n1, 14):
        step(M, n, wext(n))
        if n == SIG:
            M.wait(vm="ost"); M("s_barrier"); signal(M, 4)
        if n == POLL - 1: poll_issue(M)
        if n == POLL:
            poll_check(M, C, 4)
            M(f"s_mul_i32 s{sA}, s{sWAVE}, 5120"); M(f"s_add_u32 s{sA}, s{sA}, s{sAB}"); M(f"s_add_u32 s{sA}, s{sA}, {54*1024}")
            M(f"s_add_u32 s{sP1}, s{sA}, 4096")
            for i in range(5):
                for k in range(4):
                    M(f"buffer_load_dwordx4 {a(aO+16*i+4*k,4)}, v{vA+k}, {srdr(SWS)}, s{sA if i < 4 else sP1} offen offset:{1024*(i&3)} sc1")
    ins, left = weave(M, F, per=2); A.extend(ins); assert not left
    stamp(A, 10)
    for n in range(14, 18): step(A, n, {})
    n = 18
    order = [1, 2, 3, 0]
    for idx, k in enumerate(order):
        for nt in range(5):
            d = v(ACCO + 4 * (5 * k + nt), 4)
            A(f"v_mfma_f32_16x16x32_bf16 {d}, {a(slot(n)+4*nt,4)}, {a(aO+64+4*k,4)}, {d}")
            if idx >= 2 or (idx == 1 and nt >= 2):
                j = 5 * (idx - 1) + nt - 2
                kk = order[j // 5]
                A(f"ds_write_b128 v{vRW+kk-1}, {v(ACCO+4*(5*kk+j%5),4)} offset:{1024*(j%5)}")
    for j in range(13, 15):
        A(f"ds_write_b128 v{vRW+2}, {v(ACCO+4*(15+j%5),4)} offset:{1024*(j%5)}")
    XF = 100
    A(f"s_mov_b32 s{sT0}, {hex(LN2)}"); A(f"s_mov_b32 s{sT0+1}, {hex(LN2)}")
    for i in range(10):
        A(f"v_lshlrev_b32 v{44+2*i}, 16, v{XRS+i}"); A(f"v_and_b32 v{45+2*i}, 0xffff0000, v{XRS+i}")
    A.wait(lgkm="all")
    A("s_barrier")
    stamp(A, 11)
    for nt in range(5):
        for sl in range(3):
            A(f"ds_read_b128 {v(ACT+12*nt+4*sl,4)}, v{vRR} offset:{sl*5120+nt*1024}")
    for nt in range(5):
        b = ACT + 12 * nt; o = ACCO + 4 * nt
        for h in range(2):
            A(f"v_pk_add_f32 {v(o+2*h,2)}, {v(o+2*h,2)}, {v(b+2*h,2)}")
            A(f"v_pk_add_f32 {v(b+4+2*h,2)}, {v(b+4+2*h,2)}, {v(b+8+2*h,2)}")
        for h in range(2):
            A(f"v_pk_add_f32 {v(o+2*h,2)}, {v(o+2*h,2)}, {v(b+4+2*h,2)}")
        for h in range(2):
            A(f"v_pk_fma_f32 {v(o+2*h,2)}, {v(o+2*h,2)}, s[{sT0}:{sT0+1}], {v(44+4*nt+2*h,2)}")
        for h in range(2):
            A(f"v_cvt_pk_bf16_f32 v{64+2*nt+h}, v{o+2*h}, v{o+2*h+1}")
        if nt == 1: A(f"buffer_store_dwordx4 {v(64,4)}, v{vXO}, {srdr(SOUT)}, s{sXO} offen")
        if nt == 3: A(f"buffer_store_dwordx4 {v(68,4)}, v{vXO}, {srdr(SOUT)}, s{sXO} offen offset:64")
        if nt == 4: A(f"buffer_store_dwordx2 {v(72,2)}, v{vXO+1}, {srdr(SOUT)}, s{sXO} offen offset:128")
    A(f"s_add_u32 s{sP0}, s{sE}, 16"); A(f"v_mov_b32 v1, s{sP0}")
    A(f"s_cmp_eq_u32 s2, 0"); A(f"s_cselect_b32 s{sP1}, 0, {hex(OOB)}")
    A(f"v_subrev_u32 v2, {FLG_OFF}, v{vFL}")
    A(f"buffer_store_dword v1, v2, {srdr(SWS)}, s{sP1} offen sc1")
    prof_flush(A, 0, SWS, sWAVE)

OPT = {}

def gen(name=MAIN, **opt):
    OPT.clear(); OPT.update(opt)
    C = Ctx("f")
    A = Asm()
    prologue(A, C)
    role_kv(A, C)
    role_p(A, C)
    phase2(A, C)
    A("s_endpgm")
    A.extend(C.spins)
    A.label(C.L("end"))
    A("s_endpgm")
    return dict(name=name, ins=render(finalize(A)), grid=256, block=256, lds=LDSZ, vgpr=512, accum=256)

if __name__ == "__main__":
    for P in range(320): assert (P * 3277) >> 16 == P // 20 and (P * 6554) >> 16 == P // 10
    for P in range(20): assert (P * 13108) >> 16 == P // 5 and (P * 52) >> 8 == P // 5
    for P in range(1024): assert (P * 10923) >> 16 == P // 6
    open("f_test.s", "w").write(build_file([gen()]))
    PROF["on"] = True
    open("f_prof.s", "w").write(build_file([gen()]))
```

```python
from common import *
import common, sys

E_OFF = 0; FLG_OFF = 0x1000; W2P_OFF = 0x20000; ACT_OFF = 0x320000; ACT_BLK = 94 * 1024
KV_OFF = 0xEE0000; ST_OFF = 0xF10000; CS_OFF = 0xF20000
common.PROF_OFF = 0xF80000
WR = 49152; XR = 81920; SPARE = 147456
HS = 16384
PHI1 = SPARE; PHI2 = SPARE + 3840; PZERO = SPARE + 7680; PKX = SPARE + 10240; CSR = SPARE
PHIK = XR; VIM = XR + 40960; KVI = XR; RED = 0
LDSZ = 163840
sWAVE = 3
SX, SWA, SWB, SWS, SB1, SPH, SOUT, SPK, SCS = 24, 28, 32, 36, 40, 44, 48, 52, 56
sM, sU, sR, sC, sE, sXO, sXM, sWB = 60, 61, 62, 63, 64, 65, 66, 67
sT0, sT1, sT2, sT3 = 68, 69, 70, 71
sWO, sWS, sACT, sA, sW, sAB = 4, 5, 6, 7, 8, 9
sEX = 10
sPKO, sPKD, sQF, sCS3, sB3, sACT3, sP0, sP1 = 12, 13, 14, 15, 16, 17, 18, 19
sPC = 100
sX1, sXD = 20, 21
sWO2 = 22; sPV = 23
sF0, sF1 = 0, 1
sSTO, sCSO, sCSP, sPX0, sPX1, sWQ = 7, 9, 15, 16, 17, 12
vTID, vFL, vPOLL, vPA, vW = 8, 9, 10, 11, 12
vPT = 14
vXD = 16; vXRD = 20
vAD = 24; vPD = 29; vAR = 34; vPR = 36
vP1 = 24; vPX = 28; vPRP = 32; vCSA = 36
vSA = 15; vCL = 54
vAST = 44; vS1 = 45; vRS = 46; vCP = 47; vCB = 48; vST = 52; vEP = 55
vQC = 56
aX = 224; aW = 160; aF = 240

def srdr(n): return f"s[{n}:{n+3}]"
def slot(n): return 20 * ((n + 10) % 12)

def csel(A, dst, x, y):
    A(f"s_mov_b32 s{dst}, {y}"); A(f"s_cselect_b32 s{dst}, {x}, s{dst}")

class Ctx:
    def __init__(self, name):
        self.name = name; self.spins = Asm(); self.n = 0
    def L(self, x): return f"{self.name}_{x}"

def signal(A, level):
    A(f"s_add_u32 s{sP0}, s{sE}, {level}")
    A(f"v_mov_b32 v{vPT}, s{sP0}")
    A(f"buffer_store_dword v{vPT}, v{vFL}, {srdr(SWS)}, 0 offen sc1", "flag")

def poll_issue(A):
    A(f"buffer_load_dword v{vPOLL}, v{vPA}, {srdr(SWS)}, 0 offen sc1", "poll")

def poll_check(A, C, level):
    C.n += 1
    k = C.n
    A(f"s_add_u32 s{sP0}, s{sE}, {level}")
    A.g(f"v_subrev_u32 v{vPT}, s{sP0}, v{vPOLL}")
    A.g(f"v_cmp_gt_u32_e64 s[{sPC}:{sPC+1}], 8, v{vPT}")
    A.g(f"s_cmp_eq_u64 s[{sPC}:{sPC+1}], -1")
    A.g(f"s_cbranch_scc0 {C.L(f'spin{k}')}")
    A.label(C.L(f"back{k}")); A.ins[-1].glue = True
    S = C.spins
    S.label(C.L(f"spin{k}"))
    S(f"s_mov_b32 s{sP1}, 0")
    S.label(C.L(f"loop{k}"))
    poll_issue(S)
    S(f"s_add_u32 s{sP1}, s{sP1}, 1")
    S(f"s_cmp_gt_u32 s{sP1}, 0x8000")
    S(f"s_cbranch_scc1 {C.L(f'back{k}')}")
    S(f"v_subrev_u32 v{vPT}, s{sP0}, v{vPOLL}")
    S(f"v_cmp_gt_u32_e64 s[{sPC}:{sPC+1}], 8, v{vPT}")
    S(f"s_cmp_eq_u64 s[{sPC}:{sPC+1}], -1")
    S(f"s_cbranch_scc0 {C.L(f'loop{k}')}")
    S(f"s_branch {C.L(f'back{k}')}")

def poll_addr(A, kind, t0, t1):
    if kind == "all":
        A(f"v_and_b32 v{vPA}, 127, v{vTID}"); A(f"v_lshlrev_b32 v{vPA}, 8, v{vPA}")
        A(f"v_add_u32 v{vPA}, {FLG_OFF + 128*256}, v{vPA}")
        return
    if kind == "grp":
        A(f"s_lshr_b32 s{sF0}, s{sR}, 3"); A(f"s_lshl_b32 s{sF0}, s{sF0}, 1")
        A(f"s_bfe_u32 s{sF1}, s{sR}, 0x20001"); A(f"s_lshl_b32 s{sF1}, s{sF1}, 3")
        A(f"v_bfe_u32 v{t0}, v0, 1, 3"); A(f"v_and_b32 v{t1}, 1, v0")
        A(f"v_lshl_add_u32 v{t0}, v{t0}, 5, v{t1}")
    elif kind == "kv":
        A(f"s_and_b32 s{sF0}, s{sC}, 3"); A(f"s_lshl_b32 s{sF0}, s{sF0}, 5")
        A(f"s_lshr_b32 s{sF1}, s{sC}, 2")
        A(f"v_and_b32 v{t0}, 3, v0"); A(f"v_bfe_u32 v{t1}, v0, 2, 2")
        A(f"v_lshlrev_b32 v{t1}, 1, v{t1}")
        A(f"v_lshl_add_u32 v{t0}, v{t0}, 3, v{t1}")
    elif kind == "o":
        A(f"s_and_b32 s{sF0}, s{sR}, 7"); A(f"s_lshl_b32 s{sF0}, s{sF0}, 5")
        A(f"s_lshr_b32 s{sF1}, s{sR}, 3"); A(f"s_lshl_b32 s{sF1}, s{sF1}, 1")
        A(f"v_bfe_u32 v{t0}, v0, 1, 2"); A(f"v_and_b32 v{t1}, 1, v0")
        A(f"v_lshl_add_u32 v{t0}, v{t0}, 3, v{t1}")
    A(f"s_add_u32 s{sF0}, s{sF0}, s{sF1}")
    A(f"s_lshl_b32 s{sF0}, s{sF0}, 8")
    A(f"s_add_u32 s{sF0}, s{sF0}, {FLG_OFF}")
    A(f"v_lshl_add_u32 v{vPA}, v{t0}, 8, s{sF0}")

def x_dma(j):
    if j >= 10: return []
    o = [(f"s_add_u32 m0, s{sXM}, {(j % 3) * 4096}", None, 0), (f"s_add_u32 s{sXD}, s{sXO}, {j*128}", None, 0)]
    for i in range(4):
        o.append((f"buffer_load_dwordx4 v{vXD+i}, {srdr(SX)}, s{sXD} offen offset:{1024*i} lds", f"x{j}", 1))
    return o

def kv_dma(h):
    if h >= 20: return []
    o = [(f"s_mov_b32 s{sWO}, {h*32*3840}", None, 0), (f"s_add_u32 m0, s{sWB}, {(h % 6) * HS}", None, 0)]
    for i in range(3):
        o.append((f"buffer_load_dwordx4 v{vAD+i}, {srdr(SWA)}, s{sWO} offen offset:{1024*i} lds", f"w{h}", 1))
    o.append((f"s_add_u32 m0, s{sWQ}, {(h % 6) * HS}", None, 0))
    o.append((f"buffer_load_dwordx4 v{vPD}, {srdr(SWA)}, s{sWO} offen lds", f"w{h}", 1))
    return o

def p_dma(h):
    if h >= 20: return []
    o = [(f"s_add_u32 m0, s{sWB}, {(h % 6) * HS}", None, 0)]
    if h: o.append((f"s_add_u32 s{sWO}, s{sWO}, s{sWS}", None, 0))
    for i in range(4):
        o.append((f"buffer_load_dwordx4 v{vP1+i}, {srdr(SWA)}, s{sWO} offen offset:{1024*i} lds", f"w{h}", 1))
    return o

def w2p_loads(n):
    o = []
    if n == 13:
        so = sX1
    else:
        so = sW
    if n > 0 and n not in (13, 14):
        o.append((f"s_add_u32 s{sW}, s{sW}, {20480 if n < 13 else 5120}", None, 0))
    if n == 14:
        o.append((f"s_add_u32 s{sW}, s{sW}, s{sPV}", None, 0))
    for nt in range(5):
        o.append((f"buffer_load_dwordx4 {a(slot(n)+4*nt,4)}, v{vW+(nt>>2)}, {srdr(SWS)}, s{so} offen offset:{1024*(nt&3)} sc1", f"W2{n}", 1))
    return o

def emit1(A, e):
    if e[0].startswith("WAIT:"):
        _, k, t = e[0].split(":")
        A.wait(**{k: t})
    elif len(e) > 3 and e[3]: A.g(e[0], e[1])
    else: A(e[0], e[1])

def emit(A, lst):
    for e in lst: emit1(A, e)

class DQ:
    def __init__(self): self.q = []; self.gap = 0
    def add(self, lst, front=False):
        if front:
            k = 0
            while k < len(self.q) and self.q[k][2] == 0: k += 1
            while k < len(self.q) and not (self.q[k][2] == 0 and "m0, m0" not in self.q[k][0] and "m0, m0" not in self.q[k-1][0]
                                           and "exec" not in self.q[k][0]): k += 1
            self.q[k:k] = list(lst)
        else: self.q += list(lst)
    def pop(self, A, n=1, ahead=True):
        while self.q and n > 0.01:
            e = self.q.pop(0)
            emit1(A, e); n -= e[2]
        while self.q and self.q[0][2] == 0 and self.q[0][0].startswith("s_") and (ahead or "exec" in self.q[0][0]) \
                and not self.q[0][0].startswith("s_mov_b64 exec, s"):
            emit1(A, self.q.pop(0))
    def count(self): return sum(e[2] for e in self.q)

def spread(A, code, lst, every, first=0):
    dq = DQ(); dq.add(lst)
    n = first
    scc_live = False
    for x in code.ins:
        if n >= every and dq.q and not x.glue and not (x.op.startswith(("s_cselect", "s_cbranch_scc", "s_addc")) or scc_live):
            dq.pop(A, 1); n = 0
        A.ins.append(x)
        if x.op.startswith("s_cmp"): scc_live = True
        elif x.cls == "salu" and not x.op.startswith(("s_cselect", "s_mov", "s_mul_i32")) : scc_live = False
        elif x.cls != "salu": scc_live = False if not scc_live else scc_live
        n += 1
    dq.pop(A, 99)

def gemm_steps(A, steps, D, dq, pre_barrier=None, post_barrier=None, every=2):
    n = len(steps)
    late = []
    for s in range(n + 1):
        rd = []
        bar = None
        if s < n:
            st = steps[s]
            if st["chunk"] is not None:
                def bar(st=st):
                    if pre_barrier and st["xj"] is not None: pre_barrier(A, st["xj"])
                    tags = [f"w{st['chunk']}"]
                    if st["xj"] is not None: tags.append(f"x{st['xj']}")
                    tags += st.get("tags", [])
                    nf = 0
                    while any(e[1] in tags for e in dq.q): dq.pop(A, 1); nf += 1
                    if nf and OPT.get("verbose"): print("forced", nf, "before chunk", st["chunk"])
                    A.wait(vm=tags, lgkm="all")
                    A("s_barrier")
                    if post_barrier and st["xj"] is not None: post_barrier(A, st["xj"], dq)
                    dq.add(st.get("queue", []))
            rd = [(t, f"r{s}_{i // (2 * OPT.get('wgrp', 2))}") for i, t in enumerate(st["reads"])]
            if st["xj"] is not None:
                j = st["xj"]
                xr = [(f"ds_read_b128 {a(aX + 16*(j&1) + 4*q, 4)}, v{vXRD+q} offset:{(j % 3) * 4096}", "xr") for q in range(4)]
                rd = xr[:1] + rd + xr[1:2]
                late = xr[2:]
            else:
                rd = rd + late; late = []
                if not bar: dq.add(st.get("queue", []))
        if s == 0:
            bar()
            for t, tag in rd: A(t, tag)
            continue
        m = steps[s - 1]
        nt = m["nt"]
        bd = OPT.get("bdelay", 2) if bar else 0
        if bar and bd == 0: bar()
        for t in range(nt):
            acc = m["acc"][t]
            cin = "0" if m["first"] else v(acc, 16)
            if t % OPT.get("wgrp", 2) == 0: A.wait(lgkm=f"r{s-1}_{t // OPT.get('wgrp', 2)}")
            A(f"v_mfma_f32_32x32x16_bf16 {v(acc,16)}, {a(m['frag']+4*t,4)}, {a(m['xreg'],4)}, {cin}")
            if bar and t == bd - 1: bar()
            if t >= bd - 1:
                per = -(-len(rd) // (nt - t))
                take = rd[:per]; rd = rd[per:]
                for tx, tag in take: A(tx, tag)
            dq.gap += 1
            ev = every[min((s - 1) // 4, len(every) - 1)] if isinstance(every, (list, tuple)) else every
            if dq.q and dq.gap >= ev - 0.01:
                dq.pop(A, 1); dq.gap = min(dq.gap - ev, 0.99)

def corr_frag(A, raw, tmp):
    A(f"v_add_f32 v{tmp}, v{raw}, v{raw+2}")
    A(f"v_lshrrev_b32 v{raw+2}, 16, v{raw+1}")
    A(f"v_cvt_pk_bf16_f32 v{raw}, v{tmp}, v{tmp}")
    A(f"v_and_b32 v{raw+3}, 0xffff0000, v{raw}")
    A(f"v_sub_f32 v{tmp}, v{tmp}, v{raw+3}")
    A(f"v_mov_b32 v{raw+3}, 0")
    A(f"v_cvt_pk_bf16_f32 v{raw+1}, v{tmp}, v{raw+1}")

def stats_frag(A, t):
    m, ve = vST, vST + 1
    A(f"v_rsq_f32 v{vRS}, v{ve}")
    A(f"v_sub_f32 v{t}, 0, v{m}")
    A(f"v_mul_f32 v{t+1}, v{ve}, v{vRS}")
    A(f"v_mul_f32 v{vS1}, {hex(LOG2E)}, v{vRS}")
    A(f"v_cvt_pk_bf16_f32 v{vCB+1}, v{t}, v{t+1}")
    A(f"v_lshlrev_b32 v{t+2}, 16, v{vCB+1}")
    A(f"v_and_b32 v{t+3}, 0xffff0000, v{vCB+1}")
    A(f"v_sub_f32 v{t+2}, v{t}, v{t+2}")
    A(f"v_sub_f32 v{t+3}, v{t+1}, v{t+3}")
    A(f"v_cvt_pk_bf16_f32 v{vCB}, v{t}, v{t+2}")
    A(f"v_cvt_pk_bf16_f32 v{vCB+2}, v{t+3}, 0")
    A(f"v_mov_b32 v{vCB+3}, 0")
    A(f"v_cmp_gt_u32 vcc, 32, v0")
    for i in range(3):
        A.g(f"v_cndmask_b32 v{vCB+i}, 0, v{vCB+i}, vcc")

def mish(A, acc, n, e, G=4):
    for g0 in range(0, n, G):
        t = acc + g0
        for i in range(G): A(f"v_mul_f32 v{t+i}, v{t+i}, v{vS1}")
        for i in range(G): A(f"v_exp_f32 v{e+i}, v{t+i}")
        for i in range(G): A(f"v_fma_f32 v{e+G+i}, v{e+i}, 0.5, 1.0")
        for i in range(G): A(f"v_fma_f32 v{e+i}, v{e+i}, v{e+G+i}, 1.0")
        for i in range(G): A(f"v_rcp_f32 v{e+i}, v{e+i}")
        for i in range(G): A(f"v_fma_f32 v{e+i}, -v{t+i}, v{e+i}, v{t+i}")
        o = acc + (g0 & ~7) + (g0 & 7) // 2
        for i in range(0, G, 2): A(f"v_cvt_pk_bf16_f32 v{o+i//2}, v{e+i}, v{e+i+1}")

def mish_pk(A, acc, n, e):
    G = 8
    s1 = f"v[{vS1-1}:{vS1}]"
    for g0 in range(0, n, G):
        t = acc + g0
        for i in range(0, G, 2): A(f"v_pk_mul_f32 {v(t+i,2)}, {v(t+i,2)}, {s1} op_sel:[0,1] op_sel_hi:[1,1]")
        for i in range(G): A(f"v_exp_f32 v{e+i}, v{t+i}")
        for i in range(0, G, 2): A(f"v_pk_fma_f32 {v(e+G+i,2)}, {v(e+i,2)}, 0.5, 1.0 op_sel_hi:[1,0,0]")
        for i in range(0, G, 2): A(f"v_pk_fma_f32 {v(e+i,2)}, {v(e+i,2)}, {v(e+G+i,2)}, 1.0 op_sel_hi:[1,1,0]")
        for i in range(G): A(f"v_rcp_f32 v{e+i}, v{e+i}")
        for i in range(0, G, 2): A(f"v_pk_fma_f32 {v(e+i,2)}, {v(t+i,2)}, {v(e+i,2)}, {v(t+i,2)} neg_lo:[1,0,0] neg_hi:[1,0,0]")
        for i in range(0, G, 2): A(f"v_cvt_pk_bf16_f32 v{t+i//2}, v{e+i}, v{e+i+1}")

def pair_store(A, acc, soff, tag, t, p):
    A(f"buffer_store_dwordx4 {v(acc+16*t+8*p,4)}, v{vAST}, {srdr(SWS)}, s{soff} offen offset:{1024*t+512*p} sc1", tag)

def softmax_pair(A, p, EP, EN, PK, s1, t0):
    a0, a1 = t0, t0 + 1
    A(f"v_max3_f32 v{a0}, v{p}, v{p+1}, v{p+2}")
    A(f"v_min3_f32 v{a1}, v{p}, v{p+1}, v{p+2}")
    for i in range(3, 19, 2):
        A(f"v_max3_f32 v{a0}, v{a0}, v{p+i}, v{p+i+1}")
        A(f"v_min3_f32 v{a1}, v{a1}, v{p+i}, v{p+i+1}")
    A(f"v_max_f32 v{a0}, v{a0}, v{p+19}")
    A(f"v_min_f32 v{a1}, v{a1}, v{p+19}")
    A(f"v_mul_f32 v{a0}, v{a0}, v{s1}")
    A(f"v_mul_f32 v{a1}, v{a1}, v{s1}")
    for i in range(20):
        A(f"v_fma_f32 v{EP+i}, v{p+i}, v{s1}, -v{a0}")
        A(f"v_fma_f32 v{EN+i}, -v{p+i}, v{s1}, v{a1}")
        A(f"v_exp_f32 v{EP+i}, v{EP+i}")
        A(f"v_exp_f32 v{EN+i}, v{EN+i}")
    A(f"v_add_f32 v{a0}, v{EP}, v{EP+1}")
    A(f"v_add_f32 v{a1}, v{EN}, v{EN+1}")
    for i in range(2, 20):
        A(f"v_add_f32 v{a0}, v{a0}, v{EP+i}")
        A(f"v_add_f32 v{a1}, v{a1}, v{EN+i}")
    A(f"v_rcp_f32 v{a0}, v{a0}")
    A(f"v_rcp_f32 v{a1}, v{a1}")
    for i in range(10):
        A(f"v_mul_f32 v{EP+2*i}, v{EP+2*i}, v{a0}")
        A(f"v_mul_f32 v{EP+2*i+1}, v{EP+2*i+1}, v{a0}")
        A(f"v_cvt_pk_bf16_f32 v{PK+i}, v{EP+2*i}, v{EP+2*i+1}")
    for i in range(10):
        A(f"v_mul_f32 v{EN+2*i}, v{EN+2*i}, v{a1}")
        A(f"v_mul_f32 v{EN+2*i+1}, v{EN+2*i+1}, v{a1}")
        A(f"v_cvt_pk_bf16_f32 v{PK+10+i}, v{EN+2*i}, v{EN+2*i+1}")

def softmax_pair_pk(A, p, EP, EN, PK, s1, t0):
    a0, a1 = t0, t0 + 1
    sp = v(s1 & ~1, 2); sh = s1 & 1
    A(f"v_max3_f32 v{a0}, v{p}, v{p+1}, v{p+2}")
    A(f"v_min3_f32 v{a1}, v{p}, v{p+1}, v{p+2}")
    for i in range(3, 19, 2):
        A(f"v_max3_f32 v{a0}, v{a0}, v{p+i}, v{p+i+1}")
        A(f"v_min3_f32 v{a1}, v{a1}, v{p+i}, v{p+i+1}")
    A(f"v_max_f32 v{a0}, v{a0}, v{p+19}")
    A(f"v_min_f32 v{a1}, v{a1}, v{p+19}")
    A(f"v_mul_f32 v{a0}, v{a0}, v{s1}")
    A(f"v_mul_f32 v{a1}, v{a1}, v{s1}")
    ap = v(a0, 2)
    for i in range(0, 20, 2):
        A(f"v_pk_fma_f32 {v(EP+i,2)}, {v(p+i,2)}, {sp}, {ap} op_sel:[0,{sh},0] op_sel_hi:[1,{sh},0] neg_lo:[0,0,1] neg_hi:[0,0,1]")
        A(f"v_pk_fma_f32 {v(EN+i,2)}, {v(p+i,2)}, {sp}, {ap} op_sel:[0,{sh},1] op_sel_hi:[1,{sh},1] neg_lo:[1,0,0] neg_hi:[1,0,0]")
        for k in range(2):
            A(f"v_exp_f32 v{EP+i+k}, v{EP+i+k}")
        for k in range(2):
            A(f"v_exp_f32 v{EN+i+k}, v{EN+i+k}")
    sP, sN = v(t0 + 2, 2), v(t0 + 4, 2)
    A(f"v_pk_add_f32 {sP}, {v(EP,2)}, {v(EP+2,2)}")
    A(f"v_pk_add_f32 {sN}, {v(EN,2)}, {v(EN+2,2)}")
    for i in range(4, 20, 2):
        A(f"v_pk_add_f32 {sP}, {sP}, {v(EP+i,2)}")
        A(f"v_pk_add_f32 {sN}, {sN}, {v(EN+i,2)}")
    A(f"v_add_f32 v{a0}, v{t0+2}, v{t0+3}")
    A(f"v_add_f32 v{a1}, v{t0+4}, v{t0+5}")
    A(f"v_rcp_f32 v{a0}, v{a0}")
    A(f"v_rcp_f32 v{a1}, v{a1}")
    A("s_nop 0")
    for i in range(10):
        A(f"v_pk_mul_f32 {v(EP+2*i,2)}, {v(EP+2*i,2)}, {ap} op_sel:[0,0] op_sel_hi:[1,0]")
        if i: A(f"v_cvt_pk_bf16_f32 v{PK+i-1}, v{EP+2*i-2}, v{EP+2*i-1}")
    for i in range(10):
        A(f"v_pk_mul_f32 {v(EN+2*i,2)}, {v(EN+2*i,2)}, {ap} op_sel:[0,1] op_sel_hi:[1,1]")
        if i == 0: A(f"v_cvt_pk_bf16_f32 v{PK+9}, v{EP+18}, v{EP+19}")
        else: A(f"v_cvt_pk_bf16_f32 v{PK+10+i-1}, v{EN+2*i-2}, v{EN+2*i-1}")
    A(f"v_cvt_pk_bf16_f32 v{PK+19}, v{EN+18}, v{EN+19}")

def weave32(main, fill, **kw):
    main = list(main.ins if isinstance(main, Asm) else main)
    small = [x for x in main if x.cls == "mfma" and "16x16" in x.op]
    for x in small: x.cls = "mfma16"
    r = weave(main, fill, **kw)
    for x in small: x.cls = "mfma"
    return r

def common_lane(A):
    A("v_lshrrev_b32 v1, 5, v0")
    A("v_bfe_u32 v2, v0, 2, 2")
    A("v_and_b32 v3, 1, v0")
    A("v_bfe_u32 v4, v0, 1, 1")
    A("v_bfe_u32 v5, v0, 4, 1")
    A("v_lshl_add_u32 v4, v5, 1, v4")
    A("v_lshl_add_u32 v6, v1, 3, v2")

PRS = 64; PRC = 84; PRT = 124
vBI = 63; aPK = 0; aPH = 28

def wo_rows(A, t, b, qs, hi, t0, t1):
    A(f"s_mul_i32 s{t1}, s{t}, 52"); A(f"s_lshr_b32 s{t1}, s{t1}, 8")
    A(f"s_mul_i32 s{b}, s{t1}, 5"); A(f"s_sub_u32 s{t0}, s{t}, s{b}")
    A(f"s_mul_i32 s{b}, s{t1}, 160")
    A(f"s_lshr_b32 s{t1}, s{t0}, 1"); A(f"s_mul_i32 s{t1}, s{t1}, 80")
    A(f"s_and_b32 s{qs}, s{t0}, 1"); A(f"s_lshl_b32 s{qs}, s{qs}, 3"); A(f"s_add_u32 s{t1}, s{t1}, s{qs}")
    A(f"s_cmp_eq_u32 s{t0}, 4")
    A(f"s_cselect_b32 s{t1}, 16, s{t1}")
    A(f"s_cselect_b32 s{qs}, 40, 20")
    A(f"s_cselect_b32 s{hi}, 20, 4")
    A(f"s_add_u32 s{b}, s{b}, s{t1}")

def pack_addr(A, dst, qs, hi):
    A("v_mul_u32_u24 v2, 6554, v1"); A("v_lshrrev_b32 v2, 16, v2")
    A("v_mul_u32_u24 v3, 10, v2"); A("v_sub_u32 v3, v1, v3")
    A("v_lshrrev_b32 v4, 3, v2"); A(f"v_mul_u32_u24 v4, s{qs}, v4")
    A("v_bfe_u32 v5, v2, 2, 1"); A(f"v_mad_u32_u24 v4, v5, s{hi}, v4")
    A("v_and_b32 v5, 3, v2"); A("v_add_u32 v4, v4, v5")
    A("v_mul_u32_u24 v4, 1280, v4")
    A(f"v_lshl_add_u32 v{dst}, v3, 4, v4")

def pack_setup(A):
    T, b, qs, hi = sT0, sT1, sT2, sT3
    A(f"s_bfe_u32 s{T}, s2, 0x40003"); A(f"s_lshl_b32 s{b}, s{sWAVE}, 4"); A(f"s_add_u32 s{T}, s{T}, s{b}")
    A(f"s_and_b32 s{sPX0}, s2, 7")
    A(f"s_mul_i32 s{sPX1}, s{sPX0}, 74"); A(f"s_add_u32 s{sPKD}, s{sPX1}, s{T}")
    A(f"s_mul_i32 s{sPKD}, s{sPKD}, 5120"); A(f"s_add_u32 s{sPKD}, s{sPKD}, {W2P_OFF}")
    A(f"s_sub_u32 s{sPKO}, s{T}, 54")
    wo_rows(A, sPKO, b, qs, hi, sP0, sP1)
    A(f"s_lshl_b32 s{sP1}, s{T}, 5")
    A(f"s_cmp_lt_u32 s{T}, 54")
    A(f"s_cselect_b32 s{b}, s{sP1}, s{b}")
    A(f"s_cselect_b32 s{qs}, 8, s{qs}")
    A(f"s_cselect_b32 s{hi}, 4, s{hi}")
    A(f"s_mul_i32 s{b}, s{b}, 1280")
    A(f"s_mul_i32 s{sPX0}, s{sPX0}, 160"); A(f"s_add_u32 s{sPKO}, s{sPX0}, s{b}")
    for i in range(5):
        A(f"v_add_u32 v1, {64*i}, v0")
        pack_addr(A, vQC + i, qs, hi)
        if 0 < i < 4: A(f"v_subrev_u32 v{vQC+i}, {1024*i}, v{vQC+i}")
    A(f"s_bfe_u32 s{T}, s2, 0x40003"); A(f"s_add_u32 s{T}, s{T}, 4")
    A(f"s_add_u32 s{sPX1}, s{sPX1}, s{T}"); A(f"s_add_u32 s{sPX1}, s{sPX1}, 54")
    A(f"s_mul_i32 s{sPX1}, s{sPX1}, 5120"); A(f"s_add_u32 s{sPX1}, s{sPX1}, {W2P_OFF}")
    wo_rows(A, T, b, qs, hi, sP0, sP1)
    A(f"s_mul_i32 s{b}, s{b}, 1280"); A(f"s_add_u32 s{sPX0}, s{sPX0}, s{b}")
    A(f"s_cmp_ge_u32 s2, {128 + 48}")
    A(f"s_cselect_b32 s{sPX1}, s{sPX1}, {hex(OOB)}")
    A(f"s_cselect_b32 s{sPX0}, s{sPX0}, {hex(OOB)}")
    A(f"s_cmp_eq_u32 s{sWAVE}, 0")
    A(f"s_cselect_b64 s[{sEX}:{sEX+1}], -1, 0")
    A(f"s_lshl_b32 s{sP0}, s{sWAVE}, 6"); A(f"v_add_u32 v1, s{sP0}, v0")
    pack_addr(A, vPX, qs, hi)
    A("v_add_u32 v1, 256, v0")
    pack_addr(A, vPX + 1, qs, hi)

def pack_dma():
    o = [(f"s_lshl_b32 m0, s{sWAVE}, 13", None, 0), (f"s_add_u32 m0, m0, {WR + 4*HS}", None, 0)]
    for i in range(4):
        o.append((f"buffer_load_dwordx4 v{vQC+i}, {srdr(SPK)}, s{sPKO} offen offset:{1024*i} lds", "pk", 1))
    o.append(("s_add_u32 m0, m0, 4096", None, 0))
    o.append((f"buffer_load_dwordx4 v{vQC+4}, {srdr(SPK)}, s{sPKO} offen lds", "pk", 1))
    o.append((f"s_lshl_b32 m0, s{sWAVE}, 10", None, 0))
    o.append((f"s_add_u32 m0, m0, {PKX}", None, 0))
    o.append((f"buffer_load_dwordx4 v{vPX}, {srdr(SWB)}, s{sPX0} offen lds", "pkx", 1))
    o.append((f"s_mov_b32 m0, {PKX + 4096}", None, 0))
    o.append((f"s_mov_b64 exec, s[{sEX}:{sEX+1}]", None, 0))
    o.append((f"buffer_load_dwordx4 v{vPX+1}, {srdr(SWB)}, s{sPX0} offen lds", "pkx", 1))
    o.append(("s_mov_b64 exec, -1", None, 0))
    return o

def pack_read_addr(A):
    A("v_lshrrev_b32 v1, 4, v0"); A("v_bfe_u32 v2, v0, 2, 2"); A("v_lshl_add_u32 v1, v1, 3, v2")
    A("v_mul_u32_u24 v1, 160, v1")
    A("v_and_b32 v2, 3, v0")
    A(f"v_lshl_add_u32 v3, v2, 4, v1"); A(f"v_lshl_add_u32 v4, v2, 3, v1")
    A(f"s_lshl_b32 s{sT0}, s{sWAVE}, 13"); A(f"s_add_u32 s{sT0}, s{sT0}, {WR + 4*HS}")
    A(f"v_add_u32 v{vQC+5}, s{sT0}, v3"); A(f"v_add_u32 v{vQC+6}, s{sT0}, v4")
    A(f"s_lshr_b32 s{sT0}, s{sWAVE}, 1"); A(f"s_lshl_b32 s{sT0}, s{sT0}, 6")
    A(f"s_and_b32 s{sT1}, s{sWAVE}, 1"); A(f"s_lshl_b32 s{sT1}, s{sT1}, 3"); A(f"s_add_u32 s{sT0}, s{sT0}, s{sT1}")
    A(f"s_add_u32 s{sT0}, s{sT0}, {PKX}")
    A(f"v_add_u32 v{vPX+2}, s{sT0}, v3"); A(f"v_add_u32 v{vPX+3}, {PKX}, v4")

def pack_reads():
    o = [("WAIT:vm:pk", None, 0)]
    for nt in range(5):
        for rho in range(2):
            if nt < 4: t = f"ds_read_b64_tr_b16 {a(aPK+4*nt+2*rho,2)}, v{vQC+5} offset:{rho*640 + 64*(nt>>1) + 8*(nt&1)}"
            else: t = f"ds_read_b64_tr_b16 {a(aPK+4*nt+2*rho,2)}, v{vQC+6} offset:{rho*640 + 128}"
            o.append((t, "pkr", 0.34))
    return o

def pack_stores():
    return [(f"buffer_store_dwordx4 {a(aPK+4*nt,4)}, v{vW+(nt>>2)}, {srdr(SWS)}, s{sPKD} offen offset:{1024*(nt&3)} sc1", "prep", 1)
            for nt in range(5)]

def pack_shared():
    X = aPK + 20
    o = []
    for rho in range(2):
        o.append((f"ds_read_b64_tr_b16 {a(X+2*rho,2)}, v{vPX+2} offset:{rho*640}", None, 0.25))
        o.append((f"ds_read_b64_tr_b16 {a(X+4+2*rho,2)}, v{vPX+3} offset:{rho*640 + 128}", None, 0.25))
    o.append((f"s_lshl_b32 s{sP0}, s{sWAVE}, 10", None, 0)); o.append((f"s_add_u32 s{sP0}, s{sP0}, s{sPX1}", None, 0))
    o.append((f"s_cmp_eq_u32 s{sWAVE}, 0", None, 0)); o.append((f"s_cselect_b32 s{sP1}, s{sPX1}, {hex(OOB)}", None, 0, True))
    o.append((f"buffer_store_dwordx4 {a(X,4)}, v{vW}, {srdr(SWS)}, s{sP0} offen sc1", "prep", 1))
    o.append((f"buffer_store_dwordx4 {a(X+4,4)}, v{vW+1}, {srdr(SWS)}, s{sP1} offen sc1", "prep", 1))
    return o

def prep_setup(A):
    A(f"s_lshl_b32 s{sT0}, s{sM}, 7"); A(f"s_lshl_b32 s{sT1}, s{sU}, 4"); A(f"s_add_u32 s{sT0}, s{sT0}, s{sT1}")
    A(f"s_lshl_b32 s{sT1}, s{sWAVE}, 2"); A(f"s_add_u32 s{sT0}, s{sT0}, s{sT1}")
    A(f"s_mul_i32 s{sSTO}, s{sT0}, 1280")
    A("v_lshrrev_b32 v1, 4, v0"); A("v_and_b32 v2, 15, v0")
    A("v_mul_u32_u24 v1, 1280, v1"); A(f"v_lshl_add_u32 v{vSA}, v2, 4, v1")
    A(f"s_bfe_u32 s{sT0}, s2, 0x60001")
    A(f"s_cmp_lt_u32 s{sT0}, 30")
    csel(A, sT2, 3840, 3456)
    A(f"s_cselect_b32 s{sT3}, 0, 30")
    A(f"s_sub_u32 s{sT0}, s{sT0}, s{sT3}")
    A(f"s_lshl_b32 s{sT0}, s{sT0}, 7")
    A(f"s_and_b32 s{sT1}, s2, 1"); A(f"s_lshl_b32 s{sT1}, s{sT1}, 2"); A(f"s_add_u32 s{sT1}, s{sT1}, s{sWAVE}")
    A(f"s_mul_i32 s{sT1}, s{sT1}, 80"); A(f"s_mul_i32 s{sT1}, s{sT1}, s{sT2}")
    A(f"s_add_u32 s{sT0}, s{sT0}, s{sT1}")
    A(f"s_cmp_lt_u32 s2, {128 + 114}")
    A(f"s_cselect_b32 s{sCSO}, s{sT0}, {hex(OOB)}")
    A("v_lshrrev_b32 v1, 3, v0"); A("v_and_b32 v2, 7, v0")
    A(f"v_mul_u32_u24 v1, s{sT2}, v1")
    A(f"v_lshl_add_u32 v{vCL}, v2, 4, v1")
    A(f"s_lshl_b32 s{sCSP}, s{sT2}, 3")

def stats_loads():
    return [(f"buffer_load_dwordx4 {v(PRS+4*j,4)}, v{vSA}, {srdr(SX)}, s{sSTO} offen offset:{256*j}", None, 1) for j in range(5)]

def cs_loads():
    o = []
    for j in range(10):
        if j: o.append((f"s_add_u32 s{sCSO}, s{sCSO}, s{sCSP}", None, 0))
        o.append((f"buffer_load_dwordx4 {v(PRC+4*j,4)}, v{vCL}, {srdr(SCS)}, s{sCSO} offen", None, 1))
    o.append((f"s_bfe_u32 s{sP0}, s2, 0x60001", None, 0)); o.append((f"s_sub_u32 s{sP0}, s{sP0}, 30", None, 0))
    o.append((f"s_lshl_b32 s{sP0}, s{sP0}, 7", None, 0)); o.append((f"s_min_u32 s{sP0}, s{sP0}, {hex(OOB)}", None, 0))
    o.append((f"v_lshlrev_b32 v{vPT}, 1, v0", None, 0))
    o.append((f"buffer_load_ushort v{vBI}, v{vPT}, {srdr(SB1)}, s{sP0} offen", None, 1))
    return o

def rowsum(A, reg):
    for sh in (8, 4, 2, 1):
        A(f"v_add_f32_dpp v{reg}, v{reg}, v{reg} row_ror:{sh} row_mask:0xf bank_mask:0xf")

def zero_kv(A):
    for r in range(4): A(f"v_mov_b32 v{4+r}, 0")
    A(f"s_and_b32 s{sF0}, s2, 127"); A(f"s_lshl_b32 s{sF0}, s{sF0}, 2"); A(f"s_add_u32 s{sF0}, s{sF0}, s{sWAVE}")
    A(f"s_mul_i32 s{sF0}, s{sF0}, 320"); A(f"s_add_u32 s{sF0}, s{sF0}, {KV_OFF}")
    A(f"v_mov_b32 v1, {hex(OOB)}")
    A("v_cmp_gt_u32 vcc, 20, v0")
    A.g(f"v_cndmask_b32 v1, v1, v{vW}, vcc")
    A(f"buffer_store_dwordx4 v[4:7], v1, {srdr(SWS)}, s{sF0} offen sc1", "prep")

def stats_compute(A):
    U = PRC
    for r in range(20):
        A(f"v_lshlrev_b32 v{U+2*r}, 16, v{PRS+r}")
        A(f"v_and_b32 v{U+2*r+1}, 0xffff0000, v{PRS+r}")
        if r == 1: A(f"v_add_f32 v2, v{U}, v{U+1}")
        if r == 2: A(f"v_add_f32 v3, v{U+2}, v{U+3}")
        if r > 2: A(f"v_add_f32 v2, v2, v{U+2*r-2}"); A(f"v_add_f32 v3, v3, v{U+2*r-1}")
    A(f"v_add_f32 v2, v2, v{U+38}"); A(f"v_add_f32 v3, v3, v{U+39}")
    A(f"s_lshr_b32 s{sF0}, s{sSTO}, 5"); A(f"s_mul_hi_u32 s{sF0}, s{sF0}, 0x33333334")
    A("v_add_f32 v2, v2, v3")
    ad = Asm()
    ad("v_lshrrev_b32 v1, 4, v0"); ad("v_lshlrev_b32 v1, 3, v1")
    ad("v_and_b32 v6, 15, v0"); ad(f"v_mov_b32 v7, {hex(OOB)}")
    ad(f"s_add_u32 s{sF0}, s{sF0}, {ST_OFF}"); ad("v_mov_b32 v5, 0x3727c5ac")
    ad("v_cmp_eq_u32 vcc, 0, v6"); ad("s_nop 0")
    for k, sh in enumerate((8, 4, 2, 1)):
        A.extend(ad.ins[2*k:2*k+2])
        A(f"v_add_f32_dpp v2, v2, v2 row_ror:{sh} row_mask:0xf bank_mask:0xf")
    A("v_cndmask_b32 v1, v7, v1, vcc")
    A("v_mul_f32 v4, 0x3acccccd, v2")
    for r in range(40):
        A(f"v_sub_f32 v{U+r}, v{U+r}, v4")
        if r in (1, 2): A(f"v_mul_f32 v{2+(r&1)}, v{U+r-1}, v{U+r-1}")
        if r > 2: A(f"v_fmac_f32 v{2+(r&1)}, v{U+r-1}, v{U+r-1}")
    A(f"v_fmac_f32 v2, v{U+39}, v{U+39}")
    A("v_add_f32 v2, v2, v3")
    rowsum(A, 2)
    A("v_fmac_f32 v5, 0x3acccccd, v2")
    A(f"buffer_store_dwordx2 v[4:5], v1, {srdr(SWS)}, s{sF0} offen sc1", "prep")

def cs_setup(A):
    sel = vCSA; acc = vCSA + 4
    A("v_and_b32 v1, 15, v0"); A("v_lshrrev_b32 v2, 1, v1"); A("v_and_b32 v3, 1, v0")
    A("v_lshlrev_b32 v3, 4, v3"); A("v_mov_b32 v4, 0x3f80"); A("v_lshlrev_b32 v4, v3, v4")
    for r in range(4):
        A(f"v_cmp_eq_u32 vcc, {r}, v2"); A.g("s_nop 1"); A.g(f"v_cndmask_b32 v{sel+r}, 0, v4, vcc")
    A("v_and_b32 v2, 7, v0"); A("v_bfe_u32 v3, v0, 4, 1")
    A("v_lshlrev_b32 v2, 7, v2"); A("v_lshl_add_u32 v2, v3, 6, v2")
    A(f"s_lshl_b32 s{sF0}, s{sWAVE}, 2"); A(f"s_add_u32 s{sF0}, s{sF0}, {CSR}")
    A(f"v_add_u32 v{PRT}, s{sF0}, v2")

def cs_compute(A):
    sel = vCSA; acc = vCSA + 4
    for j in range(10):
        A(f"v_mfma_f32_16x16x32_bf16 {v(acc,4)}, {v(sel,4)}, {v(PRC+4*j,4)}, {'0' if j == 0 else v(acc,4)}")

def cs_write(A):
    acc = vCSA + 4
    for r in range(4):
        A(f"v_add_f32_dpp v{acc+r}, v{acc+r}, v{acc+r} row_ror:8 row_mask:0xf bank_mask:0xf")
    A("s_mov_b64 exec, 0xffffffff")
    for r in range(4):
        A.g(f"ds_write_b32 v{PRT}, v{acc+r} offset:{16*r}")
    A.g("s_mov_b64 exec, -1")

def cs_finish(A):
    R = vCSA; t0, t1 = sF1, sCSP
    A(f"v_add_u32 v{PRT}, {CSR}, v{vW}")
    A(f"ds_read_b128 {v(R,4)}, v{PRT}")
    A(f"s_bfe_u32 s{t0}, s2, 0x60001"); A(f"s_lshl_b32 s{t0}, s{t0}, 10")
    A(f"s_and_b32 s{t1}, s2, 1"); A(f"s_lshl_b32 s{t1}, s{t1}, 3")
    A(f"s_add_u32 s{t0}, s{t0}, s{t1}"); A(f"s_add_u32 s{t0}, s{t0}, {CS_OFF}")
    A(f"s_cmp_lt_u32 s2, {128 + 114}"); A.g(f"s_cselect_b32 s{t0}, s{t0}, {hex(OOB)}")
    A(f"s_cmp_eq_u32 s{sWAVE}, 0"); A.g(f"s_cselect_b32 s{t0}, s{t0}, {hex(OOB)}")
    A(f"v_lshlrev_b32 v{R+5}, 16, v{vBI}")
    A(f"v_add_f32 v{R}, v{R}, v{R+1}"); A(f"v_add_f32 v{R+2}, v{R+2}, v{R+3}")
    A(f"v_add_f32 v{R+4}, v{R}, v{R+2}")
    A(f"buffer_store_dwordx2 {v(R+4,2)}, v{vW}, {srdr(SWS)}, s{t0} offen sc1", "prep")

def phi_loads(A, kv, R, v=a):
    A(f"s_lshl_b32 s{sF0}, s{sC}, 2"); A(f"s_add_u32 s{sF0}, s{sF0}, s{sWAVE}"); A(f"s_mul_i32 s{sF0}, s{sF0}, 800")
    A(f"s_and_b32 s{sF1}, s{sWAVE}, 1"); A(f"s_mul_i32 s{sF1}, s{sF1}, 10")
    A(f"v_add_u32 v1, s{sF1}, v0"); A("v_subrev_u32 v2, 50, v1"); A("v_min_u32 v1, v1, v2")
    A("v_lshlrev_b32 v1, 4, v1")
    A(f"v_mov_b32 v2, {hex(OOB)}")
    A("v_cmp_gt_u32 vcc, 50, v0")
    A.g("v_cndmask_b32 v1, v2, v1, vcc")
    A.g(f"v_cndmask_b32 v3, v2, v{vW}, vcc")
    A(f"buffer_load_dwordx4 {v(R,4)}, v1, {srdr(SPH)}, s{sF0} offen")
    if kv:
        A(f"s_lshl_b32 s{sF0}, s{sU}, 2"); A(f"s_add_u32 s{sF0}, s{sF0}, s{sWAVE}"); A(f"s_mul_i32 s{sF0}, s{sF0}, 800")
        A(f"buffer_load_dwordx4 {v(R+4,4)}, v3, {srdr(SPH)}, s{sF0} offen")

def phi_writes(A, kv, R, v=a):
    A(f"s_mul_i32 s{sF0}, s{sWAVE}, 960"); A(f"s_add_u32 s{sF0}, s{sF0}, {PHI1}")
    A(f"v_add_u32 v1, s{sF0}, v{vW}")
    A(f"s_mul_i32 s{sF0}, s{sWAVE}, 480"); A(f"s_add_u32 s{sF0}, s{sF0}, {PZERO}")
    A(f"v_lshl_add_u32 v2, v0, 3, s{sF0}")
    A("v_mov_b32 v4, 0"); A("v_mov_b32 v5, 0")
    A(f"s_bfm_b64 exec, 60, 0")
    A.g(f"ds_write_b128 v1, {v(R,4)} offset:3840")
    if kv: A.g(f"ds_write_b128 v1, {v(R+4,4)}")
    A.g("ds_write_b64 v2, v[4:5]")
    A.g("s_mov_b64 exec, -1")

vA = 16; vQA = 20; vOA = 23; vF1 = 24; vF2 = 25; vXO = 26; vRW = 28; vRR = 31; vKA = 32
QR = 84; ST2 = 96; PA2 = 64; PK2 = 44; NU = 64; KVR = 88; XRS = 88
ACT = 112; ACCO = 176; aO = 100

def p2_addr_early(A):
    for k in range(4):
        A(f"s_add_u32 s{sF0}, s{sWAVE}, {k}"); A(f"s_and_b32 s{sF0}, s{sF0}, 3"); A(f"s_mul_i32 s{sF0}, s{sF0}, {ACT_BLK}")
        A(f"v_add_u32 v{vA+k}, s{sF0}, v{vW}")
    A("v_lshrrev_b32 v1, 4, v0")
    A("v_and_b32 v2, 1, v1")
    A("v_lshrrev_b32 v3, 1, v1"); A("v_mul_u32_u24 v3, 5, v3")
    A(f"s_mul_i32 s{sF0}, s{sC}, 10")
    A(f"v_add_u32 v3, s{sF0}, v3")
    A("v_and_b32 v4, 15, v0"); A("v_lshlrev_b32 v4, 4, v4")
    A("v_lshl_add_u32 v4, v3, 8, v4")
    A("v_mul_u32_u24 v5, 768, v2")
    A(f"v_add_u32 v{vQA}, v4, v5")
    A(f"v_lshl_add_u32 v{vQA+1}, v2, 3, v4")
    A("v_and_b32 v4, 15, v0"); A(f"v_lshlrev_b32 v{vQA+2}, 3, v4")
    A(f"s_mul_i32 s{sAB}, s{sR}, {4*ACT_BLK}"); A(f"s_add_u32 s{sAB}, s{sAB}, {ACT_OFF}")
    A(f"s_lshl_b32 s{sF0}, s{sWAVE}, 10"); A(f"s_add_u32 s{sA}, s{sAB}, s{sF0}")

def act_load(n, k):
    o = []
    if k == 0 and n > 0:
        o.append((f"s_add_u32 s{sA}, s{sA}, 4096", None, 0))
        if n == 13:
            o.append((f"s_cmp_lt_u32 s{sWAVE}, 2\ns_cselect_b32 s{sA}, s{sA}, {hex(OOB)}", None, 0))
    o.append((f"buffer_load_dwordx4 {v(ACT+16*(n%4)+4*k,4)}, v{vA+k}, {srdr(SWS)}, s{sA} offen sc1", f"A{n}", 1))
    return o

def p2_first_loads(A):
    A(f"s_mul_i32 s{sP0}, s{sWAVE}, {ACT_BLK}"); A(f"s_add_u32 s{sP0}, s{sP0}, s{sAB}")
    A(f"s_add_u32 s{sP0}, s{sP0}, {74*1024}")
    A(f"buffer_load_dwordx4 {v(QR,4)}, v{vQA}, {srdr(SWS)}, s{sP0} offen sc1")
    A(f"buffer_load_dwordx4 {v(QR+4,4)}, v{vQA}, {srdr(SWS)}, s{sP0} offen offset:256 sc1")
    A(f"buffer_load_dwordx2 {v(QR+8,2)}, v{vQA+1}, {srdr(SWS)}, s{sP0} offen offset:512 sc1")
    A(f"s_lshl_b32 s{sP0}, s{sR}, 2"); A(f"s_add_u32 s{sP0}, s{sP0}, s{sWAVE}"); A(f"s_lshl_b32 s{sP0}, s{sP0}, 7")
    A(f"s_add_u32 s{sP0}, s{sP0}, {ST_OFF}")
    A(f"buffer_load_dwordx2 {v(ST2,2)}, v{vQA+2}, {srdr(SWS)}, s{sP0} offen sc1")
    for n in range(4):
        for k in range(4): emit(A, act_load(n, k))

def prologue(A, C):
    L = C.L
    A.label(L("start"))
    A(f"s_getpc_b64 s[{sT0}:{sT0+1}]")
    A("s_cmp_ge_u32 s2, 256")
    A(f"s_cbranch_scc1 {L('end')}")
    A("s_load_dwordx16 s[4:19], s[0:1], 0")
    A("s_load_dwordx2 s[20:21], s[0:1], 80")
    A("s_load_dwordx2 s[22:23], s[0:1], 64")
    stamp(A, 0, True); stamp(A, 1)
    A(f"s_bfe_u32 s{sT2}, s2, 0x30003"); A(f"s_lshl_b32 s{sT2}, s{sT2}, 13")
    A("v_lshrrev_b32 v1, 6, v0"); A("v_and_b32 v2, 15, v0"); A("v_lshl_add_u32 v2, v1, 4, v2")
    A(f"v_lshl_add_u32 v2, v2, 7, s{sT2}")
    A(f"v_min_u32 v2, {L('end')}-{L('start')}-8, v2")
    A(f"v_mov_b32 v3, s{sT0+1}")
    A(f"v_add_co_u32 v2, vcc, s{sT0}, v2")
    A("v_addc_co_u32 v3, vcc, 0, v3, vcc")
    A("global_load_dword v255, v[2:3], off")
    A(f"v_readfirstlane_b32 s{sWAVE}, v1")
    A(f"v_mov_b32 v{vTID}, v0")
    A("v_and_b32 v0, 63, v0")
    A(f"s_and_b32 s{sT0}, s2, 7"); A(f"s_lshr_b32 s{sT1}, s2, 3")
    A(f"s_lshr_b32 s{sM}, s{sT0}, 1"); A(f"s_lshl_b32 s{sR}, s{sM}, 3"); A(f"s_lshl_b32 s{sM}, s{sM}, 2")
    A(f"s_and_b32 s{sT2}, s{sT1}, 3"); A(f"s_add_u32 s{sM}, s{sM}, s{sT2}")
    A(f"s_and_b32 s{sT0}, s{sT0}, 1"); A(f"s_lshl_b32 s{sT0}, s{sT0}, 2")
    A(f"s_add_u32 s{sC}, s{sT0}, s{sT2}")
    A(f"s_lshr_b32 s{sT1}, s{sT1}, 2")
    A(f"s_add_u32 s{sR}, s{sR}, s{sT1}")
    A(f"s_and_b32 s{sU}, s{sT1}, 3"); A(f"s_add_u32 s{sU}, s{sU}, s{sT0}")
    A("v_lshrrev_b32 v1, 3, v0"); A("v_and_b32 v2, 7, v0")
    A(f"s_lshl_b32 s{sT0}, s{sWAVE}, 5")
    A("v_lshrrev_b32 v4, 4, v0"); A("v_xor_b32 v4, v4, v2")
    A(f"v_add_u32 v3, s{sT0}, v1"); A("v_mul_u32_u24 v3, 1280, v3")
    A(f"v_lshl_add_u32 v{vXD}, v4, 4, v3")
    A(f"v_xor_b32 v5, 64, v{vXD}")
    A(f"v_add_u32 v{vXD+1}, {8*1280-1024}, v5")
    A(f"v_add_u32 v{vXD+2}, {16*1280-2048}, v{vXD}")
    A(f"v_add_u32 v{vXD+3}, {24*1280-3072}, v5")
    A(f"s_mul_i32 s{sXO}, s{sM}, {128*1280}")
    A(f"s_mul_i32 s{sXM}, s{sWAVE}, 12288")
    A(f"v_lshlrev_b32 v{vW}, 4, v0"); A(f"v_add_u32 v{vW+1}, 4096, v{vW}")
    A(f"s_cmp_ge_u32 s{sT1}, 4")
    A(f"s_cbranch_scc1 {L('prole')}")

def pair_lane(A):
    A("v_lshrrev_b32 v1, 3, v0"); A("v_and_b32 v2, 7, v0")
    A("v_bfe_u32 v3, v0, 4, 1"); A("v_lshlrev_b32 v3, 2, v3"); A("v_xor_b32 v3, v3, v2")

def build_srds(A, p):
    if p:
        A(f"s_bfe_u32 s{sT0}, s2, 0x60001"); A(f"s_cmp_lt_u32 s{sT0}, 30")
        A(f"s_cselect_b64 s[{SCS}:{SCS+1}], s[6:7], s[14:15]")
        csel(A, SCS + 2, 640*3840, 640*3456)
        A(f"s_and_b32 s{SCS+1}, s{SCS+1}, 0xffff"); A(f"s_mov_b32 s{SCS+3}, 0x20000")
        A(f"s_bfe_u32 s{sT0}, s2, 0x40003"); A(f"s_lshl_b32 s{sT1}, s{sWAVE}, 4"); A(f"s_add_u32 s{sT0}, s{sT0}, s{sT1}")
        A(f"s_cmp_lt_u32 s{sT0}, 54")
        A(f"s_cselect_b64 s[{SPK}:{SPK+1}], s[18:19], s[10:11]")
        csel(A, SPK + 2, 1728*1280, 640*1280)
        A(f"s_and_b32 s{SPK+1}, s{SPK+1}, 0xffff"); A(f"s_mov_b32 s{SPK+3}, 0x20000")
        srd(A, SWB, 10, 640 * 1280)
        srd(A, SB1, 16, 1728 * 2)
    srd(A, SPH, 8, 32 * 800)
    srd(A, SOUT, 22, 2048 * 1280)

def common_addr(A):
    A("v_and_b32 v1, 31, v0"); A("v_lshrrev_b32 v2, 5, v0"); A("v_bfe_u32 v3, v0, 1, 3")
    A("v_lshlrev_b32 v4, 7, v1"); A(f"v_add_u32 v4, s{sXM}, v4")
    for q in range(4):
        A(f"v_add_u32 v5, {2*q}, v2"); A("v_xor_b32 v5, v5, v3")
        A(f"v_lshl_add_u32 v{vXRD+q}, v5, 4, v4")
    A("v_lshrrev_b32 v3, 4, v1"); A(f"v_mul_u32_u24 v3, {ACT_BLK}, v3"); A("v_lshl_add_u32 v3, v2, 8, v3")
    A("v_and_b32 v4, 15, v0"); A(f"v_lshl_add_u32 v{vAST}, v4, 4, v3")
    A(f"s_lshl_b32 s{sT0}, s{sM}, 3"); A(f"s_lshl_b32 s{sT1}, s{sWAVE}, 1"); A(f"s_add_u32 s{sT0}, s{sT0}, s{sT1}")
    A(f"s_mul_i32 s{sACT}, s{sT0}, {ACT_BLK}"); A(f"s_add_u32 s{sACT}, s{sACT}, {ACT_OFF}")
    A(f"s_lshl_b32 s{sT0}, s2, 8"); A(f"s_add_u32 s{sT0}, s{sT0}, {FLG_OFF}")
    A(f"v_mov_b32 v3, s{sT0}"); A(f"v_mov_b32 v4, {hex(OOB)}")
    A(f"v_cmp_eq_u32 vcc, 0, v{vTID}"); A(f"v_cndmask_b32 v{vFL}, v4, v3, vcc")
    poll_addr(A, "all", 3, 4)
    A(f"s_mul_i32 s{sW}, s{sC}, 74"); A(f"s_add_u32 s{sW}, s{sW}, s{sWAVE}"); A(f"s_mul_i32 s{sW}, s{sW}, 5120")
    A(f"s_add_u32 s{sW}, s{sW}, {W2P_OFF}")
    A(f"s_add_u32 s{sX1}, s{sW}, {13*20480}")
    A(f"s_cmp_lt_u32 s{sWAVE}, 2"); A(f"s_cselect_b32 s{sX1}, s{sX1}, {hex(OOB)}")
    A(f"s_mul_i32 s{sPV}, s{sWAVE}, {4*5120}"); A(f"s_add_u32 s{sPV}, s{sPV}, {6*5120}")
    A("v_and_b32 v1, 3, v0"); A("v_bfe_u32 v2, v0, 2, 1"); A("v_bfe_u32 v3, v0, 3, 2")
    A("v_lshrrev_b32 v4, 1, v3"); A("v_lshl_add_u32 v4, v4, 1, v2")
    A("v_and_b32 v5, 1, v3"); A("v_lshl_add_u32 v5, v5, 2, v1"); A("v_lshl_add_u32 v4, v4, 3, v5")
    A(f"v_lshlrev_b32 v{vCP}, 4, v4")

def pair_read_base(A, dst):
    A("v_lshrrev_b32 v7, 1, v4"); A("v_lshlrev_b32 v7, 2, v7"); A("v_lshl_add_u32 v7, v3, 1, v7")
    A("v_and_b32 v5, 1, v4"); A("v_add_u32 v7, v7, v5"); A("v_lshlrev_b32 v7, 3, v7")
    A("v_lshl_add_u32 v7, v6, 7, v7"); A("v_bfe_u32 v5, v0, 3, 1"); A(f"v_lshl_add_u32 v{dst}, v5, 6, v7")

def as_queue(B):
    return [(x.text, x.tag, 1 if x.cls == "vmem" else 0, x.glue) for x in B.ins]

def stats_load(A):
    A(f"s_lshl_b32 s{sP0}, s{sM}, 2"); A(f"s_add_u32 s{sP0}, s{sP0}, s{sWAVE}"); A(f"s_lshl_b32 s{sP0}, s{sP0}, 8")
    A(f"s_add_u32 s{sP0}, s{sP0}, {ST_OFF}")
    A(f"v_and_b32 v{vPT}, 31, v0"); A(f"v_lshlrev_b32 v{vPT}, 3, v{vPT}")
    A(f"buffer_load_dwordx2 {v(vST,2)}, v{vPT}, {srdr(SWS)}, s{sP0} offen sc1")

def epoch_load(A):
    A(f"v_mov_b32 v{vEP}, 0")
    A(f"buffer_load_dword v{vEP}, v{vEP}, {srdr(SWS)}, 0 offen sc1")

def role_kv(A, C):
    L = C.L
    ACC_A = 176; ACC_Q = 64; KP = 96; PAK = 120; VP = 184; EP = 216; PK = 184; KVA = 184; CR = 120
    A(f"s_lshl_b32 s{sT0}, s{sWAVE}, 3")
    A(f"s_mul_i32 s{sT1}, s{sU}, 160"); A(f"s_add_u32 s{sT1}, s{sT1}, 1280")
    for i in range(3):
        A(f"v_add_u32 v1, {64*i}, v0")
        A("v_mul_u32_u24 v2, 3277, v1"); A("v_lshrrev_b32 v2, 16, v2")
        A("v_mul_u32_u24 v3, 20, v2"); A("v_sub_u32 v3, v1, v3")
        A("v_mul_u32_u24 v4, 13108, v3"); A("v_lshrrev_b32 v4, 16, v4")
        A("v_and_b32 v5, 1, v4"); A("v_lshrrev_b32 v4, 1, v4")
        A("v_mul_u32_u24 v5, 1200, v5"); A("v_mul_u32_u24 v4, 80, v4")
        A(f"v_add_u32 v2, s{sT0}, v2"); A("v_mul_u32_u24 v2, 3840, v2"); A("v_lshl_add_u32 v2, v3, 4, v2")
        A("v_add_u32 v2, v2, v5"); A("v_sub_u32 v2, v2, v4")
        A(f"v_add_u32 v{vAD+i}, s{sT1}, v2")
        if i: A(f"v_subrev_u32 v{vAD+i}, {1024*i}, v{vAD+i}")
    A(f"v_mov_b32 v1, {hex(OOB)}"); A("v_cmp_gt_u32 vcc, 32, v0"); A(f"v_cndmask_b32 v{vAD+2}, v1, v{vAD+2}, vcc")
    A(f"s_mul_i32 s{sWB}, s{sWAVE}, 3072"); A(f"s_add_u32 s{sWB}, s{sWB}, {WR}")
    pair_lane(A)
    A(f"v_add_u32 v4, s{sT0}, v1"); A("v_mul_u32_u24 v4, 3840, v4")
    A(f"v_lshl_add_u32 v4, v3, 4, v4"); A(f"s_lshl_b32 s{sT1}, s{sU}, 7")
    A(f"v_add_u32 v{vPD}, s{sT1}, v4")
    A("s_waitcnt lgkmcnt(0)")
    srd(A, SX, 4, 2048 * 1280)
    srd(A, SWS, 20, WS_SIZE)
    A0 = A; A = Asm()
    srd(A, SWA, 6, 640 * 3840)
    A(f"s_lshl_b32 s{sWQ}, s{sWAVE}, 10"); A(f"s_add_u32 s{sWQ}, s{sWQ}, {WR + 12288}")
    build_srds(A, False)
    spread(A0, A, x_dma(0), 3, first=3)
    A = Asm()
    common_addr(A)
    vCA = 40
    A("v_mul_u32_u24 v4, 40, v2"); A("v_lshl_add_u32 v4, v3, 2, v4"); A("v_add_u32 v4, v4, v1")
    A(f"v_lshlrev_b32 v{vCA}, 4, v4"); A(f"v_add_u32 v{vCA+2}, {600*16}, v{vCA}")
    A("v_cmp_lt_u32 vcc, 1, v3"); A(f"v_cndmask_b32 v{vCA+1}, v{vCA}, v{vCA+2}, vcc")
    common_lane(A)
    A("v_mul_u32_u24 v7, 320, v6"); A(f"v_mul_u32_u24 v{vAR}, 160, v3"); A(f"v_add_u32 v{vAR}, v{vAR}, v7")
    A(f"v_lshl_add_u32 v{vAR}, v1, 9, v{vAR}")
    A(f"v_lshl_add_u32 v{vAR}, v4, 3, v{vAR}"); A(f"v_add_u32 v{vAR}, {WR}, v{vAR}"); A(f"v_add_u32 v{vAR+1}, 65536, v{vAR}")
    pair_read_base(A, vPR)
    A(f"v_add_u32 v{vPR}, {WR + 12288}, v{vPR}")
    A(f"v_xor_b32 v{vPR+1}, 64, v{vPR}")
    A(f"v_add_u32 v{vPR+2}, 65536, v{vPR}"); A(f"v_add_u32 v{vPR+3}, 65536, v{vPR+1}")
    spread(A0, A, kv_dma(0) + kv_dma(1), 10, first=10)
    A = A0
    epoch_load(A)
    phi_loads(A, True, aPH)
    emit(A, x_dma(1) + kv_dma(2) + kv_dma(3))
    pt(A, "pro")
    S1 = OPT.get("s1kv", 9)
    steps = []
    accs = [ACC_A + 16 * t for t in range(5)] + [ACC_Q, ACC_Q + 16]
    for s in range(40):
        c, sp = divmod(s, 4)
        h = s >> 1; sl = h % 6; hi = sl >= 4
        fr = aW + 28 * (s & 1)
        rd = []
        for t in range(5):
            for rho in range(2):
                off = (sl & 3 if hi else sl) * HS + (s & 1) * 6144 + rho * 1280 + t * 32
                rd.append(f"ds_read_b64_tr_b16 {a(fr + 4*t + 2*rho, 2)}, v{vAR + hi} offset:{off}")
        for t in range(2):
            for rho in range(2):
                off = (sl & 3 if hi else sl) * HS + (s & 1) * 2048 + rho * 512
                rd.append(f"ds_read_b64_tr_b16 {a(fr + 20 + 4*t + 2*rho, 2)}, v{vPR + t + 2*hi} offset:{off}")
        q = []
        if s == 0: q += kv_dma(4) + x_dma(2)
        if sp in (0, 2): q += kv_dma(h + 5)
        if sp == 2: q += x_dma(c + 3)
        steps.append(dict(nt=7, acc=accs, first=(s == 0), xreg=aX + 16 * (c & 1) + 4 * sp, frag=fr, reads=rd,
                          chunk=h if sp in (0, 2) else None, xj=c if sp == 0 else None, queue=q))
    def pre(A, c):
        if c == S1: poll_check(A, C, 1)
    def post(A, c, dq):
        pt(A, f"c{c}")
        if c == 1: A(f"v_readfirstlane_b32 s{sE}, v{vEP}")
        if c == S1 - 1: poll_issue(A)
        if c == S1:
            A = Asm()
            stats_load(A)
            A(f"s_mul_i32 s{sP0}, s{sU}, {80*16}"); A(f"s_add_u32 s{sP0}, s{sP0}, {CS_OFF + 640*16}")
            for t in range(5):
                A(f"buffer_load_dwordx4 {v(CR+4*t,4)}, v{vCA+[0,0,1,2,2][t]}, {srdr(SWS)}, s{sP0} offen offset:{256*t} sc1")
            A(f"s_lshl_b32 s{sP0}, s{sU}, 10"); A(f"s_add_u32 s{sP0}, s{sP0}, {CS_OFF}")
            for t in range(2):
                A(f"buffer_load_dwordx4 {v(vQC+4*t,4)}, v{vCP}, {srdr(SWS)}, s{sP0} offen offset:{512*t} sc1")
            dq.add(as_queue(A), front=True)
    M = Asm(); dq = DQ()
    gemm_steps(M, steps, 1, dq, pre, post, every=OPT.get("kvevery", [2] * 9 + [1]))
    dq.pop(M, 99)
    F = Asm(); phi_writes(F, True, aPH)
    ins, left = weave(M, F, start=30, per=2); assert not left
    F = Asm()
    common_lane(F)
    F("v_mul_u32_u24 v7, 1920, v3"); F(f"v_add_u32 v7, {PHI1}, v7"); F(f"v_mov_b32 v5, {PZERO}")
    F("v_cmp_eq_u32 vcc, v1, v3"); F.g("v_cndmask_b32 v7, v5, v7, vcc")
    F("v_mul_u32_u24 v5, 40, v2"); F("v_add_u32 v7, v7, v5"); F("v_lshl_add_u32 v6, v4, 3, v7"); F("v_add_u32 v7, 32, v7")
    F(f"s_lshl_b32 s{sPKD}, s{sU}, 11"); F(f"s_add_u32 s{sPKD}, s{sPKD}, s{sACT}"); F(f"s_add_u32 s{sPKD}, s{sPKD}, {74*1024}")
    bufs = [0, 4, 8, 12, 16, 20, 24, 28, 32, 36, 40, 44]
    seq = [(sg, tau, st) for sg in range(2) for st in range(3) for tau in range(2)]
    for n in range(12):
        sg, tau, st = seq[n]
        for rho in range(2):
            F(f"ds_read_b64_tr_b16 {a(bufs[n]+2*rho,2)}, v{6+tau} offset:{sg*960+(8*st+4*rho)*40}")
    ins, left = weave(ins, F, start=200, per=1.5); assert not left
    FC = Asm()
    stats_frag(FC, 1)
    for t in range(5): corr_frag(FC, CR + 4 * t, 1 + (t & 1))
    for t in range(2): corr_frag(FC, vQC + 4 * t, 1 + (t & 1))
    if S1 < 9:
        ins, left = weave(ins, FC, start=256, per=3); FC.ins = left
    A.extend(ins)
    pt(A, "p1end")
    A.extend(FC)
    for t in range(5):
        A(f"v_mfma_f32_32x32x16_bf16 {v(ACC_A+16*t,16)}, {v(CR+4*t,4)}, {v(vCB,4)}, {v(ACC_A+16*t,16)}")
    for t in range(2):
        A(f"v_mfma_f32_32x32x16_bf16 {v(ACC_Q+16*t,16)}, {v(vQC+4*t,4)}, {v(vCB,4)}, {v(ACC_Q+16*t,16)}")
    for i in range(20):
        A(f"v_cvt_pk_bf16_f32 v{KP+i}, v{ACC_A+2*i}, v{ACC_A+2*i+1}")
    A(f"v_mov_b32 v{KP+20}, 0"); A(f"v_mov_b32 v{KP+21}, 0")
    vs = Asm()
    for t in range(2):
        for p in range(2):
            for i in range(4):
                r = ACC_Q + 16 * t + 8 * p
                vs(f"v_cvt_pk_bf16_f32 v{r+i}, v{r+2*i}, v{r+2*i+1}")
            pair_store(vs, ACC_Q, sPKD, "qst", t, p)
    vs("v_and_b32 v1, 31, v0"); vs(f"s_lshl_b32 s{sF0}, s{sWAVE}, 5"); vs(f"v_add_u32 v1, s{sF0}, v1")
    vs("v_lshrrev_b32 v2, 5, v0")
    vs("v_mul_u32_u24 v3, 48, v1"); vs("v_mul_u32_u24 v5, 12288, v2"); vs("v_add_u32 v3, v3, v5"); vs(f"v_add_u32 v{vAR+1}, {VIM}, v3")
    vs("v_mul_u32_u24 v3, 80, v1"); vs("v_mul_u32_u24 v4, 20480, v2"); vs("v_add_u32 v3, v3, v4"); vs(f"v_add_u32 v{vAR}, {PHIK}, v3")
    for sg in range(2):
        for i in range(10):
            r = ACC_A + 40 + 20 * sg + 2 * i
            vs(f"v_mul_f32 v{r}, v{r}, v{vRS}"); vs(f"v_mul_f32 v{r+1}, v{r+1}, v{vRS}")
            vs(f"v_cvt_pk_bf16_f32 v{VP+12*sg+i}, v{r}, v{r+1}")
        vs(f"v_mov_b32 v{VP+12*sg+10}, 0x3f80"); vs(f"v_mov_b32 v{VP+12*sg+11}, 0")
        for i in range(3):
            vs(f"ds_write_b128 v{vAR+1}, {v(VP+12*sg+4*i,4)} offset:{6144*sg+16*i}")
    K = Asm()
    for n in range(12):
        sg, tau, st = seq[n]
        d = v(PAK + 32 * sg + 16 * tau, 16)
        K(f"v_mfma_f32_32x32x16_bf16 {d}, {a(bufs[n],4)}, {v(KP+10*sg+4*st,4)}, {'0' if st == 0 else d}")
    ins, left = weave(K, vs, per=5)
    A.extend(ins); A.extend(left)
    NW = OPT.get("kvw2p", 5)
    wq = sum((w2p_loads(n) for n in range(NW)), [])
    F = Asm()
    for sg in range(2):
        softmax_pair_pk(F, PAK + 32 * sg, EP, EP + 20, PK, vS1, 2)
        for i in range(5):
            F(f"ds_write_b128 v{vAR}, {v(PK+4*i,4)} offset:{10240*sg+16*i}")
        if sg == 0:
            F.wait(vm="qst"); F.g("s_barrier"); signal(F, 2)
    F("v_lshrrev_b32 v1, 5, v0"); F("v_bfe_u32 v2, v0, 2, 2"); F("v_lshlrev_b32 v2, 2, v2"); F("v_lshl_add_u32 v2, v1, 1, v2")
    F("v_and_b32 v3, 3, v0"); F("v_bfe_u32 v4, v0, 4, 1"); F("v_lshl_add_u32 v3, v4, 2, v3")
    F(f"s_mul_i32 s{sF0}, s{sWAVE}, 10240"); F(f"s_add_u32 s{sF0}, s{sF0}, {PHIK}")
    F("v_mul_u32_u24 v4, 80, v2"); F(f"v_add_u32 v4, s{sF0}, v4"); F("v_lshl_add_u32 v5, v3, 3, v4")
    F("v_and_b32 v6, 1, v3"); F("v_lshl_add_u32 v6, v6, 3, v4"); F("v_add_u32 v6, 64, v6")
    F(f"s_mul_i32 s{sF0}, s{sWAVE}, 6144"); F(f"s_add_u32 s{sF0}, s{sF0}, {VIM}")
    F("v_mul_u32_u24 v4, 48, v2"); F(f"v_add_u32 v4, s{sF0}, v4"); F("v_min_u32 v7, 5, v3"); F("v_lshl_add_u32 v7, v7, 3, v4")
    spread(A, F, wq, OPT.get("kvsp", 13))
    pt(A, "p2end")
    A.wait(lgkm="all")
    A("s_barrier")
    fb = [140, 152, 164, 176]
    def krd(st):
        fr = fb[st % 4]
        for rho in range(2):
            A(f"ds_read_b64_tr_b16 {a(fr+2*rho,2)}, v5 offset:{(16*st+rho)*80}")
            A(f"ds_read_b64_tr_b16 {a(fr+8+2*rho,2)}, v7 offset:{(16*st+rho)*48}")
            A(f"ds_read_b64_tr_b16 {a(fr+4+2*rho,2)}, v6 offset:{(16*st+rho)*80}")
    for st in range(4): krd(st)
    G = Asm()
    poll_addr(G, "grp", 1, 2)
    p2_addr_early(G)
    G("v_and_b32 v1, 31, v0"); G("v_lshrrev_b32 v2, 5, v0"); G("v_lshlrev_b32 v2, 9, v2"); G("v_lshl_add_u32 v2, v1, 2, v2")
    G(f"v_mov_b32 v3, {hex(OOB)}"); G("v_cmp_gt_u32 vcc, 21, v1"); G.g(f"v_cndmask_b32 v{vKA}, v3, v2, vcc")
    G(f"s_lshl_b32 s{sT0}, s{sU}, 2"); G(f"s_add_u32 s{sT0}, s{sT0}, s{sWAVE}"); G(f"s_mul_i32 s{sT0}, s{sT0}, 5120")
    G(f"s_add_u32 s{sT0}, s{sT0}, {KV_OFF}"); G(f"s_add_u32 s{sT1}, s{sT0}, 4096")
    K = Asm()
    sv = A.ins; A.ins = K.ins
    for st in range(8):
        fr = fb[st % 4]
        for tau in range(2):
            d = v(KVA + 16 * tau, 16)
            A(f"v_mfma_f32_32x32x16_bf16 {d}, {a(fr+4*tau,4)}, {a(fr+8,4)}, {'0' if st == 0 else d}")
        if st + 4 < 8: krd(st + 4)
    A.ins = sv
    ins, left = weave(K, G, start=8, per=6)
    A.extend(ins); A.extend(left)
    for r in range(20):
        f = 8 * (r >> 2) + (r & 3)
        A(f"buffer_atomic_add_f32 v{KVA+r}, v{vKA}, {srdr(SWS)}, s{sT0 if f < 32 else sT1} offen offset:{(f & 31)*128} sc1", "fin")
    pt(A, "sig2")
    poll_issue(A)
    for n in range(NW, 12): emit(A, w2p_loads(n))
    A.wait(vm="fin")
    A("s_barrier")
    signal(A, 3)
    poll_check(A, C, 2)
    p2_first_loads(A)
    pt(A, "first")
    A(f"s_branch {L('tail')}")

def pinfo(A, sl, J, qf):
    if isinstance(sl, int):
        if sl == 0:
            A(f"s_cmp_lt_u32 s{sU}, 2"); A.g(f"s_cselect_b32 s{J}, 8, -2"); A.g(f"s_cselect_b32 s{qf}, 1, 0")
        else:
            A(f"s_mov_b32 s{J}, {8*sl - 2}"); A(f"s_mov_b32 s{qf}, 0")
        A(f"s_add_u32 s{J}, s{J}, s{sU}")

def role_p(A, C):
    L = C.L
    ACC = 128; CR = 64; MT = 96
    A.label(L("prole"))
    A(f"s_lshl_b32 s{sT0}, s{sWAVE}, 3"); A(f"s_add_u32 s{sT0}, s{sT0}, s{sU}")
    A(f"s_cmp_lt_u32 s{sT0}, 2"); A(f"s_cselect_b32 s{sT1}, 8, -2"); A(f"s_cselect_b32 s{sT2}, 1, 0")
    csel(A, sT3, 3840, 3456)
    A(f"s_add_u32 s{sT0}, s{sT0}, s{sT1}"); A(f"s_lshl_b32 s{sT1}, s{sT0}, 7")
    A(f"s_cmp_lt_u32 s{sT0}, 27"); A(f"s_cselect_b32 s{sT1}, s{sT1}, {hex(OOB)}")
    pair_lane(A)
    A(f"v_mul_u32_u24 v5, s{sT3}, v1"); A(f"v_lshl_add_u32 v{vP1}, v3, 4, v5")
    A(f"s_lshl_b32 s{sT0}, s{sT3}, 3"); A(f"s_sub_u32 s{sT0}, s{sT0}, 1024")
    for i in range(1, 4):
        A(f"v_add_u32 v{vP1+i}, s{sT0}, v{vP1+i-1}")
    A(f"s_lshl_b32 s{sWB}, s{sWAVE}, 12"); A(f"s_add_u32 s{sWB}, s{sWB}, {WR}")
    A("s_waitcnt lgkmcnt(0)")
    srd(A, SX, 4, 2048 * 1280)
    srd(A, SWS, 20, WS_SIZE)
    A(f"s_cmp_eq_u32 s{sT2}, 1")
    A(f"s_cselect_b64 s[{SWA}:{SWA+1}], s[6:7], s[14:15]")
    csel(A, SWA + 2, 640*3840, 640*3456)
    A(f"s_and_b32 s{SWA+1}, s{SWA+1}, 0xffff"); A(f"s_mov_b32 s{SWA+3}, 0x20000")
    A(f"s_mov_b32 s{sWO}, s{sT1}"); A(f"s_lshl_b32 s{sWS}, s{sT3}, 5")
    A0 = A; A = Asm()
    build_srds(A, True)
    spread(A0, A, x_dma(0), 8, first=8)
    A = Asm(); pack_setup(A)
    spread(A0, A, p_dma(0) + p_dma(1), 16, first=16)
    epoch_load(A0)
    A = Asm()
    common_addr(A)
    common_lane(A)
    pair_read_base(A, vPRP)
    A(f"v_add_u32 v{vPRP}, {WR}, v{vPRP}")
    A(f"v_xor_b32 v{vPRP+1}, 64, v{vPRP}")
    A(f"v_add_u32 v{vPRP+2}, 65536, v{vPRP}"); A(f"v_add_u32 v{vPRP+3}, 65536, v{vPRP+1}")
    pack_read_addr(A)
    prep_setup(A)
    phi_loads(A, False, aPH)
    spread(A0, A, pack_dma() + x_dma(1) + p_dma(2) + p_dma(3), 7, first=7)
    A = A0
    pt(A, "pro")
    S1 = OPT.get("s1p", 8); SG = OPT.get("sig1", 5)
    steps = []
    for s in range(40):
        g, sp = divmod(s, 4)
        h = s >> 1; sl = h % 6; hi = sl >= 4
        fr = aW + 32 * (s & 1)
        rd = []
        for t in range(8):
            for rho in range(2):
                off = (sl & 3 if hi else sl) * HS + (t >> 1) * 4096 + (s & 1) * 2048 + rho * 512
                rd.append(f"ds_read_b64_tr_b16 {a(fr + 4*t + 2*rho, 2)}, v{vPRP + (t & 1) + 2*hi} offset:{off}")
        q = []
        if s == 0: q += cs_loads() + stats_loads()
        if s == 2: q += pack_reads() + x_dma(2)
        if s == 4: q += p_dma(4) + p_dma(5) + p_dma(6) + pack_stores() + pack_shared() + p_dma(7)
        if s > 4 and sp in (0, 2): q += p_dma(h + 5)
        if sp == 2: q += x_dma(g + 3)
        steps.append(dict(nt=8, acc=[ACC + 16 * t for t in range(8)], first=(s == 0), xreg=aX + 16 * (g & 1) + 4 * sp, frag=fr,
                          reads=rd, chunk=h if sp in (0, 2) else None, xj=g if sp == 0 else None, queue=q,
                          tags=["prep"] if s == 4 * SG else (["pkx", "pkr"] if s == 4 else [])))
    def pre(A, c):
        if c == S1: poll_check(A, C, 1)
    def post(A, c, dq):
        pt(A, f"c{c}")
        if c == 1: A(f"v_readfirstlane_b32 s{sE}, v{vEP}")
        if c == SG: signal(A, 1)
        if c == S1 - 1: poll_issue(A)
        if c == S1:
            A = Asm()
            stats_load(A)
            for sl in range(4):
                pinfo(A, sl, sT0, sT1)
                A(f"s_lshl_b32 s{sT0}, s{sT0}, 10"); A(f"s_mul_i32 s{sT1}, s{sT1}, {-1920*16}")
                A(f"s_add_u32 s{sT0}, s{sT0}, s{sT1}"); A(f"s_add_u32 s{sT0}, s{sT0}, {CS_OFF + 1920*16}")
                for t in range(2):
                    A(f"buffer_load_dwordx4 {v(CR+8*sl+4*t,4)}, v{vCP}, {srdr(SWS)}, s{sT0} offen offset:{512*t} sc1")
            dq.add(as_queue(A), front=True)
    M = Asm(); dq = DQ()
    gemm_steps(M, steps, 1, dq, pre, post, every=OPT.get("pevery", [1.4, 1.4, 1.6, 2]))
    dq.pop(M, 99)
    g0 = OPT.get("pw0", 30); cb = OPT.get("csbar", 5)
    F = Asm(); cs_setup(F); zero_kv(F)
    ins, left = weave32(M, F, start=2, stop=25, budget=5.5); assert not left, len(left)
    FS = Asm(); stats_compute(FS)
    k = OPT.get("stk", 40)
    F = Asm(); phi_writes(F, False, aPH); cs_compute(F); F.extend(FS.ins[:k]); cs_write(F)
    ins, left = weave32(ins, F, start=g0, stop=16 * cb - 6, budget=OPT.get("pbud", 5.5)); assert not left, len(left)
    F = Asm(); cs_finish(F); F.extend(FS.ins[k:])
    ins, left = weave32(ins, F, start=16 * cb - 5, stop=32 * SG - 6, budget=OPT.get("pbud", 5.5)); assert not left
    F = Asm()
    stats_frag(F, 1)
    for t in range(8): corr_frag(F, CR + 4 * t, 1 + (t & 1))
    for sl, d in enumerate((sPKO, sPKD, sPX0, sPX1)):
        pinfo(F, sl, d, sF0)
        if sl == 0: F(f"s_mov_b32 s{sQF}, s{sF0}"); F(f"s_mul_i32 s{sF0}, s{sF0}, {74*1024}")
        F(f"s_lshl_b32 s{d}, s{d}, 11"); F(f"s_add_u32 s{d}, s{d}, s{sACT}")
        if sl == 0: F(f"s_add_u32 s{d}, s{d}, s{sF0}")
    ins, left = weave32(ins, F, start=32 * (S1 + 1) - 4, budget=5.5)
    A.extend(ins)
    pt(A, "p1end")
    A.extend(left)
    for t in range(8):
        A(f"v_mfma_f32_32x32x16_bf16 {v(ACC+16*t,16)}, {v(CR+4*t,4)}, {v(vCB,4)}, {v(ACC+16*t,16)}")
    poll_addr(A, "grp", 1, 2)
    p2_addr_early(A)
    def mslot(A, sl, so, tag):
        for t in range(2):
            for p in range(2):
                mish_pk(A, ACC + 32 * sl + 16 * t + 8 * p, 8, MT)
                pair_store(A, ACC + 32 * sl, so, tag, t, p)
    A(f"s_cmp_eq_u32 s{sQF}, 1")
    A(f"s_cbranch_scc0 {L('noq')}")
    for t in range(2):
        for p in range(2):
            r = ACC + 16 * t + 8 * p
            for i in range(4): A(f"v_cvt_pk_bf16_f32 v{r+i}, v{r+2*i}, v{r+2*i+1}")
            pair_store(A, ACC, sPKO, "stA", t, p)
    emit(A, w2p_loads(0))
    A(f"s_branch {L('q9')}")
    A.label(L("noq"))
    F = Asm(); mslot(F, 0, sPKO, "stA")
    spread(A, F, w2p_loads(0), OPT.get("psp", 16))
    A.label(L("q9"))
    F = Asm(); mslot(F, 1, sPKD, "stA"); mslot(F, 2, sPX0, "fin")
    F.wait(vm="stA"); F.g("s_barrier"); signal(F, 2)
    spread(A, F, sum((w2p_loads(n) for n in range(1, 5)), []), OPT.get("psp", 16))
    pt(A, "p2end")
    poll_issue(A)
    A(f"s_cmp_lt_u32 s{sU}, 5")
    A(f"s_cbranch_scc1 {L('h3')}")
    emit(A, w2p_loads(5) + w2p_loads(6))
    A(f"s_branch {L('h9')}")
    A.label(L("h3"))
    F = Asm(); mslot(F, 3, sPX1, "fin")
    spread(A, F, w2p_loads(5) + w2p_loads(6), OPT.get("psp", 16))
    A.label(L("h9"))
    pt(A, "sig2")
    poll_check(A, C, 2)
    p2_first_loads(A)
    for n in range(7, 12): emit(A, w2p_loads(n))
    pt(A, "first")

def phase2(A, C):
    L = C.L
    A.label(L("tail"))
    def step(M, n, extra):
        for k in range(4):
            b = v(ACT + 16 * (n % 4) + 4 * k, 4) if n < 14 else a(aO + 16 * (n - 14) + 4 * k, 4)
            for nt in range(5):
                d = v(ACCO + 4 * (5 * k + nt), 4)
                M(f"v_mfma_f32_16x16x32_bf16 {d}, {a(slot(n)+4*nt,4)}, {b}, {'0' if n == 0 else d}")
                emit(M, extra.get(5 * k + nt, []))
            if n + 4 < 14 and (n + 4 < 7 or n > OPT.get("p1steps", 5)): emit(M, act_load(n + 4, k))
    def wext(n):
        e = {}
        if 1 <= n and n + 11 <= 18:
            lst = w2p_loads(n + 11)
            k = 0
            for x in lst:
                e.setdefault(1 + 4 * k, []).append(x)
                k += x[2]
        return e
    F = Asm()
    F("v_lshrrev_b32 v1, 4, v0"); F("v_and_b32 v2, 3, v0"); F("v_bfe_u32 v3, v0, 2, 2")
    F("v_mul_u32_u24 v4, 960, v1"); F(f"v_add_u32 v4, {PHI2}, v4")
    F("v_mul_u32_u24 v5, 1920, v1"); F(f"v_add_u32 v5, {KVI}, v5"); F(f"v_mov_b32 v6, {PZERO}")
    F("v_cmp_eq_u32 vcc, v1, v2"); F.g("v_cndmask_b32 v4, v6, v4, vcc"); F.g("v_cndmask_b32 v5, v6, v5, vcc")
    F(f"v_mad_u32_u24 v{vF1}, v3, 40, v4"); F(f"v_mad_u32_u24 v{vF2}, v3, 48, v5")
    F(f"v_mov_b32 v{QR+10}, 0"); F(f"v_mov_b32 v{QR+11}, 0")
    fb = [("a", 240), ("a", 244), ("a", 248), ("a", 252), ("v", 100), ("v", 104), ("v", 108)]
    def reg(n, off, cnt):
        k, r = fb[n % 7]
        return R(k, r + off, cnt)
    seq = [(st, ch) for st in range(3) for ch in range(5)]
    def prd(n):
        st, ch = seq[n]
        for rho in range(2):
            F(f"ds_read_b64_tr_b16 {reg(n,2*rho,2)}, v{vF1} offset:{(8*st+4*rho)*40+ch*8}")
    for n in range(7): prd(n)
    head1 = len(F.ins)
    for n in range(15):
        st, ch = seq[n]
        d = v(PA2 + 4 * ch, 4)
        F(f"v_mfma_f32_16x16x32_bf16 {d}, {reg(n,0,4)}, {v(QR+4*st,4)}, {'0' if st == 0 else d}")
        if n + 7 < 15: prd(n + 7)
    F(f"v_rsq_f32 v{ST2}, v{ST2+1}")
    poll_addr(F, "kv", 1, 2)
    F(f"v_mul_f32 v{ST2}, {hex(LOG2E)}, v{ST2}")
    for j in range(4):
        F(f"v_add_u32 v1, {256*j}, v{vTID}"); F("v_mul_u32_u24 v2, 10923, v1"); F("v_lshrrev_b32 v2, 16, v2")
        F("v_mul_u32_u24 v3, 6, v2"); F("v_sub_u32 v3, v1, v3"); F("v_lshlrev_b32 v2, 7, v2")
        F(f"v_lshl_add_u32 v{vKA+j}, v3, 4, v2")
    softmax_pair(F, PA2, PK2, PA2, PK2, ST2, 1)
    poll_issue(F)
    P1 = OPT.get("p1steps", 5)
    M = Asm()
    for n in range(P1):
        step(M, n, wext(n))
        if n == 1:
            M.wait(vm="fin"); M("s_barrier"); signal(M, 3)
    A.extend(F.ins[:head1])
    tot = sum((2 if x.cls == "mfma" else x.cost) for x in F.ins[head1:])
    ins, left = weave(M, F.ins[head1:], per=tot / (20 * P1 - 4) + 0.05, start=2)
    A.extend(ins); A.extend(left)
    pt(A, "part1")
    poll_check(A, C, 3)
    A(f"s_mul_i32 s{sP0}, s{sC}, 20480"); A(f"s_add_u32 s{sP0}, s{sP0}, {KV_OFF}")
    for j in range(4):
        A(f"buffer_load_dwordx4 {v(KVR+4*j,4)}, v{vKA+j}, {srdr(SWS)}, s{sP0} offen sc1")
    F = Asm()
    poll_addr(F, "grp", 1, 2)
    F(f"s_lshr_b32 s{sT0}, s{sC}, 1"); F(f"s_mul_i32 s{sT0}, s{sT0}, 5"); F(f"s_add_u32 s{sT0}, s{sT0}, 54"); F(f"s_lshl_b32 s{sT0}, s{sT0}, 10")
    F(f"s_mul_i32 s{sT1}, s{sWAVE}, {ACT_BLK}"); F(f"s_add_u32 s{sT0}, s{sT0}, s{sT1}"); F(f"s_add_u32 s{sT0}, s{sT0}, s{sAB}")
    F(f"s_and_b32 s{sT1}, s{sC}, 1"); F(f"s_lshl_b32 s{sT2}, s{sT1}, 11"); F(f"s_add_u32 s{sT2}, s{sT2}, s{sT0}")
    F(f"s_lshl_b32 s{sT1}, s{sT1}, 9"); F(f"s_add_u32 s{sT1}, s{sT1}, s{sT0}"); F(f"s_add_u32 s{sT1}, s{sT1}, 4096")
    F("v_lshrrev_b32 v3, 5, v0"); F("v_lshlrev_b32 v3, 8, v3"); F("v_and_b32 v4, 15, v0"); F("v_lshl_add_u32 v3, v4, 4, v3")
    F("v_bfe_u32 v4, v0, 4, 1"); F(f"v_lshl_add_u32 v{vOA}, v4, 3, v3")
    poll_issue(F)
    F(f"v_lshlrev_b32 v2, 3, v{vTID}"); F(f"v_add_u32 v2, {KVI}, v2")
    n0 = P1
    M = Asm(); step(M, n0, wext(n0))
    ins, left = weave(M, F, per=2); A.extend(ins); A.extend(left)
    for j in range(4):
        A(f"v_cvt_pk_bf16_f32 v{KVR+4*j}, v{KVR+4*j}, v{KVR+4*j+1}")
        A(f"v_cvt_pk_bf16_f32 v{KVR+4*j+1}, v{KVR+4*j+2}, v{KVR+4*j+3}")
        A(f"ds_write_b64 v2, {v(KVR+4*j,2)} offset:{2048*j}")
    A.wait(lgkm="all")
    A("s_barrier")
    poll_check(A, C, 3)
    for m in range(7, n0 + 5):
        for k in range(4): emit(A, act_load(m, k))
    F = Asm()
    seq2 = [(st, ch) for st in range(5) for ch in range(6)]
    def krd(n):
        st, ch = seq2[n]
        for rho in range(2):
            F(f"ds_read_b64_tr_b16 {reg(n,2*rho,2)}, v{vF2} offset:{(8*st+4*rho)*48+ch*8}")
    for n in range(7): krd(n)
    for n in range(30):
        st, ch = seq2[n]
        d = v(NU + 4 * ch, 4)
        F(f"v_mfma_f32_16x16x32_bf16 {d}, {reg(n,0,4)}, {v(PK2+4*st,4)}, {'0' if st == 0 else d}")
        if n + 7 < 30: krd(n + 7)
    F(f"v_add_f32 v1, 0x358637bd, v{NU+20}"); F("v_rcp_f32 v1, v1"); F(f"v_mul_f32 v1, {hex(LOG2E)}, v1")
    for i in range(10):
        F(f"v_mul_f32 v{NU+2*i}, v{NU+2*i}, v1"); F(f"v_mul_f32 v{NU+2*i+1}, v{NU+2*i+1}, v1")
        F(f"v_cvt_pk_bf16_f32 v{NU+i}, v{NU+2*i}, v{NU+2*i+1}")
    F(f"buffer_store_dwordx4 {v(NU,4)}, v{vW}, {srdr(SWS)}, s{sT2} offen sc1", "ost")
    F(f"buffer_store_dwordx4 {v(NU+4,4)}, v{vW}, {srdr(SWS)}, s{sT2} offen offset:1024 sc1", "ost")
    F(f"buffer_store_dwordx2 {v(NU+8,2)}, v{vOA}, {srdr(SWS)}, s{sT1} offen sc1", "ost")
    M = Asm()
    P2 = OPT.get("p2steps", 1)
    for n in range(n0 + 1, n0 + 1 + P2): step(M, n, wext(n))
    tot = sum((2 if x.cls == "mfma" else x.cost) for x in F.ins)
    ins, left = weave(M, F, per=tot / (20 * P2) + 0.05); A.extend(ins); A.extend(left)
    pt(A, "part2")
    n1 = n0 + 1 + P2
    F = Asm()
    poll_addr(F, "o", 1, 2)
    F("v_and_b32 v1, 15, v0"); F(f"s_lshl_b32 s{sT0}, s{sWAVE}, 4"); F(f"v_add_u32 v1, s{sT0}, v1"); F("v_mul_u32_u24 v1, 1280, v1")
    F("v_lshrrev_b32 v2, 4, v0"); F(f"v_lshl_add_u32 v{vXO}, v2, 4, v1"); F(f"v_lshl_add_u32 v{vXO+1}, v2, 3, v1")
    F(f"s_mul_i32 s{sXO}, s{sR}, {64*1280}"); F(f"s_mul_i32 s{sT0}, s{sC}, 160"); F(f"s_add_u32 s{sXO}, s{sXO}, s{sT0}")
    for k in range(1, 4):
        F(f"s_add_u32 s{sT0}, s{sWAVE}, {k}"); F(f"s_and_b32 s{sT0}, s{sT0}, 3"); F(f"s_mul_i32 s{sT0}, s{sT0}, 15360")
        F(f"s_add_u32 s{sT0}, s{sT0}, {RED + (k-1)*5120}"); F(f"v_add_u32 v{vRW+k-1}, s{sT0}, v{vW}")
    F(f"s_mul_i32 s{sT0}, s{sWAVE}, 15360"); F(f"v_add_u32 v{vRR}, s{sT0}, v{vW}")
    F(f"buffer_load_dwordx4 {v(XRS,4)}, v{vXO}, {srdr(SX)}, s{sXO} offen")
    F(f"buffer_load_dwordx4 {v(XRS+4,4)}, v{vXO}, {srdr(SX)}, s{sXO} offen offset:64")
    F(f"buffer_load_dwordx2 {v(XRS+8,2)}, v{vXO+1}, {srdr(SX)}, s{sXO} offen offset:128")
    M = Asm()
    SIG = n1 + OPT.get("osig", 1); POLL = OPT.get("opoll", 12)
    for n in range(n1, 14):
        step(M, n, wext(n))
        if n == SIG:
            M.wait(vm="ost"); M("s_barrier"); signal(M, 4)
        if n == POLL - 1: poll_issue(M)
        if n == POLL:
            poll_check(M, C, 4)
            M(f"s_mul_i32 s{sA}, s{sWAVE}, 5120"); M(f"s_add_u32 s{sA}, s{sA}, s{sAB}"); M(f"s_add_u32 s{sA}, s{sA}, {54*1024}")
            M(f"s_add_u32 s{sP1}, s{sA}, 4096")
            for i in range(5):
                for k in range(4):
                    M(f"buffer_load_dwordx4 {a(aO+16*i+4*k,4)}, v{vA+k}, {srdr(SWS)}, s{sA if i < 4 else sP1} offen offset:{1024*(i&3)} sc1")
    ins, left = weave(M, F, per=2); A.extend(ins); assert not left
    pt(A, "s13")
    for n in range(14, 18): step(A, n, {})
    n = 18
    order = [1, 2, 3, 0]
    for idx, k in enumerate(order):
        for nt in range(5):
            d = v(ACCO + 4 * (5 * k + nt), 4)
            A(f"v_mfma_f32_16x16x32_bf16 {d}, {a(slot(n)+4*nt,4)}, {a(aO+64+4*k,4)}, {d}")
            if idx >= 2 or (idx == 1 and nt >= 2):
                j = 5 * (idx - 1) + nt - 2
                kk = order[j // 5]
                A(f"ds_write_b128 v{vRW+kk-1}, {v(ACCO+4*(5*kk+j%5),4)} offset:{1024*(j%5)}")
    for j in range(13, 15):
        A(f"ds_write_b128 v{vRW+2}, {v(ACCO+4*(15+j%5),4)} offset:{1024*(j%5)}")
    XF = 100
    A(f"s_mov_b32 s{sT0}, {hex(LN2)}"); A(f"s_mov_b32 s{sT0+1}, {hex(LN2)}")
    for i in range(10):
        A(f"v_lshlrev_b32 v{44+2*i}, 16, v{XRS+i}"); A(f"v_and_b32 v{45+2*i}, 0xffff0000, v{XRS+i}")
    A.wait(lgkm="all")
    A("s_barrier")
    pt(A, "red")
    for nt in range(5):
        for sl in range(3):
            A(f"ds_read_b128 {v(ACT+12*nt+4*sl,4)}, v{vRR} offset:{sl*5120+nt*1024}")
    for nt in range(5):
        b = ACT + 12 * nt; o = ACCO + 4 * nt
        for h in range(2):
            A(f"v_pk_add_f32 {v(o+2*h,2)}, {v(o+2*h,2)}, {v(b+2*h,2)}")
            A(f"v_pk_add_f32 {v(b+4+2*h,2)}, {v(b+4+2*h,2)}, {v(b+8+2*h,2)}")
        for h in range(2):
            A(f"v_pk_add_f32 {v(o+2*h,2)}, {v(o+2*h,2)}, {v(b+4+2*h,2)}")
        for h in range(2):
            A(f"v_pk_fma_f32 {v(o+2*h,2)}, {v(o+2*h,2)}, s[{sT0}:{sT0+1}], {v(44+4*nt+2*h,2)}")
        for h in range(2):
            A(f"v_cvt_pk_bf16_f32 v{64+2*nt+h}, v{o+2*h}, v{o+2*h+1}")
        if nt == 1: A(f"buffer_store_dwordx4 {v(64,4)}, v{vXO}, {srdr(SOUT)}, s{sXO} offen")
        if nt == 3: A(f"buffer_store_dwordx4 {v(68,4)}, v{vXO}, {srdr(SOUT)}, s{sXO} offen offset:64")
        if nt == 4: A(f"buffer_store_dwordx2 {v(72,2)}, v{vXO+1}, {srdr(SOUT)}, s{sXO} offen offset:128")
    A(f"s_add_u32 s{sP0}, s{sE}, 16"); A(f"v_mov_b32 v1, s{sP0}")
    A(f"s_cmp_eq_u32 s2, 0"); A(f"s_cselect_b32 s{sP1}, 0, {hex(OOB)}")
    A(f"v_subrev_u32 v2, {FLG_OFF}, v{vFL}")
    A(f"buffer_store_dword v1, v2, {srdr(SWS)}, s{sP1} offen sc1")
    prof_flush(A, 0, SWS, sWAVE)

OPT = {}
DEFST = ["pro", "c0", "p1end", "p2end", "sig2", "first", "part1", "part2", "s13", "red"]
def pt(A, name):
    L = OPT.get("stamps", DEFST)
    if name in L: stamp(A, 2 + L.index(name))

def gen(name=MAIN, **opt):
    OPT.clear(); OPT.update(opt)
    C = Ctx("f")
    A = Asm()
    prologue(A, C)
    role_kv(A, C)
    role_p(A, C)
    phase2(A, C)
    A("s_endpgm")
    A.extend(C.spins)
    A.label(C.L("end"))
    A("s_endpgm")
    return dict(name=name, ins=render(finalize(A)), grid=256, block=256, lds=LDSZ, vgpr=512, accum=256)

if __name__ == "__main__":
    for P in range(320): assert (P * 3277) >> 16 == P // 20 and (P * 6554) >> 16 == P // 10
    for P in range(20): assert (P * 13108) >> 16 == P // 5 and (P * 52) >> 8 == P // 5
    for P in range(1024): assert (P * 10923) >> 16 == P // 6
    open("g_test.s", "w").write(build_file([gen()]))
    PROF["on"] = True
    st = sys.argv[1].split(",") if len(sys.argv) > 1 else DEFST
    open("g_prof.s", "w").write(build_file([gen(stamps=st)]))
```

```python
from common import *
import common, sys

E_OFF = 0; FLG_OFF = 0x1000; W2P_OFF = 0x20000; ACT_OFF = 0x320000; ACT_BLK = 94 * 1024
KV_OFF = 0xEE0000; ST_OFF = 0xF10000; CS_OFF = 0xF20000
common.PROF_OFF = 0xF80000
XW = 13312; WR = 4 * XW; XR = 86016; SPARE = 151552
HS = 16384
PHI2 = SPARE; PZERO = SPARE + 3840; PHI1 = SPARE + 5760; PKX = SPARE + 5760; CSR = SPARE + 10880
PHIK = XR; VIM = XR + 40960; KVI = XR; RED = 0
LDSZ = 163840
sWAVE = 3
SX, SWA, SWB, SWS, SB1, SPH, SOUT, SPK, SCS = 24, 28, 32, 36, 40, 44, 48, 52, 56
sM, sU, sR, sC, sE, sXO, sXM, sWB = 60, 61, 62, 63, 64, 65, 66, 67
sT0, sT1, sT2, sT3 = 68, 69, 70, 71
sWO, sWS, sACT, sA, sW, sAB = 4, 5, 6, 7, 8, 9
sEX = 10
sPKO, sPKD, sQF, sCS3, sB3, sACT3, sP0, sP1 = 12, 13, 14, 15, 16, 17, 18, 19
sPC = 100
sX1, sXD = 20, 21
sWO2 = 22; sPV = 23
sF0, sF1 = 0, 1
sSTO, sCSO, sCSP, sPX0, sPX1, sWQ, sCSL = 7, 9, 15, 16, 17, 12, 22
vTID, vFL, vPOLL, vPA, vW = 8, 9, 10, 11, 12
vPT = 14
vXD = 16; vXRD = 20
vAD = 24; vPD = 29; vAR = 34; vPR = 36
vP1 = 24; vPX = 28; vPRP = 32; vCSA = 36
vSA = 15; vCL = 54
vAST = 44; vS1 = 45; vRS = 46; vCP = 47; vCB = 48; vST = 52; vEP = 55
vQC = 56
aX = 224; aW = 160; aF = 240

def srdr(n): return f"s[{n}:{n+3}]"
def slot(n): return 20 * ((n + 10) % 12)

def csel(A, dst, x, y):
    A(f"s_mov_b32 s{dst}, {y}"); A(f"s_cselect_b32 s{dst}, {x}, s{dst}")

class Ctx:
    def __init__(self, name):
        self.name = name; self.spins = Asm(); self.n = 0
    def L(self, x): return f"{self.name}_{x}"

def signal(A, level):
    A(f"s_add_u32 s{sP0}, s{sE}, {level}")
    A(f"v_mov_b32 v{vPT}, s{sP0}")
    A(f"buffer_store_dword v{vPT}, v{vFL}, {srdr(SWS)}, 0 offen sc1", "flag")

def poll_issue(A):
    A(f"buffer_load_dword v{vPOLL}, v{vPA}, {srdr(SWS)}, 0 offen sc1", "poll")

def poll_check(A, C, level):
    C.n += 1
    k = C.n
    A(f"s_add_u32 s{sP0}, s{sE}, {level}")
    A.g(f"v_subrev_u32 v{vPT}, s{sP0}, v{vPOLL}")
    A.g(f"v_cmp_gt_u32_e64 s[{sPC}:{sPC+1}], 8, v{vPT}")
    A.g(f"s_cmp_eq_u64 s[{sPC}:{sPC+1}], -1")
    A.g(f"s_cbranch_scc0 {C.L(f'spin{k}')}")
    A.label(C.L(f"back{k}")); A.ins[-1].glue = True
    S = C.spins
    S.label(C.L(f"spin{k}"))
    S(f"s_mov_b32 s{sP1}, 0")
    S.label(C.L(f"loop{k}"))
    poll_issue(S)
    S(f"s_add_u32 s{sP1}, s{sP1}, 1")
    S(f"s_cmp_gt_u32 s{sP1}, 0x8000")
    S(f"s_cbranch_scc1 {C.L(f'back{k}')}")
    S(f"v_subrev_u32 v{vPT}, s{sP0}, v{vPOLL}")
    S(f"v_cmp_gt_u32_e64 s[{sPC}:{sPC+1}], 8, v{vPT}")
    S(f"s_cmp_eq_u64 s[{sPC}:{sPC+1}], -1")
    S(f"s_cbranch_scc0 {C.L(f'loop{k}')}")
    S(f"s_branch {C.L(f'back{k}')}")

def poll_addr(A, kind, t0, t1):
    if kind == "all":
        A(f"v_and_b32 v{vPA}, 127, v{vTID}"); A(f"v_lshlrev_b32 v{vPA}, 8, v{vPA}")
        A(f"v_add_u32 v{vPA}, {FLG_OFF + 128*256}, v{vPA}")
        return
    if kind == "grp":
        A(f"s_lshr_b32 s{sF0}, s{sR}, 4"); A(f"s_lshl_b32 s{sF0}, s{sF0}, 2")
        A(f"s_bfe_u32 s{sF1}, s{sR}, 0x30001"); A(f"s_lshl_b32 s{sF1}, s{sF1}, 3")
        A(f"v_bfe_u32 v{t0}, v0, 2, 2"); A(f"v_and_b32 v{t1}, 3, v0")
        A(f"v_lshl_add_u32 v{t0}, v{t0}, 6, v{t1}")
    elif kind == "kv":
        A(f"s_and_b32 s{sF0}, s{sC}, 1"); A(f"s_lshl_b32 s{sF0}, s{sF0}, 6")
        A(f"s_lshr_b32 s{sF1}, s{sC}, 1")
        A(f"v_and_b32 v{t0}, 15, v0")
        A(f"v_lshlrev_b32 v{t0}, 2, v{t0}")
    elif kind == "o":
        A(f"s_and_b32 s{sF0}, s{sR}, 7"); A(f"s_lshl_b32 s{sF0}, s{sF0}, 5")
        A(f"s_lshr_b32 s{sF1}, s{sR}, 3"); A(f"s_lshl_b32 s{sF1}, s{sF1}, 1")
        A(f"v_bfe_u32 v{t0}, v0, 1, 2"); A(f"v_and_b32 v{t1}, 1, v0")
        A(f"v_lshl_add_u32 v{t0}, v{t0}, 3, v{t1}")
    A(f"s_add_u32 s{sF0}, s{sF0}, s{sF1}")
    A(f"s_lshl_b32 s{sF0}, s{sF0}, 8")
    A(f"s_add_u32 s{sF0}, s{sF0}, {FLG_OFF}")
    A(f"v_lshl_add_u32 v{vPA}, v{t0}, 8, s{sF0}")

def x_dma(j):
    if j >= 10 or (OPT.get("nodma") and j >= 2): return []
    o = [(f"s_add_u32 m0, s{sXM}, {(j % 3) * 4096}", None, 0), (f"s_add_u32 s{sXD}, s{sXO}, {0 if OPT.get('samedma') else j*128}", None, 0)]
    for i in range(4):
        o.append((f"buffer_load_dwordx4 v{vXD+i}, {srdr(SX)}, s{sXD} offen offset:{1024*i} lds", f"x{j}", 1))
    return o

def kv_dma(h):
    if h >= 20 or (OPT.get("nodma") and h >= 4): return []
    o = [(f"s_mov_b32 s{sWO}, {0 if OPT.get('samedma') else h*32*3840}", None, 0), (f"s_add_u32 m0, s{sWB}, {(h % 6) * HS}", None, 0)]
    for i in range(3):
        o.append((f"buffer_load_dwordx4 v{vAD+i}, {srdr(SWA)}, s{sWO} offen offset:{1024*i} lds", f"w{h}", 1))
    o.append((f"s_add_u32 m0, s{sWQ}, {(h % 6) * HS}", None, 0))
    o.append((f"buffer_load_dwordx4 v{vPD}, {srdr(SWA)}, s{sWO} offen lds", f"w{h}", 1))
    return o

def p_dma(h):
    if h >= 20 or (OPT.get("nodma") and h >= 4): return []
    o = [(f"s_add_u32 m0, s{sWB}, {(h % 6) * HS}", None, 0)]
    if h and not OPT.get("samedma"): o.append((f"s_add_u32 s{sWO}, s{sWO}, s{sWS}", None, 0))
    for i in range(4):
        o.append((f"buffer_load_dwordx4 v{vP1+i}, {srdr(SWA)}, s{sWO} offen offset:{1024*i} lds", f"w{h}", 1))
    return o

def w2p_loads(n):
    o = []
    if n == 13:
        so = sX1
    else:
        so = sW
    if n > 0 and n not in (13, 14):
        o.append((f"s_add_u32 s{sW}, s{sW}, {20480 if n < 13 else 5120}", None, 0))
    if n == 14:
        o.append((f"s_add_u32 s{sW}, s{sW}, s{sPV}", None, 0))
    for nt in range(5):
        o.append((f"buffer_load_dwordx4 {a(slot(n)+4*nt,4)}, v{vW+(nt>>2)}, {srdr(SWS)}, s{so} offen offset:{1024*(nt&3)} sc1", f"W2{n}", 1))
    return o

def emit1(A, e):
    if e[0].startswith("WAIT:"):
        _, k, t = e[0].split(":")
        A.wait(**{k: t})
    elif len(e) > 3 and e[3]: A.g(e[0], e[1])
    else: A(e[0], e[1])

def emit(A, lst):
    for e in lst: emit1(A, e)

class DQ:
    def __init__(self): self.q = []; self.gap = 0
    def add(self, lst, front=False):
        if front:
            k = 0
            while k < len(self.q) and self.q[k][2] == 0: k += 1
            while k < len(self.q) and not (self.q[k][2] == 0 and "m0, m0" not in self.q[k][0] and "m0, m0" not in self.q[k-1][0]
                                           and "exec" not in self.q[k][0]): k += 1
            self.q[k:k] = list(lst)
        else: self.q += list(lst)
    def pop(self, A, n=1, ahead=True):
        while self.q and n > 0.01:
            e = self.q.pop(0)
            emit1(A, e); n -= e[2]
        while self.q and self.q[0][2] == 0 and self.q[0][0].startswith("s_") and (ahead or "exec" in self.q[0][0]) \
                and not self.q[0][0].startswith("s_mov_b64 exec, s"):
            emit1(A, self.q.pop(0))
    def count(self): return sum(e[2] for e in self.q)

def spread(A, code, lst, every, first=0):
    dq = DQ(); dq.add(lst)
    n = first
    scc_live = False
    for x in code.ins:
        if n >= every and dq.q and not x.glue and not (x.op.startswith(("s_cselect", "s_cbranch_scc", "s_addc")) or scc_live):
            dq.pop(A, 1); n = 0
        A.ins.append(x)
        if x.op.startswith("s_cmp"): scc_live = True
        elif x.cls == "salu" and not x.op.startswith(("s_cselect", "s_mov", "s_mul_i32")) : scc_live = False
        elif x.cls != "salu": scc_live = False if not scc_live else scc_live
        n += 1
    dq.pop(A, 99)

def gemm_steps(A, steps, D, dq, pre_barrier=None, post_barrier=None, every=2):
    n = len(steps)
    late = []
    for s in range(n + 1):
        rd = []
        bar = None
        if s < n:
            st = steps[s]
            if st["chunk"] is not None:
                def bar(st=st):
                    if pre_barrier and st["xj"] is not None: pre_barrier(A, st["xj"])
                    tags = [f"w{st['chunk']}"]
                    if st["xj"] is not None: tags.append(f"x{st['xj']}")
                    tags += st.get("tags", [])
                    nf = 0
                    while any(e[1] in tags for e in dq.q): dq.pop(A, 1); nf += 1
                    if nf and OPT.get("verbose"): print("forced", nf, "before chunk", st["chunk"])
                    A.wait(vm=tags, lgkm="all")
                    A("s_barrier")
                    if post_barrier and st["xj"] is not None: post_barrier(A, st["xj"], dq)
                    dq.add(st.get("queue", []))
            rd = [(t, f"r{s}_{i // (2 * OPT.get('wgrp', 2))}") for i, t in enumerate(st["reads"])]
            if st["xj"] is not None:
                j = st["xj"]
                xr = [(f"ds_read_b128 {a(aX + 16*(j&1) + 4*q, 4)}, v{vXRD+q} offset:{(j % 3) * 4096}", "xr") for q in range(4)]
                rd = xr[:1] + rd + xr[1:2]
                late = xr[2:]
            else:
                rd = rd + late; late = []
                if not bar: dq.add(st.get("queue", []))
        if s == 0:
            bar()
            for t, tag in rd: A(t, tag)
            continue
        m = steps[s - 1]
        nt = m["nt"]
        bd = OPT.get("bdelay", 2) if bar else 0
        if bar and bd == 0: bar()
        for t in range(nt):
            acc = m["acc"][t]
            cin = "0" if m["first"] else v(acc, 16)
            if t % OPT.get("wgrp", 2) == 0: A.wait(lgkm=f"r{s-1}_{t // OPT.get('wgrp', 2)}")
            A(f"v_mfma_f32_32x32x16_bf16 {v(acc,16)}, {a(m['frag']+4*t,4)}, {a(m['xreg'],4)}, {cin}")
            if bar and t == bd - 1: bar()
            if t >= bd - 1:
                per = -(-len(rd) // (nt - t))
                take = rd[:per]; rd = rd[per:]
                for tx, tag in take: A(tx, tag)
            dq.gap += 1
            ev = every[min((s - 1) // 4, len(every) - 1)] if isinstance(every, (list, tuple)) else every
            if dq.q and dq.gap >= ev - 0.01:
                dq.pop(A, 1); dq.gap = min(dq.gap - ev, 0.99)

def corr_frag(A, raw, tmp):
    A(f"v_add_f32 v{tmp}, v{raw}, v{raw+2}")
    A(f"v_lshrrev_b32 v{raw+2}, 16, v{raw+1}")
    A(f"v_cvt_pk_bf16_f32 v{raw}, v{tmp}, v{tmp}")
    A(f"v_and_b32 v{raw+3}, 0xffff0000, v{raw}")
    A(f"v_sub_f32 v{tmp}, v{tmp}, v{raw+3}")
    A(f"v_mov_b32 v{raw+3}, 0")
    A(f"v_cvt_pk_bf16_f32 v{raw+1}, v{tmp}, v{raw+1}")

def stats_frag(A, t):
    m, ve = vST, vST + 1
    A(f"v_rsq_f32 v{vRS}, v{ve}")
    A(f"v_sub_f32 v{t}, 0, v{m}")
    A(f"v_mul_f32 v{t+1}, v{ve}, v{vRS}")
    A(f"v_mul_f32 v{vS1}, {hex(LOG2E)}, v{vRS}")
    A(f"v_cvt_pk_bf16_f32 v{vCB+1}, v{t}, v{t+1}")
    A(f"v_lshlrev_b32 v{t+2}, 16, v{vCB+1}")
    A(f"v_and_b32 v{t+3}, 0xffff0000, v{vCB+1}")
    A(f"v_sub_f32 v{t+2}, v{t}, v{t+2}")
    A(f"v_sub_f32 v{t+3}, v{t+1}, v{t+3}")
    A(f"v_cvt_pk_bf16_f32 v{vCB}, v{t}, v{t+2}")
    A(f"v_cvt_pk_bf16_f32 v{vCB+2}, v{t+3}, 0")
    A(f"v_mov_b32 v{vCB+3}, 0")
    A(f"v_cmp_gt_u32 vcc, 32, v0")
    for i in range(3):
        A.g(f"v_cndmask_b32 v{vCB+i}, 0, v{vCB+i}, vcc")

def mish(A, acc, n, e, G=4):
    for g0 in range(0, n, G):
        t = acc + g0
        for i in range(G): A(f"v_mul_f32 v{t+i}, v{t+i}, v{vS1}")
        for i in range(G): A(f"v_exp_f32 v{e+i}, v{t+i}")
        for i in range(G): A(f"v_fma_f32 v{e+G+i}, v{e+i}, 0.5, 1.0")
        for i in range(G): A(f"v_fma_f32 v{e+i}, v{e+i}, v{e+G+i}, 1.0")
        for i in range(G): A(f"v_rcp_f32 v{e+i}, v{e+i}")
        for i in range(G): A(f"v_fma_f32 v{e+i}, -v{t+i}, v{e+i}, v{t+i}")
        o = acc + (g0 & ~7) + (g0 & 7) // 2
        for i in range(0, G, 2): A(f"v_cvt_pk_bf16_f32 v{o+i//2}, v{e+i}, v{e+i+1}")

def mish_pk(A, acc, n, e):
    G = 8
    s1 = f"v[{vS1-1}:{vS1}]"
    for g0 in range(0, n, G):
        t = acc + g0
        for i in range(0, G, 2): A(f"v_pk_mul_f32 {v(t+i,2)}, {v(t+i,2)}, {s1} op_sel:[0,1] op_sel_hi:[1,1]")
        for i in range(G): A(f"v_exp_f32 v{e+i}, v{t+i}")
        for i in range(0, G, 2): A(f"v_pk_fma_f32 {v(e+G+i,2)}, {v(e+i,2)}, 0.5, 1.0 op_sel_hi:[1,0,0]")
        for i in range(0, G, 2): A(f"v_pk_fma_f32 {v(e+i,2)}, {v(e+i,2)}, {v(e+G+i,2)}, 1.0 op_sel_hi:[1,1,0]")
        for i in range(G): A(f"v_rcp_f32 v{e+i}, v{e+i}")
        for i in range(0, G, 2): A(f"v_pk_fma_f32 {v(e+i,2)}, {v(t+i,2)}, {v(e+i,2)}, {v(t+i,2)} neg_lo:[1,0,0] neg_hi:[1,0,0]")
        for i in range(0, G, 2): A(f"v_cvt_pk_bf16_f32 v{t+i//2}, v{e+i}, v{e+i+1}")

def pair_store(A, acc, soff, tag, t, p):
    A(f"buffer_store_dwordx4 {v(acc+16*t+8*p,4)}, v{vAST}, {srdr(SWS)}, s{soff} offen offset:{1024*t+512*p} sc1", tag)

def softmax_pair(A, p, EP, EN, PK, s1, t0):
    a0, a1 = t0, t0 + 1
    A(f"v_max3_f32 v{a0}, v{p}, v{p+1}, v{p+2}")
    A(f"v_min3_f32 v{a1}, v{p}, v{p+1}, v{p+2}")
    for i in range(3, 19, 2):
        A(f"v_max3_f32 v{a0}, v{a0}, v{p+i}, v{p+i+1}")
        A(f"v_min3_f32 v{a1}, v{a1}, v{p+i}, v{p+i+1}")
    A(f"v_max_f32 v{a0}, v{a0}, v{p+19}")
    A(f"v_min_f32 v{a1}, v{a1}, v{p+19}")
    A(f"v_mul_f32 v{a0}, v{a0}, v{s1}")
    A(f"v_mul_f32 v{a1}, v{a1}, v{s1}")
    for i in range(20):
        A(f"v_fma_f32 v{EP+i}, v{p+i}, v{s1}, -v{a0}")
        A(f"v_fma_f32 v{EN+i}, -v{p+i}, v{s1}, v{a1}")
        A(f"v_exp_f32 v{EP+i}, v{EP+i}")
        A(f"v_exp_f32 v{EN+i}, v{EN+i}")
    A(f"v_add_f32 v{a0}, v{EP}, v{EP+1}")
    A(f"v_add_f32 v{a1}, v{EN}, v{EN+1}")
    for i in range(2, 20):
        A(f"v_add_f32 v{a0}, v{a0}, v{EP+i}")
        A(f"v_add_f32 v{a1}, v{a1}, v{EN+i}")
    A(f"v_rcp_f32 v{a0}, v{a0}")
    A(f"v_rcp_f32 v{a1}, v{a1}")
    for i in range(10):
        A(f"v_mul_f32 v{EP+2*i}, v{EP+2*i}, v{a0}")
        A(f"v_mul_f32 v{EP+2*i+1}, v{EP+2*i+1}, v{a0}")
        A(f"v_cvt_pk_bf16_f32 v{PK+i}, v{EP+2*i}, v{EP+2*i+1}")
    for i in range(10):
        A(f"v_mul_f32 v{EN+2*i}, v{EN+2*i}, v{a1}")
        A(f"v_mul_f32 v{EN+2*i+1}, v{EN+2*i+1}, v{a1}")
        A(f"v_cvt_pk_bf16_f32 v{PK+10+i}, v{EN+2*i}, v{EN+2*i+1}")

def softmax_pair_pk(A, p, EP, EN, PK, s1, t0):
    a0, a1 = t0, t0 + 1
    sp = v(s1 & ~1, 2); sh = s1 & 1
    A(f"v_max3_f32 v{a0}, v{p}, v{p+1}, v{p+2}")
    A(f"v_min3_f32 v{a1}, v{p}, v{p+1}, v{p+2}")
    for i in range(3, 19, 2):
        A(f"v_max3_f32 v{a0}, v{a0}, v{p+i}, v{p+i+1}")
        A(f"v_min3_f32 v{a1}, v{a1}, v{p+i}, v{p+i+1}")
    A(f"v_max_f32 v{a0}, v{a0}, v{p+19}")
    A(f"v_min_f32 v{a1}, v{a1}, v{p+19}")
    A(f"v_mul_f32 v{a0}, v{a0}, v{s1}")
    A(f"v_mul_f32 v{a1}, v{a1}, v{s1}")
    ap = v(a0, 2)
    for i in range(0, 20, 2):
        A(f"v_pk_fma_f32 {v(EP+i,2)}, {v(p+i,2)}, {sp}, {ap} op_sel:[0,{sh},0] op_sel_hi:[1,{sh},0] neg_lo:[0,0,1] neg_hi:[0,0,1]")
        A(f"v_pk_fma_f32 {v(EN+i,2)}, {v(p+i,2)}, {sp}, {ap} op_sel:[0,{sh},1] op_sel_hi:[1,{sh},1] neg_lo:[1,0,0] neg_hi:[1,0,0]")
        for k in range(2):
            A(f"v_exp_f32 v{EP+i+k}, v{EP+i+k}")
        for k in range(2):
            A(f"v_exp_f32 v{EN+i+k}, v{EN+i+k}")
    sP, sN = v(t0 + 2, 2), v(t0 + 4, 2)
    A(f"v_pk_add_f32 {sP}, {v(EP,2)}, {v(EP+2,2)}")
    A(f"v_pk_add_f32 {sN}, {v(EN,2)}, {v(EN+2,2)}")
    for i in range(4, 20, 2):
        A(f"v_pk_add_f32 {sP}, {sP}, {v(EP+i,2)}")
        A(f"v_pk_add_f32 {sN}, {sN}, {v(EN+i,2)}")
    A(f"v_add_f32 v{a0}, v{t0+2}, v{t0+3}")
    A(f"v_add_f32 v{a1}, v{t0+4}, v{t0+5}")
    A(f"v_rcp_f32 v{a0}, v{a0}")
    A(f"v_rcp_f32 v{a1}, v{a1}")
    A("s_nop 0")
    for i in range(10):
        A(f"v_pk_mul_f32 {v(EP+2*i,2)}, {v(EP+2*i,2)}, {ap} op_sel:[0,0] op_sel_hi:[1,0]")
        if i: A(f"v_cvt_pk_bf16_f32 v{PK+i-1}, v{EP+2*i-2}, v{EP+2*i-1}")
    for i in range(10):
        A(f"v_pk_mul_f32 {v(EN+2*i,2)}, {v(EN+2*i,2)}, {ap} op_sel:[0,1] op_sel_hi:[1,1]")
        if i == 0: A(f"v_cvt_pk_bf16_f32 v{PK+9}, v{EP+18}, v{EP+19}")
        else: A(f"v_cvt_pk_bf16_f32 v{PK+10+i-1}, v{EN+2*i-2}, v{EN+2*i-1}")
    A(f"v_cvt_pk_bf16_f32 v{PK+19}, v{EN+18}, v{EN+19}")

def weave32(main, fill, **kw):
    main = list(main.ins if isinstance(main, Asm) else main)
    small = [x for x in main if x.cls == "mfma" and "16x16" in x.op]
    for x in small: x.cls = "mfma16"
    r = weave(main, fill, **kw)
    for x in small: x.cls = "mfma"
    return r

def common_lane(A):
    A("v_lshrrev_b32 v1, 5, v0")
    A("v_bfe_u32 v2, v0, 2, 2")
    A("v_and_b32 v3, 1, v0")
    A("v_bfe_u32 v4, v0, 1, 1")
    A("v_bfe_u32 v5, v0, 4, 1")
    A("v_lshl_add_u32 v4, v5, 1, v4")
    A("v_lshl_add_u32 v6, v1, 3, v2")

PRS = 64; PRC = 84; PRT = 124
vBI = 63; aPK = 0; aPH = 28

def wo_rows(A, t, b, qs, hi, t0, t1):
    A(f"s_mul_i32 s{t1}, s{t}, 52"); A(f"s_lshr_b32 s{t1}, s{t1}, 8")
    A(f"s_mul_i32 s{b}, s{t1}, 5"); A(f"s_sub_u32 s{t0}, s{t}, s{b}")
    A(f"s_mul_i32 s{b}, s{t1}, 160")
    A(f"s_lshr_b32 s{t1}, s{t0}, 1"); A(f"s_mul_i32 s{t1}, s{t1}, 80")
    A(f"s_and_b32 s{qs}, s{t0}, 1"); A(f"s_lshl_b32 s{qs}, s{qs}, 3"); A(f"s_add_u32 s{t1}, s{t1}, s{qs}")
    A(f"s_cmp_eq_u32 s{t0}, 4")
    A(f"s_cselect_b32 s{t1}, 16, s{t1}")
    A(f"s_cselect_b32 s{qs}, 40, 20")
    A(f"s_cselect_b32 s{hi}, 20, 4")
    A(f"s_add_u32 s{b}, s{b}, s{t1}")

def pack_addr(A, dst, qs, hi):
    A("v_mul_u32_u24 v2, 6554, v1"); A("v_lshrrev_b32 v2, 16, v2")
    A("v_mul_u32_u24 v3, 10, v2"); A("v_sub_u32 v3, v1, v3")
    A("v_lshrrev_b32 v4, 3, v2"); A(f"v_mul_u32_u24 v4, s{qs}, v4")
    A("v_bfe_u32 v5, v2, 2, 1"); A(f"v_mad_u32_u24 v4, v5, s{hi}, v4")
    A("v_and_b32 v5, 3, v2"); A("v_add_u32 v4, v4, v5")
    A("v_mul_u32_u24 v4, 1280, v4")
    A(f"v_lshl_add_u32 v{dst}, v3, 4, v4")

def pack_T(A, T, t):
    A(f"s_bfe_u32 s{T}, s2, 0x10006"); A(f"s_and_b32 s{t}, s2, 7"); A(f"s_lshl_b32 s{t}, s{t}, 1"); A(f"s_add_u32 s{T}, s{T}, s{t}")
    A(f"s_lshl_b32 s{t}, s{sWAVE}, 4"); A(f"s_add_u32 s{T}, s{T}, s{t}")

def cs_line(A, Lr, t0, t1):
    A(f"s_and_b32 s{t0}, s2, 3"); A(f"s_lshl_b32 s{t0}, s{t0}, 1"); A(f"s_bfe_u32 s{t1}, s2, 0x10003"); A(f"s_add_u32 s{t0}, s{t0}, s{t1}")
    A(f"s_bfe_u32 s{t1}, s2, 0x30004"); A(f"s_lshl_b32 s{Lr}, s{t1}, 3"); A(f"s_add_u32 s{Lr}, s{Lr}, s{t0}")
    A(f"s_cmp_lt_u32 s{Lr}, 2"); A(f"s_cselect_b32 s{t1}, 8, 28"); A(f"s_add_u32 s{Lr}, s{Lr}, s{t1}")
    A(f"s_bfe_u32 s{t1}, s2, 0x40003")
    A(f"s_cmp_ge_u32 s{t1}, 8"); A(f"s_cselect_b32 s{Lr}, s{t0}, s{Lr}")
    A(f"s_cmp_ge_u32 s{t1}, 13"); A(f"s_cselect_b32 s{t0}, 7, 0"); A(f"s_add_u32 s{t0}, s{t0}, s{t1}")
    A(f"s_cmp_ge_u32 s{t1}, 10"); A(f"s_cselect_b32 s{Lr}, s{t0}, s{Lr}")
    A(f"s_cselect_b32 s{t1}, 1, 0")
    A(f"s_bfe_u32 s{t0}, s2, 0x10001"); A(f"s_mul_i32 s{t0}, s{t0}, 5"); A(f"s_mul_i32 s{t0}, s{t0}, s{t1}"); A(f"s_add_u32 s{Lr}, s{Lr}, s{t0}")
    A(f"s_and_b32 s{t0}, s2, s{t1}"); A(f"s_mul_i32 s{t0}, s{t0}, 3"); A(f"s_add_u32 s{Lr}, s{Lr}, s{t0}")
    A(f"s_bfe_u32 s{t1}, s2, 0x40003"); A(f"s_lshl_b32 s{t1}, 1, s{t1}"); A(f"s_and_b32 s{t1}, s{t1}, 0x9000")
    A(f"s_mul_i32 s{t1}, s{t1}, s{t0}"); A(f"s_add_u32 s{Lr}, s{Lr}, s{t1}")
    A(f"s_min_u32 s{Lr}, s{Lr}, 63")

def pack_setup(A):
    T, b, qs, hi = sT0, sT1, sT2, sT3
    pack_T(A, T, b)
    A(f"s_bfe_u32 s{sPX0}, s2, 0x30003")
    A(f"s_mul_i32 s{sPX1}, s{sPX0}, 74"); A(f"s_add_u32 s{sPKD}, s{sPX1}, s{T}")
    A(f"s_mul_i32 s{sPKD}, s{sPKD}, 5120"); A(f"s_add_u32 s{sPKD}, s{sPKD}, {W2P_OFF}")
    A(f"s_sub_u32 s{sPKO}, s{T}, 54")
    wo_rows(A, sPKO, b, qs, hi, sP0, sP1)
    A(f"s_lshl_b32 s{sP1}, s{T}, 5")
    A(f"s_cmp_lt_u32 s{T}, 54")
    A(f"s_cselect_b32 s{b}, s{sP1}, s{b}")
    A(f"s_cselect_b32 s{qs}, 8, s{qs}")
    A(f"s_cselect_b32 s{hi}, 4, s{hi}")
    A(f"s_mul_i32 s{b}, s{b}, 1280")
    A(f"s_mul_i32 s{sPX0}, s{sPX0}, 160"); A(f"s_add_u32 s{sPKO}, s{sPX0}, s{b}")
    for i in range(5):
        A(f"v_add_u32 v1, {64*i}, v0")
        pack_addr(A, vQC + i, qs, hi)
        if 0 < i < 4: A(f"v_subrev_u32 v{vQC+i}, {1024*i}, v{vQC+i}")
    A(f"s_bfe_u32 s{T}, s2, 0x10006"); A(f"s_lshl_b32 s{T}, s{T}, 3"); A(f"s_and_b32 s{b}, s2, 7"); A(f"s_add_u32 s{T}, s{T}, s{b}")
    A(f"s_add_u32 s{T}, s{T}, 10")
    A(f"s_add_u32 s{sPX1}, s{sPX1}, s{T}"); A(f"s_add_u32 s{sPX1}, s{sPX1}, 54")
    A(f"s_mul_i32 s{sPX1}, s{sPX1}, 5120"); A(f"s_add_u32 s{sPX1}, s{sPX1}, {W2P_OFF}")
    wo_rows(A, T, b, qs, hi, sP0, sP1)
    A(f"s_mul_i32 s{b}, s{b}, 1280"); A(f"s_add_u32 s{sPX0}, s{sPX0}, s{b}")
    A(f"s_cmp_lt_u32 s{T}, 20")
    A(f"s_cselect_b32 s{sPX1}, s{sPX1}, {hex(OOB)}")
    A(f"s_cselect_b32 s{sPX0}, s{sPX0}, {hex(OOB)}")
    A(f"s_cmp_eq_u32 s{sWAVE}, 0")
    A(f"s_cselect_b64 s[{sEX}:{sEX+1}], -1, 0")
    A(f"s_lshl_b32 s{sP0}, s{sWAVE}, 6"); A(f"v_add_u32 v1, s{sP0}, v0")
    pack_addr(A, vPX, qs, hi)
    A("v_add_u32 v1, 256, v0")
    pack_addr(A, vPX + 1, qs, hi)

def pack_dma():
    o = [(f"s_add_u32 m0, s{sXM}, 8192", None, 0)]
    for i in range(4):
        o.append((f"buffer_load_dwordx4 v{vQC+i}, {srdr(SPK)}, s{sPKO} offen offset:{1024*i} lds", "pk", 1))
    o.append(("s_add_u32 m0, m0, 4096", None, 0))
    o.append((f"buffer_load_dwordx4 v{vQC+4}, {srdr(SPK)}, s{sPKO} offen lds", "pk", 1))
    o.append((f"s_lshl_b32 m0, s{sWAVE}, 10", None, 0))
    o.append((f"s_add_u32 m0, m0, {PKX}", None, 0))
    o.append((f"buffer_load_dwordx4 v{vPX}, {srdr(SWB)}, s{sPX0} offen lds", "pkx", 1))
    o.append((f"s_mov_b32 m0, {PKX + 4096}", None, 0))
    o.append((f"s_mov_b64 exec, s[{sEX}:{sEX+1}]", None, 0))
    o.append((f"buffer_load_dwordx4 v{vPX+1}, {srdr(SWB)}, s{sPX0} offen lds", "pkx", 1))
    o.append(("s_mov_b64 exec, -1", None, 0))
    return o

def pack_read_addr(A):
    A("v_lshrrev_b32 v1, 4, v0"); A("v_bfe_u32 v2, v0, 2, 2"); A("v_lshl_add_u32 v1, v1, 3, v2")
    A("v_mul_u32_u24 v1, 160, v1")
    A("v_and_b32 v2, 3, v0")
    A(f"v_lshl_add_u32 v3, v2, 4, v1"); A(f"v_lshl_add_u32 v4, v2, 3, v1")
    A(f"s_add_u32 s{sT0}, s{sXM}, 8192")
    A(f"v_add_u32 v{vQC+5}, s{sT0}, v3"); A(f"v_add_u32 v{vQC+6}, s{sT0}, v4")
    A(f"s_lshr_b32 s{sT0}, s{sWAVE}, 1"); A(f"s_lshl_b32 s{sT0}, s{sT0}, 6")
    A(f"s_and_b32 s{sT1}, s{sWAVE}, 1"); A(f"s_lshl_b32 s{sT1}, s{sT1}, 3"); A(f"s_add_u32 s{sT0}, s{sT0}, s{sT1}")
    A(f"s_add_u32 s{sT0}, s{sT0}, {PKX}")
    A(f"v_add_u32 v{vPX+2}, s{sT0}, v3"); A(f"v_add_u32 v{vPX+3}, {PKX}, v4")

def pack_reads():
    o = [("WAIT:vm:pk", None, 0)]
    for nt in range(5):
        for rho in range(2):
            if nt < 4: t = f"ds_read_b64_tr_b16 {a(aPK+4*nt+2*rho,2)}, v{vQC+5} offset:{rho*640 + 64*(nt>>1) + 8*(nt&1)}"
            else: t = f"ds_read_b64_tr_b16 {a(aPK+4*nt+2*rho,2)}, v{vQC+6} offset:{rho*640 + 128}"
            o.append((t, "pkr", 0.34))
    return o

def pack_stores():
    return [(f"buffer_store_dwordx4 {a(aPK+4*nt,4)}, v{vW+(nt>>2)}, {srdr(SWS)}, s{sPKD} offen offset:{1024*(nt&3)} sc1", "prep", 1)
            for nt in range(5)]

def pack_shared():
    X = aPK + 20
    o = []
    for rho in range(2):
        o.append((f"ds_read_b64_tr_b16 {a(X+2*rho,2)}, v{vPX+2} offset:{rho*640}", None, 0.25))
        o.append((f"ds_read_b64_tr_b16 {a(X+4+2*rho,2)}, v{vPX+3} offset:{rho*640 + 128}", None, 0.25))
    o.append((f"s_lshl_b32 s{sP0}, s{sWAVE}, 10", None, 0)); o.append((f"s_add_u32 s{sP0}, s{sP0}, s{sPX1}", None, 0))
    o.append((f"s_cmp_eq_u32 s{sWAVE}, 0", None, 0)); o.append((f"s_cselect_b32 s{sP1}, s{sPX1}, {hex(OOB)}", None, 0, True))
    o.append((f"buffer_store_dwordx4 {a(X,4)}, v{vW}, {srdr(SWS)}, s{sP0} offen sc1", "prep", 1))
    o.append((f"buffer_store_dwordx4 {a(X+4,4)}, v{vW+1}, {srdr(SWS)}, s{sP1} offen sc1", "prep", 1))
    return o

def prep_setup(A):
    A(f"s_lshl_b32 s{sT0}, s{sM}, 7"); A(f"s_lshl_b32 s{sT1}, s{sU}, 4"); A(f"s_add_u32 s{sT0}, s{sT0}, s{sT1}")
    A(f"s_lshl_b32 s{sT1}, s{sWAVE}, 2"); A(f"s_add_u32 s{sT0}, s{sT0}, s{sT1}")
    A(f"s_mul_i32 s{sSTO}, s{sT0}, 1280")
    A("v_lshrrev_b32 v1, 4, v0"); A("v_and_b32 v2, 15, v0")
    A("v_mul_u32_u24 v1, 1280, v1"); A(f"v_lshl_add_u32 v{vSA}, v2, 4, v1")
    A(f"s_cmp_lt_u32 s{sCSL}, 30")
    csel(A, sT2, 3840, 3456)
    A(f"s_cselect_b32 s{sT3}, 0, 30")
    A(f"s_sub_u32 s{sT0}, s{sCSL}, s{sT3}")
    A(f"s_lshl_b32 s{sT0}, s{sT0}, 7")
    A(f"s_bfe_u32 s{sT1}, s2, 0x10002"); A(f"s_lshl_b32 s{sT3}, s{sWAVE}, 1"); A(f"s_add_u32 s{sT1}, s{sT1}, s{sT3}")
    A(f"s_mul_i32 s{sT1}, s{sT1}, 80"); A(f"s_mul_i32 s{sT1}, s{sT1}, s{sT2}")
    A(f"s_add_u32 s{sT0}, s{sT0}, s{sT1}")
    A(f"s_cmp_lt_u32 s{sCSL}, 57")
    A(f"s_cselect_b32 s{sCSO}, s{sT0}, {hex(OOB)}")
    A("v_lshrrev_b32 v1, 3, v0"); A("v_and_b32 v2, 7, v0")
    A(f"v_mul_u32_u24 v1, s{sT2}, v1")
    A(f"v_lshl_add_u32 v{vCL}, v2, 4, v1")
    A(f"s_lshl_b32 s{sCSP}, s{sT2}, 3")

def stats_loads():
    return [(f"buffer_load_dwordx4 {v(PRS+4*j,4)}, v{vSA}, {srdr(SX)}, s{sSTO} offen offset:{256*j}", None, 1) for j in range(5)]

def cs_loads():
    o = []
    for j in range(10):
        if j: o.append((f"s_add_u32 s{sCSO}, s{sCSO}, s{sCSP}", None, 0))
        o.append((f"buffer_load_dwordx4 {v(PRC+4*j,4)}, v{vCL}, {srdr(SCS)}, s{sCSO} offen", None, 1))
    o.append((f"s_sub_u32 s{sP0}, s{sCSL}, 30", None, 0))
    o.append((f"s_lshl_b32 s{sP0}, s{sP0}, 7", None, 0)); o.append((f"s_min_u32 s{sP0}, s{sP0}, {hex(OOB)}", None, 0))
    o.append((f"v_lshlrev_b32 v{vPT}, 1, v0", None, 0))
    o.append((f"buffer_load_ushort v{vBI}, v{vPT}, {srdr(SB1)}, s{sP0} offen", None, 1))
    return o

def rowsum(A, reg):
    for sh in (8, 4, 2, 1):
        A(f"v_add_f32_dpp v{reg}, v{reg}, v{reg} row_ror:{sh} row_mask:0xf bank_mask:0xf")

def zero_kv(A):
    for r in range(4): A(f"v_mov_b32 v{4+r}, 0")
    A(f"s_and_b32 s{sF0}, s2, 127"); A(f"s_lshl_b32 s{sF0}, s{sF0}, 2"); A(f"s_add_u32 s{sF0}, s{sF0}, s{sWAVE}")
    A(f"s_mul_i32 s{sF0}, s{sF0}, 320"); A(f"s_add_u32 s{sF0}, s{sF0}, {KV_OFF}")
    A(f"v_mov_b32 v1, {hex(OOB)}")
    A("v_cmp_gt_u32 vcc, 20, v0")
    A.g(f"v_cndmask_b32 v1, v1, v{vW}, vcc")
    A(f"buffer_store_dwordx4 v[4:7], v1, {srdr(SWS)}, s{sF0} offen sc1", "prep")

def stats_compute(A):
    U = PRC
    for r in range(20):
        A(f"v_lshlrev_b32 v{U+2*r}, 16, v{PRS+r}")
        A(f"v_and_b32 v{U+2*r+1}, 0xffff0000, v{PRS+r}")
        if r == 1: A(f"v_add_f32 v2, v{U}, v{U+1}")
        if r == 2: A(f"v_add_f32 v3, v{U+2}, v{U+3}")
        if r > 2: A(f"v_add_f32 v2, v2, v{U+2*r-2}"); A(f"v_add_f32 v3, v3, v{U+2*r-1}")
    A(f"v_add_f32 v2, v2, v{U+38}"); A(f"v_add_f32 v3, v3, v{U+39}")
    A(f"s_lshr_b32 s{sF0}, s{sSTO}, 5"); A(f"s_mul_hi_u32 s{sF0}, s{sF0}, 0x33333334")
    A("v_add_f32 v2, v2, v3")
    ad = Asm()
    ad("v_lshrrev_b32 v1, 4, v0"); ad("v_lshlrev_b32 v1, 3, v1")
    ad("v_and_b32 v6, 15, v0"); ad(f"v_mov_b32 v7, {hex(OOB)}")
    ad(f"s_add_u32 s{sF0}, s{sF0}, {ST_OFF}"); ad("v_mov_b32 v5, 0x3727c5ac")
    ad("v_cmp_eq_u32 vcc, 0, v6"); ad("s_nop 0")
    for k, sh in enumerate((8, 4, 2, 1)):
        A.extend(ad.ins[2*k:2*k+2])
        A(f"v_add_f32_dpp v2, v2, v2 row_ror:{sh} row_mask:0xf bank_mask:0xf")
    A("v_cndmask_b32 v1, v7, v1, vcc")
    A("v_mul_f32 v4, 0x3acccccd, v2")
    for r in range(40):
        A(f"v_sub_f32 v{U+r}, v{U+r}, v4")
        if r in (1, 2): A(f"v_mul_f32 v{2+(r&1)}, v{U+r-1}, v{U+r-1}")
        if r > 2: A(f"v_fmac_f32 v{2+(r&1)}, v{U+r-1}, v{U+r-1}")
    A(f"v_fmac_f32 v2, v{U+39}, v{U+39}")
    A("v_add_f32 v2, v2, v3")
    rowsum(A, 2)
    A("v_fmac_f32 v5, 0x3acccccd, v2")
    A(f"buffer_store_dwordx2 v[4:5], v1, {srdr(SWS)}, s{sF0} offen sc1", "prep")

def cs_setup(A):
    sel = vCSA; acc = vCSA + 4
    A("v_and_b32 v1, 15, v0"); A("v_lshrrev_b32 v2, 1, v1"); A("v_and_b32 v3, 1, v0")
    A("v_lshlrev_b32 v3, 4, v3"); A("v_mov_b32 v4, 0x3f80"); A("v_lshlrev_b32 v4, v3, v4")
    for r in range(4):
        A(f"v_cmp_eq_u32 vcc, {r}, v2"); A.g("s_nop 1"); A.g(f"v_cndmask_b32 v{sel+r}, 0, v4, vcc")
    A("v_and_b32 v2, 7, v0"); A("v_bfe_u32 v3, v0, 4, 1")
    A("v_lshlrev_b32 v2, 7, v2"); A("v_lshl_add_u32 v2, v3, 6, v2")
    A(f"s_lshl_b32 s{sF0}, s{sWAVE}, 2"); A(f"s_add_u32 s{sF0}, s{sF0}, {CSR}")
    A(f"v_add_u32 v{PRT}, s{sF0}, v2")

def cs_compute(A):
    sel = vCSA; acc = vCSA + 4
    for j in range(10):
        A(f"v_mfma_f32_16x16x32_bf16 {v(acc,4)}, {v(sel,4)}, {v(PRC+4*j,4)}, {'0' if j == 0 else v(acc,4)}")

def cs_write(A):
    acc = vCSA + 4
    for r in range(4):
        A(f"v_add_f32_dpp v{acc+r}, v{acc+r}, v{acc+r} row_ror:8 row_mask:0xf bank_mask:0xf")
    A("s_mov_b64 exec, 0xffffffff")
    for r in range(4):
        A.g(f"ds_write_b32 v{PRT}, v{acc+r} offset:{16*r}")
    A.g("s_mov_b64 exec, -1")

def cs_finish(A):
    R = vCSA; t0, t1 = sF1, sCSP
    A(f"v_add_u32 v{PRT}, {CSR}, v{vW}")
    A(f"ds_read_b128 {v(R,4)}, v{PRT}")
    A(f"s_lshl_b32 s{t0}, s{sCSL}, 10")
    A(f"s_bfe_u32 s{t1}, s2, 0x10002"); A(f"s_lshl_b32 s{t1}, s{t1}, 3")
    A(f"s_add_u32 s{t0}, s{t0}, s{t1}"); A(f"s_add_u32 s{t0}, s{t0}, {CS_OFF}")
    A(f"s_cmp_lt_u32 s{sCSL}, 57"); A.g(f"s_cselect_b32 s{t0}, s{t0}, {hex(OOB)}")
    A(f"s_cmp_eq_u32 s{sWAVE}, 0"); A.g(f"s_cselect_b32 s{t0}, s{t0}, {hex(OOB)}")
    A(f"v_lshlrev_b32 v{R+5}, 16, v{vBI}")
    A(f"v_add_f32 v{R}, v{R}, v{R+1}"); A(f"v_add_f32 v{R+2}, v{R+2}, v{R+3}")
    A(f"v_add_f32 v{R+4}, v{R}, v{R+2}")
    A(f"buffer_store_dwordx2 {v(R+4,2)}, v{vW}, {srdr(SWS)}, s{t0} offen sc1", "prep")

def phi_loads(A, kv, R, v=a):
    A(f"s_lshl_b32 s{sF0}, s{sC}, 2"); A(f"s_add_u32 s{sF0}, s{sF0}, s{sWAVE}"); A(f"s_mul_i32 s{sF0}, s{sF0}, 800")
    A(f"s_and_b32 s{sF1}, s{sWAVE}, 1"); A(f"s_mul_i32 s{sF1}, s{sF1}, 10")
    A(f"v_add_u32 v1, s{sF1}, v0"); A("v_subrev_u32 v2, 50, v1"); A("v_min_u32 v1, v1, v2")
    A("v_lshlrev_b32 v1, 4, v1")
    A(f"v_mov_b32 v2, {hex(OOB)}")
    A("v_cmp_gt_u32 vcc, 50, v0")
    A.g("v_cndmask_b32 v1, v2, v1, vcc")
    A.g(f"v_cndmask_b32 v3, v2, v{vW}, vcc")
    A(f"buffer_load_dwordx4 {v(R,4)}, v1, {srdr(SPH)}, s{sF0} offen")
    if kv:
        A(f"s_lshl_b32 s{sF0}, s{sU}, 2"); A(f"s_add_u32 s{sF0}, s{sF0}, s{sWAVE}"); A(f"s_mul_i32 s{sF0}, s{sF0}, 800")
        A(f"buffer_load_dwordx4 {v(R+4,4)}, v3, {srdr(SPH)}, s{sF0} offen")

def phi_writes(A, kv, R, v=a):
    A(f"s_mul_i32 s{sF0}, s{sWAVE}, 960"); A(f"s_add_u32 s{sF0}, s{sF0}, {PHI2}")
    A(f"v_add_u32 v1, s{sF0}, v{vW}")
    A(f"s_mul_i32 s{sF0}, s{sWAVE}, 480"); A(f"s_add_u32 s{sF0}, s{sF0}, {PZERO}")
    A(f"v_lshl_add_u32 v2, v0, 3, s{sF0}")
    A("v_mov_b32 v4, 0"); A("v_mov_b32 v5, 0")
    A(f"s_bfm_b64 exec, 60, 0")
    A.g(f"ds_write_b128 v1, {v(R,4)}")
    if kv: A.g(f"ds_write_b128 v1, {v(R+4,4)} offset:{PHI1 - PHI2}")
    A.g("ds_write_b64 v2, v[4:5]")
    A.g("s_mov_b64 exec, -1")

vA = 16; vQA = 20; vOA = 23; vF1 = 24; vF2 = 25; vXO = 26; vRW = 28; vRR = 31; vKA = 32
QR = 84; ST2 = 96; PA2 = 64; PK2 = 44; NU = 64; KVR = 88; XRS = 88
ACT = 112; ACCO = 176; aO = 100

def p2_addr_early(A):
    for k in range(4):
        A(f"s_add_u32 s{sF0}, s{sWAVE}, {k}"); A(f"s_and_b32 s{sF0}, s{sF0}, 3"); A(f"s_mul_i32 s{sF0}, s{sF0}, {ACT_BLK}")
        A(f"v_add_u32 v{vA+k}, s{sF0}, v{vW}")
    A("v_lshrrev_b32 v1, 4, v0")
    A("v_and_b32 v2, 1, v1")
    A("v_lshrrev_b32 v3, 1, v1"); A("v_mul_u32_u24 v3, 5, v3")
    A(f"s_mul_i32 s{sF0}, s{sC}, 10")
    A(f"v_add_u32 v3, s{sF0}, v3")
    A("v_and_b32 v4, 15, v0"); A("v_lshlrev_b32 v4, 4, v4")
    A("v_lshl_add_u32 v4, v3, 8, v4")
    A("v_mul_u32_u24 v5, 768, v2")
    A(f"v_add_u32 v{vQA}, v4, v5")
    A(f"v_lshl_add_u32 v{vQA+1}, v2, 3, v4")
    A("v_and_b32 v4, 15, v0"); A(f"v_lshlrev_b32 v{vQA+2}, 3, v4")
    A(f"s_mul_i32 s{sAB}, s{sR}, {4*ACT_BLK}"); A(f"s_add_u32 s{sAB}, s{sAB}, {ACT_OFF}")
    A(f"s_lshl_b32 s{sF0}, s{sWAVE}, 10"); A(f"s_add_u32 s{sA}, s{sAB}, s{sF0}")

def act_load(n, k):
    o = []
    if k == 0 and n > 0:
        o.append((f"s_add_u32 s{sA}, s{sA}, 4096", None, 0))
        if n == 13:
            o.append((f"s_cmp_lt_u32 s{sWAVE}, 2\ns_cselect_b32 s{sA}, s{sA}, {hex(OOB)}", None, 0))
    o.append((f"buffer_load_dwordx4 {v(ACT+16*(n%4)+4*k,4)}, v{vA+k}, {srdr(SWS)}, s{sA} offen sc1", f"A{n}", 1))
    return o

def p2_first_loads(A):
    A(f"s_mul_i32 s{sP0}, s{sWAVE}, {ACT_BLK}"); A(f"s_add_u32 s{sP0}, s{sP0}, s{sAB}")
    A(f"s_add_u32 s{sP0}, s{sP0}, {74*1024}")
    A(f"buffer_load_dwordx4 {v(QR,4)}, v{vQA}, {srdr(SWS)}, s{sP0} offen sc1")
    A(f"buffer_load_dwordx4 {v(QR+4,4)}, v{vQA}, {srdr(SWS)}, s{sP0} offen offset:256 sc1")
    A(f"buffer_load_dwordx2 {v(QR+8,2)}, v{vQA+1}, {srdr(SWS)}, s{sP0} offen offset:512 sc1")
    A(f"s_lshl_b32 s{sP0}, s{sR}, 2"); A(f"s_add_u32 s{sP0}, s{sP0}, s{sWAVE}"); A(f"s_lshl_b32 s{sP0}, s{sP0}, 7")
    A(f"s_add_u32 s{sP0}, s{sP0}, {ST_OFF}")
    A(f"buffer_load_dwordx2 {v(ST2,2)}, v{vQA+2}, {srdr(SWS)}, s{sP0} offen sc1")
    for n in range(4):
        for k in range(4): emit(A, act_load(n, k))

def prologue(A, C):
    L = C.L
    A.label(L("start"))
    A(f"s_getpc_b64 s[{sT0}:{sT0+1}]")
    A("s_cmp_ge_u32 s2, 256")
    A(f"s_cbranch_scc1 {L('end')}")
    A("s_load_dwordx16 s[4:19], s[0:1], 0")
    A("s_load_dwordx2 s[20:21], s[0:1], 80")
    A("s_load_dwordx2 s[22:23], s[0:1], 64")
    stamp(A, 0, True); stamp(A, 1)
    A(f"s_bfe_u32 s{sT2}, s2, 0x30003"); A(f"s_lshl_b32 s{sT2}, s{sT2}, 13")
    A("v_lshrrev_b32 v1, 6, v0"); A("v_and_b32 v2, 15, v0"); A("v_lshl_add_u32 v2, v1, 4, v2")
    A(f"v_lshl_add_u32 v2, v2, 7, s{sT2}")
    A(f"v_min_u32 v2, {L('end')}-{L('start')}-8, v2")
    A(f"v_mov_b32 v3, s{sT0+1}")
    A(f"v_add_co_u32 v2, vcc, s{sT0}, v2")
    A("v_addc_co_u32 v3, vcc, 0, v3, vcc")
    A("global_load_dword v255, v[2:3], off")
    A(f"v_readfirstlane_b32 s{sWAVE}, v1")
    A(f"v_mov_b32 v{vTID}, v0")
    A("v_and_b32 v0, 63, v0")
    A(f"s_and_b32 s{sT0}, s2, 7"); A(f"s_lshr_b32 s{sT1}, s2, 3")
    A(f"s_lshr_b32 s{sM}, s{sT0}, 2"); A(f"s_lshl_b32 s{sM}, s{sM}, 3"); A(f"s_and_b32 s{sT2}, s{sT1}, 7"); A(f"s_add_u32 s{sM}, s{sM}, s{sT2}")
    A(f"s_and_b32 s{sU}, s{sT0}, 3"); A(f"s_lshl_b32 s{sU}, s{sU}, 1"); A(f"s_bfe_u32 s{sT2}, s{sT1}, 0x10003"); A(f"s_add_u32 s{sU}, s{sU}, s{sT2}")
    A(f"s_lshr_b32 s{sR}, s{sT0}, 1"); A(f"s_lshl_b32 s{sR}, s{sR}, 3"); A(f"s_lshr_b32 s{sT2}, s{sT1}, 2"); A(f"s_add_u32 s{sR}, s{sR}, s{sT2}")
    A(f"s_and_b32 s{sC}, s{sT0}, 1"); A(f"s_lshl_b32 s{sC}, s{sC}, 2"); A(f"s_and_b32 s{sT2}, s{sT1}, 3"); A(f"s_add_u32 s{sC}, s{sC}, s{sT2}")
    A("v_lshrrev_b32 v1, 3, v0"); A("v_and_b32 v2, 7, v0")
    A(f"s_lshl_b32 s{sT0}, s{sWAVE}, 5")
    A("v_lshrrev_b32 v4, 4, v0"); A("v_xor_b32 v4, v4, v2")
    A(f"v_add_u32 v3, s{sT0}, v1"); A("v_mul_u32_u24 v3, 1280, v3")
    A(f"v_lshl_add_u32 v{vXD}, v4, 4, v3")
    A(f"v_xor_b32 v5, 64, v{vXD}")
    A(f"v_add_u32 v{vXD+1}, {8*1280-1024}, v5")
    A(f"v_add_u32 v{vXD+2}, {16*1280-2048}, v{vXD}")
    A(f"v_add_u32 v{vXD+3}, {24*1280-3072}, v5")
    A(f"s_mul_i32 s{sXO}, s{sM}, {128*1280}")
    A(f"s_mul_i32 s{sXM}, s{sWAVE}, {XW}")
    A(f"v_lshlrev_b32 v{vW}, 4, v0"); A(f"v_add_u32 v{vW+1}, 4096, v{vW}")
    A(f"s_cmp_ge_u32 s2, 128")
    A(f"s_cbranch_scc1 {L('prole')}")

def pair_lane(A):
    A("v_lshrrev_b32 v1, 3, v0"); A("v_and_b32 v2, 7, v0")
    A("v_bfe_u32 v3, v0, 4, 1"); A("v_lshlrev_b32 v3, 2, v3"); A("v_xor_b32 v3, v3, v2")

def build_srds(A, p):
    if p:
        srd(A, SOUT, 22, 2048 * 1280)
        cs_line(A, sCSL, sT0, sT1)
        A(f"s_cmp_lt_u32 s{sCSL}, 30")
        A(f"s_cselect_b64 s[{SCS}:{SCS+1}], s[6:7], s[14:15]")
        csel(A, SCS + 2, 640*3840, 640*3456)
        A(f"s_and_b32 s{SCS+1}, s{SCS+1}, 0xffff"); A(f"s_mov_b32 s{SCS+3}, 0x20000")
        pack_T(A, sT0, sT1)
        A(f"s_cmp_lt_u32 s{sT0}, 54")
        A(f"s_cselect_b64 s[{SPK}:{SPK+1}], s[18:19], s[10:11]")
        csel(A, SPK + 2, 1728*1280, 640*1280)
        A(f"s_and_b32 s{SPK+1}, s{SPK+1}, 0xffff"); A(f"s_mov_b32 s{SPK+3}, 0x20000")
        srd(A, SWB, 10, 640 * 1280)
        srd(A, SB1, 16, 1728 * 2)
    srd(A, SPH, 8, 32 * 800)
    if not p: srd(A, SOUT, 22, 2048 * 1280)

def common_addr(A):
    A("v_and_b32 v1, 31, v0"); A("v_lshrrev_b32 v2, 5, v0"); A("v_bfe_u32 v3, v0, 1, 3")
    A("v_lshlrev_b32 v4, 7, v1"); A(f"v_add_u32 v4, s{sXM}, v4")
    for q in range(4):
        A(f"v_add_u32 v5, {2*q}, v2"); A("v_xor_b32 v5, v5, v3")
        A(f"v_lshl_add_u32 v{vXRD+q}, v5, 4, v4")
    A("v_lshrrev_b32 v3, 4, v1"); A(f"v_mul_u32_u24 v3, {ACT_BLK}, v3"); A("v_lshl_add_u32 v3, v2, 8, v3")
    A("v_and_b32 v4, 15, v0"); A(f"v_lshl_add_u32 v{vAST}, v4, 4, v3")
    A(f"s_lshl_b32 s{sT0}, s{sM}, 3"); A(f"s_lshl_b32 s{sT1}, s{sWAVE}, 1"); A(f"s_add_u32 s{sT0}, s{sT0}, s{sT1}")
    A(f"s_mul_i32 s{sACT}, s{sT0}, {ACT_BLK}"); A(f"s_add_u32 s{sACT}, s{sACT}, {ACT_OFF}")
    A(f"s_lshl_b32 s{sT0}, s2, 8"); A(f"s_add_u32 s{sT0}, s{sT0}, {FLG_OFF}")
    A(f"v_mov_b32 v3, s{sT0}"); A(f"v_mov_b32 v4, {hex(OOB)}")
    A(f"v_cmp_eq_u32 vcc, 0, v{vTID}"); A(f"v_cndmask_b32 v{vFL}, v4, v3, vcc")
    poll_addr(A, "all", 3, 4)
    A(f"s_mul_i32 s{sW}, s{sC}, 74"); A(f"s_add_u32 s{sW}, s{sW}, s{sWAVE}"); A(f"s_mul_i32 s{sW}, s{sW}, 5120")
    A(f"s_add_u32 s{sW}, s{sW}, {W2P_OFF}")
    A(f"s_add_u32 s{sX1}, s{sW}, {13*20480}")
    A(f"s_cmp_lt_u32 s{sWAVE}, 2"); A(f"s_cselect_b32 s{sX1}, s{sX1}, {hex(OOB)}")
    A(f"s_mul_i32 s{sPV}, s{sWAVE}, {4*5120}"); A(f"s_add_u32 s{sPV}, s{sPV}, {6*5120}")
    A("v_and_b32 v1, 3, v0"); A("v_bfe_u32 v2, v0, 2, 1"); A("v_bfe_u32 v3, v0, 3, 2")
    A("v_lshrrev_b32 v4, 1, v3"); A("v_lshl_add_u32 v4, v4, 1, v2")
    A("v_and_b32 v5, 1, v3"); A("v_lshl_add_u32 v5, v5, 2, v1"); A("v_lshl_add_u32 v4, v4, 3, v5")
    A(f"v_lshlrev_b32 v{vCP}, 4, v4")

def pair_read_base(A, dst):
    A("v_lshrrev_b32 v7, 1, v4"); A("v_lshlrev_b32 v7, 2, v7"); A("v_lshl_add_u32 v7, v3, 1, v7")
    A("v_and_b32 v5, 1, v4"); A("v_add_u32 v7, v7, v5"); A("v_lshlrev_b32 v7, 3, v7")
    A("v_lshl_add_u32 v7, v6, 7, v7"); A("v_bfe_u32 v5, v0, 3, 1"); A(f"v_lshl_add_u32 v{dst}, v5, 6, v7")

def as_queue(B):
    return [(x.text, x.tag, 1 if x.cls == "vmem" else 0, x.glue) for x in B.ins]

def stats_load(A):
    A(f"s_lshl_b32 s{sP0}, s{sM}, 2"); A(f"s_add_u32 s{sP0}, s{sP0}, s{sWAVE}"); A(f"s_lshl_b32 s{sP0}, s{sP0}, 8")
    A(f"s_add_u32 s{sP0}, s{sP0}, {ST_OFF}")
    A(f"v_and_b32 v{vPT}, 31, v0"); A(f"v_lshlrev_b32 v{vPT}, 3, v{vPT}")
    A(f"buffer_load_dwordx2 {v(vST,2)}, v{vPT}, {srdr(SWS)}, s{sP0} offen sc1")

def epoch_load(A):
    A(f"v_mov_b32 v{vEP}, 0")
    A(f"buffer_load_dword v{vEP}, v{vEP}, {srdr(SWS)}, 0 offen sc1")

def role_kv(A, C):
    L = C.L
    ACC_A = 176; ACC_Q = 64; KP = 96; PAK = 120; VP = 184; EP = 216; PK = 184; KVA = 184; CR = 120
    A(f"s_lshl_b32 s{sT0}, s{sWAVE}, 3")
    A(f"s_mul_i32 s{sT1}, s{sU}, 160"); A(f"s_add_u32 s{sT1}, s{sT1}, 1280")
    for i in range(3):
        A(f"v_add_u32 v1, {64*i}, v0")
        A("v_mul_u32_u24 v2, 3277, v1"); A("v_lshrrev_b32 v2, 16, v2")
        A("v_mul_u32_u24 v3, 20, v2"); A("v_sub_u32 v3, v1, v3")
        A("v_mul_u32_u24 v4, 13108, v3"); A("v_lshrrev_b32 v4, 16, v4")
        A("v_and_b32 v5, 1, v4"); A("v_lshrrev_b32 v4, 1, v4")
        A("v_mul_u32_u24 v5, 1200, v5"); A("v_mul_u32_u24 v4, 80, v4")
        A(f"v_add_u32 v2, s{sT0}, v2"); A("v_mul_u32_u24 v2, 3840, v2"); A("v_lshl_add_u32 v2, v3, 4, v2")
        A("v_add_u32 v2, v2, v5"); A("v_sub_u32 v2, v2, v4")
        A(f"v_add_u32 v{vAD+i}, s{sT1}, v2")
        if i: A(f"v_subrev_u32 v{vAD+i}, {1024*i}, v{vAD+i}")
    A(f"v_mov_b32 v1, {hex(OOB)}"); A("v_cmp_gt_u32 vcc, 32, v0"); A(f"v_cndmask_b32 v{vAD+2}, v1, v{vAD+2}, vcc")
    A(f"s_mul_i32 s{sWB}, s{sWAVE}, 3072"); A(f"s_add_u32 s{sWB}, s{sWB}, {WR}")
    pair_lane(A)
    A(f"v_add_u32 v4, s{sT0}, v1"); A("v_mul_u32_u24 v4, 3840, v4")
    A(f"v_lshl_add_u32 v4, v3, 4, v4"); A(f"s_lshl_b32 s{sT1}, s{sU}, 7")
    A(f"v_add_u32 v{vPD}, s{sT1}, v4")
    A("s_waitcnt lgkmcnt(0)")
    srd(A, SX, 4, 2048 * 1280)
    srd(A, SWS, 20, WS_SIZE)
    A0 = A; A = Asm()
    srd(A, SWA, 6, 640 * 3840)
    A(f"s_lshl_b32 s{sWQ}, s{sWAVE}, 10"); A(f"s_add_u32 s{sWQ}, s{sWQ}, {WR + 12288}")
    build_srds(A, False)
    spread(A0, A, x_dma(0), 3, first=3)
    A = Asm()
    common_addr(A)
    vCA = 40
    A("v_mul_u32_u24 v4, 40, v2"); A("v_lshl_add_u32 v4, v3, 2, v4"); A("v_add_u32 v4, v4, v1")
    A(f"v_lshlrev_b32 v{vCA}, 4, v4"); A(f"v_add_u32 v{vCA+2}, {600*16}, v{vCA}")
    A("v_cmp_lt_u32 vcc, 1, v3"); A(f"v_cndmask_b32 v{vCA+1}, v{vCA}, v{vCA+2}, vcc")
    common_lane(A)
    A("v_mul_u32_u24 v7, 320, v6"); A(f"v_mul_u32_u24 v{vAR}, 160, v3"); A(f"v_add_u32 v{vAR}, v{vAR}, v7")
    A(f"v_lshl_add_u32 v{vAR}, v1, 9, v{vAR}")
    A(f"v_lshl_add_u32 v{vAR}, v4, 3, v{vAR}"); A(f"v_add_u32 v{vAR}, {WR}, v{vAR}"); A(f"v_add_u32 v{vAR+1}, 65536, v{vAR}")
    pair_read_base(A, vPR)
    A(f"v_add_u32 v{vPR}, {WR + 12288}, v{vPR}")
    A(f"v_xor_b32 v{vPR+1}, 64, v{vPR}")
    A(f"v_add_u32 v{vPR+2}, 65536, v{vPR}"); A(f"v_add_u32 v{vPR+3}, 65536, v{vPR+1}")
    spread(A0, A, kv_dma(0) + kv_dma(1), 10, first=10)
    A = A0
    epoch_load(A)
    phi_loads(A, True, aPH)
    emit(A, x_dma(1) + kv_dma(2) + kv_dma(3))
    pt(A, "pro")
    S1 = OPT.get("s1kv", 9); HB = OPT.get("hbkv", 1)
    steps = []
    accs = [ACC_A + 16 * t for t in range(5)] + [ACC_Q, ACC_Q + 16]
    for s in range(40):
        c, sp = divmod(s, 4)
        h = s >> 1; sl = h % 6; hi = sl >= 4
        fr = aW + 28 * (s & 1)
        rd = []
        for t in range(5):
            for rho in range(2):
                off = (sl & 3 if hi else sl) * HS + (s & 1) * 6144 + rho * 1280 + t * 32
                rd.append(f"ds_read_b64_tr_b16 {a(fr + 4*t + 2*rho, 2)}, v{vAR + hi} offset:{off}")
        for t in range(2):
            for rho in range(2):
                off = (sl & 3 if hi else sl) * HS + (s & 1) * 2048 + rho * 512
                rd.append(f"ds_read_b64_tr_b16 {a(fr + 20 + 4*t + 2*rho, 2)}, v{vPR + t + 2*hi} offset:{off}")
        q = []
        if HB:
            if s == 0: q += kv_dma(4) + x_dma(2)
            if sp in (0, 2): q += kv_dma(h + 5)
            if sp == 2: q += x_dma(c + 3)
        elif sp == 0: q += x_dma(c + 2) + kv_dma(h + 4) + kv_dma(h + 5)
        steps.append(dict(nt=7, acc=accs, first=(s == 0), xreg=aX + 16 * (c & 1) + 4 * sp, frag=fr, reads=rd,
                          chunk=h if sp == 0 or (HB and sp == 2) else None, xj=c if sp == 0 else None, queue=q,
                          tags=[] if HB else [f"w{h+1}"]))
    def pre(A, c):
        if c == S1: poll_check(A, C, 1)
    def post(A, c, dq):
        pt(A, f"c{c}")
        if c == 1: A(f"v_readfirstlane_b32 s{sE}, v{vEP}")
        if c == S1 - 1: poll_issue(A)
        if c == S1:
            A = Asm()
            stats_load(A)
            A(f"s_mul_i32 s{sP0}, s{sU}, {80*16}"); A(f"s_add_u32 s{sP0}, s{sP0}, {CS_OFF + 640*16}")
            for t in range(5):
                A(f"buffer_load_dwordx4 {v(CR+4*t,4)}, v{vCA+[0,0,1,2,2][t]}, {srdr(SWS)}, s{sP0} offen offset:{256*t} sc1")
            A(f"s_lshl_b32 s{sP0}, s{sU}, 10"); A(f"s_add_u32 s{sP0}, s{sP0}, {CS_OFF}")
            for t in range(2):
                A(f"buffer_load_dwordx4 {v(vQC+4*t,4)}, v{vCP}, {srdr(SWS)}, s{sP0} offen offset:{512*t} sc1")
            dq.add(as_queue(A), front=True)
    M = Asm(); dq = DQ()
    gemm_steps(M, steps, 1, dq, pre, post, every=OPT.get("kvevery", [2] * 9 + [1]))
    dq.pop(M, 99)
    F = Asm(); phi_writes(F, True, aPH)
    ins, left = weave(M, F, start=30, per=2); assert not left
    F = Asm()
    common_lane(F)
    F("v_mul_u32_u24 v7, 1920, v3"); F(f"v_add_u32 v7, {PHI1}, v7"); F(f"v_mov_b32 v5, {PZERO}")
    F("v_cmp_eq_u32 vcc, v1, v3"); F.g("v_cndmask_b32 v7, v5, v7, vcc")
    F("v_mul_u32_u24 v5, 40, v2"); F("v_add_u32 v7, v7, v5"); F("v_lshl_add_u32 v6, v4, 3, v7"); F("v_add_u32 v7, 32, v7")
    F(f"s_lshl_b32 s{sPKD}, s{sU}, 11"); F(f"s_add_u32 s{sPKD}, s{sPKD}, s{sACT}"); F(f"s_add_u32 s{sPKD}, s{sPKD}, {74*1024}")
    bufs = [0, 4, 8, 12, 16, 20, 24, 28, 32, 36, 40, 44]
    seq = [(sg, tau, st) for sg in range(2) for st in range(3) for tau in range(2)]
    for n in range(12):
        sg, tau, st = seq[n]
        for rho in range(2):
            F(f"ds_read_b64_tr_b16 {a(bufs[n]+2*rho,2)}, v{6+tau} offset:{sg*960+(8*st+4*rho)*40}")
    ins, left = weave(ins, F, start=200, per=1.5); assert not left
    FC = Asm()
    stats_frag(FC, 1)
    for t in range(5): corr_frag(FC, CR + 4 * t, 1 + (t & 1))
    for t in range(2): corr_frag(FC, vQC + 4 * t, 1 + (t & 1))
    if S1 < 9:
        ins, left = weave(ins, FC, start=256, per=3); FC.ins = left
    A.extend(ins)
    pt(A, "p1end")
    A.extend(FC)
    for t in range(5):
        A(f"v_mfma_f32_32x32x16_bf16 {v(ACC_A+16*t,16)}, {v(CR+4*t,4)}, {v(vCB,4)}, {v(ACC_A+16*t,16)}")
    for t in range(2):
        A(f"v_mfma_f32_32x32x16_bf16 {v(ACC_Q+16*t,16)}, {v(vQC+4*t,4)}, {v(vCB,4)}, {v(ACC_Q+16*t,16)}")
    for i in range(20):
        A(f"v_cvt_pk_bf16_f32 v{KP+i}, v{ACC_A+2*i}, v{ACC_A+2*i+1}")
    A(f"v_mov_b32 v{KP+20}, 0"); A(f"v_mov_b32 v{KP+21}, 0")
    vs = Asm()
    for t in range(2):
        for p in range(2):
            for i in range(4):
                r = ACC_Q + 16 * t + 8 * p
                vs(f"v_cvt_pk_bf16_f32 v{r+i}, v{r+2*i}, v{r+2*i+1}")
            pair_store(vs, ACC_Q, sPKD, "qst", t, p)
    vs("v_and_b32 v1, 31, v0"); vs(f"s_lshl_b32 s{sF0}, s{sWAVE}, 5"); vs(f"v_add_u32 v1, s{sF0}, v1")
    vs("v_lshrrev_b32 v2, 5, v0")
    vs("v_mul_u32_u24 v3, 48, v1"); vs("v_mul_u32_u24 v5, 12288, v2"); vs("v_add_u32 v3, v3, v5"); vs(f"v_add_u32 v{vAR+1}, {VIM}, v3")
    vs("v_mul_u32_u24 v3, 80, v1"); vs("v_mul_u32_u24 v4, 20480, v2"); vs("v_add_u32 v3, v3, v4"); vs(f"v_add_u32 v{vAR}, {PHIK}, v3")
    for sg in range(2):
        for i in range(10):
            r = ACC_A + 40 + 20 * sg + 2 * i
            vs(f"v_mul_f32 v{r}, v{r}, v{vRS}"); vs(f"v_mul_f32 v{r+1}, v{r+1}, v{vRS}")
            vs(f"v_cvt_pk_bf16_f32 v{VP+12*sg+i}, v{r}, v{r+1}")
        vs(f"v_mov_b32 v{VP+12*sg+10}, 0x3f80"); vs(f"v_mov_b32 v{VP+12*sg+11}, 0")
        for i in range(3):
            vs(f"ds_write_b128 v{vAR+1}, {v(VP+12*sg+4*i,4)} offset:{6144*sg+16*i}")
    K = Asm()
    for n in range(12):
        sg, tau, st = seq[n]
        d = v(PAK + 32 * sg + 16 * tau, 16)
        K(f"v_mfma_f32_32x32x16_bf16 {d}, {a(bufs[n],4)}, {v(KP+10*sg+4*st,4)}, {'0' if st == 0 else d}")
    ins, left = weave(K, vs, per=5)
    A.extend(ins); A.extend(left)
    NW = OPT.get("kvw2p", 5)
    wq = sum((w2p_loads(n) for n in range(NW)), [])
    F = Asm()
    for sg in range(2):
        softmax_pair_pk(F, PAK + 32 * sg, EP, EP + 20, PK, vS1, 2)
        for i in range(5):
            F(f"ds_write_b128 v{vAR}, {v(PK+4*i,4)} offset:{10240*sg+16*i}")
        if sg == 0:
            F.wait(vm="qst"); F.g("s_barrier"); signal(F, 2)
    F("v_lshrrev_b32 v1, 5, v0"); F("v_bfe_u32 v2, v0, 2, 2"); F("v_lshlrev_b32 v2, 2, v2"); F("v_lshl_add_u32 v2, v1, 1, v2")
    F("v_and_b32 v3, 3, v0"); F("v_bfe_u32 v4, v0, 4, 1"); F("v_lshl_add_u32 v3, v4, 2, v3")
    F(f"s_mul_i32 s{sF0}, s{sWAVE}, 10240"); F(f"s_add_u32 s{sF0}, s{sF0}, {PHIK}")
    F("v_mul_u32_u24 v4, 80, v2"); F(f"v_add_u32 v4, s{sF0}, v4"); F("v_lshl_add_u32 v5, v3, 3, v4")
    F("v_and_b32 v6, 1, v3"); F("v_lshl_add_u32 v6, v6, 3, v4"); F("v_add_u32 v6, 64, v6")
    F(f"s_mul_i32 s{sF0}, s{sWAVE}, 6144"); F(f"s_add_u32 s{sF0}, s{sF0}, {VIM}")
    F("v_mul_u32_u24 v4, 48, v2"); F(f"v_add_u32 v4, s{sF0}, v4"); F("v_min_u32 v7, 5, v3"); F("v_lshl_add_u32 v7, v7, 3, v4")
    spread(A, F, wq, OPT.get("kvsp", 13))
    pt(A, "p2end")
    A.wait(lgkm="all")
    A("s_barrier")
    fb = [140, 152, 164, 176]
    def krd(st):
        fr = fb[st % 4]
        for rho in range(2):
            A(f"ds_read_b64_tr_b16 {a(fr+2*rho,2)}, v5 offset:{(16*st+rho)*80}")
            A(f"ds_read_b64_tr_b16 {a(fr+8+2*rho,2)}, v7 offset:{(16*st+rho)*48}")
            A(f"ds_read_b64_tr_b16 {a(fr+4+2*rho,2)}, v6 offset:{(16*st+rho)*80}")
    for st in range(4): krd(st)
    G = Asm()
    poll_addr(G, "grp", 1, 2)
    p2_addr_early(G)
    G("v_and_b32 v1, 31, v0"); G("v_lshrrev_b32 v2, 5, v0"); G("v_lshlrev_b32 v2, 9, v2"); G("v_lshl_add_u32 v2, v1, 2, v2")
    G(f"v_mov_b32 v3, {hex(OOB)}"); G("v_cmp_gt_u32 vcc, 21, v1"); G.g(f"v_cndmask_b32 v{vKA}, v3, v2, vcc")
    G(f"s_lshl_b32 s{sT0}, s{sU}, 2"); G(f"s_add_u32 s{sT0}, s{sT0}, s{sWAVE}"); G(f"s_mul_i32 s{sT0}, s{sT0}, 5120")
    G(f"s_add_u32 s{sT0}, s{sT0}, {KV_OFF}"); G(f"s_add_u32 s{sT1}, s{sT0}, 4096")
    K = Asm()
    sv = A.ins; A.ins = K.ins
    for st in range(8):
        fr = fb[st % 4]
        for tau in range(2):
            d = v(KVA + 16 * tau, 16)
            A(f"v_mfma_f32_32x32x16_bf16 {d}, {a(fr+4*tau,4)}, {a(fr+8,4)}, {'0' if st == 0 else d}")
        if st + 4 < 8: krd(st + 4)
    A.ins = sv
    ins, left = weave(K, G, start=8, per=6)
    A.extend(ins); A.extend(left)
    for r in range(20):
        f = 8 * (r >> 2) + (r & 3)
        A(f"buffer_atomic_add_f32 v{KVA+r}, v{vKA}, {srdr(SWS)}, s{sT0 if f < 32 else sT1} offen offset:{(f & 31)*128} sc1", "fin")
    pt(A, "sig2")
    poll_issue(A)
    for n in range(NW, 12): emit(A, w2p_loads(n))
    A.wait(vm="fin")
    A("s_barrier")
    signal(A, 3)
    poll_check(A, C, 2)
    p2_first_loads(A)
    pt(A, "first")
    A(f"s_branch {L('tail')}")

def pinfo(A, sl, J, qf):
    if isinstance(sl, int):
        if sl == 0:
            A(f"s_cmp_lt_u32 s{sU}, 2"); A.g(f"s_cselect_b32 s{J}, 8, -2"); A.g(f"s_cselect_b32 s{qf}, 1, 0")
        else:
            A(f"s_mov_b32 s{J}, {8*sl - 2}"); A(f"s_mov_b32 s{qf}, 0")
        A(f"s_add_u32 s{J}, s{J}, s{sU}")

def role_p(A, C):
    L = C.L
    ACC = 128; CR = 64; MT = 96
    A.label(L("prole"))
    A(f"s_lshl_b32 s{sT0}, s{sWAVE}, 3"); A(f"s_add_u32 s{sT0}, s{sT0}, s{sU}")
    A(f"s_cmp_lt_u32 s{sT0}, 2"); A(f"s_cselect_b32 s{sT1}, 8, -2"); A(f"s_cselect_b32 s{sT2}, 1, 0")
    csel(A, sT3, 3840, 3456)
    A(f"s_add_u32 s{sT0}, s{sT0}, s{sT1}"); A(f"s_lshl_b32 s{sT1}, s{sT0}, 7")
    A(f"s_cmp_lt_u32 s{sT0}, 27"); A(f"s_cselect_b32 s{sT1}, s{sT1}, {hex(OOB)}")
    pair_lane(A)
    A(f"v_mul_u32_u24 v5, s{sT3}, v1"); A(f"v_lshl_add_u32 v{vP1}, v3, 4, v5")
    A(f"s_lshl_b32 s{sT0}, s{sT3}, 3"); A(f"s_sub_u32 s{sT0}, s{sT0}, 1024")
    for i in range(1, 4):
        A(f"v_add_u32 v{vP1+i}, s{sT0}, v{vP1+i-1}")
    A(f"s_lshl_b32 s{sWB}, s{sWAVE}, 12"); A(f"s_add_u32 s{sWB}, s{sWB}, {WR}")
    A("s_waitcnt lgkmcnt(0)")
    srd(A, SX, 4, 2048 * 1280)
    srd(A, SWS, 20, WS_SIZE)
    A(f"s_cmp_eq_u32 s{sT2}, 1")
    A(f"s_cselect_b64 s[{SWA}:{SWA+1}], s[6:7], s[14:15]")
    csel(A, SWA + 2, 640*3840, 640*3456)
    A(f"s_and_b32 s{SWA+1}, s{SWA+1}, 0xffff"); A(f"s_mov_b32 s{SWA+3}, 0x20000")
    A(f"s_mov_b32 s{sWO}, s{sT1}"); A(f"s_lshl_b32 s{sWS}, s{sT3}, 5")
    A0 = A; A = Asm()
    build_srds(A, True)
    spread(A0, A, x_dma(0), 8, first=8)
    A = Asm(); pack_setup(A)
    spread(A0, A, p_dma(0) + p_dma(1), 16, first=16)
    epoch_load(A0)
    A = Asm()
    common_addr(A)
    common_lane(A)
    pair_read_base(A, vPRP)
    A(f"v_add_u32 v{vPRP}, {WR}, v{vPRP}")
    A(f"v_xor_b32 v{vPRP+1}, 64, v{vPRP}")
    A(f"v_add_u32 v{vPRP+2}, 65536, v{vPRP}"); A(f"v_add_u32 v{vPRP+3}, 65536, v{vPRP+1}")
    pack_read_addr(A)
    prep_setup(A)
    phi_loads(A, False, aPH)
    spread(A0, A, pack_dma() + x_dma(1) + p_dma(2) + p_dma(3), 7, first=7)
    A = A0
    pt(A, "pro")
    S1 = OPT.get("s1p", 8); SG = OPT.get("sig1", 5); HB = OPT.get("hbp", 1)
    steps = []
    for s in range(40):
        g, sp = divmod(s, 4)
        h = s >> 1; sl = h % 6; hi = sl >= 4
        fr = aW + 32 * (s & 1)
        rd = []
        for t in range(8):
            for rho in range(2):
                off = (sl & 3 if hi else sl) * HS + (t >> 1) * 4096 + (s & 1) * 2048 + rho * 512
                rd.append(f"ds_read_b64_tr_b16 {a(fr + 4*t + 2*rho, 2)}, v{vPRP + (t & 1) + 2*hi} offset:{off}")
        q = []
        NP = OPT.get("noprep")
        if s == 0: q += ([] if NP else cs_loads()) + p_dma(4) + pack_reads() + ([] if NP else stats_loads()) + [("WAIT:lgkm:pkr", None, 0)] + x_dma(2) + p_dma(5)
        elif HB:
            if sp in (0, 2): q += p_dma(h + 5)
            if sp == 2: q += x_dma(g + 3)
        elif sp == 0: q += x_dma(g + 2) + p_dma(h + 4) + p_dma(h + 5)
        if s == 4 and not NP: q += pack_stores() + pack_shared()
        steps.append(dict(nt=8, acc=[ACC + 16 * t for t in range(8)], first=(s == 0), xreg=aX + 16 * (g & 1) + 4 * sp, frag=fr,
                          reads=rd, chunk=h if sp == 0 or (HB and sp == 2) else None, xj=g if sp == 0 else None, queue=q,
                          tags=(["prep"] if s == 4 * SG else (["pkx"] if s == 4 else [])) + ([] if HB else [f"w{h+1}"])))
    def pre(A, c):
        if c == S1: poll_check(A, C, 1)
    def post(A, c, dq):
        pt(A, f"c{c}")
        if c == 1: A(f"v_readfirstlane_b32 s{sE}, v{vEP}")
        if c == SG: signal(A, 1)
        if c == S1 - 1: poll_issue(A)
        if c == S1:
            A = Asm()
            stats_load(A)
            for sl in range(4):
                pinfo(A, sl, sT0, sT1)
                A(f"s_lshl_b32 s{sT0}, s{sT0}, 10"); A(f"s_mul_i32 s{sT1}, s{sT1}, {-1920*16}")
                A(f"s_add_u32 s{sT0}, s{sT0}, s{sT1}"); A(f"s_add_u32 s{sT0}, s{sT0}, {CS_OFF + 1920*16}")
                for t in range(2):
                    A(f"buffer_load_dwordx4 {v(CR+8*sl+4*t,4)}, v{vCP}, {srdr(SWS)}, s{sT0} offen offset:{512*t} sc1")
            dq.add(as_queue(A), front=True)
    M = Asm(); dq = DQ()
    gemm_steps(M, steps, 1, dq, pre, post, every=OPT.get("pevery", [1.4, 1.4, 1.6, 2]))
    dq.pop(M, 99)
    g0 = OPT.get("pw0", 30); cb = OPT.get("csbar", 5 if HB else 6)
    F = Asm(); cs_setup(F); zero_kv(F)
    ins, left = weave32(M, F, start=2, stop=25, budget=5.5); assert not left, len(left)
    FS = Asm(); stats_compute(FS)
    k = OPT.get("stk", 40)
    F = Asm(); phi_writes(F, False, aPH); cs_compute(F); F.extend(FS.ins[:k]); cs_write(F)
    ins, left = weave32(ins, F, start=g0, stop=16 * cb - 6, budget=OPT.get("pbud", 5.5)); assert not left, len(left)
    F = Asm(); cs_finish(F); F.extend(FS.ins[k:])
    ins, left = weave32(ins, F, start=16 * cb - 5, stop=32 * SG - 6, budget=OPT.get("pbud", 5.5)); assert not left
    F = Asm()
    stats_frag(F, 1)
    for t in range(8): corr_frag(F, CR + 4 * t, 1 + (t & 1))
    for sl, d in enumerate((sPKO, sPKD, sPX0, sPX1)):
        pinfo(F, sl, d, sF0)
        if sl == 0: F(f"s_mov_b32 s{sQF}, s{sF0}"); F(f"s_mul_i32 s{sF0}, s{sF0}, {74*1024}")
        F(f"s_lshl_b32 s{d}, s{d}, 11"); F(f"s_add_u32 s{d}, s{d}, s{sACT}")
        if sl == 0: F(f"s_add_u32 s{d}, s{d}, s{sF0}")
    ins, left = weave32(ins, F, start=32 * (S1 + 1) - 4, budget=5.5)
    A.extend(ins)
    pt(A, "p1end")
    A.extend(left)
    for t in range(8):
        A(f"v_mfma_f32_32x32x16_bf16 {v(ACC+16*t,16)}, {v(CR+4*t,4)}, {v(vCB,4)}, {v(ACC+16*t,16)}")
    poll_addr(A, "grp", 1, 2)
    p2_addr_early(A)
    def mslot(A, sl, so, tag):
        for t in range(2):
            for p in range(2):
                mish_pk(A, ACC + 32 * sl + 16 * t + 8 * p, 8, MT)
                pair_store(A, ACC + 32 * sl, so, tag, t, p)
    A(f"s_cmp_eq_u32 s{sQF}, 1")
    A(f"s_cbranch_scc0 {L('noq')}")
    for t in range(2):
        for p in range(2):
            r = ACC + 16 * t + 8 * p
            for i in range(4): A(f"v_cvt_pk_bf16_f32 v{r+i}, v{r+2*i}, v{r+2*i+1}")
            pair_store(A, ACC, sPKO, "stA", t, p)
    emit(A, w2p_loads(0))
    A(f"s_branch {L('q9')}")
    A.label(L("noq"))
    F = Asm(); mslot(F, 0, sPKO, "stA")
    spread(A, F, w2p_loads(0), OPT.get("psp", 16))
    A.label(L("q9"))
    F = Asm(); mslot(F, 1, sPKD, "stA"); mslot(F, 2, sPX0, "fin")
    F.wait(vm="stA"); F.g("s_barrier"); signal(F, 2)
    spread(A, F, sum((w2p_loads(n) for n in range(1, 5)), []), OPT.get("psp", 16))
    pt(A, "p2end")
    poll_issue(A)
    A(f"s_cmp_lt_u32 s{sU}, 5")
    A(f"s_cbranch_scc1 {L('h3')}")
    emit(A, w2p_loads(5) + w2p_loads(6))
    A(f"s_branch {L('h9')}")
    A.label(L("h3"))
    F = Asm(); mslot(F, 3, sPX1, "fin")
    spread(A, F, w2p_loads(5) + w2p_loads(6), OPT.get("psp", 16))
    A.label(L("h9"))
    pt(A, "sig2")
    poll_check(A, C, 2)
    p2_first_loads(A)
    for n in range(7, 12): emit(A, w2p_loads(n))
    pt(A, "first")

def phase2(A, C):
    L = C.L
    A.label(L("tail"))
    def step(M, n, extra):
        for k in range(4):
            b = v(ACT + 16 * (n % 4) + 4 * k, 4) if n < 14 else a(aO + 16 * (n - 14) + 4 * k, 4)
            for nt in range(5):
                d = v(ACCO + 4 * (5 * k + nt), 4)
                M(f"v_mfma_f32_16x16x32_bf16 {d}, {a(slot(n)+4*nt,4)}, {b}, {'0' if n == 0 else d}")
                emit(M, extra.get(5 * k + nt, []))
            if n + 4 < 14 and (n + 4 < 7 or n > OPT.get("p1steps", 5)): emit(M, act_load(n + 4, k))
    def wext(n):
        e = {}
        if 1 <= n and n + 11 <= 18:
            lst = w2p_loads(n + 11)
            k = 0
            for x in lst:
                e.setdefault(1 + 4 * k, []).append(x)
                k += x[2]
        return e
    F = Asm()
    F("v_lshrrev_b32 v1, 4, v0"); F("v_and_b32 v2, 3, v0"); F("v_bfe_u32 v3, v0, 2, 2")
    F("v_mul_u32_u24 v4, 960, v1"); F(f"v_add_u32 v4, {PHI2}, v4")
    F("v_mul_u32_u24 v5, 1920, v1"); F(f"v_add_u32 v5, {KVI}, v5"); F(f"v_mov_b32 v6, {PZERO}")
    F("v_cmp_eq_u32 vcc, v1, v2"); F.g("v_cndmask_b32 v4, v6, v4, vcc"); F.g("v_cndmask_b32 v5, v6, v5, vcc")
    F(f"v_mad_u32_u24 v{vF1}, v3, 40, v4"); F(f"v_mad_u32_u24 v{vF2}, v3, 48, v5")
    F(f"v_mov_b32 v{QR+10}, 0"); F(f"v_mov_b32 v{QR+11}, 0")
    fb = [("a", 240), ("a", 244), ("a", 248), ("a", 252), ("v", 100), ("v", 104), ("v", 108)]
    def reg(n, off, cnt):
        k, r = fb[n % 7]
        return R(k, r + off, cnt)
    seq = [(st, ch) for st in range(3) for ch in range(5)]
    def prd(n):
        st, ch = seq[n]
        for rho in range(2):
            F(f"ds_read_b64_tr_b16 {reg(n,2*rho,2)}, v{vF1} offset:{(8*st+4*rho)*40+ch*8}")
    for n in range(7): prd(n)
    head1 = len(F.ins)
    for n in range(15):
        st, ch = seq[n]
        d = v(PA2 + 4 * ch, 4)
        F(f"v_mfma_f32_16x16x32_bf16 {d}, {reg(n,0,4)}, {v(QR+4*st,4)}, {'0' if st == 0 else d}")
        if n + 7 < 15: prd(n + 7)
    F(f"v_rsq_f32 v{ST2}, v{ST2+1}")
    poll_addr(F, "kv", 1, 2)
    F(f"v_mul_f32 v{ST2}, {hex(LOG2E)}, v{ST2}")
    for j in range(4):
        F(f"v_add_u32 v1, {256*j}, v{vTID}"); F("v_mul_u32_u24 v2, 10923, v1"); F("v_lshrrev_b32 v2, 16, v2")
        F("v_mul_u32_u24 v3, 6, v2"); F("v_sub_u32 v3, v1, v3"); F("v_lshlrev_b32 v2, 7, v2")
        F(f"v_lshl_add_u32 v{vKA+j}, v3, 4, v2")
    softmax_pair(F, PA2, PK2, PA2, PK2, ST2, 1)
    poll_issue(F)
    P1 = OPT.get("p1steps", 5)
    M = Asm()
    for n in range(P1):
        step(M, n, wext(n))
        if n == 1:
            M.wait(vm="fin"); M("s_barrier"); signal(M, 3)
    A.extend(F.ins[:head1])
    tot = sum((2 if x.cls == "mfma" else x.cost) for x in F.ins[head1:])
    ins, left = weave(M, F.ins[head1:], per=tot / (20 * P1 - 4) + 0.05, start=2)
    A.extend(ins); A.extend(left)
    pt(A, "part1")
    poll_check(A, C, 3)
    A(f"s_mul_i32 s{sP0}, s{sC}, 20480"); A(f"s_add_u32 s{sP0}, s{sP0}, {KV_OFF}")
    for j in range(4):
        A(f"buffer_load_dwordx4 {v(KVR+4*j,4)}, v{vKA+j}, {srdr(SWS)}, s{sP0} offen sc1")
    F = Asm()
    poll_addr(F, "grp", 1, 2)
    F(f"s_lshr_b32 s{sT0}, s{sC}, 1"); F(f"s_mul_i32 s{sT0}, s{sT0}, 5"); F(f"s_add_u32 s{sT0}, s{sT0}, 54"); F(f"s_lshl_b32 s{sT0}, s{sT0}, 10")
    F(f"s_mul_i32 s{sT1}, s{sWAVE}, {ACT_BLK}"); F(f"s_add_u32 s{sT0}, s{sT0}, s{sT1}"); F(f"s_add_u32 s{sT0}, s{sT0}, s{sAB}")
    F(f"s_and_b32 s{sT1}, s{sC}, 1"); F(f"s_lshl_b32 s{sT2}, s{sT1}, 11"); F(f"s_add_u32 s{sT2}, s{sT2}, s{sT0}")
    F(f"s_lshl_b32 s{sT1}, s{sT1}, 9"); F(f"s_add_u32 s{sT1}, s{sT1}, s{sT0}"); F(f"s_add_u32 s{sT1}, s{sT1}, 4096")
    F("v_lshrrev_b32 v3, 5, v0"); F("v_lshlrev_b32 v3, 8, v3"); F("v_and_b32 v4, 15, v0"); F("v_lshl_add_u32 v3, v4, 4, v3")
    F("v_bfe_u32 v4, v0, 4, 1"); F(f"v_lshl_add_u32 v{vOA}, v4, 3, v3")
    poll_issue(F)
    F(f"v_lshlrev_b32 v2, 3, v{vTID}"); F(f"v_add_u32 v2, {KVI}, v2")
    n0 = P1
    M = Asm(); step(M, n0, wext(n0))
    ins, left = weave(M, F, per=2); A.extend(ins); A.extend(left)
    for j in range(4):
        A(f"v_cvt_pk_bf16_f32 v{KVR+4*j}, v{KVR+4*j}, v{KVR+4*j+1}")
        A(f"v_cvt_pk_bf16_f32 v{KVR+4*j+1}, v{KVR+4*j+2}, v{KVR+4*j+3}")
        A(f"ds_write_b64 v2, {v(KVR+4*j,2)} offset:{2048*j}")
    A.wait(lgkm="all")
    A("s_barrier")
    poll_check(A, C, 3)
    for m in range(7, n0 + 5):
        for k in range(4): emit(A, act_load(m, k))
    F = Asm()
    seq2 = [(st, ch) for st in range(5) for ch in range(6)]
    def krd(n):
        st, ch = seq2[n]
        for rho in range(2):
            F(f"ds_read_b64_tr_b16 {reg(n,2*rho,2)}, v{vF2} offset:{(8*st+4*rho)*48+ch*8}")
    for n in range(7): krd(n)
    for n in range(30):
        st, ch = seq2[n]
        d = v(NU + 4 * ch, 4)
        F(f"v_mfma_f32_16x16x32_bf16 {d}, {reg(n,0,4)}, {v(PK2+4*st,4)}, {'0' if st == 0 else d}")
        if n + 7 < 30: krd(n + 7)
    F(f"v_add_f32 v1, 0x358637bd, v{NU+20}"); F("v_rcp_f32 v1, v1"); F(f"v_mul_f32 v1, {hex(LOG2E)}, v1")
    for i in range(10):
        F(f"v_mul_f32 v{NU+2*i}, v{NU+2*i}, v1"); F(f"v_mul_f32 v{NU+2*i+1}, v{NU+2*i+1}, v1")
        F(f"v_cvt_pk_bf16_f32 v{NU+i}, v{NU+2*i}, v{NU+2*i+1}")
    F(f"buffer_store_dwordx4 {v(NU,4)}, v{vW}, {srdr(SWS)}, s{sT2} offen sc1", "ost")
    F(f"buffer_store_dwordx4 {v(NU+4,4)}, v{vW}, {srdr(SWS)}, s{sT2} offen offset:1024 sc1", "ost")
    F(f"buffer_store_dwordx2 {v(NU+8,2)}, v{vOA}, {srdr(SWS)}, s{sT1} offen sc1", "ost")
    M = Asm()
    P2 = OPT.get("p2steps", 1)
    for n in range(n0 + 1, n0 + 1 + P2): step(M, n, wext(n))
    tot = sum((2 if x.cls == "mfma" else x.cost) for x in F.ins)
    ins, left = weave(M, F, per=tot / (20 * P2) + 0.05); A.extend(ins); A.extend(left)
    pt(A, "part2")
    n1 = n0 + 1 + P2
    F = Asm()
    poll_addr(F, "o", 1, 2)
    F("v_and_b32 v1, 15, v0"); F(f"s_lshl_b32 s{sT0}, s{sWAVE}, 4"); F(f"v_add_u32 v1, s{sT0}, v1"); F("v_mul_u32_u24 v1, 1280, v1")
    F("v_lshrrev_b32 v2, 4, v0"); F(f"v_lshl_add_u32 v{vXO}, v2, 4, v1"); F(f"v_lshl_add_u32 v{vXO+1}, v2, 3, v1")
    F(f"s_mul_i32 s{sXO}, s{sR}, {64*1280}"); F(f"s_mul_i32 s{sT0}, s{sC}, 160"); F(f"s_add_u32 s{sXO}, s{sXO}, s{sT0}")
    for k in range(1, 4):
        F(f"s_add_u32 s{sT0}, s{sWAVE}, {k}"); F(f"s_and_b32 s{sT0}, s{sT0}, 3"); F(f"s_mul_i32 s{sT0}, s{sT0}, 15360")
        F(f"s_add_u32 s{sT0}, s{sT0}, {RED + (k-1)*5120}"); F(f"v_add_u32 v{vRW+k-1}, s{sT0}, v{vW}")
    F(f"s_mul_i32 s{sT0}, s{sWAVE}, 15360"); F(f"v_add_u32 v{vRR}, s{sT0}, v{vW}")
    F(f"buffer_load_dwordx4 {v(XRS,4)}, v{vXO}, {srdr(SX)}, s{sXO} offen")
    F(f"buffer_load_dwordx4 {v(XRS+4,4)}, v{vXO}, {srdr(SX)}, s{sXO} offen offset:64")
    F(f"buffer_load_dwordx2 {v(XRS+8,2)}, v{vXO+1}, {srdr(SX)}, s{sXO} offen offset:128")
    M = Asm()
    SIG = n1 + OPT.get("osig", 1); POLL = OPT.get("opoll", 12)
    for n in range(n1, 14):
        step(M, n, wext(n))
        if n == SIG:
            M.wait(vm="ost"); M("s_barrier"); signal(M, 4)
        if n == POLL - 1: poll_issue(M)
        if n == POLL:
            poll_check(M, C, 4)
            M(f"s_mul_i32 s{sA}, s{sWAVE}, 5120"); M(f"s_add_u32 s{sA}, s{sA}, s{sAB}"); M(f"s_add_u32 s{sA}, s{sA}, {54*1024}")
            M(f"s_add_u32 s{sP1}, s{sA}, 4096")
            for i in range(5):
                for k in range(4):
                    M(f"buffer_load_dwordx4 {a(aO+16*i+4*k,4)}, v{vA+k}, {srdr(SWS)}, s{sA if i < 4 else sP1} offen offset:{1024*(i&3)} sc1")
    ins, left = weave(M, F, per=2); A.extend(ins); assert not left
    pt(A, "s13")
    for n in range(14, 18): step(A, n, {})
    n = 18
    order = [1, 2, 3, 0]
    for idx, k in enumerate(order):
        for nt in range(5):
            d = v(ACCO + 4 * (5 * k + nt), 4)
            A(f"v_mfma_f32_16x16x32_bf16 {d}, {a(slot(n)+4*nt,4)}, {a(aO+64+4*k,4)}, {d}")
            if idx >= 2 or (idx == 1 and nt >= 2):
                j = 5 * (idx - 1) + nt - 2
                kk = order[j // 5]
                A(f"ds_write_b128 v{vRW+kk-1}, {v(ACCO+4*(5*kk+j%5),4)} offset:{1024*(j%5)}")
    for j in range(13, 15):
        A(f"ds_write_b128 v{vRW+2}, {v(ACCO+4*(15+j%5),4)} offset:{1024*(j%5)}")
    XF = 100
    A(f"s_mov_b32 s{sT0}, {hex(LN2)}"); A(f"s_mov_b32 s{sT0+1}, {hex(LN2)}")
    for i in range(10):
        A(f"v_lshlrev_b32 v{44+2*i}, 16, v{XRS+i}"); A(f"v_and_b32 v{45+2*i}, 0xffff0000, v{XRS+i}")
    A.wait(lgkm="all")
    A("s_barrier")
    pt(A, "red")
    for nt in range(5):
        for sl in range(3):
            A(f"ds_read_b128 {v(ACT+12*nt+4*sl,4)}, v{vRR} offset:{sl*5120+nt*1024}")
    for nt in range(5):
        b = ACT + 12 * nt; o = ACCO + 4 * nt
        for h in range(2):
            A(f"v_pk_add_f32 {v(o+2*h,2)}, {v(o+2*h,2)}, {v(b+2*h,2)}")
            A(f"v_pk_add_f32 {v(b+4+2*h,2)}, {v(b+4+2*h,2)}, {v(b+8+2*h,2)}")
        for h in range(2):
            A(f"v_pk_add_f32 {v(o+2*h,2)}, {v(o+2*h,2)}, {v(b+4+2*h,2)}")
        for h in range(2):
            A(f"v_pk_fma_f32 {v(o+2*h,2)}, {v(o+2*h,2)}, s[{sT0}:{sT0+1}], {v(44+4*nt+2*h,2)}")
        for h in range(2):
            A(f"v_cvt_pk_bf16_f32 v{64+2*nt+h}, v{o+2*h}, v{o+2*h+1}")
        if nt == 1: A(f"buffer_store_dwordx4 {v(64,4)}, v{vXO}, {srdr(SOUT)}, s{sXO} offen")
        if nt == 3: A(f"buffer_store_dwordx4 {v(68,4)}, v{vXO}, {srdr(SOUT)}, s{sXO} offen offset:64")
        if nt == 4: A(f"buffer_store_dwordx2 {v(72,2)}, v{vXO+1}, {srdr(SOUT)}, s{sXO} offen offset:128")
    A(f"s_add_u32 s{sP0}, s{sE}, 16"); A(f"v_mov_b32 v1, s{sP0}")
    A(f"s_cmp_eq_u32 s2, 0"); A(f"s_cselect_b32 s{sP1}, 0, {hex(OOB)}")
    A(f"v_subrev_u32 v2, {FLG_OFF}, v{vFL}")
    A(f"buffer_store_dword v1, v2, {srdr(SWS)}, s{sP1} offen sc1")
    prof_flush(A, 0, SWS, sWAVE)

OPT = {}
DEFST = ["pro", "c0", "p1end", "p2end", "sig2", "first", "part1", "part2", "s13", "red"]
def pt(A, name):
    L = OPT.get("stamps", DEFST)
    if name in L: stamp(A, 2 + L.index(name))

def gen(name=MAIN, **opt):
    OPT.clear(); OPT.update(opt)
    C = Ctx("f")
    A = Asm()
    prologue(A, C)
    role_kv(A, C)
    role_p(A, C)
    phase2(A, C)
    A("s_endpgm")
    A.extend(C.spins)
    A.label(C.L("end"))
    A("s_endpgm")
    return dict(name=name, ins=render(finalize(A)), grid=256, block=256, lds=LDSZ, vgpr=512, accum=256)

if __name__ == "__main__":
    for P in range(320): assert (P * 3277) >> 16 == P // 20 and (P * 6554) >> 16 == P // 10
    for P in range(20): assert (P * 13108) >> 16 == P // 5 and (P * 52) >> 8 == P // 5
    for P in range(1024): assert (P * 10923) >> 16 == P // 6
    open("g_test.s", "w").write(build_file([gen()]))
    PROF["on"] = True
    st = sys.argv[1].split(",") if len(sys.argv) > 1 and sys.argv[1] != "-" else DEFST
    if st == ["C"]: st = [f"c{i}" for i in range(10)]
    opt = eval("dict(" + sys.argv[2] + ")") if len(sys.argv) > 2 else {}
    open(sys.argv[3] if len(sys.argv) > 3 else "g_prof.s", "w").write(build_file([gen(stamps=st, **opt)]))
    if len(sys.argv) > 4:
        PROF["on"] = False
        open(sys.argv[4], "w").write(build_file([gen(**opt)]))
```

```python
from common import *
import common, sys

E_OFF = 0; FLG_OFF = 0x1000; W2P_OFF = 0x20000; ACT_OFF = 0x320000; ACT_BLK = 94 * 1024
KV_OFF = 0xEE0000; ST_OFF = 0xF20000; CS_OFF = 0xF30000
KVH = 3840; KVC = 32 * KVH
common.PROF_OFF = 0xF80000
XW = 13312; WR = 4 * XW; XR = 86016; SPARE = 151552
HS = 16384
PHI2 = SPARE; PZERO = SPARE + 3840; PHI1 = SPARE + 5760; PKX = SPARE + 5760; CSR = SPARE + 10880
PHIK = XR; VIM = XR + 40960; KVI = XR; RED = 0
LDSZ = 163840
sWAVE = 3
SX, SWA, SWB, SWS, SB1, SPH, SOUT, SPK, SCS = 24, 28, 32, 36, 40, 44, 48, 52, 56
sM, sU, sR, sC, sE, sXO, sXM, sWB = 60, 61, 62, 63, 64, 65, 66, 67
sT0, sT1, sT2, sT3 = 68, 69, 70, 71
sWO, sWS, sACT, sA, sW, sAB = 4, 5, 6, 7, 8, 9
sEX = 10
sPKO, sPKD, sQF, sCS3, sB3, sACT3, sP0, sP1 = 12, 13, 14, 15, 16, 17, 18, 19
sPC = 100
sX1, sXD = 20, 21
sWT = 22; sPV = 23
sF0, sF1 = 0, 1
sSTO, sCSO, sCSP, sPX0, sPX1, sWQ, sCSL = 7, 9, 15, 16, 17, 12, 22
vTID, vFL, vPOLL, vPA, vW = 8, 9, 10, 11, 12
vPT = 14
vXD = 16; vXRD = 20
vAD = 24; vPD = 29; vAR = 34; vPR = 36
vP1 = 24; vPX = 28; vPRP = 32; vCSA = 36
vSA = 15; vCL = 54
vAST = 44; vS1 = 45; vRS = 46; vCP = 47; vCB = 48; vST = 52; vEP = 55
vQC = 56
aX = 224; aW = 160; aF = 240

def srdr(n): return f"s[{n}:{n+3}]"
def slot(n): return 20 * ((n + 10) % 12)

def csel(A, dst, x, y):
    A(f"s_mov_b32 s{dst}, {y}"); A(f"s_cselect_b32 s{dst}, {x}, s{dst}")

class Ctx:
    def __init__(self, name):
        self.name = name; self.spins = Asm(); self.n = 0
    def L(self, x): return f"{self.name}_{x}"

def signal(A, level):
    A(f"s_add_u32 s{sP0}, s{sE}, {level}")
    A(f"v_mov_b32 v{vPT}, s{sP0}")
    A(f"buffer_store_dword v{vPT}, v{vFL}, {srdr(SWS)}, 0 offen sc1", "flag")

def poll_issue(A):
    A(f"buffer_load_dword v{vPOLL}, v{vPA}, {srdr(SWS)}, 0 offen sc1", "poll")

def poll_check(A, C, level):
    C.n += 1
    k = C.n
    A(f"s_add_u32 s{sP0}, s{sE}, {level}")
    A.g(f"v_subrev_u32 v{vPT}, s{sP0}, v{vPOLL}")
    A.g(f"v_cmp_gt_u32_e64 s[{sPC}:{sPC+1}], 8, v{vPT}")
    A.g(f"s_cmp_eq_u64 s[{sPC}:{sPC+1}], -1")
    A.g(f"s_cbranch_scc0 {C.L(f'spin{k}')}")
    A.label(C.L(f"back{k}")); A.ins[-1].glue = True
    S = C.spins
    S.label(C.L(f"spin{k}"))
    S(f"s_mov_b32 s{sP1}, 0")
    S.label(C.L(f"loop{k}"))
    poll_issue(S)
    S(f"s_add_u32 s{sP1}, s{sP1}, 1")
    S(f"s_cmp_gt_u32 s{sP1}, 0x8000")
    S(f"s_cbranch_scc1 {C.L(f'back{k}')}")
    S(f"v_subrev_u32 v{vPT}, s{sP0}, v{vPOLL}")
    S(f"v_cmp_gt_u32_e64 s[{sPC}:{sPC+1}], 8, v{vPT}")
    S(f"s_cmp_eq_u64 s[{sPC}:{sPC+1}], -1")
    S(f"s_cbranch_scc0 {C.L(f'loop{k}')}")
    S(f"s_branch {C.L(f'back{k}')}")

def poll_addr(A, kind, t0, t1):
    if kind == "all":
        A(f"v_and_b32 v{vPA}, 127, v{vTID}"); A(f"v_lshlrev_b32 v{vPA}, 8, v{vPA}")
        A(f"v_add_u32 v{vPA}, {FLG_OFF + 128*256}, v{vPA}")
        return
    if kind == "grp":
        A(f"s_lshr_b32 s{sF0}, s{sR}, 4"); A(f"s_lshl_b32 s{sF0}, s{sF0}, 2")
        A(f"s_bfe_u32 s{sF1}, s{sR}, 0x30001"); A(f"s_lshl_b32 s{sF1}, s{sF1}, 3")
        A(f"v_bfe_u32 v{t0}, v0, 2, 2"); A(f"v_and_b32 v{t1}, 3, v0")
        A(f"v_lshl_add_u32 v{t0}, v{t0}, 6, v{t1}")
    elif kind in ("pgrp", "q"):
        A(f"s_lshr_b32 s{sF0}, s{sR}, 4"); A(f"s_lshl_b32 s{sF0}, s{sF0}, 2")
        A(f"s_bfe_u32 s{sF1}, s{sR}, 0x30001"); A(f"s_lshl_b32 s{sF1}, s{sF1}, 3")
        A(f"s_add_u32 s{sF0}, s{sF0}, s{sF1}")
        if kind == "pgrp":
            A(f"s_mov_b32 s{sF1}, 128")
            A(f"v_bfe_u32 v{t0}, v0, 2, 1"); A(f"v_and_b32 v{t1}, 3, v0")
        else:
            A(f"s_mul_i32 s{sF1}, s{sC}, 5"); A(f"s_lshr_b32 s{sF1}, s{sF1}, 2")
            A(f"v_and_b32 v{t0}, 1, v0"); A(f"v_add_u32 v{t0}, s{sF1}, v{t0}")
            A(f"v_lshrrev_b32 v{vPA}, 3, v{t0}"); A(f"v_bfe_u32 v{t1}, v{t0}, 1, 2"); A(f"v_and_b32 v{t0}, 1, v{t0}")
            A(f"v_lshl_add_u32 v{t0}, v{vPA}, 1, v{t0}")
            A(f"s_mov_b32 s{sF1}, 0")
        A(f"v_lshl_add_u32 v{t0}, v{t0}, 6, v{t1}")
    elif kind == "kvp":
        A(f"s_and_b32 s{sF0}, s{sC}, 1"); A(f"s_lshl_b32 s{sF0}, s{sF0}, 6")
        A(f"s_lshr_b32 s{sF1}, s{sC}, 1")
        A(f"s_add_u32 s{sF0}, s{sF0}, s{sF1}"); A(f"s_lshl_b32 s{sF0}, s{sF0}, 8"); A(f"s_add_u32 s{sF0}, s{sF0}, {FLG_OFF}")
        A(f"v_and_b32 v{t0}, 15, v0")
        A(f"v_lshl_add_u32 v{t0}, v{t0}, 10, s{sF0}")
        A("v_cmp_gt_u32 vcc, 32, v0"); A.g(f"v_cndmask_b32 v{vPA}, v{vPA}, v{t0}, vcc")
        return
    elif kind == "o":
        A(f"s_and_b32 s{sF0}, s{sR}, 7"); A(f"s_lshl_b32 s{sF0}, s{sF0}, 5")
        A(f"s_lshr_b32 s{sF1}, s{sR}, 3"); A(f"s_lshl_b32 s{sF1}, s{sF1}, 1")
        A(f"v_bfe_u32 v{t0}, v0, 1, 2"); A(f"v_and_b32 v{t1}, 1, v0")
        A(f"v_lshl_add_u32 v{t0}, v{t0}, 3, v{t1}")
    A(f"s_add_u32 s{sF0}, s{sF0}, s{sF1}")
    A(f"s_lshl_b32 s{sF0}, s{sF0}, 8")
    A(f"s_add_u32 s{sF0}, s{sF0}, {FLG_OFF}")
    A(f"v_lshl_add_u32 v{vPA}, v{t0}, 8, s{sF0}")

def x_dma(j):
    if j >= 10 or (OPT.get("nodma") and j >= 2): return []
    o = [(f"s_add_u32 m0, s{sXM}, {(j % 3) * 4096}", None, 0), (f"s_add_u32 s{sXD}, s{sXO}, {0 if OPT.get('samedma') else j*128}", None, 0)]
    for i in range(4):
        o.append((f"buffer_load_dwordx4 v{vXD+i}, {srdr(SX)}, s{sXD} offen offset:{1024*i} lds", f"x{j}", 1))
    return o

def kv_dma(h):
    if h >= 20 or (OPT.get("nodma") and h >= 4): return []
    o = [(f"s_mov_b32 s{sWO}, {0 if OPT.get('samedma') else h*32*3840}", None, 0), (f"s_add_u32 m0, s{sWB}, {(h % 6) * HS}", None, 0)]
    for i in range(3):
        o.append((f"buffer_load_dwordx4 v{vAD+i}, {srdr(SWA)}, s{sWO} offen offset:{1024*i} lds", f"w{h}", 1))
    o.append((f"s_add_u32 m0, s{sWQ}, {(h % 6) * HS}", None, 0))
    o.append((f"buffer_load_dwordx4 v{vPD}, {srdr(SWA)}, s{sWO} offen lds", f"w{h}", 1))
    return o

def p_dma(h):
    if h >= 20 or (OPT.get("nodma") and h >= 4): return []
    o = [(f"s_add_u32 m0, s{sWB}, {(h % 6) * HS}", None, 0)]
    if h and not OPT.get("samedma"): o.append((f"s_add_u32 s{sWO}, s{sWO}, s{sWS}", None, 0))
    for i in range(4):
        o.append((f"buffer_load_dwordx4 v{vP1+i}, {srdr(SWA)}, s{sWO} offen offset:{1024*i} lds", f"w{h}", 1))
    return o

def w2p_loads(n):
    o = []
    so = sWT
    if n == 0: so = sW
    elif n == 13: so = sX1
    elif n == 14: so = sPV
    elif n < 13: o.append((f"s_add_u32 s{sWT}, s{sW}, {20480*n}", None, 0))
    else: o.append((f"s_add_u32 s{sWT}, s{sPV}, {5120*(n-14)}", None, 0))
    for nt in range(5):
        o.append((f"buffer_load_dwordx4 {a(slot(n)+4*nt,4)}, v{vW+(nt>>2)}, {srdr(SWS)}, s{so} offen offset:{1024*(nt&3)} sc1", f"W2{n}", 1))
    return o
def wl(*ns): return sum((w2p_loads(n) for n in ns), [])

def emit1(A, e):
    if e[0].startswith("WAIT:"):
        _, k, t = e[0].split(":")
        A.wait(**{k: t})
    elif len(e) > 3 and e[3]: A.g(e[0], e[1])
    else: A(e[0], e[1])

def emit(A, lst):
    for e in lst: emit1(A, e)

class DQ:
    def __init__(self): self.q = []; self.gap = 0
    def add(self, lst, front=False):
        if front:
            k = 0
            while k < len(self.q) and self.q[k][2] == 0: k += 1
            while k < len(self.q) and not (self.q[k][2] == 0 and "m0, m0" not in self.q[k][0] and "m0, m0" not in self.q[k-1][0]
                                           and "exec" not in self.q[k][0]): k += 1
            self.q[k:k] = list(lst)
        else: self.q += list(lst)
    def pop(self, A, n=1, ahead=True):
        while self.q and n > 0.01:
            e = self.q.pop(0)
            emit1(A, e); n -= e[2]
        while self.q and self.q[0][2] == 0 and self.q[0][0].startswith("s_") and (ahead or "exec" in self.q[0][0]) \
                and not self.q[0][0].startswith("s_mov_b64 exec, s"):
            emit1(A, self.q.pop(0))
    def count(self): return sum(e[2] for e in self.q)

def spread(A, code, lst, every, first=0):
    dq = DQ(); dq.add(lst)
    n = first
    scc_live = False
    for x in code.ins:
        if n >= every and dq.q and not x.glue and not (x.op.startswith(("s_cselect", "s_cbranch_scc", "s_addc")) or scc_live):
            dq.pop(A, 1); n = 0
        A.ins.append(x)
        if x.op.startswith("s_cmp"): scc_live = True
        elif x.cls == "salu" and not x.op.startswith(("s_cselect", "s_mov", "s_mul_i32")) : scc_live = False
        elif x.cls != "salu": scc_live = False if not scc_live else scc_live
        n += 1
    dq.pop(A, 99)

def gemm_steps(A, steps, D, dq, pre_barrier=None, post_barrier=None, every=2):
    n = len(steps)
    late = []
    for s in range(n + 1):
        rd = []
        bar = None
        if s < n:
            st = steps[s]
            if st["chunk"] is not None:
                def bar(st=st):
                    if pre_barrier and st["xj"] is not None: pre_barrier(A, st["xj"])
                    tags = [f"w{st['chunk']}"]
                    if st["xj"] is not None: tags.append(f"x{st['xj']}")
                    tags += st.get("tags", [])
                    nf = 0
                    while any(e[1] in tags for e in dq.q): dq.pop(A, 1); nf += 1
                    if nf and OPT.get("verbose"): print("forced", nf, "before chunk", st["chunk"])
                    A.wait(vm=tags, lgkm="all")
                    A("s_barrier")
                    if post_barrier and st["xj"] is not None: post_barrier(A, st["xj"], dq)
                    dq.add(st.get("queue", []))
            rd = [(t, f"r{s}_{i // (2 * OPT.get('wgrp', 2))}") for i, t in enumerate(st["reads"])]
            if st["xj"] is not None:
                j = st["xj"]
                xr = [(f"ds_read_b128 {a(aX + 16*(j&1) + 4*q, 4)}, v{vXRD+q} offset:{(j % 3) * 4096}", "xr") for q in range(4)]
                rd = xr[:1] + rd + xr[1:2]
                late = xr[2:]
            else:
                rd = rd + late; late = []
                if not bar: dq.add(st.get("queue", []))
        if s == 0:
            bar()
            for t, tag in rd: A(t, tag)
            continue
        m = steps[s - 1]
        nt = m["nt"]
        bd = OPT.get("bdelay", 3) if bar else 0
        if bar and bd == 0: bar()
        for t in range(nt):
            acc = m["acc"][t]
            cin = "0" if m["first"] else v(acc, 16)
            if t % OPT.get("wgrp", 2) == 0: A.wait(lgkm=f"r{s-1}_{t // OPT.get('wgrp', 2)}")
            A(f"v_mfma_f32_32x32x16_bf16 {v(acc,16)}, {a(m['frag']+4*t,4)}, {a(m['xreg'],4)}, {cin}")
            if bar and t == bd - 1: bar()
            if t >= bd - 1:
                per = -(-len(rd) // (nt - t))
                take = rd[:per]; rd = rd[per:]
                for tx, tag in take: A(tx, tag)
            dq.gap += 1
            ev = every[min((s - 1) // 4, len(every) - 1)] if isinstance(every, (list, tuple)) else every
            if dq.q and dq.gap >= ev - 0.01:
                dq.pop(A, 1); dq.gap = min(dq.gap - ev, 0.99)

def corr_frag(A, raw, tmp):
    A(f"v_add_f32 v{tmp}, v{raw}, v{raw+2}")
    A(f"v_lshrrev_b32 v{raw+2}, 16, v{raw+1}")
    A(f"v_cvt_pk_bf16_f32 v{raw}, v{tmp}, v{tmp}")
    A(f"v_and_b32 v{raw+3}, 0xffff0000, v{raw}")
    A(f"v_sub_f32 v{tmp}, v{tmp}, v{raw+3}")
    A(f"v_mov_b32 v{raw+3}, 0")
    A(f"v_cvt_pk_bf16_f32 v{raw+1}, v{tmp}, v{raw+1}")

def stats_frag(A, t):
    m, ve = vST, vST + 1
    A(f"v_rsq_f32 v{vRS}, v{ve}")
    A(f"v_sub_f32 v{t}, 0, v{m}")
    A(f"v_mul_f32 v{t+1}, v{ve}, v{vRS}")
    A(f"v_mul_f32 v{vS1}, {hex(LOG2E)}, v{vRS}")
    A(f"v_cvt_pk_bf16_f32 v{vCB+1}, v{t}, v{t+1}")
    A(f"v_lshlrev_b32 v{t+2}, 16, v{vCB+1}")
    A(f"v_and_b32 v{t+3}, 0xffff0000, v{vCB+1}")
    A(f"v_sub_f32 v{t+2}, v{t}, v{t+2}")
    A(f"v_sub_f32 v{t+3}, v{t+1}, v{t+3}")
    A(f"v_cvt_pk_bf16_f32 v{vCB}, v{t}, v{t+2}")
    A(f"v_cvt_pk_bf16_f32 v{vCB+2}, v{t+3}, 0")
    A(f"v_mov_b32 v{vCB+3}, 0")
    A(f"v_cmp_gt_u32 vcc, 32, v0")
    for i in range(3):
        A.g(f"v_cndmask_b32 v{vCB+i}, 0, v{vCB+i}, vcc")

def mish(A, acc, n, e, G=4):
    for g0 in range(0, n, G):
        t = acc + g0
        for i in range(G): A(f"v_mul_f32 v{t+i}, v{t+i}, v{vS1}")
        for i in range(G): A(f"v_exp_f32 v{e+i}, v{t+i}")
        for i in range(G): A(f"v_fma_f32 v{e+G+i}, v{e+i}, 0.5, 1.0")
        for i in range(G): A(f"v_fma_f32 v{e+i}, v{e+i}, v{e+G+i}, 1.0")
        for i in range(G): A(f"v_rcp_f32 v{e+i}, v{e+i}")
        for i in range(G): A(f"v_fma_f32 v{e+i}, -v{t+i}, v{e+i}, v{t+i}")
        o = acc + (g0 & ~7) + (g0 & 7) // 2
        for i in range(0, G, 2): A(f"v_cvt_pk_bf16_f32 v{o+i//2}, v{e+i}, v{e+i+1}")

def mish_pk(A, acc, n, e):
    G = 8
    s1 = f"v[{vS1-1}:{vS1}]"
    for g0 in range(0, n, G):
        t = acc + g0
        for i in range(0, G, 2): A(f"v_pk_mul_f32 {v(t+i,2)}, {v(t+i,2)}, {s1} op_sel:[0,1] op_sel_hi:[1,1]")
        for i in range(G): A(f"v_exp_f32 v{e+i}, v{t+i}")
        for i in range(0, G, 2): A(f"v_pk_fma_f32 {v(e+G+i,2)}, {v(e+i,2)}, 0.5, 1.0 op_sel_hi:[1,0,0]")
        for i in range(0, G, 2): A(f"v_pk_fma_f32 {v(e+i,2)}, {v(e+i,2)}, {v(e+G+i,2)}, 1.0 op_sel_hi:[1,1,0]")
        for i in range(G): A(f"v_rcp_f32 v{e+i}, v{e+i}")
        for i in range(0, G, 2): A(f"v_pk_fma_f32 {v(e+i,2)}, {v(t+i,2)}, {v(e+i,2)}, {v(t+i,2)} neg_lo:[1,0,0] neg_hi:[1,0,0]")
        for i in range(0, G, 2): A(f"v_cvt_pk_bf16_f32 v{t+i//2}, v{e+i}, v{e+i+1}")

def pair_store(A, acc, soff, tag, t, p):
    A(f"buffer_store_dwordx4 {v(acc+16*t+8*p,4)}, v{vAST}, {srdr(SWS)}, s{soff} offen offset:{1024*t+512*p} sc1", tag)

def softmax_pair(A, p, EP, EN, PK, s1, t0):
    a0, a1 = t0, t0 + 1
    A(f"v_max3_f32 v{a0}, v{p}, v{p+1}, v{p+2}")
    A(f"v_min3_f32 v{a1}, v{p}, v{p+1}, v{p+2}")
    for i in range(3, 19, 2):
        A(f"v_max3_f32 v{a0}, v{a0}, v{p+i}, v{p+i+1}")
        A(f"v_min3_f32 v{a1}, v{a1}, v{p+i}, v{p+i+1}")
    A(f"v_max_f32 v{a0}, v{a0}, v{p+19}")
    A(f"v_min_f32 v{a1}, v{a1}, v{p+19}")
    A(f"v_mul_f32 v{a0}, v{a0}, v{s1}")
    A(f"v_mul_f32 v{a1}, v{a1}, v{s1}")
    for i in range(20):
        A(f"v_fma_f32 v{EP+i}, v{p+i}, v{s1}, -v{a0}")
        A(f"v_fma_f32 v{EN+i}, -v{p+i}, v{s1}, v{a1}")
        A(f"v_exp_f32 v{EP+i}, v{EP+i}")
        A(f"v_exp_f32 v{EN+i}, v{EN+i}")
    A(f"v_add_f32 v{a0}, v{EP}, v{EP+1}")
    A(f"v_add_f32 v{a1}, v{EN}, v{EN+1}")
    for i in range(2, 20):
        A(f"v_add_f32 v{a0}, v{a0}, v{EP+i}")
        A(f"v_add_f32 v{a1}, v{a1}, v{EN+i}")
    A(f"v_rcp_f32 v{a0}, v{a0}")
    A(f"v_rcp_f32 v{a1}, v{a1}")
    for i in range(10):
        A(f"v_mul_f32 v{EP+2*i}, v{EP+2*i}, v{a0}")
        A(f"v_mul_f32 v{EP+2*i+1}, v{EP+2*i+1}, v{a0}")
        A(f"v_cvt_pk_bf16_f32 v{PK+i}, v{EP+2*i}, v{EP+2*i+1}")
    for i in range(10):
        A(f"v_mul_f32 v{EN+2*i}, v{EN+2*i}, v{a1}")
        A(f"v_mul_f32 v{EN+2*i+1}, v{EN+2*i+1}, v{a1}")
        A(f"v_cvt_pk_bf16_f32 v{PK+10+i}, v{EN+2*i}, v{EN+2*i+1}")

def softmax_pair_pk(A, p, EP, EN, PK, s1, t0):
    a0, a1 = t0, t0 + 1
    sp = v(s1 & ~1, 2); sh = s1 & 1
    A(f"v_max3_f32 v{a0}, v{p}, v{p+1}, v{p+2}")
    A(f"v_min3_f32 v{a1}, v{p}, v{p+1}, v{p+2}")
    for i in range(3, 19, 2):
        A(f"v_max3_f32 v{a0}, v{a0}, v{p+i}, v{p+i+1}")
        A(f"v_min3_f32 v{a1}, v{a1}, v{p+i}, v{p+i+1}")
    A(f"v_max_f32 v{a0}, v{a0}, v{p+19}")
    A(f"v_min_f32 v{a1}, v{a1}, v{p+19}")
    A(f"v_mul_f32 v{a0}, v{a0}, v{s1}")
    A(f"v_mul_f32 v{a1}, v{a1}, v{s1}")
    ap = v(a0, 2)
    for i in range(0, 20, 2):
        A(f"v_pk_fma_f32 {v(EP+i,2)}, {v(p+i,2)}, {sp}, {ap} op_sel:[0,{sh},0] op_sel_hi:[1,{sh},0] neg_lo:[0,0,1] neg_hi:[0,0,1]")
        A(f"v_pk_fma_f32 {v(EN+i,2)}, {v(p+i,2)}, {sp}, {ap} op_sel:[0,{sh},1] op_sel_hi:[1,{sh},1] neg_lo:[1,0,0] neg_hi:[1,0,0]")
        for k in range(2):
            A(f"v_exp_f32 v{EP+i+k}, v{EP+i+k}")
        for k in range(2):
            A(f"v_exp_f32 v{EN+i+k}, v{EN+i+k}")
    sP, sN = v(t0 + 2, 2), v(t0 + 4, 2)
    A(f"v_pk_add_f32 {sP}, {v(EP,2)}, {v(EP+2,2)}")
    A(f"v_pk_add_f32 {sN}, {v(EN,2)}, {v(EN+2,2)}")
    for i in range(4, 20, 2):
        A(f"v_pk_add_f32 {sP}, {sP}, {v(EP+i,2)}")
        A(f"v_pk_add_f32 {sN}, {sN}, {v(EN+i,2)}")
    A(f"v_add_f32 v{a0}, v{t0+2}, v{t0+3}")
    A(f"v_add_f32 v{a1}, v{t0+4}, v{t0+5}")
    A(f"v_rcp_f32 v{a0}, v{a0}")
    A(f"v_rcp_f32 v{a1}, v{a1}")
    A("s_nop 0")
    for i in range(10):
        A(f"v_pk_mul_f32 {v(EP+2*i,2)}, {v(EP+2*i,2)}, {ap} op_sel:[0,0] op_sel_hi:[1,0]")
        if i: A(f"v_cvt_pk_bf16_f32 v{PK+i-1}, v{EP+2*i-2}, v{EP+2*i-1}")
    for i in range(10):
        A(f"v_pk_mul_f32 {v(EN+2*i,2)}, {v(EN+2*i,2)}, {ap} op_sel:[0,1] op_sel_hi:[1,1]")
        if i == 0: A(f"v_cvt_pk_bf16_f32 v{PK+9}, v{EP+18}, v{EP+19}")
        else: A(f"v_cvt_pk_bf16_f32 v{PK+10+i-1}, v{EN+2*i-2}, v{EN+2*i-1}")
    A(f"v_cvt_pk_bf16_f32 v{PK+19}, v{EN+18}, v{EN+19}")

def weave32(main, fill, **kw):
    main = list(main.ins if isinstance(main, Asm) else main)
    small = [x for x in main if x.cls == "mfma" and "16x16" in x.op]
    for x in small: x.cls = "mfma16"
    r = weave(main, fill, **kw)
    for x in small: x.cls = "mfma"
    return r

def common_lane(A):
    A("v_lshrrev_b32 v1, 5, v0")
    A("v_bfe_u32 v2, v0, 2, 2")
    A("v_and_b32 v3, 1, v0")
    A("v_bfe_u32 v4, v0, 1, 1")
    A("v_bfe_u32 v5, v0, 4, 1")
    A("v_lshl_add_u32 v4, v5, 1, v4")
    A("v_lshl_add_u32 v6, v1, 3, v2")

PRS = 64; PRC = 84; PRT = 124
vBI = 63; aPK = 0; aPH = 28

def wo_rows(A, t, b, qs, hi, t0, t1):
    A(f"s_mul_i32 s{t1}, s{t}, 52"); A(f"s_lshr_b32 s{t1}, s{t1}, 8")
    A(f"s_mul_i32 s{b}, s{t1}, 5"); A(f"s_sub_u32 s{t0}, s{t}, s{b}")
    A(f"s_mul_i32 s{b}, s{t1}, 160")
    A(f"s_lshr_b32 s{t1}, s{t0}, 1"); A(f"s_mul_i32 s{t1}, s{t1}, 80")
    A(f"s_and_b32 s{qs}, s{t0}, 1"); A(f"s_lshl_b32 s{qs}, s{qs}, 3"); A(f"s_add_u32 s{t1}, s{t1}, s{qs}")
    A(f"s_cmp_eq_u32 s{t0}, 4")
    A(f"s_cselect_b32 s{t1}, 16, s{t1}")
    A(f"s_cselect_b32 s{qs}, 40, 20")
    A(f"s_cselect_b32 s{hi}, 20, 4")
    A(f"s_add_u32 s{b}, s{b}, s{t1}")

def pack_addr(A, dst, qs, hi):
    A("v_mul_u32_u24 v2, 6554, v1"); A("v_lshrrev_b32 v2, 16, v2")
    A("v_mul_u32_u24 v3, 10, v2"); A("v_sub_u32 v3, v1, v3")
    A("v_lshrrev_b32 v4, 3, v2"); A(f"v_mul_u32_u24 v4, s{qs}, v4")
    A("v_bfe_u32 v5, v2, 2, 1"); A(f"v_mad_u32_u24 v4, v5, s{hi}, v4")
    A("v_and_b32 v5, 3, v2"); A("v_add_u32 v4, v4, v5")
    A("v_mul_u32_u24 v4, 1280, v4")
    A(f"v_lshl_add_u32 v{dst}, v3, 4, v4")

def pack_T(A, T, t):
    A(f"s_bfe_u32 s{T}, s2, 0x10006"); A(f"s_and_b32 s{t}, s2, 7"); A(f"s_lshl_b32 s{t}, s{t}, 1"); A(f"s_add_u32 s{T}, s{T}, s{t}")
    A(f"s_lshl_b32 s{t}, s{sWAVE}, 4"); A(f"s_add_u32 s{T}, s{T}, s{t}")

def cs_line(A, Lr, t0, t1):
    A(f"s_and_b32 s{t0}, s2, 3"); A(f"s_lshl_b32 s{t0}, s{t0}, 1"); A(f"s_bfe_u32 s{t1}, s2, 0x10003"); A(f"s_add_u32 s{t0}, s{t0}, s{t1}")
    A(f"s_bfe_u32 s{t1}, s2, 0x30004"); A(f"s_lshl_b32 s{Lr}, s{t1}, 3"); A(f"s_add_u32 s{Lr}, s{Lr}, s{t0}")
    A(f"s_cmp_lt_u32 s{Lr}, 2"); A(f"s_cselect_b32 s{t1}, 8, 28"); A(f"s_add_u32 s{Lr}, s{Lr}, s{t1}")
    A(f"s_bfe_u32 s{t1}, s2, 0x40003")
    A(f"s_cmp_ge_u32 s{t1}, 8"); A(f"s_cselect_b32 s{Lr}, s{t0}, s{Lr}")
    A(f"s_cmp_ge_u32 s{t1}, 13"); A(f"s_cselect_b32 s{t0}, 7, 0"); A(f"s_add_u32 s{t0}, s{t0}, s{t1}")
    A(f"s_cmp_ge_u32 s{t1}, 10"); A(f"s_cselect_b32 s{Lr}, s{t0}, s{Lr}")
    A(f"s_cselect_b32 s{t1}, 1, 0")
    A(f"s_bfe_u32 s{t0}, s2, 0x10001"); A(f"s_mul_i32 s{t0}, s{t0}, 5"); A(f"s_mul_i32 s{t0}, s{t0}, s{t1}"); A(f"s_add_u32 s{Lr}, s{Lr}, s{t0}")
    A(f"s_and_b32 s{t0}, s2, s{t1}"); A(f"s_mul_i32 s{t0}, s{t0}, 3"); A(f"s_add_u32 s{Lr}, s{Lr}, s{t0}")
    A(f"s_bfe_u32 s{t1}, s2, 0x40003"); A(f"s_lshl_b32 s{t1}, 1, s{t1}"); A(f"s_and_b32 s{t1}, s{t1}, 0x9000")
    A(f"s_mul_i32 s{t1}, s{t1}, s{t0}"); A(f"s_add_u32 s{Lr}, s{Lr}, s{t1}")
    A(f"s_min_u32 s{Lr}, s{Lr}, 63")

def pack_setup(A):
    T, b, qs, hi = sT0, sT1, sT2, sT3
    pack_T(A, T, b)
    A(f"s_bfe_u32 s{sPX0}, s2, 0x30003")
    A(f"s_mul_i32 s{sPX1}, s{sPX0}, 74"); A(f"s_add_u32 s{sPKD}, s{sPX1}, s{T}")
    A(f"s_mul_i32 s{sPKD}, s{sPKD}, 5120"); A(f"s_add_u32 s{sPKD}, s{sPKD}, {W2P_OFF}")
    A(f"s_sub_u32 s{sPKO}, s{T}, 54")
    wo_rows(A, sPKO, b, qs, hi, sP0, sP1)
    A(f"s_lshl_b32 s{sP1}, s{T}, 5")
    A(f"s_cmp_lt_u32 s{T}, 54")
    A(f"s_cselect_b32 s{b}, s{sP1}, s{b}")
    A(f"s_cselect_b32 s{qs}, 8, s{qs}")
    A(f"s_cselect_b32 s{hi}, 4, s{hi}")
    A(f"s_mul_i32 s{b}, s{b}, 1280")
    A(f"s_mul_i32 s{sPX0}, s{sPX0}, 160"); A(f"s_add_u32 s{sPKO}, s{sPX0}, s{b}")
    for i in range(5):
        A(f"v_add_u32 v1, {64*i}, v0")
        pack_addr(A, vQC + i, qs, hi)
        if 0 < i < 4: A(f"v_subrev_u32 v{vQC+i}, {1024*i}, v{vQC+i}")
    A(f"s_bfe_u32 s{T}, s2, 0x10006"); A(f"s_lshl_b32 s{T}, s{T}, 3"); A(f"s_and_b32 s{b}, s2, 7"); A(f"s_add_u32 s{T}, s{T}, s{b}")
    A(f"s_add_u32 s{T}, s{T}, 10")
    A(f"s_add_u32 s{sPX1}, s{sPX1}, s{T}"); A(f"s_add_u32 s{sPX1}, s{sPX1}, 54")
    A(f"s_mul_i32 s{sPX1}, s{sPX1}, 5120"); A(f"s_add_u32 s{sPX1}, s{sPX1}, {W2P_OFF}")
    wo_rows(A, T, b, qs, hi, sP0, sP1)
    A(f"s_mul_i32 s{b}, s{b}, 1280"); A(f"s_add_u32 s{sPX0}, s{sPX0}, s{b}")
    A(f"s_cmp_lt_u32 s{T}, 20")
    A(f"s_cselect_b32 s{sPX1}, s{sPX1}, {hex(OOB)}")
    A(f"s_cselect_b32 s{sPX0}, s{sPX0}, {hex(OOB)}")
    A(f"s_cmp_eq_u32 s{sWAVE}, 0")
    A(f"s_cselect_b64 s[{sEX}:{sEX+1}], -1, 0")
    A(f"s_lshl_b32 s{sP0}, s{sWAVE}, 6"); A(f"v_add_u32 v1, s{sP0}, v0")
    pack_addr(A, vPX, qs, hi)
    A("v_add_u32 v1, 256, v0")
    pack_addr(A, vPX + 1, qs, hi)

def pack_dma():
    o = [(f"s_add_u32 m0, s{sXM}, 8192", None, 0)]
    for i in range(4):
        o.append((f"buffer_load_dwordx4 v{vQC+i}, {srdr(SPK)}, s{sPKO} offen offset:{1024*i} lds", "pk", 1))
    o.append(("s_add_u32 m0, m0, 4096", None, 0))
    o.append((f"buffer_load_dwordx4 v{vQC+4}, {srdr(SPK)}, s{sPKO} offen lds", "pk", 1))
    o.append((f"s_lshl_b32 m0, s{sWAVE}, 10", None, 0))
    o.append((f"s_add_u32 m0, m0, {PKX}", None, 0))
    o.append((f"buffer_load_dwordx4 v{vPX}, {srdr(SWB)}, s{sPX0} offen lds", "pkx", 1))
    o.append((f"s_mov_b32 m0, {PKX + 4096}", None, 0))
    o.append((f"s_mov_b64 exec, s[{sEX}:{sEX+1}]", None, 0))
    o.append((f"buffer_load_dwordx4 v{vPX+1}, {srdr(SWB)}, s{sPX0} offen lds", "pkx", 1))
    o.append(("s_mov_b64 exec, -1", None, 0))
    return o

def pack_read_addr(A):
    A("v_lshrrev_b32 v1, 4, v0"); A("v_bfe_u32 v2, v0, 2, 2"); A("v_lshl_add_u32 v1, v1, 3, v2")
    A("v_mul_u32_u24 v1, 160, v1")
    A("v_and_b32 v2, 3, v0")
    A(f"v_lshl_add_u32 v3, v2, 4, v1"); A(f"v_lshl_add_u32 v4, v2, 3, v1")
    A(f"s_add_u32 s{sT0}, s{sXM}, 8192")
    A(f"v_add_u32 v{vQC+5}, s{sT0}, v3"); A(f"v_add_u32 v{vQC+6}, s{sT0}, v4")
    A(f"s_lshr_b32 s{sT0}, s{sWAVE}, 1"); A(f"s_lshl_b32 s{sT0}, s{sT0}, 6")
    A(f"s_and_b32 s{sT1}, s{sWAVE}, 1"); A(f"s_lshl_b32 s{sT1}, s{sT1}, 3"); A(f"s_add_u32 s{sT0}, s{sT0}, s{sT1}")
    A(f"s_add_u32 s{sT0}, s{sT0}, {PKX}")
    A(f"v_add_u32 v{vPX+2}, s{sT0}, v3"); A(f"v_add_u32 v{vPX+3}, {PKX}, v4")

def pack_reads():
    o = [("WAIT:vm:pk", None, 0)]
    for nt in range(5):
        for rho in range(2):
            if nt < 4: t = f"ds_read_b64_tr_b16 {a(aPK+4*nt+2*rho,2)}, v{vQC+5} offset:{rho*640 + 64*(nt>>1) + 8*(nt&1)}"
            else: t = f"ds_read_b64_tr_b16 {a(aPK+4*nt+2*rho,2)}, v{vQC+6} offset:{rho*640 + 128}"
            o.append((t, "pkr", 0.34))
    return o

def pack_stores():
    return [(f"buffer_store_dwordx4 {a(aPK+4*nt,4)}, v{vW+(nt>>2)}, {srdr(SWS)}, s{sPKD} offen offset:{1024*(nt&3)} sc1", "prep", 1)
            for nt in range(5)]

def pack_shared():
    X = aPK + 20
    o = []
    for rho in range(2):
        o.append((f"ds_read_b64_tr_b16 {a(X+2*rho,2)}, v{vPX+2} offset:{rho*640}", None, 0.25))
        o.append((f"ds_read_b64_tr_b16 {a(X+4+2*rho,2)}, v{vPX+3} offset:{rho*640 + 128}", None, 0.25))
    o.append((f"s_lshl_b32 s{sP0}, s{sWAVE}, 10", None, 0)); o.append((f"s_add_u32 s{sP0}, s{sP0}, s{sPX1}", None, 0))
    o.append((f"s_cmp_eq_u32 s{sWAVE}, 0", None, 0)); o.append((f"s_cselect_b32 s{sP1}, s{sPX1}, {hex(OOB)}", None, 0, True))
    o.append((f"buffer_store_dwordx4 {a(X,4)}, v{vW}, {srdr(SWS)}, s{sP0} offen sc1", "prep", 1))
    o.append((f"buffer_store_dwordx4 {a(X+4,4)}, v{vW+1}, {srdr(SWS)}, s{sP1} offen sc1", "prep", 1))
    return o

def prep_setup(A):
    A(f"s_lshl_b32 s{sT0}, s{sM}, 7"); A(f"s_lshl_b32 s{sT1}, s{sU}, 4"); A(f"s_add_u32 s{sT0}, s{sT0}, s{sT1}")
    A(f"s_lshl_b32 s{sT1}, s{sWAVE}, 2"); A(f"s_add_u32 s{sT0}, s{sT0}, s{sT1}")
    A(f"s_mul_i32 s{sSTO}, s{sT0}, 1280")
    A("v_lshrrev_b32 v1, 4, v0"); A("v_and_b32 v2, 15, v0")
    A("v_mul_u32_u24 v1, 1280, v1"); A(f"v_lshl_add_u32 v{vSA}, v2, 4, v1")
    A(f"s_cmp_lt_u32 s{sCSL}, 30")
    csel(A, sT2, 3840, 3456)
    A(f"s_cselect_b32 s{sT3}, 0, 30")
    A(f"s_sub_u32 s{sT0}, s{sCSL}, s{sT3}")
    A(f"s_lshl_b32 s{sT0}, s{sT0}, 7")
    A(f"s_bfe_u32 s{sT1}, s2, 0x10002"); A(f"s_lshl_b32 s{sT3}, s{sWAVE}, 1"); A(f"s_add_u32 s{sT1}, s{sT1}, s{sT3}")
    A(f"s_mul_i32 s{sT1}, s{sT1}, 80"); A(f"s_mul_i32 s{sT1}, s{sT1}, s{sT2}")
    A(f"s_add_u32 s{sT0}, s{sT0}, s{sT1}")
    A(f"s_cmp_lt_u32 s{sCSL}, 57")
    A(f"s_cselect_b32 s{sCSO}, s{sT0}, {hex(OOB)}")
    A("v_lshrrev_b32 v1, 3, v0"); A("v_and_b32 v2, 7, v0")
    A(f"v_mul_u32_u24 v1, s{sT2}, v1")
    A(f"v_lshl_add_u32 v{vCL}, v2, 4, v1")
    A(f"s_lshl_b32 s{sCSP}, s{sT2}, 3")

def stats_loads():
    return [(f"buffer_load_dwordx4 {v(PRS+4*j,4)}, v{vSA}, {srdr(SX)}, s{sSTO} offen offset:{256*j}", None, 1) for j in range(5)]

def cs_loads():
    o = []
    for j in range(10):
        if j: o.append((f"s_add_u32 s{sCSO}, s{sCSO}, s{sCSP}", None, 0))
        o.append((f"buffer_load_dwordx4 {v(PRC+4*j,4)}, v{vCL}, {srdr(SCS)}, s{sCSO} offen", None, 1))
    o.append((f"s_sub_u32 s{sP0}, s{sCSL}, 30", None, 0))
    o.append((f"s_lshl_b32 s{sP0}, s{sP0}, 7", None, 0)); o.append((f"s_min_u32 s{sP0}, s{sP0}, {hex(OOB)}", None, 0))
    o.append((f"v_lshlrev_b32 v{vPT}, 1, v0", None, 0))
    o.append((f"buffer_load_ushort v{vBI}, v{vPT}, {srdr(SB1)}, s{sP0} offen", None, 1))
    return o

def rowsum(A, reg):
    for sh in (8, 4, 2, 1):
        A(f"v_add_f32_dpp v{reg}, v{reg}, v{reg} row_ror:{sh} row_mask:0xf bank_mask:0xf")

def zero_kv(A):
    for r in range(4): A(f"v_mov_b32 v{4+r}, 0")
    A(f"s_and_b32 s{sF0}, s2, 127"); A(f"s_lshl_b32 s{sF0}, s{sF0}, 2"); A(f"s_add_u32 s{sF0}, s{sF0}, s{sWAVE}")
    A(f"s_mul_i32 s{sF0}, s{sF0}, 480"); A(f"s_add_u32 s{sF0}, s{sF0}, {KV_OFF}")
    A(f"v_mov_b32 v1, {hex(OOB)}")
    A("v_cmp_gt_u32 vcc, 30, v0")
    A.g(f"v_cndmask_b32 v1, v1, v{vW}, vcc")
    A(f"buffer_store_dwordx4 v[4:7], v1, {srdr(SWS)}, s{sF0} offen sc1", "prep")

def stats_compute(A):
    U = PRC
    for r in range(20):
        A(f"v_lshlrev_b32 v{U+2*r}, 16, v{PRS+r}")
        A(f"v_and_b32 v{U+2*r+1}, 0xffff0000, v{PRS+r}")
        if r == 1: A(f"v_add_f32 v2, v{U}, v{U+1}")
        if r == 2: A(f"v_add_f32 v3, v{U+2}, v{U+3}")
        if r > 2: A(f"v_add_f32 v2, v2, v{U+2*r-2}"); A(f"v_add_f32 v3, v3, v{U+2*r-1}")
    A(f"v_add_f32 v2, v2, v{U+38}"); A(f"v_add_f32 v3, v3, v{U+39}")
    A(f"s_lshr_b32 s{sF0}, s{sSTO}, 5"); A(f"s_mul_hi_u32 s{sF0}, s{sF0}, 0x33333334")
    A("v_add_f32 v2, v2, v3")
    ad = Asm()
    ad("v_lshrrev_b32 v1, 4, v0"); ad("v_lshlrev_b32 v1, 3, v1")
    ad("v_and_b32 v6, 15, v0"); ad(f"v_mov_b32 v7, {hex(OOB)}")
    ad(f"s_add_u32 s{sF0}, s{sF0}, {ST_OFF}"); ad("v_mov_b32 v5, 0x3727c5ac")
    ad("v_cmp_eq_u32 vcc, 0, v6"); ad("s_nop 0")
    for k, sh in enumerate((8, 4, 2, 1)):
        A.extend(ad.ins[2*k:2*k+2])
        A(f"v_add_f32_dpp v2, v2, v2 row_ror:{sh} row_mask:0xf bank_mask:0xf")
    A("v_cndmask_b32 v1, v7, v1, vcc")
    A("v_mul_f32 v4, 0x3acccccd, v2")
    for r in range(40):
        A(f"v_sub_f32 v{U+r}, v{U+r}, v4")
        if r in (1, 2): A(f"v_mul_f32 v{2+(r&1)}, v{U+r-1}, v{U+r-1}")
        if r > 2: A(f"v_fmac_f32 v{2+(r&1)}, v{U+r-1}, v{U+r-1}")
    A(f"v_fmac_f32 v2, v{U+39}, v{U+39}")
    A("v_add_f32 v2, v2, v3")
    rowsum(A, 2)
    A("v_fmac_f32 v5, 0x3acccccd, v2")
    A(f"buffer_store_dwordx2 v[4:5], v1, {srdr(SWS)}, s{sF0} offen sc1", "prep")

def cs_setup(A):
    sel = vCSA; acc = vCSA + 4
    A("v_and_b32 v1, 15, v0"); A("v_lshrrev_b32 v2, 1, v1"); A("v_and_b32 v3, 1, v0")
    A("v_lshlrev_b32 v3, 4, v3"); A("v_mov_b32 v4, 0x3f80"); A("v_lshlrev_b32 v4, v3, v4")
    for r in range(4):
        A(f"v_cmp_eq_u32 vcc, {r}, v2"); A.g("s_nop 1"); A.g(f"v_cndmask_b32 v{sel+r}, 0, v4, vcc")
    A("v_and_b32 v2, 7, v0"); A("v_bfe_u32 v3, v0, 4, 1")
    A("v_lshlrev_b32 v2, 7, v2"); A("v_lshl_add_u32 v2, v3, 6, v2")
    A(f"s_lshl_b32 s{sF0}, s{sWAVE}, 2"); A(f"s_add_u32 s{sF0}, s{sF0}, {CSR}")
    A(f"v_add_u32 v{PRT}, s{sF0}, v2")

def cs_compute(A):
    sel = vCSA; acc = vCSA + 4
    for j in range(10):
        A(f"v_mfma_f32_16x16x32_bf16 {v(acc,4)}, {v(sel,4)}, {v(PRC+4*j,4)}, {'0' if j == 0 else v(acc,4)}")

def cs_write(A):
    acc = vCSA + 4
    for r in range(4):
        A(f"v_add_f32_dpp v{acc+r}, v{acc+r}, v{acc+r} row_ror:8 row_mask:0xf bank_mask:0xf")
    A("s_mov_b64 exec, 0xffffffff")
    for r in range(4):
        A.g(f"ds_write_b32 v{PRT}, v{acc+r} offset:{16*r}")
    A.g("s_mov_b64 exec, -1")

def cs_finish(A):
    R = vCSA; t0, t1 = sF1, sCSP
    A(f"v_add_u32 v{PRT}, {CSR}, v{vW}")
    A(f"ds_read_b128 {v(R,4)}, v{PRT}")
    A(f"s_lshl_b32 s{t0}, s{sCSL}, 10")
    A(f"s_bfe_u32 s{t1}, s2, 0x10002"); A(f"s_lshl_b32 s{t1}, s{t1}, 3")
    A(f"s_add_u32 s{t0}, s{t0}, s{t1}"); A(f"s_add_u32 s{t0}, s{t0}, {CS_OFF}")
    A(f"s_cmp_lt_u32 s{sCSL}, 57"); A.g(f"s_cselect_b32 s{t0}, s{t0}, {hex(OOB)}")
    A(f"s_cmp_eq_u32 s{sWAVE}, 0"); A.g(f"s_cselect_b32 s{t0}, s{t0}, {hex(OOB)}")
    A(f"v_lshlrev_b32 v{R+5}, 16, v{vBI}")
    A(f"v_add_f32 v{R}, v{R}, v{R+1}"); A(f"v_add_f32 v{R+2}, v{R+2}, v{R+3}")
    A(f"v_add_f32 v{R+4}, v{R}, v{R+2}")
    A(f"buffer_store_dwordx2 {v(R+4,2)}, v{vW}, {srdr(SWS)}, s{t0} offen sc1", "prep")

def phi_loads(A, kv, R, v=a):
    A(f"s_lshl_b32 s{sF0}, s{sC}, 2"); A(f"s_add_u32 s{sF0}, s{sF0}, s{sWAVE}"); A(f"s_mul_i32 s{sF0}, s{sF0}, 800")
    A(f"s_and_b32 s{sF1}, s{sWAVE}, 1"); A(f"s_mul_i32 s{sF1}, s{sF1}, 10")
    A(f"v_add_u32 v1, s{sF1}, v0"); A("v_subrev_u32 v2, 50, v1"); A("v_min_u32 v1, v1, v2")
    A("v_lshlrev_b32 v1, 4, v1")
    A(f"v_mov_b32 v2, {hex(OOB)}")
    A("v_cmp_gt_u32 vcc, 50, v0")
    A.g("v_cndmask_b32 v1, v2, v1, vcc")
    A.g(f"v_cndmask_b32 v3, v2, v{vW}, vcc")
    A(f"buffer_load_dwordx4 {v(R,4)}, v1, {srdr(SPH)}, s{sF0} offen")
    if kv:
        A(f"s_lshl_b32 s{sF0}, s{sU}, 2"); A(f"s_add_u32 s{sF0}, s{sF0}, s{sWAVE}"); A(f"s_mul_i32 s{sF0}, s{sF0}, 800")
        A(f"buffer_load_dwordx4 {v(R+4,4)}, v3, {srdr(SPH)}, s{sF0} offen")

def phi_writes(A, kv, R, v=a):
    A(f"s_mul_i32 s{sF0}, s{sWAVE}, 960"); A(f"s_add_u32 s{sF0}, s{sF0}, {PHI2}")
    A(f"v_add_u32 v1, s{sF0}, v{vW}")
    A(f"s_mul_i32 s{sF0}, s{sWAVE}, 480"); A(f"s_add_u32 s{sF0}, s{sF0}, {PZERO}")
    A(f"v_lshl_add_u32 v2, v0, 3, s{sF0}")
    A("v_mov_b32 v4, 0"); A("v_mov_b32 v5, 0")
    A(f"s_bfm_b64 exec, 60, 0")
    A.g(f"ds_write_b128 v1, {v(R,4)}")
    if kv: A.g(f"ds_write_b128 v1, {v(R+4,4)} offset:{PHI1 - PHI2}")
    A.g("ds_write_b64 v2, v[4:5]")
    A.g("s_mov_b64 exec, -1")

vA = 16; vQA = 20; vOA = 23; vF1 = 24; vF2 = 25; vXO = 26; vRW = 28; vRR = 31; vKA = 32
QR = 84; ST2 = 96; PA2 = 64; PK2 = 44; NU = 64; KVR = 88; XRS = 88
ACT = 112; ACCO = 176; aO = 100

def p2_addr_early(A):
    for k in range(4):
        A(f"s_add_u32 s{sF0}, s{sWAVE}, {k}"); A(f"s_and_b32 s{sF0}, s{sF0}, 3"); A(f"s_mul_i32 s{sF0}, s{sF0}, {ACT_BLK}")
        A(f"v_add_u32 v{vA+k}, s{sF0}, v{vW}")
    A("v_lshrrev_b32 v1, 4, v0")
    A("v_and_b32 v2, 1, v1")
    A("v_lshrrev_b32 v3, 1, v1"); A("v_mul_u32_u24 v3, 5, v3")
    A(f"s_mul_i32 s{sF0}, s{sC}, 10")
    A(f"v_add_u32 v3, s{sF0}, v3")
    A("v_and_b32 v4, 15, v0"); A("v_lshlrev_b32 v4, 4, v4")
    A("v_lshl_add_u32 v4, v3, 8, v4")
    A("v_mul_u32_u24 v5, 768, v2")
    A(f"v_add_u32 v{vQA}, v4, v5")
    A(f"v_lshl_add_u32 v{vQA+1}, v2, 3, v4")
    A("v_and_b32 v4, 15, v0"); A(f"v_lshlrev_b32 v{vQA+2}, 3, v4")
    A(f"s_mul_i32 s{sAB}, s{sR}, {4*ACT_BLK}"); A(f"s_add_u32 s{sAB}, s{sAB}, {ACT_OFF}")
    A(f"s_lshl_b32 s{sF0}, s{sWAVE}, 10"); A(f"s_add_u32 s{sA}, s{sAB}, s{sF0}")

def act_load(n, k):
    o = []
    if k == 0 and n > 0:
        o.append((f"s_add_u32 s{sA}, s{sA}, 4096", None, 0))
        if n == 13:
            o.append((f"s_cmp_lt_u32 s{sWAVE}, 2\ns_cselect_b32 s{sA}, s{sA}, {hex(OOB)}", None, 0))
    o.append((f"buffer_load_dwordx4 {v(ACT+16*(n%4)+4*k,4)}, v{vA+k}, {srdr(SWS)}, s{sA} offen sc1", f"A{n}", 1))
    return o

def p2_first_loads(A):
    A(f"s_mul_i32 s{sP0}, s{sWAVE}, {ACT_BLK}"); A(f"s_add_u32 s{sP0}, s{sP0}, s{sAB}")
    A(f"s_add_u32 s{sP0}, s{sP0}, {74*1024}")
    A(f"buffer_load_dwordx4 {v(QR,4)}, v{vQA}, {srdr(SWS)}, s{sP0} offen sc1")
    A(f"buffer_load_dwordx4 {v(QR+4,4)}, v{vQA}, {srdr(SWS)}, s{sP0} offen offset:256 sc1")
    A(f"buffer_load_dwordx2 {v(QR+8,2)}, v{vQA+1}, {srdr(SWS)}, s{sP0} offen offset:512 sc1")
    A(f"s_lshl_b32 s{sP0}, s{sR}, 2"); A(f"s_add_u32 s{sP0}, s{sP0}, s{sWAVE}"); A(f"s_lshl_b32 s{sP0}, s{sP0}, 7")
    A(f"s_add_u32 s{sP0}, s{sP0}, {ST_OFF}")
    A(f"buffer_load_dwordx2 {v(ST2,2)}, v{vQA+2}, {srdr(SWS)}, s{sP0} offen sc1", "q")

P2FB = [("a", 240), ("a", 244), ("a", 248), ("a", 252), ("v", 100), ("v", 104), ("v", 108)]
def reg(n, off, cnt):
    k, r = P2FB[n % 7]
    return R(k, r + off, cnt)
P1SEQ = [(st, ch) for st in range(3) for ch in range(5)]
def prd(F, n):
    st, ch = P1SEQ[n]
    for rho in range(2):
        F(f"ds_read_b64_tr_b16 {reg(n,2*rho,2)}, v{vF1} offset:{(8*st+4*rho)*40+ch*8}")

def part1_head(F):
    F("v_lshrrev_b32 v1, 4, v0"); F("v_and_b32 v2, 3, v0"); F("v_bfe_u32 v3, v0, 2, 2")
    F("v_mul_u32_u24 v4, 960, v1"); F(f"v_add_u32 v4, {PHI2}, v4")
    F("v_mul_u32_u24 v5, 1920, v1"); F(f"v_add_u32 v5, {KVI}, v5"); F(f"v_mov_b32 v6, {PZERO}")
    F("v_cmp_eq_u32 vcc, v1, v2"); F.g("v_cndmask_b32 v4, v6, v4, vcc"); F.g("v_cndmask_b32 v5, v6, v5, vcc")
    F(f"v_mad_u32_u24 v{vF1}, v3, 40, v4"); F(f"v_mad_u32_u24 v{vF2}, v3, 48, v5")
    F(f"v_mov_b32 v{QR+10}, 0"); F(f"v_mov_b32 v{QR+11}, 0")
    for n in range(7): prd(F, n)
    poll_addr(F, "pgrp", 1, 2)
    F.wait(vm="q")

def prologue(A, C):
    L = C.L
    A.label(L("start"))
    A(f"s_getpc_b64 s[{sT0}:{sT0+1}]")
    A("s_cmp_ge_u32 s2, 256")
    A(f"s_cbranch_scc1 {L('end')}")
    if OPT.get("swap", 1): A("s_xor_b32 s2, s2, 128")
    A("s_load_dwordx16 s[4:19], s[0:1], 0")
    A("s_load_dwordx2 s[20:21], s[0:1], 80")
    A("s_load_dwordx2 s[22:23], s[0:1], 64")
    stamp(A, 0, True); stamp(A, 1)
    A(f"s_bfe_u32 s{sT2}, s2, 0x30003"); A(f"s_lshl_b32 s{sT2}, s{sT2}, 13")
    A("v_lshrrev_b32 v1, 6, v0"); A("v_and_b32 v2, 15, v0"); A("v_lshl_add_u32 v2, v1, 4, v2")
    A(f"v_lshl_add_u32 v2, v2, 7, s{sT2}")
    A(f"v_min_u32 v2, {L('end')}-{L('start')}-8, v2")
    A(f"v_mov_b32 v3, s{sT0+1}")
    A(f"v_add_co_u32 v2, vcc, s{sT0}, v2")
    A("v_addc_co_u32 v3, vcc, 0, v3, vcc")
    A("global_load_dword v255, v[2:3], off")
    A(f"v_readfirstlane_b32 s{sWAVE}, v1")
    A(f"v_mov_b32 v{vTID}, v0")
    A("v_and_b32 v0, 63, v0")
    A(f"s_and_b32 s{sT0}, s2, 7"); A(f"s_lshr_b32 s{sT1}, s2, 3")
    A(f"s_lshr_b32 s{sM}, s{sT0}, 2"); A(f"s_lshl_b32 s{sM}, s{sM}, 3"); A(f"s_and_b32 s{sT2}, s{sT1}, 7"); A(f"s_add_u32 s{sM}, s{sM}, s{sT2}")
    A(f"s_and_b32 s{sU}, s{sT0}, 3"); A(f"s_lshl_b32 s{sU}, s{sU}, 1"); A(f"s_bfe_u32 s{sT2}, s{sT1}, 0x10003"); A(f"s_add_u32 s{sU}, s{sU}, s{sT2}")
    A(f"s_lshr_b32 s{sR}, s{sT0}, 1"); A(f"s_lshl_b32 s{sR}, s{sR}, 3"); A(f"s_lshr_b32 s{sT2}, s{sT1}, 2"); A(f"s_add_u32 s{sR}, s{sR}, s{sT2}")
    A(f"s_and_b32 s{sC}, s{sT0}, 1"); A(f"s_lshl_b32 s{sC}, s{sC}, 2"); A(f"s_and_b32 s{sT2}, s{sT1}, 3"); A(f"s_add_u32 s{sC}, s{sC}, s{sT2}")
    A("v_lshrrev_b32 v1, 3, v0"); A("v_and_b32 v2, 7, v0")
    A(f"s_lshl_b32 s{sT0}, s{sWAVE}, 5")
    A("v_lshrrev_b32 v4, 4, v0"); A("v_xor_b32 v4, v4, v2")
    A(f"v_add_u32 v3, s{sT0}, v1"); A("v_mul_u32_u24 v3, 1280, v3")
    A(f"v_lshl_add_u32 v{vXD}, v4, 4, v3")
    A(f"v_xor_b32 v5, 64, v{vXD}")
    A(f"v_add_u32 v{vXD+1}, {8*1280-1024}, v5")
    A(f"v_add_u32 v{vXD+2}, {16*1280-2048}, v{vXD}")
    A(f"v_add_u32 v{vXD+3}, {24*1280-3072}, v5")
    A(f"s_mul_i32 s{sXO}, s{sM}, {128*1280}")
    A(f"s_mul_i32 s{sXM}, s{sWAVE}, {XW}")
    A(f"v_lshlrev_b32 v{vW}, 4, v0"); A(f"v_add_u32 v{vW+1}, 4096, v{vW}")
    A(f"s_cmp_ge_u32 s2, 128")
    A(f"s_cbranch_scc1 {L('prole')}")

def pair_lane(A):
    A("v_lshrrev_b32 v1, 3, v0"); A("v_and_b32 v2, 7, v0")
    A("v_bfe_u32 v3, v0, 4, 1"); A("v_lshlrev_b32 v3, 2, v3"); A("v_xor_b32 v3, v3, v2")

def build_srds(A, p):
    if p:
        srd(A, SOUT, 22, 2048 * 1280)
        cs_line(A, sCSL, sT0, sT1)
        A(f"s_cmp_lt_u32 s{sCSL}, 30")
        A(f"s_cselect_b64 s[{SCS}:{SCS+1}], s[6:7], s[14:15]")
        csel(A, SCS + 2, 640*3840, 640*3456)
        A(f"s_and_b32 s{SCS+1}, s{SCS+1}, 0xffff"); A(f"s_mov_b32 s{SCS+3}, 0x20000")
        pack_T(A, sT0, sT1)
        A(f"s_cmp_lt_u32 s{sT0}, 54")
        A(f"s_cselect_b64 s[{SPK}:{SPK+1}], s[18:19], s[10:11]")
        csel(A, SPK + 2, 1728*1280, 640*1280)
        A(f"s_and_b32 s{SPK+1}, s{SPK+1}, 0xffff"); A(f"s_mov_b32 s{SPK+3}, 0x20000")
        srd(A, SWB, 10, 640 * 1280)
        srd(A, SB1, 16, 1728 * 2)
    srd(A, SPH, 8, 32 * 800)
    if not p: srd(A, SOUT, 22, 2048 * 1280)

def common_addr(A):
    A("v_and_b32 v1, 31, v0"); A("v_lshrrev_b32 v2, 5, v0"); A("v_bfe_u32 v3, v0, 1, 3")
    A("v_lshlrev_b32 v4, 7, v1"); A(f"v_add_u32 v4, s{sXM}, v4")
    for q in range(4):
        A(f"v_add_u32 v5, {2*q}, v2"); A("v_xor_b32 v5, v5, v3")
        A(f"v_lshl_add_u32 v{vXRD+q}, v5, 4, v4")
    A("v_lshrrev_b32 v3, 4, v1"); A(f"v_mul_u32_u24 v3, {ACT_BLK}, v3"); A("v_lshl_add_u32 v3, v2, 8, v3")
    A("v_and_b32 v4, 15, v0"); A(f"v_lshl_add_u32 v{vAST}, v4, 4, v3")
    A(f"s_lshl_b32 s{sT0}, s{sM}, 3"); A(f"s_lshl_b32 s{sT1}, s{sWAVE}, 1"); A(f"s_add_u32 s{sT0}, s{sT0}, s{sT1}")
    A(f"s_mul_i32 s{sACT}, s{sT0}, {ACT_BLK}"); A(f"s_add_u32 s{sACT}, s{sACT}, {ACT_OFF}")
    A(f"s_lshl_b32 s{sT0}, s2, 8"); A(f"s_add_u32 s{sT0}, s{sT0}, {FLG_OFF}")
    A(f"v_mov_b32 v3, s{sT0}"); A(f"v_mov_b32 v4, {hex(OOB)}")
    A(f"v_cmp_eq_u32 vcc, 0, v{vTID}"); A(f"v_cndmask_b32 v{vFL}, v4, v3, vcc")
    poll_addr(A, "all", 3, 4)
    A(f"s_mul_i32 s{sW}, s{sC}, 74"); A(f"s_add_u32 s{sW}, s{sW}, s{sWAVE}"); A(f"s_mul_i32 s{sW}, s{sW}, 5120")
    A(f"s_add_u32 s{sW}, s{sW}, {W2P_OFF}")
    A(f"s_add_u32 s{sX1}, s{sW}, {13*20480}")
    A(f"s_cmp_lt_u32 s{sWAVE}, 2"); A(f"s_cselect_b32 s{sX1}, s{sX1}, {hex(OOB)}")
    A(f"s_mul_i32 s{sPV}, s{sWAVE}, {4*5120}"); A(f"s_add_u32 s{sPV}, s{sPV}, {6*5120 + 12*20480}")
    A(f"s_add_u32 s{sPV}, s{sPV}, s{sW}")
    A("v_and_b32 v1, 3, v0"); A("v_bfe_u32 v2, v0, 2, 1"); A("v_bfe_u32 v3, v0, 3, 2")
    A("v_lshrrev_b32 v4, 1, v3"); A("v_lshl_add_u32 v4, v4, 1, v2")
    A("v_and_b32 v5, 1, v3"); A("v_lshl_add_u32 v5, v5, 2, v1"); A("v_lshl_add_u32 v4, v4, 3, v5")
    A(f"v_lshlrev_b32 v{vCP}, 4, v4")

def pair_read_base(A, dst):
    A("v_lshrrev_b32 v7, 1, v4"); A("v_lshlrev_b32 v7, 2, v7"); A("v_lshl_add_u32 v7, v3, 1, v7")
    A("v_and_b32 v5, 1, v4"); A("v_add_u32 v7, v7, v5"); A("v_lshlrev_b32 v7, 3, v7")
    A("v_lshl_add_u32 v7, v6, 7, v7"); A("v_bfe_u32 v5, v0, 3, 1"); A(f"v_lshl_add_u32 v{dst}, v5, 6, v7")

def as_queue(B):
    return [(x.text, x.tag, 1 if x.cls == "vmem" else 0, x.glue) for x in B.ins]

def stats_load(A):
    A(f"s_lshl_b32 s{sP0}, s{sM}, 2"); A(f"s_add_u32 s{sP0}, s{sP0}, s{sWAVE}"); A(f"s_lshl_b32 s{sP0}, s{sP0}, 8")
    A(f"s_add_u32 s{sP0}, s{sP0}, {ST_OFF}")
    A(f"v_and_b32 v{vPT}, 31, v0"); A(f"v_lshlrev_b32 v{vPT}, 3, v{vPT}")
    A(f"buffer_load_dwordx2 {v(vST,2)}, v{vPT}, {srdr(SWS)}, s{sP0} offen sc1")

def epoch_load(A):
    A(f"v_mov_b32 v{vEP}, 0")
    A(f"buffer_load_dword v{vEP}, v{vEP}, {srdr(SWS)}, 0 offen sc1")

def role_kv(A, C):
    L = C.L
    ACC_A = 176; ACC_Q = 64; KP = 96; PAK = 120; VP = 184; EP = 216; PK = 184; KVA = 184; CR = 120
    A(f"s_lshl_b32 s{sT0}, s{sWAVE}, 3")
    A(f"s_mul_i32 s{sT1}, s{sU}, 160"); A(f"s_add_u32 s{sT1}, s{sT1}, 1280")
    for i in range(3):
        A(f"v_add_u32 v1, {64*i}, v0")
        A("v_mul_u32_u24 v2, 3277, v1"); A("v_lshrrev_b32 v2, 16, v2")
        A("v_mul_u32_u24 v3, 20, v2"); A("v_sub_u32 v3, v1, v3")
        A("v_mul_u32_u24 v4, 13108, v3"); A("v_lshrrev_b32 v4, 16, v4")
        A("v_and_b32 v5, 1, v4"); A("v_lshrrev_b32 v4, 1, v4")
        A("v_mul_u32_u24 v5, 1200, v5"); A("v_mul_u32_u24 v4, 80, v4")
        A(f"v_add_u32 v2, s{sT0}, v2"); A("v_mul_u32_u24 v2, 3840, v2"); A("v_lshl_add_u32 v2, v3, 4, v2")
        A("v_add_u32 v2, v2, v5"); A("v_sub_u32 v2, v2, v4")
        A(f"v_add_u32 v{vAD+i}, s{sT1}, v2")
        if i: A(f"v_subrev_u32 v{vAD+i}, {1024*i}, v{vAD+i}")
    A(f"v_mov_b32 v1, {hex(OOB)}"); A("v_cmp_gt_u32 vcc, 32, v0"); A(f"v_cndmask_b32 v{vAD+2}, v1, v{vAD+2}, vcc")
    A(f"s_mul_i32 s{sWB}, s{sWAVE}, 3072"); A(f"s_add_u32 s{sWB}, s{sWB}, {WR}")
    pair_lane(A)
    A(f"v_add_u32 v4, s{sT0}, v1"); A("v_mul_u32_u24 v4, 3840, v4")
    A(f"v_lshl_add_u32 v4, v3, 4, v4"); A(f"s_lshl_b32 s{sT1}, s{sU}, 7")
    A(f"v_add_u32 v{vPD}, s{sT1}, v4")
    A("s_waitcnt lgkmcnt(0)")
    srd(A, SX, 4, 2048 * 1280)
    srd(A, SWS, 20, WS_SIZE)
    A0 = A; A = Asm()
    srd(A, SWA, 6, 640 * 3840)
    A(f"s_lshl_b32 s{sWQ}, s{sWAVE}, 10"); A(f"s_add_u32 s{sWQ}, s{sWQ}, {WR + 12288}")
    build_srds(A, False)
    spread(A0, A, x_dma(0), 3, first=3)
    A = Asm()
    common_addr(A)
    vCA = 40
    A("v_mul_u32_u24 v4, 40, v2"); A("v_lshl_add_u32 v4, v3, 2, v4"); A("v_add_u32 v4, v4, v1")
    A(f"v_lshlrev_b32 v{vCA}, 4, v4"); A(f"v_add_u32 v{vCA+2}, {600*16}, v{vCA}")
    A("v_cmp_lt_u32 vcc, 1, v3"); A(f"v_cndmask_b32 v{vCA+1}, v{vCA}, v{vCA+2}, vcc")
    common_lane(A)
    A("v_mul_u32_u24 v7, 320, v6"); A(f"v_mul_u32_u24 v{vAR}, 160, v3"); A(f"v_add_u32 v{vAR}, v{vAR}, v7")
    A(f"v_lshl_add_u32 v{vAR}, v1, 9, v{vAR}")
    A(f"v_lshl_add_u32 v{vAR}, v4, 3, v{vAR}"); A(f"v_add_u32 v{vAR}, {WR}, v{vAR}"); A(f"v_add_u32 v{vAR+1}, 65536, v{vAR}")
    pair_read_base(A, vPR)
    A(f"v_add_u32 v{vPR}, {WR + 12288}, v{vPR}")
    A(f"v_xor_b32 v{vPR+1}, 64, v{vPR}")
    A(f"v_add_u32 v{vPR+2}, 65536, v{vPR}"); A(f"v_add_u32 v{vPR+3}, 65536, v{vPR+1}")
    spread(A0, A, kv_dma(0) + kv_dma(1), 10, first=10)
    A = A0
    epoch_load(A)
    phi_loads(A, True, aPH)
    emit(A, x_dma(1) + kv_dma(2) + kv_dma(3))
    pt(A, "pro")
    S1 = OPT.get("s1kv", 9); HB = OPT.get("hbkv", 1)
    KW = OPT.get("kw", ((5,), (6, 7, 0, 1), (2, 3, 4, 8, 9, 10, 11)))
    steps = []
    accs = [ACC_A + 16 * t for t in range(5)] + [ACC_Q, ACC_Q + 16]
    for s in range(40):
        c, sp = divmod(s, 4)
        h = s >> 1; sl = h % 6; hi = sl >= 4
        fr = aW + 28 * (s & 1)
        rd = []
        for t in range(5):
            for rho in range(2):
                off = (sl & 3 if hi else sl) * HS + (s & 1) * 6144 + rho * 1280 + t * 32
                rd.append(f"ds_read_b64_tr_b16 {a(fr + 4*t + 2*rho, 2)}, v{vAR + hi} offset:{off}")
        for t in range(2):
            for rho in range(2):
                off = (sl & 3 if hi else sl) * HS + (s & 1) * 2048 + rho * 512
                rd.append(f"ds_read_b64_tr_b16 {a(fr + 20 + 4*t + 2*rho, 2)}, v{vPR + t + 2*hi} offset:{off}")
        q = []
        if HB:
            if s == 0: q += kv_dma(4) + x_dma(2)
            if sp in (0, 2): q += kv_dma(h + 5)
            if sp == 2: q += x_dma(c + 3)
        elif sp == 0: q += x_dma(c + 2) + kv_dma(h + 4) + kv_dma(h + 5)
        steps.append(dict(nt=7, acc=accs, first=(s == 0), xreg=aX + 16 * (c & 1) + 4 * sp, frag=fr, reads=rd,
                          chunk=h if sp == 0 or (HB and sp == 2) else None, xj=c if sp == 0 else None, queue=q,
                          tags=[] if HB else [f"w{h+1}"]))
    def pre(A, c):
        if c == S1: poll_check(A, C, 1)
    def post(A, c, dq):
        pt(A, f"c{c}")
        if c == 1: A(f"v_readfirstlane_b32 s{sE}, v{vEP}")
        if c == S1 - 1: poll_issue(A)
        if c == S1:
            A = Asm()
            stats_load(A)
            A(f"s_mul_i32 s{sP0}, s{sU}, {80*16}"); A(f"s_add_u32 s{sP0}, s{sP0}, {CS_OFF + 640*16}")
            for t in range(5):
                A(f"buffer_load_dwordx4 {v(CR+4*t,4)}, v{vCA+[0,0,1,2,2][t]}, {srdr(SWS)}, s{sP0} offen offset:{256*t} sc1")
            A(f"s_lshl_b32 s{sP0}, s{sU}, 10"); A(f"s_add_u32 s{sP0}, s{sP0}, {CS_OFF}")
            for t in range(2):
                A(f"buffer_load_dwordx4 {v(vQC+4*t,4)}, v{vCP}, {srdr(SWS)}, s{sP0} offen offset:{512*t} sc1")
            dq.add(as_queue(A), front=True)
            dq.add(wl(*KW[0]))
    M = Asm(); dq = DQ()
    gemm_steps(M, steps, 1, dq, pre, post, every=OPT.get("kvevery", [2] * 9 + [1]))
    dq.pop(M, 99)
    F = Asm(); phi_writes(F, True, aPH)
    ins, left = weave(M, F, start=30, per=2); assert not left
    F = Asm()
    common_lane(F)
    F("v_mul_u32_u24 v7, 1920, v3"); F(f"v_add_u32 v7, {PHI1}, v7"); F(f"v_mov_b32 v5, {PZERO}")
    F("v_cmp_eq_u32 vcc, v1, v3"); F.g("v_cndmask_b32 v7, v5, v7, vcc")
    F("v_mul_u32_u24 v5, 40, v2"); F("v_add_u32 v7, v7, v5"); F("v_lshl_add_u32 v6, v4, 3, v7"); F("v_add_u32 v7, 32, v7")
    F(f"s_lshl_b32 s{sPKD}, s{sU}, 11"); F(f"s_add_u32 s{sPKD}, s{sPKD}, s{sACT}"); F(f"s_add_u32 s{sPKD}, s{sPKD}, {74*1024}")
    bufs = [0, 4, 8, 12, 16, 20, 24, 28, 32, 36, 40, 44]
    seq = [(sg, tau, st) for sg in range(2) for st in range(3) for tau in range(2)]
    for n in range(12):
        sg, tau, st = seq[n]
        for rho in range(2):
            F(f"ds_read_b64_tr_b16 {a(bufs[n]+2*rho,2)}, v{6+tau} offset:{sg*960+(8*st+4*rho)*40}")
    ins, left = weave(ins, F, start=200, per=1.5); assert not left
    FC = Asm()
    stats_frag(FC, 1)
    for t in range(5): corr_frag(FC, CR + 4 * t, 1 + (t & 1))
    for t in range(2): corr_frag(FC, vQC + 4 * t, 1 + (t & 1))
    if S1 < 9:
        ins, left = weave(ins, FC, start=256, per=3); FC.ins = left
    A.extend(ins)
    pt(A, "p1end")
    A0 = A; A = Asm()
    A.extend(FC)
    for t in range(5):
        A(f"v_mfma_f32_32x32x16_bf16 {v(ACC_A+16*t,16)}, {v(CR+4*t,4)}, {v(vCB,4)}, {v(ACC_A+16*t,16)}")
    for t in range(2):
        A(f"v_mfma_f32_32x32x16_bf16 {v(ACC_Q+16*t,16)}, {v(vQC+4*t,4)}, {v(vCB,4)}, {v(ACC_Q+16*t,16)}")
    for i in range(20):
        A(f"v_cvt_pk_bf16_f32 v{KP+i}, v{ACC_A+2*i}, v{ACC_A+2*i+1}")
    A(f"v_mov_b32 v{KP+20}, 0"); A(f"v_mov_b32 v{KP+21}, 0")
    vs = Asm()
    for t in range(2):
        for p in range(2):
            for i in range(4):
                r = ACC_Q + 16 * t + 8 * p
                vs(f"v_cvt_pk_bf16_f32 v{r+i}, v{r+2*i}, v{r+2*i+1}")
            pair_store(vs, ACC_Q, sPKD, "qst", t, p)
    vs("v_and_b32 v1, 31, v0"); vs(f"s_lshl_b32 s{sF0}, s{sWAVE}, 5"); vs(f"v_add_u32 v1, s{sF0}, v1")
    vs("v_lshrrev_b32 v2, 5, v0")
    vs("v_mul_u32_u24 v3, 48, v1"); vs("v_mul_u32_u24 v5, 12288, v2"); vs("v_add_u32 v3, v3, v5"); vs(f"v_add_u32 v{vAR+1}, {VIM}, v3")
    vs("v_mul_u32_u24 v3, 80, v1"); vs("v_mul_u32_u24 v4, 20480, v2"); vs("v_add_u32 v3, v3, v4"); vs(f"v_add_u32 v{vAR}, {PHIK}, v3")
    for sg in range(2):
        for i in range(10):
            r = ACC_A + 40 + 20 * sg + 2 * i
            vs(f"v_mul_f32 v{r}, v{r}, v{vRS}"); vs(f"v_mul_f32 v{r+1}, v{r+1}, v{vRS}")
            vs(f"v_cvt_pk_bf16_f32 v{VP+12*sg+i}, v{r}, v{r+1}")
        vs(f"v_mov_b32 v{VP+12*sg+10}, 0x3f80"); vs(f"v_mov_b32 v{VP+12*sg+11}, 0")
        for i in range(3):
            vs(f"ds_write_b128 v{vAR+1}, {v(VP+12*sg+4*i,4)} offset:{6144*sg+16*i}")
    K = Asm()
    for n in range(12):
        sg, tau, st = seq[n]
        d = v(PAK + 32 * sg + 16 * tau, 16)
        K(f"v_mfma_f32_32x32x16_bf16 {d}, {a(bufs[n],4)}, {v(KP+10*sg+4*st,4)}, {'0' if st == 0 else d}")
    ins, left = weave(K, vs, per=5)
    A.extend(ins); A.extend(left)
    if OPT.get("verbose"): print("kv epilogue head", len(A.ins))
    spread(A0, A, wl(*KW[1]), OPT.get("kvsp0", 9), first=OPT.get("kvf0", 0))
    A = A0
    wq = wl(*KW[2])
    F = Asm()
    for sg in range(2):
        softmax_pair_pk(F, PAK + 32 * sg, EP, EP + 20, PK, vS1, 2)
        for i in range(5):
            F(f"ds_write_b128 v{vAR}, {v(PK+4*i,4)} offset:{10240*sg+16*i}")
        if sg == 0:
            F.wait(vm="qst"); F.g("s_barrier"); signal(F, 2)
    poll_addr(F, "q", 1, 2)
    F("v_lshrrev_b32 v1, 5, v0"); F("v_bfe_u32 v2, v0, 2, 2"); F("v_lshlrev_b32 v2, 2, v2"); F("v_lshl_add_u32 v2, v1, 1, v2")
    F("v_and_b32 v3, 3, v0"); F("v_bfe_u32 v4, v0, 4, 1"); F("v_lshl_add_u32 v3, v4, 2, v3")
    F(f"s_mul_i32 s{sF0}, s{sWAVE}, 10240"); F(f"s_add_u32 s{sF0}, s{sF0}, {PHIK}")
    F("v_mul_u32_u24 v4, 80, v2"); F(f"v_add_u32 v4, s{sF0}, v4"); F("v_lshl_add_u32 v5, v3, 3, v4")
    F("v_and_b32 v6, 1, v3"); F("v_lshl_add_u32 v6, v6, 3, v4"); F("v_add_u32 v6, 64, v6")
    F(f"s_mul_i32 s{sF0}, s{sWAVE}, 6144"); F(f"s_add_u32 s{sF0}, s{sF0}, {VIM}")
    F("v_mul_u32_u24 v4, 48, v2"); F(f"v_add_u32 v4, s{sF0}, v4"); F("v_min_u32 v7, 5, v3"); F("v_lshl_add_u32 v7, v7, 3, v4")
    if OPT.get("verbose"): print("kv epilogue F", len(F.ins))
    spread(A, F, wq, OPT.get("kvsp", 9))
    pt(A, "p2end")
    if OPT.get("kvqp", 0) == 0: poll_issue(A)
    A.wait(lgkm="all")
    A("s_barrier")
    fb = [120, 132, 144, 156]
    def krd(st):
        fr = fb[st % 4]
        for rho in range(2):
            A(f"ds_read_b64_tr_b16 {v(fr+2*rho,2)}, v5 offset:{(16*st+rho)*80}")
            A(f"ds_read_b64_tr_b16 {v(fr+8+2*rho,2)}, v7 offset:{(16*st+rho)*48}")
            A(f"ds_read_b64_tr_b16 {v(fr+4+2*rho,2)}, v6 offset:{(16*st+rho)*80}")
    for st in range(4): krd(st)
    if OPT.get("kvqp", 0) == 1: poll_issue(A)
    G = Asm()
    p2_addr_early(G)
    G(f"s_mul_i32 s{sT1}, s{sWAVE}, 10240"); G(f"s_add_u32 s{sT1}, s{sT1}, {PHIK}")
    G("v_and_b32 v1, 31, v0"); G("v_lshrrev_b32 v2, 5, v0"); G("v_mul_u32_u24 v2, 384, v2"); G("v_lshl_add_u32 v2, v1, 2, v2")
    G("v_add_u32 v3, 4096, v2"); G("v_cmp_gt_u32 vcc, 24, v1"); G.g("v_cndmask_b32 v2, v3, v2, vcc")
    G(f"v_add_u32 v{vKA+1}, s{sT1}, v2")
    G(f"v_lshlrev_b32 v{vKA}, 2, v0"); G(f"v_add_u32 v{vKA+2}, s{sT1}, v{vKA}")
    G(f"s_lshl_b32 s{sT0}, s{sU}, 2"); G(f"s_add_u32 s{sT0}, s{sT0}, s{sWAVE}"); G(f"s_mul_i32 s{sT0}, s{sT0}, {KVH}")
    G(f"s_and_b32 s{sT1}, s{sM}, 1"); G(f"s_mul_i32 s{sT1}, s{sT1}, {KVC}"); G(f"s_add_u32 s{sT0}, s{sT0}, s{sT1}")
    G(f"s_add_u32 s{sT0}, s{sT0}, {KV_OFF}")
    K = Asm()
    sv = A.ins; A.ins = K.ins
    for st in range(8):
        fr = fb[st % 4]
        for tau in range(2):
            d = v(KVA + 16 * tau, 16)
            A(f"v_mfma_f32_32x32x16_bf16 {d}, {v(fr+4*tau,4)}, {v(fr+8,4)}, {'0' if st == 0 else d}")
        if st + 4 < 8: krd(st + 4)
    A.ins = sv
    ins, left = weave(K, G, start=8, per=6)
    A.extend(ins); A.extend(left)
    DN = 120
    def relayout(A):
        for r in range(20):
            A(f"ds_write_b32 v{vKA+1}, v{KVA+r} offset:{(8 * (r >> 2) + (r & 3)) * 96}")
        for i in range(0, 14, 2):
            A(f"ds_read2st64_b32 {v(DN+i,2)}, v{vKA+2} offset0:{i} offset1:{i+1}")
        A(f"ds_read_b32 v{DN+14}, v{vKA+2} offset:{14*256}")
    if OPT.get("kvrl", 1): relayout(A)
    poll_check(A, C, 2)
    p2_first_loads(A)
    pt(A, "sig2")
    if not OPT.get("kvrl", 1): relayout(A)
    for r in range(15):
        A(f"buffer_atomic_add_f32 v{DN+r}, v{vKA}, {srdr(SWS)}, s{sT0} offen offset:{r*256} sc1", "fin")
    pt(A, "first")
    part1_head(A)
    A(f"s_branch {L('tail')}")

def pinfo(A, sl, J, qf):
    if isinstance(sl, int):
        if sl == 0:
            A(f"s_cmp_lt_u32 s{sU}, 2"); A.g(f"s_cselect_b32 s{J}, 8, -2"); A.g(f"s_cselect_b32 s{qf}, 1, 0")
        else:
            A(f"s_mov_b32 s{J}, {8*sl - 2}"); A(f"s_mov_b32 s{qf}, 0")
        A(f"s_add_u32 s{J}, s{J}, s{sU}")

def role_p(A, C):
    L = C.L
    ACC = 128; CR = 64; MT = 64
    A.label(L("prole"))
    A(f"s_lshl_b32 s{sT0}, s{sWAVE}, 3"); A(f"s_add_u32 s{sT0}, s{sT0}, s{sU}")
    A(f"s_cmp_lt_u32 s{sT0}, 2"); A(f"s_cselect_b32 s{sT1}, 8, -2"); A(f"s_cselect_b32 s{sT2}, 1, 0")
    csel(A, sT3, 3840, 3456)
    A(f"s_add_u32 s{sT0}, s{sT0}, s{sT1}"); A(f"s_lshl_b32 s{sT1}, s{sT0}, 7")
    A(f"s_cmp_lt_u32 s{sT0}, 27"); A(f"s_cselect_b32 s{sT1}, s{sT1}, {hex(OOB)}")
    pair_lane(A)
    A(f"v_mul_u32_u24 v5, s{sT3}, v1"); A(f"v_lshl_add_u32 v{vP1}, v3, 4, v5")
    A(f"s_lshl_b32 s{sT0}, s{sT3}, 3"); A(f"s_sub_u32 s{sT0}, s{sT0}, 1024")
    for i in range(1, 4):
        A(f"v_add_u32 v{vP1+i}, s{sT0}, v{vP1+i-1}")
    A(f"s_lshl_b32 s{sWB}, s{sWAVE}, 12"); A(f"s_add_u32 s{sWB}, s{sWB}, {WR}")
    A("s_waitcnt lgkmcnt(0)")
    srd(A, SX, 4, 2048 * 1280)
    srd(A, SWS, 20, WS_SIZE)
    A(f"s_cmp_eq_u32 s{sT2}, 1")
    A(f"s_cselect_b64 s[{SWA}:{SWA+1}], s[6:7], s[14:15]")
    csel(A, SWA + 2, 640*3840, 640*3456)
    A(f"s_and_b32 s{SWA+1}, s{SWA+1}, 0xffff"); A(f"s_mov_b32 s{SWA+3}, 0x20000")
    A(f"s_mov_b32 s{sWO}, s{sT1}"); A(f"s_lshl_b32 s{sWS}, s{sT3}, 5")
    A0 = A; A = Asm()
    build_srds(A, True)
    spread(A0, A, x_dma(0), 8, first=8)
    A = Asm(); pack_setup(A)
    spread(A0, A, p_dma(0) + p_dma(1), 16, first=16)
    epoch_load(A0)
    A = Asm()
    common_addr(A)
    common_lane(A)
    pair_read_base(A, vPRP)
    A(f"v_add_u32 v{vPRP}, {WR}, v{vPRP}")
    A(f"v_xor_b32 v{vPRP+1}, 64, v{vPRP}")
    A(f"v_add_u32 v{vPRP+2}, 65536, v{vPRP}"); A(f"v_add_u32 v{vPRP+3}, 65536, v{vPRP+1}")
    pack_read_addr(A)
    prep_setup(A)
    phi_loads(A, False, aPH)
    spread(A0, A, pack_dma() + x_dma(1) + p_dma(2) + p_dma(3), 7, first=7)
    A = A0
    pt(A, "pro")
    S1 = OPT.get("s1p", 8); SG = OPT.get("sig1", 5); HB = OPT.get("hbp", 1)
    PW = OPT.get("pw", ((2, 3, 4, 5), (0, 1, 6), (7, 8), (9,), (10, 11)))
    steps = []
    for s in range(40):
        g, sp = divmod(s, 4)
        h = s >> 1; sl = h % 6; hi = sl >= 4
        fr = aW + 32 * (s & 1)
        rd = []
        for t in range(8):
            for rho in range(2):
                off = (sl & 3 if hi else sl) * HS + (t >> 1) * 4096 + (s & 1) * 2048 + rho * 512
                rd.append(f"ds_read_b64_tr_b16 {a(fr + 4*t + 2*rho, 2)}, v{vPRP + (t & 1) + 2*hi} offset:{off}")
        q = []
        NP = OPT.get("noprep")
        if s == 0: q += ([] if NP else cs_loads()) + p_dma(4) + pack_reads() + ([] if NP else stats_loads()) + [("WAIT:lgkm:pkr", None, 0)] + x_dma(2) + p_dma(5)
        elif HB:
            if sp in (0, 2): q += p_dma(h + 5)
            if sp == 2: q += x_dma(g + 3)
        elif sp == 0: q += x_dma(g + 2) + p_dma(h + 4) + p_dma(h + 5)
        if s == 4 and not NP: q += pack_stores() + pack_shared()
        steps.append(dict(nt=8, acc=[ACC + 16 * t for t in range(8)], first=(s == 0), xreg=aX + 16 * (g & 1) + 4 * sp, frag=fr,
                          reads=rd, chunk=h if sp == 0 or (HB and sp == 2) else None, xj=g if sp == 0 else None, queue=q,
                          tags=(["prep"] if s == 4 * SG else (["pkx"] if s == 4 else [])) + ([] if HB else [f"w{h+1}"])))
    def pre(A, c):
        if c == S1: poll_check(A, C, 1)
    def post(A, c, dq):
        pt(A, f"c{c}")
        if c == 1: A(f"v_readfirstlane_b32 s{sE}, v{vEP}")
        if c == SG: signal(A, 1)
        if c == S1 - 1: poll_issue(A)
        if c == S1:
            A = Asm()
            stats_load(A)
            for sl in range(4):
                pinfo(A, sl, sT0, sT1)
                A(f"s_lshl_b32 s{sT0}, s{sT0}, 10"); A(f"s_mul_i32 s{sT1}, s{sT1}, {-1920*16}")
                A(f"s_add_u32 s{sT0}, s{sT0}, s{sT1}"); A(f"s_add_u32 s{sT0}, s{sT0}, {CS_OFF + 1920*16}")
                for t in range(2):
                    A(f"buffer_load_dwordx4 {v(CR+8*sl+4*t,4)}, v{vCP}, {srdr(SWS)}, s{sT0} offen offset:{512*t} sc1")
            dq.add(as_queue(A), front=True)
            dq.add(wl(*PW[0]))
    M = Asm(); dq = DQ()
    gemm_steps(M, steps, 1, dq, pre, post, every=OPT.get("pevery", [1.4, 1.4, 1.6, 2]))
    dq.pop(M, 99)
    g0 = OPT.get("pw0", 30); cb = OPT.get("csbar", 5 if HB else 6)
    F = Asm(); cs_setup(F); zero_kv(F)
    ins, left = weave32(M, F, start=2, stop=25, budget=5.5); assert not left, len(left)
    FS = Asm(); stats_compute(FS)
    k = OPT.get("stk", 40)
    F = Asm(); phi_writes(F, False, aPH); cs_compute(F); F.extend(FS.ins[:k]); cs_write(F)
    ins, left = weave32(ins, F, start=g0, stop=16 * cb - 6, budget=OPT.get("pbud", 5.5)); assert not left, len(left)
    F = Asm(); cs_finish(F); F.extend(FS.ins[k:])
    ins, left = weave32(ins, F, start=16 * cb - 5, stop=32 * SG - 6, budget=OPT.get("pbud", 5.5)); assert not left
    F = Asm()
    stats_frag(F, 1)
    for t in range(8): corr_frag(F, CR + 4 * t, 1 + (t & 1))
    for sl, d in enumerate((sPKO, sPKD, sPX0, sPX1)):
        pinfo(F, sl, d, sF0)
        if sl == 0: F(f"s_mov_b32 s{sQF}, s{sF0}"); F(f"s_mul_i32 s{sF0}, s{sF0}, {74*1024}")
        F(f"s_lshl_b32 s{d}, s{d}, 11"); F(f"s_add_u32 s{d}, s{d}, s{sACT}")
        if sl == 0: F(f"s_add_u32 s{d}, s{d}, s{sF0}")
    ins, left = weave32(ins, F, start=32 * (S1 + 1) - 4, budget=5.5)
    A.extend(ins)
    pt(A, "p1end")
    A.extend(left)
    for t in range(8):
        A(f"v_mfma_f32_32x32x16_bf16 {v(ACC+16*t,16)}, {v(CR+4*t,4)}, {v(vCB,4)}, {v(ACC+16*t,16)}")
    poll_addr(A, "q", 1, 2)
    p2_addr_early(A)
    def mslot(A, sl, so, tag, ts=(0, 1)):
        for t in ts:
            for p in range(2):
                mish_pk(A, ACC + 32 * sl + 16 * t + 8 * p, 8, MT)
                pair_store(A, ACC + 32 * sl, so, tag, t, p)
    sp = OPT.get("psp", 14)
    A(f"s_cmp_eq_u32 s{sQF}, 1")
    A(f"s_cbranch_scc0 {L('noq')}")
    for t in range(2):
        for p in range(2):
            r = ACC + 16 * t + 8 * p
            for i in range(4): A(f"v_cvt_pk_bf16_f32 v{r+i}, v{r+2*i}, v{r+2*i+1}")
            pair_store(A, ACC, sPKO, "qst", t, p)
    F = Asm(); mslot(F, 1, sPKD, "stA", (0,))
    spread(A, F, wl(*PW[1][:1]), sp)
    A.wait(vm="qst"); A.g("s_barrier"); signal(A, 2)
    emit(A, wl(*PW[1][1:]))
    A(f"s_branch {L('q9')}")
    A.label(L("noq"))
    F = Asm(); mslot(F, 0, sPKO, "stA"); mslot(F, 1, sPKD, "stA", (0,))
    spread(A, F, wl(*PW[1]), sp)
    A.label(L("q9"))
    F = Asm(); mslot(F, 1, sPKD, "stA", (1,))
    poll_issue(F)
    mslot(F, 2, sPX0, "fin", (0,))
    spread(A, F, wl(*PW[2]), sp)
    A.wait(vm="stA"); A.g("s_barrier"); signal(A, 3)
    pt(A, "p2end")
    F = Asm(); mslot(F, 2, sPX0, "fin", (1,))
    spread(A, F, wl(*PW[3]), sp)
    poll_check(A, C, 2)
    p2_first_loads(A)
    pt(A, "sig2")
    A(f"s_cmp_lt_u32 s{sU}, 5")
    A(f"s_cbranch_scc1 {L('h3')}")
    emit(A, wl(*PW[4]))
    A(f"s_branch {L('h9')}")
    A.label(L("h3"))
    F = Asm(); mslot(F, 3, sPX1, "fin")
    spread(A, F, wl(*PW[4]), sp)
    A.label(L("h9"))
    pt(A, "first")
    part1_head(A)

def phase2(A, C):
    L = C.L
    A.label(L("tail"))
    def step(M, n, extra):
        for k in range(4):
            b = v(ACT + 16 * (n % 4) + 4 * k, 4) if n < 14 else a(aO + 16 * (n - 14) + 4 * k, 4)
            for nt in range(5):
                d = v(ACCO + 4 * (5 * k + nt), 4)
                M(f"v_mfma_f32_16x16x32_bf16 {d}, {a(slot(n)+4*nt,4)}, {b}, {'0' if n == 0 else d}")
                emit(M, extra.get(5 * k + nt, []))
            if n + 4 < 14: emit(M, act_load(n + 4, k))
    def wext(n):
        e = {}
        if 1 <= n and n + 11 <= 18:
            lst = w2p_loads(n + 11)
            k = 0
            for x in lst:
                e.setdefault(1 + 4 * k, []).append(x)
                k += x[2]
        return e
    F = Asm()
    for n in range(15):
        st, ch = P1SEQ[n]
        d = v(PA2 + 4 * ch, 4)
        F(f"v_mfma_f32_16x16x32_bf16 {d}, {reg(n,0,4)}, {v(QR+4*st,4)}, {'0' if st == 0 else d}")
        if n + 7 < 15: prd(F, n + 7)
    F(f"v_rsq_f32 v{ST2}, v{ST2+1}"); F("s_nop 0")
    F(f"v_mul_f32 v{ST2}, {hex(LOG2E)}, v{ST2}")
    G = Asm()
    softmax_pair_pk(G, PA2, PK2, PA2, PK2, ST2, 2)
    kp = OPT.get("p1poll", 110)
    H = Asm(); poll_issue(H)
    G.ins[kp:kp] = H.ins
    F.extend(G)
    if OPT.get("verbose"): print("part1", len(F.ins), len(G.ins))
    A.extend(F)
    pt(A, "sm")
    A.wait(vm="fin"); A("s_barrier"); signal(A, 4)
    pt(A, "fin")
    poll_check(A, C, 3)
    F = Asm()
    poll_addr(F, "kvp", 1, 2)
    F(f"v_lshlrev_b32 v{vKA}, 4, v{vTID}")
    for j in range(1, 4): F(f"v_add_u32 v{vKA+j}, {4096*j}, v{vKA}")
    spread(A, F, sum((act_load(n, k) for n in range(4) for k in range(4)), []), 2, first=2)
    pt(A, "part1")
    NA = OPT.get("na", 2); NB = OPT.get("nb", 2)
    assert NA <= 3
    kq = OPT.get("kvpoll", 1)
    if kq == 0: poll_issue(A)
    for n in range(NA):
        step(A, n, wext(n))
        if kq == n + 1: poll_issue(A)
    poll_check(A, C, 4)
    pt(A, "kvchk")
    A(f"s_mul_i32 s{sP0}, s{sC}, {4*KVH}"); A(f"s_add_u32 s{sP0}, s{sP0}, {KV_OFF}"); A(f"s_add_u32 s{sP1}, s{sP0}, {KVC}")
    for j in range(4):
        A(f"buffer_load_dwordx4 {v(KVR+4*j,4)}, v{vKA+j}, {srdr(SWS)}, s{sP0} offen sc1")
        A(f"buffer_load_dwordx4 {v(NU+4*j,4)}, v{vKA+j}, {srdr(SWS)}, s{sP1} offen sc1")
    F = Asm()
    F(f"s_lshr_b32 s{sT0}, s{sC}, 1"); F(f"s_mul_i32 s{sT0}, s{sT0}, 5"); F(f"s_add_u32 s{sT0}, s{sT0}, 54"); F(f"s_lshl_b32 s{sT0}, s{sT0}, 10")
    F(f"s_mul_i32 s{sT1}, s{sWAVE}, {ACT_BLK}"); F(f"s_add_u32 s{sT0}, s{sT0}, s{sT1}"); F(f"s_add_u32 s{sT0}, s{sT0}, s{sAB}")
    F(f"s_and_b32 s{sT1}, s{sC}, 1"); F(f"s_lshl_b32 s{sT2}, s{sT1}, 11"); F(f"s_add_u32 s{sT2}, s{sT2}, s{sT0}")
    F(f"s_lshl_b32 s{sT1}, s{sT1}, 9"); F(f"s_add_u32 s{sT1}, s{sT1}, s{sT0}"); F(f"s_add_u32 s{sT1}, s{sT1}, 4096")
    F("v_lshrrev_b32 v3, 5, v0"); F("v_lshlrev_b32 v3, 8, v3"); F("v_and_b32 v4, 15, v0"); F("v_lshl_add_u32 v3, v4, 4, v3")
    F("v_bfe_u32 v4, v0, 4, 1"); F(f"v_lshl_add_u32 v{vOA}, v4, 3, v3")
    F(f"v_lshlrev_b32 v2, 3, v{vTID}"); F(f"v_add_u32 v2, {KVI}, v2")
    n0 = NA + NB - 1
    M = Asm()
    for n in range(NA, NA + NB): step(M, n, wext(n))
    ins, left = weave(M, F, per=2); A.extend(ins); A.extend(left)
    for j in range(4):
        for h in range(2): A(f"v_pk_add_f32 {v(KVR+4*j+2*h,2)}, {v(KVR+4*j+2*h,2)}, {v(NU+4*j+2*h,2)}")
        A(f"v_cvt_pk_bf16_f32 v{KVR+4*j}, v{KVR+4*j}, v{KVR+4*j+1}")
        A(f"v_cvt_pk_bf16_f32 v{KVR+4*j+1}, v{KVR+4*j+2}, v{KVR+4*j+3}")
        A(f"ds_write_b64 v2, {v(KVR+4*j,2)} offset:{2048*j}")
    A.wait(lgkm="all")
    A("s_barrier")
    pt(A, "stage")
    F = Asm()
    seq2 = [(st, ch) for st in range(5) for ch in range(6)]
    def krd(n):
        st, ch = seq2[n]
        for rho in range(2):
            F(f"ds_read_b64_tr_b16 {reg(n,2*rho,2)}, v{vF2} offset:{(8*st+4*rho)*48+ch*8}")
    for n in range(7): krd(n)
    for n in range(30):
        st, ch = seq2[n]
        d = v(NU + 4 * ch, 4)
        F(f"v_mfma_f32_16x16x32_bf16 {d}, {reg(n,0,4)}, {v(PK2+4*st,4)}, {'0' if st == 0 else d}")
        if n + 7 < 30: krd(n + 7)
    F(f"v_add_f32 v1, 0x358637bd, v{NU+20}"); F("v_rcp_f32 v1, v1"); F(f"v_mul_f32 v1, {hex(LOG2E)}, v1")
    for i in range(10):
        F(f"v_mul_f32 v{NU+2*i}, v{NU+2*i}, v1"); F(f"v_mul_f32 v{NU+2*i+1}, v{NU+2*i+1}, v1")
        F(f"v_cvt_pk_bf16_f32 v{NU+i}, v{NU+2*i}, v{NU+2*i+1}")
    F(f"buffer_store_dwordx4 {v(NU,4)}, v{vW}, {srdr(SWS)}, s{sT2} offen sc1", "ost")
    F(f"buffer_store_dwordx4 {v(NU+4,4)}, v{vW}, {srdr(SWS)}, s{sT2} offen offset:1024 sc1", "ost")
    F(f"buffer_store_dwordx2 {v(NU+8,2)}, v{vOA}, {srdr(SWS)}, s{sT1} offen sc1", "ost")
    M = Asm()
    P2 = OPT.get("p2steps", 1)
    for n in range(n0 + 1, n0 + 1 + P2): step(M, n, wext(n))
    tot = sum((2 if x.cls == "mfma" else x.cost) for x in F.ins)
    if P2: ins, left = weave(M, F, per=tot / (20 * P2) + 0.05); A.extend(ins); A.extend(left)
    else: A.extend(F)
    pt(A, "part2")
    n1 = n0 + 1 + P2
    F = Asm()
    poll_addr(F, "o", 1, 2)
    F("v_and_b32 v1, 15, v0"); F(f"s_lshl_b32 s{sT0}, s{sWAVE}, 4"); F(f"v_add_u32 v1, s{sT0}, v1"); F("v_mul_u32_u24 v1, 1280, v1")
    F("v_lshrrev_b32 v2, 4, v0"); F(f"v_lshl_add_u32 v{vXO}, v2, 4, v1"); F(f"v_lshl_add_u32 v{vXO+1}, v2, 3, v1")
    F(f"s_mul_i32 s{sXO}, s{sR}, {64*1280}"); F(f"s_mul_i32 s{sT0}, s{sC}, 160"); F(f"s_add_u32 s{sXO}, s{sXO}, s{sT0}")
    for k in range(1, 4):
        F(f"s_add_u32 s{sT0}, s{sWAVE}, {k}"); F(f"s_and_b32 s{sT0}, s{sT0}, 3"); F(f"s_mul_i32 s{sT0}, s{sT0}, 15360")
        F(f"s_add_u32 s{sT0}, s{sT0}, {RED + (k-1)*5120}"); F(f"v_add_u32 v{vRW+k-1}, s{sT0}, v{vW}")
    F(f"s_mul_i32 s{sT0}, s{sWAVE}, 15360"); F(f"v_add_u32 v{vRR}, s{sT0}, v{vW}")
    F(f"buffer_load_dwordx4 {v(XRS,4)}, v{vXO}, {srdr(SX)}, s{sXO} offen")
    F(f"buffer_load_dwordx4 {v(XRS+4,4)}, v{vXO}, {srdr(SX)}, s{sXO} offen offset:64")
    F(f"buffer_load_dwordx2 {v(XRS+8,2)}, v{vXO+1}, {srdr(SX)}, s{sXO} offen offset:128")
    M = Asm()
    SIG = n1 + OPT.get("osig", 1); POLL = OPT.get("opoll", 10)
    ol = [(f"buffer_load_dwordx4 {a(aO+16*i+4*k,4)}, v{vA+k}, {srdr(SWS)}, s{sA if i < 4 else sP1} offen offset:{1024*(i&3)} sc1", None, 1)
          for i in range(5) for k in range(4)]
    osp = OPT.get("osp", 3); o0 = OPT.get("o0", 2)
    for n in range(n1, 14):
        e = wext(n)
        if n > POLL:
            for g in range(20):
                if (20 * (n - POLL - 1) + g) % osp == osp - 1 and ol: e.setdefault(g, []).append(ol.pop(0))
        step(M, n, e)
        if n == SIG:
            M.wait(vm="ost"); M("s_barrier"); signal(M, 5)
            pt(M, "osig")
        if n == POLL - 1: poll_issue(M)
        if n == POLL:
            poll_check(M, C, 5)
            pt(M, "ochk")
            M(f"s_mul_i32 s{sA}, s{sWAVE}, 5120"); M(f"s_add_u32 s{sA}, s{sA}, s{sAB}"); M(f"s_add_u32 s{sA}, s{sA}, {54*1024}")
            M(f"s_add_u32 s{sP1}, s{sA}, 4096")
            emit(M, ol[:o0]); del ol[:o0]
    emit(M, ol)
    ins, left = weave(M, F, per=2); A.extend(ins); assert not left
    pt(A, "s13")
    for n in range(14, 18): step(A, n, {})
    n = 18
    order = [1, 2, 3, 0]
    for idx, k in enumerate(order):
        for nt in range(5):
            d = v(ACCO + 4 * (5 * k + nt), 4)
            A(f"v_mfma_f32_16x16x32_bf16 {d}, {a(slot(n)+4*nt,4)}, {a(aO+64+4*k,4)}, {d}")
            if idx >= 2 or (idx == 1 and nt >= 2):
                j = 5 * (idx - 1) + nt - 2
                kk = order[j // 5]
                A(f"ds_write_b128 v{vRW+kk-1}, {v(ACCO+4*(5*kk+j%5),4)} offset:{1024*(j%5)}")
    for j in range(13, 15):
        A(f"ds_write_b128 v{vRW+2}, {v(ACCO+4*(15+j%5),4)} offset:{1024*(j%5)}")
    XF = 100
    A(f"s_mov_b32 s{sT0}, {hex(LN2)}"); A(f"s_mov_b32 s{sT0+1}, {hex(LN2)}")
    for i in range(10):
        A(f"v_lshlrev_b32 v{44+2*i}, 16, v{XRS+i}"); A(f"v_and_b32 v{45+2*i}, 0xffff0000, v{XRS+i}")
    A.wait(lgkm="all")
    A("s_barrier")
    pt(A, "red")
    for nt in range(5):
        for sl in range(3):
            A(f"ds_read_b128 {v(ACT+12*nt+4*sl,4)}, v{vRR} offset:{sl*5120+nt*1024}")
    for nt in range(5):
        b = ACT + 12 * nt; o = ACCO + 4 * nt
        for h in range(2):
            A(f"v_pk_add_f32 {v(o+2*h,2)}, {v(o+2*h,2)}, {v(b+2*h,2)}")
            A(f"v_pk_add_f32 {v(b+4+2*h,2)}, {v(b+4+2*h,2)}, {v(b+8+2*h,2)}")
        for h in range(2):
            A(f"v_pk_add_f32 {v(o+2*h,2)}, {v(o+2*h,2)}, {v(b+4+2*h,2)}")
        for h in range(2):
            A(f"v_pk_fma_f32 {v(o+2*h,2)}, {v(o+2*h,2)}, s[{sT0}:{sT0+1}], {v(44+4*nt+2*h,2)}")
        for h in range(2):
            A(f"v_cvt_pk_bf16_f32 v{64+2*nt+h}, v{o+2*h}, v{o+2*h+1}")
        if nt == 1: A(f"buffer_store_dwordx4 {v(64,4)}, v{vXO}, {srdr(SOUT)}, s{sXO} offen")
        if nt == 3: A(f"buffer_store_dwordx4 {v(68,4)}, v{vXO}, {srdr(SOUT)}, s{sXO} offen offset:64")
        if nt == 4: A(f"buffer_store_dwordx2 {v(72,2)}, v{vXO+1}, {srdr(SOUT)}, s{sXO} offen offset:128")
    A(f"s_add_u32 s{sP0}, s{sE}, 16"); A(f"v_mov_b32 v1, s{sP0}")
    A(f"s_cmp_eq_u32 s2, 0"); A(f"s_cselect_b32 s{sP1}, 0, {hex(OOB)}")
    A(f"v_subrev_u32 v2, {FLG_OFF}, v{vFL}")
    A(f"buffer_store_dword v1, v2, {srdr(SWS)}, s{sP1} offen sc1")
    prof_flush(A, 0, SWS, sWAVE)

OPT = {}
DEFST = ["p1end", "p2end", "first", "fin", "kvchk", "stage", "part2", "osig", "ochk", "s13"]
def pt(A, name):
    L = OPT.get("stamps", DEFST)
    if name in L: stamp(A, 2 + L.index(name))

def gen(name=MAIN, **opt):
    OPT.clear(); OPT.update(opt)
    C = Ctx("f")
    A = Asm()
    prologue(A, C)
    role_kv(A, C)
    role_p(A, C)
    phase2(A, C)
    A("s_endpgm")
    A.extend(C.spins)
    A.label(C.L("end"))
    A("s_endpgm")
    return dict(name=name, ins=render(finalize(A)), grid=256, block=256, lds=LDSZ, vgpr=512, accum=256)

if __name__ == "__main__":
    for P in range(320): assert (P * 3277) >> 16 == P // 20 and (P * 6554) >> 16 == P // 10
    for P in range(20): assert (P * 13108) >> 16 == P // 5 and (P * 52) >> 8 == P // 5
    for P in range(1024): assert (P * 10923) >> 16 == P // 6
    open("g_test.s", "w").write(build_file([gen()]))
    PROF["on"] = True
    st = sys.argv[1].split(",") if len(sys.argv) > 1 and sys.argv[1] != "-" else DEFST
    if st == ["C"]: st = [f"c{i}" for i in range(10)]
    opt = eval("dict(" + sys.argv[2] + ")") if len(sys.argv) > 2 else {}
    open(sys.argv[3] if len(sys.argv) > 3 else "g_prof.s", "w").write(build_file([gen(stamps=st, **opt)]))
    if len(sys.argv) > 4:
        PROF["on"] = False
        open(sys.argv[4], "w").write(build_file([gen(**opt)]))
```

```python
from common import *
import common, sys

E_OFF = 0; FLG_OFF = 0x1000; W2P_OFF = 0x20000; ACT_OFF = 0x320000; ACT_BLK = 94 * 1024
KV_OFF = 0xEE0000; ST_OFF = 0xF20000; CS_OFF = 0xF30000
KVH = 3840; KVC = 32 * KVH
common.PROF_OFF = 0xF80000
XW = 13312; WR = 4 * XW; XR = 86016; SPARE = 151552
HS = 16384
PHI2 = SPARE; PZERO = SPARE + 3840; PHI1 = SPARE + 5760; PKX = SPARE + 5760; CSR = SPARE + 10880
PHIK = XR; VIM = XR + 40960; KVI = 20480; RED = 0
LDSZ = 163840
sWAVE = 3
SX, SWA, SWB, SWS, SB1, SPH, SOUT, SPK, SCS = 24, 28, 32, 36, 40, 44, 48, 52, 56
sM, sU, sR, sC, sE, sXO, sXM, sWB = 60, 61, 62, 63, 64, 65, 66, 67
sT0, sT1, sT2, sT3 = 68, 69, 70, 71
sWO, sWS, sACT, sA, sW, sAB = 4, 5, 6, 7, 8, 9
sEX = 10
sPKO, sPKD, sQF, sCS3, sB3, sACT3, sP0, sP1 = 12, 13, 14, 15, 16, 17, 18, 19
sPC = 100
sX1, sXD = 20, 21
sWT = 22; sPV = 23
sF0, sF1 = 0, 1
sSTO, sCSO, sCSP, sPX0, sPX1, sWQ, sCSL = 7, 9, 15, 16, 17, 12, 22
vTID, vFL, vPOLL, vPA, vW = 8, 9, 10, 11, 12
vPT = 14
vXD = 16; vXRD = 20
vAD = 24; vPD = 29; vAR = 34; vPR = 36
vP1 = 24; vPX = 28; vPRP = 32; vCSA = 36
vSA = 15; vCL = 54
vAST = 44; vS1 = 45; vRS = 46; vCP = 47; vCB = 48; vST = 52; vEP = 55
vQC = 56
aX = 224; aW = 160; aF = 240

def srdr(n): return f"s[{n}:{n+3}]"
def slot(n): return 20 * ((n + 10) % 12)

def csel(A, dst, x, y):
    A(f"s_mov_b32 s{dst}, {y}"); A(f"s_cselect_b32 s{dst}, {x}, s{dst}")

class Ctx:
    def __init__(self, name):
        self.name = name; self.spins = Asm(); self.n = 0
    def L(self, x): return f"{self.name}_{x}"

def signal(A, level):
    A(f"s_add_u32 s{sP0}, s{sE}, {level}")
    A(f"v_mov_b32 v{vPT}, s{sP0}")
    A(f"buffer_store_dword v{vPT}, v{vFL}, {srdr(SWS)}, 0 offen sc1", "flag")

def poll_issue(A):
    A(f"buffer_load_dword v{vPOLL}, v{vPA}, {srdr(SWS)}, 0 offen sc1", "poll")

def poll_check(A, C, level):
    C.n += 1
    k = C.n
    A(f"s_add_u32 s{sP0}, s{sE}, {level}")
    A.g(f"v_subrev_u32 v{vPT}, s{sP0}, v{vPOLL}")
    A.g(f"v_cmp_gt_u32_e64 s[{sPC}:{sPC+1}], 8, v{vPT}")
    A.g(f"s_cmp_eq_u64 s[{sPC}:{sPC+1}], -1")
    A.g(f"s_cbranch_scc0 {C.L(f'spin{k}')}")
    A.label(C.L(f"back{k}")); A.ins[-1].glue = True
    S = C.spins
    S.label(C.L(f"spin{k}"))
    S(f"s_mov_b32 s{sP1}, 0")
    S.label(C.L(f"loop{k}"))
    poll_issue(S)
    S(f"s_add_u32 s{sP1}, s{sP1}, 1")
    S(f"s_cmp_gt_u32 s{sP1}, 0x8000")
    S(f"s_cbranch_scc1 {C.L(f'back{k}')}")
    S(f"v_subrev_u32 v{vPT}, s{sP0}, v{vPOLL}")
    S(f"v_cmp_gt_u32_e64 s[{sPC}:{sPC+1}], 8, v{vPT}")
    S(f"s_cmp_eq_u64 s[{sPC}:{sPC+1}], -1")
    S(f"s_cbranch_scc0 {C.L(f'loop{k}')}")
    S(f"s_branch {C.L(f'back{k}')}")

def poll_addr(A, kind, t0, t1):
    if kind == "all":
        A(f"v_and_b32 v{vPA}, 127, v{vTID}"); A(f"v_lshlrev_b32 v{vPA}, 8, v{vPA}")
        A(f"v_add_u32 v{vPA}, {FLG_OFF + 128*256}, v{vPA}")
        return
    if kind == "grp":
        A(f"s_lshr_b32 s{sF0}, s{sR}, 4"); A(f"s_lshl_b32 s{sF0}, s{sF0}, 2")
        A(f"s_bfe_u32 s{sF1}, s{sR}, 0x30001"); A(f"s_lshl_b32 s{sF1}, s{sF1}, 3")
        A(f"v_bfe_u32 v{t0}, v0, 2, 2"); A(f"v_and_b32 v{t1}, 3, v0")
        A(f"v_lshl_add_u32 v{t0}, v{t0}, 6, v{t1}")
    elif kind in ("pgrp", "q"):
        A(f"s_lshr_b32 s{sF0}, s{sR}, 4"); A(f"s_lshl_b32 s{sF0}, s{sF0}, 2")
        A(f"s_bfe_u32 s{sF1}, s{sR}, 0x30001"); A(f"s_lshl_b32 s{sF1}, s{sF1}, 3")
        A(f"s_add_u32 s{sF0}, s{sF0}, s{sF1}")
        if kind == "pgrp":
            A(f"s_mov_b32 s{sF1}, 128")
            A(f"v_bfe_u32 v{t0}, v0, 2, 1"); A(f"v_and_b32 v{t1}, 3, v0")
        else:
            A(f"s_mul_i32 s{sF1}, s{sC}, 5"); A(f"s_lshr_b32 s{sF1}, s{sF1}, 2")
            A(f"v_and_b32 v{t0}, 1, v0"); A(f"v_add_u32 v{t0}, s{sF1}, v{t0}")
            A(f"v_lshrrev_b32 v{vPA}, 3, v{t0}"); A(f"v_bfe_u32 v{t1}, v{t0}, 1, 2"); A(f"v_and_b32 v{t0}, 1, v{t0}")
            A(f"v_lshl_add_u32 v{t0}, v{vPA}, 1, v{t0}")
            A(f"s_mov_b32 s{sF1}, 0")
        A(f"v_lshl_add_u32 v{t0}, v{t0}, 6, v{t1}")
    elif kind == "kvp":
        A(f"s_and_b32 s{sF0}, s{sC}, 1"); A(f"s_lshl_b32 s{sF0}, s{sF0}, 6")
        A(f"s_lshr_b32 s{sF1}, s{sC}, 1")
        A(f"s_add_u32 s{sF0}, s{sF0}, s{sF1}"); A(f"s_lshl_b32 s{sF0}, s{sF0}, 8"); A(f"s_add_u32 s{sF0}, s{sF0}, {FLG_OFF}")
        A(f"v_and_b32 v{t0}, 15, v0")
        A(f"v_lshl_add_u32 v{t0}, v{t0}, 10, s{sF0}")
        A("v_cmp_gt_u32 vcc, 32, v0"); A.g(f"v_cndmask_b32 v{vPA}, v{vPA}, v{t0}, vcc")
        return
    elif kind == "o":
        A(f"s_and_b32 s{sF0}, s{sR}, 7"); A(f"s_lshl_b32 s{sF0}, s{sF0}, 5")
        A(f"s_lshr_b32 s{sF1}, s{sR}, 3"); A(f"s_lshl_b32 s{sF1}, s{sF1}, 1")
        A(f"v_bfe_u32 v{t0}, v0, 1, 2"); A(f"v_and_b32 v{t1}, 1, v0")
        A(f"v_lshl_add_u32 v{t0}, v{t0}, 3, v{t1}")
    A(f"s_add_u32 s{sF0}, s{sF0}, s{sF1}")
    A(f"s_lshl_b32 s{sF0}, s{sF0}, 8")
    A(f"s_add_u32 s{sF0}, s{sF0}, {FLG_OFF}")
    A(f"v_lshl_add_u32 v{vPA}, v{t0}, 8, s{sF0}")

def x_dma(j):
    if j >= 10 or (OPT.get("nodma") and j >= 2): return []
    o = [(f"s_add_u32 m0, s{sXM}, {(j % 3) * 4096}", None, 0), (f"s_add_u32 s{sXD}, s{sXO}, {0 if OPT.get('samedma') else j*128}", None, 0)]
    for i in range(4):
        o.append((f"buffer_load_dwordx4 v{vXD+i}, {srdr(SX)}, s{sXD} offen offset:{1024*i} lds", f"x{j}", 1))
    return o

def kv_dma(h):
    if h >= 20 or (OPT.get("nodma") and h >= 4): return []
    o = [(f"s_mov_b32 s{sWO}, {0 if OPT.get('samedma') else h*32*3840}", None, 0), (f"s_add_u32 m0, s{sWB}, {(h % 6) * HS}", None, 0)]
    for i in range(3):
        o.append((f"buffer_load_dwordx4 v{vAD+i}, {srdr(SWA)}, s{sWO} offen offset:{1024*i} lds", f"w{h}", 1))
    o.append((f"s_add_u32 m0, s{sWQ}, {(h % 6) * HS}", None, 0))
    o.append((f"buffer_load_dwordx4 v{vPD}, {srdr(SWA)}, s{sWO} offen lds", f"w{h}", 1))
    return o

def p_dma(h):
    if h >= 20 or (OPT.get("nodma") and h >= 4): return []
    o = [(f"s_add_u32 m0, s{sWB}, {(h % 6) * HS}", None, 0)]
    if h and not OPT.get("samedma"): o.append((f"s_add_u32 s{sWO}, s{sWO}, s{sWS}", None, 0))
    for i in range(4):
        o.append((f"buffer_load_dwordx4 v{vP1+i}, {srdr(SWA)}, s{sWO} offen offset:{1024*i} lds", f"w{h}", 1))
    return o

def w2p_loads(n):
    o = []
    so = sWT
    if n == 0: so = sW
    elif n == 13: so = sX1
    elif n == 14: so = sPV
    elif n < 13: o.append((f"s_add_u32 s{sWT}, s{sW}, {20480*n}", None, 0))
    else: o.append((f"s_add_u32 s{sWT}, s{sPV}, {5120*(n-14)}", None, 0))
    for nt in range(5):
        o.append((f"buffer_load_dwordx4 {a(slot(n)+4*nt,4)}, v{vW+(nt>>2)}, {srdr(SWS)}, s{so} offen offset:{1024*(nt&3)} sc1", f"W2{n}", 1))
    return o
def wl(*ns): return sum((w2p_loads(n) for n in ns), [])

def emit1(A, e):
    if e[0].startswith("WAIT:"):
        _, k, t = e[0].split(":")
        A.wait(**{k: t})
    elif len(e) > 3 and e[3]: A.g(e[0], e[1])
    else: A(e[0], e[1])

def emit(A, lst):
    for e in lst: emit1(A, e)

class DQ:
    def __init__(self): self.q = []; self.gap = 0
    def add(self, lst, front=False):
        if front:
            k = 0
            while k < len(self.q) and self.q[k][2] == 0: k += 1
            while k < len(self.q) and not (self.q[k][2] == 0 and "m0, m0" not in self.q[k][0] and "m0, m0" not in self.q[k-1][0]
                                           and "exec" not in self.q[k][0]): k += 1
            self.q[k:k] = list(lst)
        else: self.q += list(lst)
    def pop(self, A, n=1, ahead=True):
        while self.q and n > 0.01:
            e = self.q.pop(0)
            emit1(A, e); n -= e[2]
        while self.q and self.q[0][2] == 0 and self.q[0][0].startswith("s_") and (ahead or "exec" in self.q[0][0]) \
                and not self.q[0][0].startswith("s_mov_b64 exec, s"):
            emit1(A, self.q.pop(0))
    def count(self): return sum(e[2] for e in self.q)

def spread(A, code, lst, every, first=0):
    dq = DQ(); dq.add(lst)
    n = first
    scc_live = False
    for x in code.ins:
        if n >= every and dq.q and not x.glue and not (x.op.startswith(("s_cselect", "s_cbranch_scc", "s_addc")) or scc_live):
            dq.pop(A, 1); n = 0
        A.ins.append(x)
        if x.op.startswith("s_cmp"): scc_live = True
        elif x.cls == "salu" and not x.op.startswith(("s_cselect", "s_mov", "s_mul_i32")) : scc_live = False
        elif x.cls != "salu": scc_live = False if not scc_live else scc_live
        n += 1
    dq.pop(A, 99)

def gemm_steps(A, steps, D, dq, pre_barrier=None, post_barrier=None, every=2):
    n = len(steps)
    late = []
    for s in range(n + 1):
        rd = []
        bar = None
        if s < n:
            st = steps[s]
            if st["chunk"] is not None:
                def bar(st=st):
                    if pre_barrier and st["xj"] is not None: pre_barrier(A, st["xj"])
                    tags = [f"w{st['chunk']}"]
                    if st["xj"] is not None: tags.append(f"x{st['xj']}")
                    tags += st.get("tags", [])
                    nf = 0
                    while any(e[1] in tags for e in dq.q): dq.pop(A, 1); nf += 1
                    if nf and OPT.get("verbose"): print("forced", nf, "before chunk", st["chunk"])
                    A.wait(vm=tags, lgkm="all")
                    A("s_barrier")
                    if post_barrier and st["xj"] is not None: post_barrier(A, st["xj"], dq)
                    dq.add(st.get("queue", []))
            rd = [(t, f"r{s}_{i // (2 * OPT.get('wgrp', 2))}") for i, t in enumerate(st["reads"])]
            if st["xj"] is not None:
                j = st["xj"]
                xr = [(f"ds_read_b128 {a(aX + 16*(j&1) + 4*q, 4)}, v{vXRD+q} offset:{(j % 3) * 4096}", "xr") for q in range(4)]
                rd = xr[:1] + rd + xr[1:2]
                late = xr[2:]
            else:
                rd = rd + late; late = []
                if not bar: dq.add(st.get("queue", []))
        if s == 0:
            bar()
            for t, tag in rd: A(t, tag)
            continue
        m = steps[s - 1]
        nt = m["nt"]
        bd = OPT.get("bdelay", 3) if bar else 0
        if bar and bd == 0: bar()
        for t in range(nt):
            acc = m["acc"][t]
            cin = "0" if m["first"] else v(acc, 16)
            if t % OPT.get("wgrp", 2) == 0: A.wait(lgkm=f"r{s-1}_{t // OPT.get('wgrp', 2)}")
            A(f"v_mfma_f32_32x32x16_bf16 {v(acc,16)}, {a(m['frag']+4*t,4)}, {a(m['xreg'],4)}, {cin}")
            if bar and t == bd - 1: bar()
            if t >= bd - 1:
                per = -(-len(rd) // (nt - t))
                take = rd[:per]; rd = rd[per:]
                for tx, tag in take: A(tx, tag)
            dq.gap += 1
            ev = every[min((s - 1) // 4, len(every) - 1)] if isinstance(every, (list, tuple)) else every
            if dq.q and dq.gap >= ev - 0.01:
                dq.pop(A, 1); dq.gap = min(dq.gap - ev, 0.99)

def corr_frag(A, raw, tmp):
    A(f"v_add_f32 v{tmp}, v{raw}, v{raw+2}")
    A(f"v_lshrrev_b32 v{raw+2}, 16, v{raw+1}")
    A(f"v_cvt_pk_bf16_f32 v{raw}, v{tmp}, v{tmp}")
    A(f"v_and_b32 v{raw+3}, 0xffff0000, v{raw}")
    A(f"v_sub_f32 v{tmp}, v{tmp}, v{raw+3}")
    A(f"v_mov_b32 v{raw+3}, 0")
    A(f"v_cvt_pk_bf16_f32 v{raw+1}, v{tmp}, v{raw+1}")

def stats_frag(A, t):
    m, ve = vST, vST + 1
    A(f"v_rsq_f32 v{vRS}, v{ve}")
    A(f"v_sub_f32 v{t}, 0, v{m}")
    A(f"v_mul_f32 v{t+1}, v{ve}, v{vRS}")
    A(f"v_mul_f32 v{vS1}, {hex(LOG2E)}, v{vRS}")
    A(f"v_cvt_pk_bf16_f32 v{vCB+1}, v{t}, v{t+1}")
    A(f"v_lshlrev_b32 v{t+2}, 16, v{vCB+1}")
    A(f"v_and_b32 v{t+3}, 0xffff0000, v{vCB+1}")
    A(f"v_sub_f32 v{t+2}, v{t}, v{t+2}")
    A(f"v_sub_f32 v{t+3}, v{t+1}, v{t+3}")
    A(f"v_cvt_pk_bf16_f32 v{vCB}, v{t}, v{t+2}")
    A(f"v_cvt_pk_bf16_f32 v{vCB+2}, v{t+3}, 0")
    A(f"v_mov_b32 v{vCB+3}, 0")
    A(f"v_cmp_gt_u32 vcc, 32, v0")
    for i in range(3):
        A.g(f"v_cndmask_b32 v{vCB+i}, 0, v{vCB+i}, vcc")

def mish(A, acc, n, e, G=4):
    for g0 in range(0, n, G):
        t = acc + g0
        for i in range(G): A(f"v_mul_f32 v{t+i}, v{t+i}, v{vS1}")
        for i in range(G): A(f"v_exp_f32 v{e+i}, v{t+i}")
        for i in range(G): A(f"v_fma_f32 v{e+G+i}, v{e+i}, 0.5, 1.0")
        for i in range(G): A(f"v_fma_f32 v{e+i}, v{e+i}, v{e+G+i}, 1.0")
        for i in range(G): A(f"v_rcp_f32 v{e+i}, v{e+i}")
        for i in range(G): A(f"v_fma_f32 v{e+i}, -v{t+i}, v{e+i}, v{t+i}")
        o = acc + (g0 & ~7) + (g0 & 7) // 2
        for i in range(0, G, 2): A(f"v_cvt_pk_bf16_f32 v{o+i//2}, v{e+i}, v{e+i+1}")

def mish_pk(A, acc, n, e):
    G = 8
    s1 = f"v[{vS1-1}:{vS1}]"
    for g0 in range(0, n, G):
        t = acc + g0
        for i in range(0, G, 2): A(f"v_pk_mul_f32 {v(t+i,2)}, {v(t+i,2)}, {s1} op_sel:[0,1] op_sel_hi:[1,1]")
        for i in range(G): A(f"v_exp_f32 v{e+i}, v{t+i}")
        for i in range(0, G, 2): A(f"v_pk_fma_f32 {v(e+G+i,2)}, {v(e+i,2)}, 0.5, 1.0 op_sel_hi:[1,0,0]")
        for i in range(0, G, 2): A(f"v_pk_fma_f32 {v(e+i,2)}, {v(e+i,2)}, {v(e+G+i,2)}, 1.0 op_sel_hi:[1,1,0]")
        for i in range(G): A(f"v_rcp_f32 v{e+i}, v{e+i}")
        for i in range(0, G, 2): A(f"v_pk_fma_f32 {v(e+i,2)}, {v(t+i,2)}, {v(e+i,2)}, {v(t+i,2)} neg_lo:[1,0,0] neg_hi:[1,0,0]")
        for i in range(0, G, 2): A(f"v_cvt_pk_bf16_f32 v{t+i//2}, v{e+i}, v{e+i+1}")

def pair_store(A, acc, soff, tag, t, p):
    A(f"buffer_store_dwordx4 {v(acc+16*t+8*p,4)}, v{vAST}, {srdr(SWS)}, s{soff} offen offset:{1024*t+512*p} sc1", tag)

def softmax_pair(A, p, EP, EN, PK, s1, t0):
    a0, a1 = t0, t0 + 1
    A(f"v_max3_f32 v{a0}, v{p}, v{p+1}, v{p+2}")
    A(f"v_min3_f32 v{a1}, v{p}, v{p+1}, v{p+2}")
    for i in range(3, 19, 2):
        A(f"v_max3_f32 v{a0}, v{a0}, v{p+i}, v{p+i+1}")
        A(f"v_min3_f32 v{a1}, v{a1}, v{p+i}, v{p+i+1}")
    A(f"v_max_f32 v{a0}, v{a0}, v{p+19}")
    A(f"v_min_f32 v{a1}, v{a1}, v{p+19}")
    A(f"v_mul_f32 v{a0}, v{a0}, v{s1}")
    A(f"v_mul_f32 v{a1}, v{a1}, v{s1}")
    for i in range(20):
        A(f"v_fma_f32 v{EP+i}, v{p+i}, v{s1}, -v{a0}")
        A(f"v_fma_f32 v{EN+i}, -v{p+i}, v{s1}, v{a1}")
        A(f"v_exp_f32 v{EP+i}, v{EP+i}")
        A(f"v_exp_f32 v{EN+i}, v{EN+i}")
    A(f"v_add_f32 v{a0}, v{EP}, v{EP+1}")
    A(f"v_add_f32 v{a1}, v{EN}, v{EN+1}")
    for i in range(2, 20):
        A(f"v_add_f32 v{a0}, v{a0}, v{EP+i}")
        A(f"v_add_f32 v{a1}, v{a1}, v{EN+i}")
    A(f"v_rcp_f32 v{a0}, v{a0}")
    A(f"v_rcp_f32 v{a1}, v{a1}")
    for i in range(10):
        A(f"v_mul_f32 v{EP+2*i}, v{EP+2*i}, v{a0}")
        A(f"v_mul_f32 v{EP+2*i+1}, v{EP+2*i+1}, v{a0}")
        A(f"v_cvt_pk_bf16_f32 v{PK+i}, v{EP+2*i}, v{EP+2*i+1}")
    for i in range(10):
        A(f"v_mul_f32 v{EN+2*i}, v{EN+2*i}, v{a1}")
        A(f"v_mul_f32 v{EN+2*i+1}, v{EN+2*i+1}, v{a1}")
        A(f"v_cvt_pk_bf16_f32 v{PK+10+i}, v{EN+2*i}, v{EN+2*i+1}")

def softmax_pair_pk(A, p, EP, EN, PK, s1, t0):
    a0, a1 = t0, t0 + 1
    sp = v(s1 & ~1, 2); sh = s1 & 1
    A(f"v_max3_f32 v{a0}, v{p}, v{p+1}, v{p+2}")
    A(f"v_min3_f32 v{a1}, v{p}, v{p+1}, v{p+2}")
    for i in range(3, 19, 2):
        A(f"v_max3_f32 v{a0}, v{a0}, v{p+i}, v{p+i+1}")
        A(f"v_min3_f32 v{a1}, v{a1}, v{p+i}, v{p+i+1}")
    A(f"v_max_f32 v{a0}, v{a0}, v{p+19}")
    A(f"v_min_f32 v{a1}, v{a1}, v{p+19}")
    A(f"v_mul_f32 v{a0}, v{a0}, v{s1}")
    A(f"v_mul_f32 v{a1}, v{a1}, v{s1}")
    ap = v(a0, 2)
    for i in range(0, 20, 2):
        A(f"v_pk_fma_f32 {v(EP+i,2)}, {v(p+i,2)}, {sp}, {ap} op_sel:[0,{sh},0] op_sel_hi:[1,{sh},0] neg_lo:[0,0,1] neg_hi:[0,0,1]")
        A(f"v_pk_fma_f32 {v(EN+i,2)}, {v(p+i,2)}, {sp}, {ap} op_sel:[0,{sh},1] op_sel_hi:[1,{sh},1] neg_lo:[1,0,0] neg_hi:[1,0,0]")
        for k in range(2):
            A(f"v_exp_f32 v{EP+i+k}, v{EP+i+k}")
        for k in range(2):
            A(f"v_exp_f32 v{EN+i+k}, v{EN+i+k}")
    sP, sN = v(t0 + 2, 2), v(t0 + 4, 2)
    A(f"v_pk_add_f32 {sP}, {v(EP,2)}, {v(EP+2,2)}")
    A(f"v_pk_add_f32 {sN}, {v(EN,2)}, {v(EN+2,2)}")
    for i in range(4, 20, 2):
        A(f"v_pk_add_f32 {sP}, {sP}, {v(EP+i,2)}")
        A(f"v_pk_add_f32 {sN}, {sN}, {v(EN+i,2)}")
    A(f"v_add_f32 v{a0}, v{t0+2}, v{t0+3}")
    A(f"v_add_f32 v{a1}, v{t0+4}, v{t0+5}")
    A(f"v_rcp_f32 v{a0}, v{a0}")
    A(f"v_rcp_f32 v{a1}, v{a1}")
    A("s_nop 0")
    for i in range(10):
        A(f"v_pk_mul_f32 {v(EP+2*i,2)}, {v(EP+2*i,2)}, {ap} op_sel:[0,0] op_sel_hi:[1,0]")
        if i: A(f"v_cvt_pk_bf16_f32 v{PK+i-1}, v{EP+2*i-2}, v{EP+2*i-1}")
    for i in range(10):
        A(f"v_pk_mul_f32 {v(EN+2*i,2)}, {v(EN+2*i,2)}, {ap} op_sel:[0,1] op_sel_hi:[1,1]")
        if i == 0: A(f"v_cvt_pk_bf16_f32 v{PK+9}, v{EP+18}, v{EP+19}")
        else: A(f"v_cvt_pk_bf16_f32 v{PK+10+i-1}, v{EN+2*i-2}, v{EN+2*i-1}")
    A(f"v_cvt_pk_bf16_f32 v{PK+19}, v{EN+18}, v{EN+19}")

def weave32(main, fill, **kw):
    main = list(main.ins if isinstance(main, Asm) else main)
    small = [x for x in main if x.cls == "mfma" and "16x16" in x.op]
    for x in small: x.cls = "mfma16"
    r = weave(main, fill, **kw)
    for x in small: x.cls = "mfma"
    return r

def common_lane(A):
    A("v_lshrrev_b32 v1, 5, v0")
    A("v_bfe_u32 v2, v0, 2, 2")
    A("v_and_b32 v3, 1, v0")
    A("v_bfe_u32 v4, v0, 1, 1")
    A("v_bfe_u32 v5, v0, 4, 1")
    A("v_lshl_add_u32 v4, v5, 1, v4")
    A("v_lshl_add_u32 v6, v1, 3, v2")

PRS = 64; PRC = 84; PRT = 124
vBI = 63; aPK = 0; aPH = 28

def wo_rows(A, t, b, qs, hi, t0, t1):
    A(f"s_mul_i32 s{t1}, s{t}, 52"); A(f"s_lshr_b32 s{t1}, s{t1}, 8")
    A(f"s_mul_i32 s{b}, s{t1}, 5"); A(f"s_sub_u32 s{t0}, s{t}, s{b}")
    A(f"s_mul_i32 s{b}, s{t1}, 160")
    A(f"s_lshr_b32 s{t1}, s{t0}, 1"); A(f"s_mul_i32 s{t1}, s{t1}, 80")
    A(f"s_and_b32 s{qs}, s{t0}, 1"); A(f"s_lshl_b32 s{qs}, s{qs}, 3"); A(f"s_add_u32 s{t1}, s{t1}, s{qs}")
    A(f"s_cmp_eq_u32 s{t0}, 4")
    A(f"s_cselect_b32 s{t1}, 16, s{t1}")
    A(f"s_cselect_b32 s{qs}, 40, 20")
    A(f"s_cselect_b32 s{hi}, 20, 4")
    A(f"s_add_u32 s{b}, s{b}, s{t1}")

def pack_addr(A, dst, qs, hi):
    A("v_mul_u32_u24 v2, 6554, v1"); A("v_lshrrev_b32 v2, 16, v2")
    A("v_mul_u32_u24 v3, 10, v2"); A("v_sub_u32 v3, v1, v3")
    A("v_lshrrev_b32 v4, 3, v2"); A(f"v_mul_u32_u24 v4, s{qs}, v4")
    A("v_bfe_u32 v5, v2, 2, 1"); A(f"v_mad_u32_u24 v4, v5, s{hi}, v4")
    A("v_and_b32 v5, 3, v2"); A("v_add_u32 v4, v4, v5")
    A("v_mul_u32_u24 v4, 1280, v4")
    A(f"v_lshl_add_u32 v{dst}, v3, 4, v4")

def pack_T(A, T, t):
    A(f"s_bfe_u32 s{T}, s2, 0x10006"); A(f"s_and_b32 s{t}, s2, 7"); A(f"s_lshl_b32 s{t}, s{t}, 1"); A(f"s_add_u32 s{T}, s{T}, s{t}")
    A(f"s_lshl_b32 s{t}, s{sWAVE}, 4"); A(f"s_add_u32 s{T}, s{T}, s{t}")

def cs_line(A, Lr, t0, t1):
    A(f"s_and_b32 s{t0}, s2, 3"); A(f"s_lshl_b32 s{t0}, s{t0}, 1"); A(f"s_bfe_u32 s{t1}, s2, 0x10003"); A(f"s_add_u32 s{t0}, s{t0}, s{t1}")
    A(f"s_bfe_u32 s{t1}, s2, 0x30004"); A(f"s_lshl_b32 s{Lr}, s{t1}, 3"); A(f"s_add_u32 s{Lr}, s{Lr}, s{t0}")
    A(f"s_cmp_lt_u32 s{Lr}, 2"); A(f"s_cselect_b32 s{t1}, 8, 28"); A(f"s_add_u32 s{Lr}, s{Lr}, s{t1}")
    A(f"s_bfe_u32 s{t1}, s2, 0x40003")
    A(f"s_cmp_ge_u32 s{t1}, 8"); A(f"s_cselect_b32 s{Lr}, s{t0}, s{Lr}")
    A(f"s_cmp_ge_u32 s{t1}, 13"); A(f"s_cselect_b32 s{t0}, 7, 0"); A(f"s_add_u32 s{t0}, s{t0}, s{t1}")
    A(f"s_cmp_ge_u32 s{t1}, 10"); A(f"s_cselect_b32 s{Lr}, s{t0}, s{Lr}")
    A(f"s_cselect_b32 s{t1}, 1, 0")
    A(f"s_bfe_u32 s{t0}, s2, 0x10001"); A(f"s_mul_i32 s{t0}, s{t0}, 5"); A(f"s_mul_i32 s{t0}, s{t0}, s{t1}"); A(f"s_add_u32 s{Lr}, s{Lr}, s{t0}")
    A(f"s_and_b32 s{t0}, s2, s{t1}"); A(f"s_mul_i32 s{t0}, s{t0}, 3"); A(f"s_add_u32 s{Lr}, s{Lr}, s{t0}")
    A(f"s_bfe_u32 s{t1}, s2, 0x40003"); A(f"s_lshl_b32 s{t1}, 1, s{t1}"); A(f"s_and_b32 s{t1}, s{t1}, 0x9000")
    A(f"s_mul_i32 s{t1}, s{t1}, s{t0}"); A(f"s_add_u32 s{Lr}, s{Lr}, s{t1}")
    A(f"s_min_u32 s{Lr}, s{Lr}, 63")

def pack_setup(A):
    T, b, qs, hi = sT0, sT1, sT2, sT3
    pack_T(A, T, b)
    A(f"s_bfe_u32 s{sPX0}, s2, 0x30003")
    A(f"s_mul_i32 s{sPX1}, s{sPX0}, 74"); A(f"s_add_u32 s{sPKD}, s{sPX1}, s{T}")
    A(f"s_mul_i32 s{sPKD}, s{sPKD}, 5120"); A(f"s_add_u32 s{sPKD}, s{sPKD}, {W2P_OFF}")
    A(f"s_sub_u32 s{sPKO}, s{T}, 54")
    wo_rows(A, sPKO, b, qs, hi, sP0, sP1)
    A(f"s_lshl_b32 s{sP1}, s{T}, 5")
    A(f"s_cmp_lt_u32 s{T}, 54")
    A(f"s_cselect_b32 s{b}, s{sP1}, s{b}")
    A(f"s_cselect_b32 s{qs}, 8, s{qs}")
    A(f"s_cselect_b32 s{hi}, 4, s{hi}")
    A(f"s_mul_i32 s{b}, s{b}, 1280")
    A(f"s_mul_i32 s{sPX0}, s{sPX0}, 160"); A(f"s_add_u32 s{sPKO}, s{sPX0}, s{b}")
    for i in range(5):
        A(f"v_add_u32 v1, {64*i}, v0")
        pack_addr(A, vQC + i, qs, hi)
        if 0 < i < 4: A(f"v_subrev_u32 v{vQC+i}, {1024*i}, v{vQC+i}")
    A(f"s_bfe_u32 s{T}, s2, 0x10006"); A(f"s_lshl_b32 s{T}, s{T}, 3"); A(f"s_and_b32 s{b}, s2, 7"); A(f"s_add_u32 s{T}, s{T}, s{b}")
    A(f"s_add_u32 s{T}, s{T}, 10")
    A(f"s_add_u32 s{sPX1}, s{sPX1}, s{T}"); A(f"s_add_u32 s{sPX1}, s{sPX1}, 54")
    A(f"s_mul_i32 s{sPX1}, s{sPX1}, 5120"); A(f"s_add_u32 s{sPX1}, s{sPX1}, {W2P_OFF}")
    wo_rows(A, T, b, qs, hi, sP0, sP1)
    A(f"s_mul_i32 s{b}, s{b}, 1280"); A(f"s_add_u32 s{sPX0}, s{sPX0}, s{b}")
    A(f"s_cmp_lt_u32 s{T}, 20")
    A(f"s_cselect_b32 s{sPX1}, s{sPX1}, {hex(OOB)}")
    A(f"s_cselect_b32 s{sPX0}, s{sPX0}, {hex(OOB)}")
    A(f"s_cmp_eq_u32 s{sWAVE}, 0")
    A(f"s_cselect_b64 s[{sEX}:{sEX+1}], -1, 0")
    A(f"s_lshl_b32 s{sP0}, s{sWAVE}, 6"); A(f"v_add_u32 v1, s{sP0}, v0")
    pack_addr(A, vPX, qs, hi)
    A("v_add_u32 v1, 256, v0")
    pack_addr(A, vPX + 1, qs, hi)

def pack_dma():
    o = [(f"s_add_u32 m0, s{sXM}, 8192", None, 0)]
    for i in range(4):
        o.append((f"buffer_load_dwordx4 v{vQC+i}, {srdr(SPK)}, s{sPKO} offen offset:{1024*i} lds", "pk", 1))
    o.append(("s_add_u32 m0, m0, 4096", None, 0))
    o.append((f"buffer_load_dwordx4 v{vQC+4}, {srdr(SPK)}, s{sPKO} offen lds", "pk", 1))
    o.append((f"s_lshl_b32 m0, s{sWAVE}, 10", None, 0))
    o.append((f"s_add_u32 m0, m0, {PKX}", None, 0))
    o.append((f"buffer_load_dwordx4 v{vPX}, {srdr(SWB)}, s{sPX0} offen lds", "pkx", 1))
    o.append((f"s_mov_b32 m0, {PKX + 4096}", None, 0))
    o.append((f"s_mov_b64 exec, s[{sEX}:{sEX+1}]", None, 0))
    o.append((f"buffer_load_dwordx4 v{vPX+1}, {srdr(SWB)}, s{sPX0} offen lds", "pkx", 1))
    o.append(("s_mov_b64 exec, -1", None, 0))
    return o

def pack_read_addr(A):
    A("v_lshrrev_b32 v1, 4, v0"); A("v_bfe_u32 v2, v0, 2, 2"); A("v_lshl_add_u32 v1, v1, 3, v2")
    A("v_mul_u32_u24 v1, 160, v1")
    A("v_and_b32 v2, 3, v0")
    A(f"v_lshl_add_u32 v3, v2, 4, v1"); A(f"v_lshl_add_u32 v4, v2, 3, v1")
    A(f"s_add_u32 s{sT0}, s{sXM}, 8192")
    A(f"v_add_u32 v{vQC+5}, s{sT0}, v3"); A(f"v_add_u32 v{vQC+6}, s{sT0}, v4")
    A(f"s_lshr_b32 s{sT0}, s{sWAVE}, 1"); A(f"s_lshl_b32 s{sT0}, s{sT0}, 6")
    A(f"s_and_b32 s{sT1}, s{sWAVE}, 1"); A(f"s_lshl_b32 s{sT1}, s{sT1}, 3"); A(f"s_add_u32 s{sT0}, s{sT0}, s{sT1}")
    A(f"s_add_u32 s{sT0}, s{sT0}, {PKX}")
    A(f"v_add_u32 v{vPX+2}, s{sT0}, v3"); A(f"v_add_u32 v{vPX+3}, {PKX}, v4")

def pack_reads():
    o = [("WAIT:vm:pk", None, 0)]
    for nt in range(5):
        for rho in range(2):
            if nt < 4: t = f"ds_read_b64_tr_b16 {a(aPK+4*nt+2*rho,2)}, v{vQC+5} offset:{rho*640 + 64*(nt>>1) + 8*(nt&1)}"
            else: t = f"ds_read_b64_tr_b16 {a(aPK+4*nt+2*rho,2)}, v{vQC+6} offset:{rho*640 + 128}"
            o.append((t, "pkr", 0.34))
    return o

def pack_stores():
    return [(f"buffer_store_dwordx4 {a(aPK+4*nt,4)}, v{vW+(nt>>2)}, {srdr(SWS)}, s{sPKD} offen offset:{1024*(nt&3)} sc1", "prep", 1)
            for nt in range(5)]

def pack_shared():
    X = aPK + 20
    o = []
    for rho in range(2):
        o.append((f"ds_read_b64_tr_b16 {a(X+2*rho,2)}, v{vPX+2} offset:{rho*640}", None, 0.25))
        o.append((f"ds_read_b64_tr_b16 {a(X+4+2*rho,2)}, v{vPX+3} offset:{rho*640 + 128}", None, 0.25))
    o.append((f"s_lshl_b32 s{sP0}, s{sWAVE}, 10", None, 0)); o.append((f"s_add_u32 s{sP0}, s{sP0}, s{sPX1}", None, 0))
    o.append((f"s_cmp_eq_u32 s{sWAVE}, 0", None, 0)); o.append((f"s_cselect_b32 s{sP1}, s{sPX1}, {hex(OOB)}", None, 0, True))
    o.append((f"buffer_store_dwordx4 {a(X,4)}, v{vW}, {srdr(SWS)}, s{sP0} offen sc1", "prep", 1))
    o.append((f"buffer_store_dwordx4 {a(X+4,4)}, v{vW+1}, {srdr(SWS)}, s{sP1} offen sc1", "prep", 1))
    return o

def prep_setup(A):
    A(f"s_lshl_b32 s{sT0}, s{sM}, 7"); A(f"s_lshl_b32 s{sT1}, s{sU}, 4"); A(f"s_add_u32 s{sT0}, s{sT0}, s{sT1}")
    A(f"s_lshl_b32 s{sT1}, s{sWAVE}, 2"); A(f"s_add_u32 s{sT0}, s{sT0}, s{sT1}")
    A(f"s_mul_i32 s{sSTO}, s{sT0}, 1280")
    A("v_lshrrev_b32 v1, 4, v0"); A("v_and_b32 v2, 15, v0")
    A("v_mul_u32_u24 v1, 1280, v1"); A(f"v_lshl_add_u32 v{vSA}, v2, 4, v1")
    A(f"s_cmp_lt_u32 s{sCSL}, 30")
    csel(A, sT2, 3840, 3456)
    A(f"s_cselect_b32 s{sT3}, 0, 30")
    A(f"s_sub_u32 s{sT0}, s{sCSL}, s{sT3}")
    A(f"s_lshl_b32 s{sT0}, s{sT0}, 7")
    A(f"s_bfe_u32 s{sT1}, s2, 0x10002"); A(f"s_lshl_b32 s{sT3}, s{sWAVE}, 1"); A(f"s_add_u32 s{sT1}, s{sT1}, s{sT3}")
    A(f"s_mul_i32 s{sT1}, s{sT1}, 80"); A(f"s_mul_i32 s{sT1}, s{sT1}, s{sT2}")
    A(f"s_add_u32 s{sT0}, s{sT0}, s{sT1}")
    A(f"s_cmp_lt_u32 s{sCSL}, 57")
    A(f"s_cselect_b32 s{sCSO}, s{sT0}, {hex(OOB)}")
    A("v_lshrrev_b32 v1, 3, v0"); A("v_and_b32 v2, 7, v0")
    A(f"v_mul_u32_u24 v1, s{sT2}, v1")
    A(f"v_lshl_add_u32 v{vCL}, v2, 4, v1")
    A(f"s_lshl_b32 s{sCSP}, s{sT2}, 3")

def stats_loads():
    return [(f"buffer_load_dwordx4 {v(PRS+4*j,4)}, v{vSA}, {srdr(SX)}, s{sSTO} offen offset:{256*j}", None, 1) for j in range(5)]

def cs_loads():
    o = []
    for j in range(10):
        if j: o.append((f"s_add_u32 s{sCSO}, s{sCSO}, s{sCSP}", None, 0))
        o.append((f"buffer_load_dwordx4 {v(PRC+4*j,4)}, v{vCL}, {srdr(SCS)}, s{sCSO} offen", None, 1))
    o.append((f"s_sub_u32 s{sP0}, s{sCSL}, 30", None, 0))
    o.append((f"s_lshl_b32 s{sP0}, s{sP0}, 7", None, 0)); o.append((f"s_min_u32 s{sP0}, s{sP0}, {hex(OOB)}", None, 0))
    o.append((f"v_lshlrev_b32 v{vPT}, 1, v0", None, 0))
    o.append((f"buffer_load_ushort v{vBI}, v{vPT}, {srdr(SB1)}, s{sP0} offen", None, 1))
    return o

def rowsum(A, reg):
    for sh in (8, 4, 2, 1):
        A(f"v_add_f32_dpp v{reg}, v{reg}, v{reg} row_ror:{sh} row_mask:0xf bank_mask:0xf")

def zero_kv(A):
    for r in range(4): A(f"v_mov_b32 v{4+r}, 0")
    A(f"s_and_b32 s{sF0}, s2, 127"); A(f"s_lshl_b32 s{sF0}, s{sF0}, 2"); A(f"s_add_u32 s{sF0}, s{sF0}, s{sWAVE}")
    A(f"s_mul_i32 s{sF0}, s{sF0}, 480"); A(f"s_add_u32 s{sF0}, s{sF0}, {KV_OFF}")
    A(f"v_mov_b32 v1, {hex(OOB)}")
    A("v_cmp_gt_u32 vcc, 30, v0")
    A.g(f"v_cndmask_b32 v1, v1, v{vW}, vcc")
    A(f"buffer_store_dwordx4 v[4:7], v1, {srdr(SWS)}, s{sF0} offen sc1", "prep")

def stats_compute(A):
    U = PRC
    for r in range(20):
        A(f"v_lshlrev_b32 v{U+2*r}, 16, v{PRS+r}")
        A(f"v_and_b32 v{U+2*r+1}, 0xffff0000, v{PRS+r}")
        if r == 1: A(f"v_add_f32 v2, v{U}, v{U+1}")
        if r == 2: A(f"v_add_f32 v3, v{U+2}, v{U+3}")
        if r > 2: A(f"v_add_f32 v2, v2, v{U+2*r-2}"); A(f"v_add_f32 v3, v3, v{U+2*r-1}")
    A(f"v_add_f32 v2, v2, v{U+38}"); A(f"v_add_f32 v3, v3, v{U+39}")
    A(f"s_lshr_b32 s{sF0}, s{sSTO}, 5"); A(f"s_mul_hi_u32 s{sF0}, s{sF0}, 0x33333334")
    A("v_add_f32 v2, v2, v3")
    ad = Asm()
    ad("v_lshrrev_b32 v1, 4, v0"); ad("v_lshlrev_b32 v1, 3, v1")
    ad("v_and_b32 v6, 15, v0"); ad(f"v_mov_b32 v7, {hex(OOB)}")
    ad(f"s_add_u32 s{sF0}, s{sF0}, {ST_OFF}"); ad("v_mov_b32 v5, 0x3727c5ac")
    ad("v_cmp_eq_u32 vcc, 0, v6"); ad("s_nop 0")
    for k, sh in enumerate((8, 4, 2, 1)):
        A.extend(ad.ins[2*k:2*k+2])
        A(f"v_add_f32_dpp v2, v2, v2 row_ror:{sh} row_mask:0xf bank_mask:0xf")
    A("v_cndmask_b32 v1, v7, v1, vcc")
    A("v_mul_f32 v4, 0x3acccccd, v2")
    for r in range(40):
        A(f"v_sub_f32 v{U+r}, v{U+r}, v4")
        if r in (1, 2): A(f"v_mul_f32 v{2+(r&1)}, v{U+r-1}, v{U+r-1}")
        if r > 2: A(f"v_fmac_f32 v{2+(r&1)}, v{U+r-1}, v{U+r-1}")
    A(f"v_fmac_f32 v2, v{U+39}, v{U+39}")
    A("v_add_f32 v2, v2, v3")
    rowsum(A, 2)
    A("v_fmac_f32 v5, 0x3acccccd, v2")
    A(f"buffer_store_dwordx2 v[4:5], v1, {srdr(SWS)}, s{sF0} offen sc1", "prep")

def cs_setup(A):
    sel = vCSA; acc = vCSA + 4
    A("v_and_b32 v1, 15, v0"); A("v_lshrrev_b32 v2, 1, v1"); A("v_and_b32 v3, 1, v0")
    A("v_lshlrev_b32 v3, 4, v3"); A("v_mov_b32 v4, 0x3f80"); A("v_lshlrev_b32 v4, v3, v4")
    for r in range(4):
        A(f"v_cmp_eq_u32 vcc, {r}, v2"); A.g("s_nop 1"); A.g(f"v_cndmask_b32 v{sel+r}, 0, v4, vcc")
    A("v_and_b32 v2, 7, v0"); A("v_bfe_u32 v3, v0, 4, 1")
    A("v_lshlrev_b32 v2, 7, v2"); A("v_lshl_add_u32 v2, v3, 6, v2")
    A(f"s_lshl_b32 s{sF0}, s{sWAVE}, 2"); A(f"s_add_u32 s{sF0}, s{sF0}, {CSR}")
    A(f"v_add_u32 v{PRT}, s{sF0}, v2")

def cs_compute(A):
    sel = vCSA; acc = vCSA + 4
    for j in range(10):
        A(f"v_mfma_f32_16x16x32_bf16 {v(acc,4)}, {v(sel,4)}, {v(PRC+4*j,4)}, {'0' if j == 0 else v(acc,4)}")

def cs_write(A):
    acc = vCSA + 4
    for r in range(4):
        A(f"v_add_f32_dpp v{acc+r}, v{acc+r}, v{acc+r} row_ror:8 row_mask:0xf bank_mask:0xf")
    A("s_mov_b64 exec, 0xffffffff")
    for r in range(4):
        A.g(f"ds_write_b32 v{PRT}, v{acc+r} offset:{16*r}")
    A.g("s_mov_b64 exec, -1")

def cs_finish(A):
    R = vCSA; t0, t1 = sF1, sCSP
    A(f"v_add_u32 v{PRT}, {CSR}, v{vW}")
    A(f"ds_read_b128 {v(R,4)}, v{PRT}")
    A(f"s_lshl_b32 s{t0}, s{sCSL}, 10")
    A(f"s_bfe_u32 s{t1}, s2, 0x10002"); A(f"s_lshl_b32 s{t1}, s{t1}, 3")
    A(f"s_add_u32 s{t0}, s{t0}, s{t1}"); A(f"s_add_u32 s{t0}, s{t0}, {CS_OFF}")
    A(f"s_cmp_lt_u32 s{sCSL}, 57"); A.g(f"s_cselect_b32 s{t0}, s{t0}, {hex(OOB)}")
    A(f"s_cmp_eq_u32 s{sWAVE}, 0"); A.g(f"s_cselect_b32 s{t0}, s{t0}, {hex(OOB)}")
    A(f"v_lshlrev_b32 v{R+5}, 16, v{vBI}")
    A(f"v_add_f32 v{R}, v{R}, v{R+1}"); A(f"v_add_f32 v{R+2}, v{R+2}, v{R+3}")
    A(f"v_add_f32 v{R+4}, v{R}, v{R+2}")
    A(f"buffer_store_dwordx2 {v(R+4,2)}, v{vW}, {srdr(SWS)}, s{t0} offen sc1", "prep")

def phi_loads(A, kv, R, v=a):
    A(f"s_lshl_b32 s{sF0}, s{sC}, 2"); A(f"s_add_u32 s{sF0}, s{sF0}, s{sWAVE}"); A(f"s_mul_i32 s{sF0}, s{sF0}, 800")
    A(f"s_and_b32 s{sF1}, s{sWAVE}, 1"); A(f"s_mul_i32 s{sF1}, s{sF1}, 10")
    A(f"v_add_u32 v1, s{sF1}, v0"); A("v_subrev_u32 v2, 50, v1"); A("v_min_u32 v1, v1, v2")
    A("v_lshlrev_b32 v1, 4, v1")
    A(f"v_mov_b32 v2, {hex(OOB)}")
    A("v_cmp_gt_u32 vcc, 50, v0")
    A.g("v_cndmask_b32 v1, v2, v1, vcc")
    A.g(f"v_cndmask_b32 v3, v2, v{vW}, vcc")
    A(f"buffer_load_dwordx4 {v(R,4)}, v1, {srdr(SPH)}, s{sF0} offen")
    if kv:
        A(f"s_lshl_b32 s{sF0}, s{sU}, 2"); A(f"s_add_u32 s{sF0}, s{sF0}, s{sWAVE}"); A(f"s_mul_i32 s{sF0}, s{sF0}, 800")
        A(f"buffer_load_dwordx4 {v(R+4,4)}, v3, {srdr(SPH)}, s{sF0} offen")

def phi_writes(A, kv, R, v=a):
    A(f"s_mul_i32 s{sF0}, s{sWAVE}, 960"); A(f"s_add_u32 s{sF0}, s{sF0}, {PHI2}")
    A(f"v_add_u32 v1, s{sF0}, v{vW}")
    A(f"s_mul_i32 s{sF0}, s{sWAVE}, 480"); A(f"s_add_u32 s{sF0}, s{sF0}, {PZERO}")
    A(f"v_lshl_add_u32 v2, v0, 3, s{sF0}")
    A("v_mov_b32 v4, 0"); A("v_mov_b32 v5, 0")
    A(f"s_bfm_b64 exec, 60, 0")
    A.g(f"ds_write_b128 v1, {v(R,4)}")
    if kv: A.g(f"ds_write_b128 v1, {v(R+4,4)} offset:{PHI1 - PHI2}")
    A.g("ds_write_b64 v2, v[4:5]")
    A.g("s_mov_b64 exec, -1")

vA = 16; vQA = 20; vOA = 23; vF1 = 24; vF2 = 25; vXO = 26; vRW = 28; vRR = 31; vKA = 32
QR = 84; ST2 = 96; PA2 = 64; PK2 = 44; NU = 64; KVR = 88; XRS = 88
ACT = 112; ACCO = 176; aO = 100

def p2_addr_early(A):
    for k in range(4):
        A(f"s_add_u32 s{sF0}, s{sWAVE}, {k}"); A(f"s_and_b32 s{sF0}, s{sF0}, 3"); A(f"s_mul_i32 s{sF0}, s{sF0}, {ACT_BLK}")
        A(f"v_add_u32 v{vA+k}, s{sF0}, v{vW}")
    A("v_lshrrev_b32 v1, 4, v0")
    A("v_and_b32 v2, 1, v1")
    A("v_lshrrev_b32 v3, 1, v1"); A("v_mul_u32_u24 v3, 5, v3")
    A(f"s_mul_i32 s{sF0}, s{sC}, 10")
    A(f"v_add_u32 v3, s{sF0}, v3")
    A("v_and_b32 v4, 15, v0"); A("v_lshlrev_b32 v4, 4, v4")
    A("v_lshl_add_u32 v4, v3, 8, v4")
    A("v_mul_u32_u24 v5, 768, v2")
    A(f"v_add_u32 v{vQA}, v4, v5")
    A(f"v_lshl_add_u32 v{vQA+1}, v2, 3, v4")
    A("v_and_b32 v4, 15, v0"); A(f"v_lshlrev_b32 v{vQA+2}, 3, v4")
    A(f"s_mul_i32 s{sAB}, s{sR}, {4*ACT_BLK}"); A(f"s_add_u32 s{sAB}, s{sAB}, {ACT_OFF}")
    A(f"s_lshl_b32 s{sF0}, s{sWAVE}, 10"); A(f"s_add_u32 s{sA}, s{sAB}, s{sF0}")

def act_load(n, k):
    o = []
    if k == 0 and n > 0:
        o.append((f"s_add_u32 s{sA}, s{sA}, 4096", None, 0))
        if n == 13:
            o.append((f"s_cmp_lt_u32 s{sWAVE}, 2\ns_cselect_b32 s{sA}, s{sA}, {hex(OOB)}", None, 0))
    o.append((f"buffer_load_dwordx4 {v(ACT+16*(n%4)+4*k,4)}, v{vA+k}, {srdr(SWS)}, s{sA} offen sc1", f"A{n}", 1))
    return o

def p2_first_loads(A):
    A(f"s_mul_i32 s{sP0}, s{sWAVE}, {ACT_BLK}"); A(f"s_add_u32 s{sP0}, s{sP0}, s{sAB}")
    A(f"s_add_u32 s{sP0}, s{sP0}, {74*1024}")
    A(f"buffer_load_dwordx4 {v(QR,4)}, v{vQA}, {srdr(SWS)}, s{sP0} offen sc1")
    A(f"buffer_load_dwordx4 {v(QR+4,4)}, v{vQA}, {srdr(SWS)}, s{sP0} offen offset:256 sc1")
    A(f"buffer_load_dwordx2 {v(QR+8,2)}, v{vQA+1}, {srdr(SWS)}, s{sP0} offen offset:512 sc1")
    A(f"s_lshl_b32 s{sP0}, s{sR}, 2"); A(f"s_add_u32 s{sP0}, s{sP0}, s{sWAVE}"); A(f"s_lshl_b32 s{sP0}, s{sP0}, 7")
    A(f"s_add_u32 s{sP0}, s{sP0}, {ST_OFF}")
    A(f"buffer_load_dwordx2 {v(ST2,2)}, v{vQA+2}, {srdr(SWS)}, s{sP0} offen sc1", "q")

P2FB = [("a", 240), ("a", 244), ("a", 248), ("a", 252), ("v", 100), ("v", 104), ("v", 108)]
def reg(n, off, cnt):
    k, r = P2FB[n % 7]
    return R(k, r + off, cnt)
P1SEQ = [(st, ch) for st in range(3) for ch in range(5)]
def prd(F, n):
    st, ch = P1SEQ[n]
    for rho in range(2):
        F(f"ds_read_b64_tr_b16 {reg(n,2*rho,2)}, v{vF1} offset:{(8*st+4*rho)*40+ch*8}")

def part1_head(F):
    F("v_lshrrev_b32 v1, 4, v0"); F("v_and_b32 v2, 3, v0"); F("v_bfe_u32 v3, v0, 2, 2")
    F("v_mul_u32_u24 v4, 960, v1"); F(f"v_add_u32 v4, {PHI2}, v4")
    F("v_mul_u32_u24 v5, 1920, v1"); F(f"v_add_u32 v5, {KVI}, v5"); F(f"v_mov_b32 v6, {PZERO}")
    F("v_cmp_eq_u32 vcc, v1, v2"); F.g("v_cndmask_b32 v4, v6, v4, vcc"); F.g("v_cndmask_b32 v5, v6, v5, vcc")
    F(f"v_mad_u32_u24 v{vF1}, v3, 40, v4"); F(f"v_mad_u32_u24 v{vF2}, v3, 48, v5")
    F(f"v_mov_b32 v{QR+10}, 0"); F(f"v_mov_b32 v{QR+11}, 0")
    for n in range(7): prd(F, n)
    poll_addr(F, "pgrp", 1, 2)
    F.wait(vm="q")

def prologue(A, C):
    L = C.L
    A.label(L("start"))
    A(f"s_getpc_b64 s[{sT0}:{sT0+1}]")
    A("s_cmp_ge_u32 s2, 256")
    A(f"s_cbranch_scc1 {L('end')}")
    if OPT.get("swap", 1): A("s_xor_b32 s2, s2, 128")
    A("s_load_dwordx16 s[4:19], s[0:1], 0")
    A("s_load_dwordx2 s[20:21], s[0:1], 80")
    A("s_load_dwordx2 s[22:23], s[0:1], 64")
    stamp(A, 0, True); stamp(A, 1)
    A(f"s_bfe_u32 s{sT2}, s2, 0x30003"); A(f"s_lshl_b32 s{sT2}, s{sT2}, 13")
    A("v_lshrrev_b32 v1, 6, v0"); A("v_and_b32 v2, 15, v0"); A("v_lshl_add_u32 v2, v1, 4, v2")
    A(f"v_lshl_add_u32 v2, v2, 7, s{sT2}")
    A(f"v_min_u32 v2, {L('end')}-{L('start')}-8, v2")
    A(f"v_mov_b32 v3, s{sT0+1}")
    A(f"v_add_co_u32 v2, vcc, s{sT0}, v2")
    A("v_addc_co_u32 v3, vcc, 0, v3, vcc")
    A("global_load_dword v255, v[2:3], off")
    A(f"v_readfirstlane_b32 s{sWAVE}, v1")
    A(f"v_mov_b32 v{vTID}, v0")
    A("v_and_b32 v0, 63, v0")
    A(f"s_and_b32 s{sT0}, s2, 7"); A(f"s_lshr_b32 s{sT1}, s2, 3")
    A(f"s_lshr_b32 s{sM}, s{sT0}, 2"); A(f"s_lshl_b32 s{sM}, s{sM}, 3"); A(f"s_and_b32 s{sT2}, s{sT1}, 7"); A(f"s_add_u32 s{sM}, s{sM}, s{sT2}")
    A(f"s_and_b32 s{sU}, s{sT0}, 3"); A(f"s_lshl_b32 s{sU}, s{sU}, 1"); A(f"s_bfe_u32 s{sT2}, s{sT1}, 0x10003"); A(f"s_add_u32 s{sU}, s{sU}, s{sT2}")
    A(f"s_lshr_b32 s{sR}, s{sT0}, 1"); A(f"s_lshl_b32 s{sR}, s{sR}, 3"); A(f"s_lshr_b32 s{sT2}, s{sT1}, 2"); A(f"s_add_u32 s{sR}, s{sR}, s{sT2}")
    A(f"s_and_b32 s{sC}, s{sT0}, 1"); A(f"s_lshl_b32 s{sC}, s{sC}, 2"); A(f"s_and_b32 s{sT2}, s{sT1}, 3"); A(f"s_add_u32 s{sC}, s{sC}, s{sT2}")
    A("v_lshrrev_b32 v1, 3, v0"); A("v_and_b32 v2, 7, v0")
    A(f"s_lshl_b32 s{sT0}, s{sWAVE}, 5")
    A("v_lshrrev_b32 v4, 4, v0"); A("v_xor_b32 v4, v4, v2")
    A(f"v_add_u32 v3, s{sT0}, v1"); A("v_mul_u32_u24 v3, 1280, v3")
    A(f"v_lshl_add_u32 v{vXD}, v4, 4, v3")
    A(f"v_xor_b32 v5, 64, v{vXD}")
    A(f"v_add_u32 v{vXD+1}, {8*1280-1024}, v5")
    A(f"v_add_u32 v{vXD+2}, {16*1280-2048}, v{vXD}")
    A(f"v_add_u32 v{vXD+3}, {24*1280-3072}, v5")
    A(f"s_mul_i32 s{sXO}, s{sM}, {128*1280}")
    A(f"s_mul_i32 s{sXM}, s{sWAVE}, {XW}")
    A(f"v_lshlrev_b32 v{vW}, 4, v0"); A(f"v_add_u32 v{vW+1}, 4096, v{vW}")
    A(f"s_cmp_ge_u32 s2, 128")
    A(f"s_cbranch_scc1 {L('prole')}")

def pair_lane(A):
    A("v_lshrrev_b32 v1, 3, v0"); A("v_and_b32 v2, 7, v0")
    A("v_bfe_u32 v3, v0, 4, 1"); A("v_lshlrev_b32 v3, 2, v3"); A("v_xor_b32 v3, v3, v2")

def build_srds(A, p):
    if p:
        srd(A, SOUT, 22, 2048 * 1280)
        cs_line(A, sCSL, sT0, sT1)
        A(f"s_cmp_lt_u32 s{sCSL}, 30")
        A(f"s_cselect_b64 s[{SCS}:{SCS+1}], s[6:7], s[14:15]")
        csel(A, SCS + 2, 640*3840, 640*3456)
        A(f"s_and_b32 s{SCS+1}, s{SCS+1}, 0xffff"); A(f"s_mov_b32 s{SCS+3}, 0x20000")
        pack_T(A, sT0, sT1)
        A(f"s_cmp_lt_u32 s{sT0}, 54")
        A(f"s_cselect_b64 s[{SPK}:{SPK+1}], s[18:19], s[10:11]")
        csel(A, SPK + 2, 1728*1280, 640*1280)
        A(f"s_and_b32 s{SPK+1}, s{SPK+1}, 0xffff"); A(f"s_mov_b32 s{SPK+3}, 0x20000")
        srd(A, SWB, 10, 640 * 1280)
        srd(A, SB1, 16, 1728 * 2)
    srd(A, SPH, 8, 32 * 800)
    if not p: srd(A, SOUT, 22, 2048 * 1280)

def common_addr(A):
    A("v_and_b32 v1, 31, v0"); A("v_lshrrev_b32 v2, 5, v0"); A("v_bfe_u32 v3, v0, 1, 3")
    A("v_lshlrev_b32 v4, 7, v1"); A(f"v_add_u32 v4, s{sXM}, v4")
    for q in range(4):
        A(f"v_add_u32 v5, {2*q}, v2"); A("v_xor_b32 v5, v5, v3")
        A(f"v_lshl_add_u32 v{vXRD+q}, v5, 4, v4")
    A("v_lshrrev_b32 v3, 4, v1"); A(f"v_mul_u32_u24 v3, {ACT_BLK}, v3"); A("v_lshl_add_u32 v3, v2, 8, v3")
    A("v_and_b32 v4, 15, v0"); A(f"v_lshl_add_u32 v{vAST}, v4, 4, v3")
    A(f"s_lshl_b32 s{sT0}, s{sM}, 3"); A(f"s_lshl_b32 s{sT1}, s{sWAVE}, 1"); A(f"s_add_u32 s{sT0}, s{sT0}, s{sT1}")
    A(f"s_mul_i32 s{sACT}, s{sT0}, {ACT_BLK}"); A(f"s_add_u32 s{sACT}, s{sACT}, {ACT_OFF}")
    A(f"s_lshl_b32 s{sT0}, s2, 8"); A(f"s_add_u32 s{sT0}, s{sT0}, {FLG_OFF}")
    A(f"v_mov_b32 v3, s{sT0}"); A(f"v_mov_b32 v4, {hex(OOB)}")
    A(f"v_cmp_eq_u32 vcc, 0, v{vTID}"); A(f"v_cndmask_b32 v{vFL}, v4, v3, vcc")
    poll_addr(A, "all", 3, 4)
    A(f"s_mul_i32 s{sW}, s{sC}, 74"); A(f"s_add_u32 s{sW}, s{sW}, s{sWAVE}"); A(f"s_mul_i32 s{sW}, s{sW}, 5120")
    A(f"s_add_u32 s{sW}, s{sW}, {W2P_OFF}")
    A(f"s_add_u32 s{sX1}, s{sW}, {13*20480}")
    A(f"s_cmp_lt_u32 s{sWAVE}, 2"); A(f"s_cselect_b32 s{sX1}, s{sX1}, {hex(OOB)}")
    A(f"s_mul_i32 s{sPV}, s{sWAVE}, {4*5120}"); A(f"s_add_u32 s{sPV}, s{sPV}, {6*5120 + 12*20480}")
    A(f"s_add_u32 s{sPV}, s{sPV}, s{sW}")
    A("v_and_b32 v1, 3, v0"); A("v_bfe_u32 v2, v0, 2, 1"); A("v_bfe_u32 v3, v0, 3, 2")
    A("v_lshrrev_b32 v4, 1, v3"); A("v_lshl_add_u32 v4, v4, 1, v2")
    A("v_and_b32 v5, 1, v3"); A("v_lshl_add_u32 v5, v5, 2, v1"); A("v_lshl_add_u32 v4, v4, 3, v5")
    A(f"v_lshlrev_b32 v{vCP}, 4, v4")

def pair_read_base(A, dst):
    A("v_lshrrev_b32 v7, 1, v4"); A("v_lshlrev_b32 v7, 2, v7"); A("v_lshl_add_u32 v7, v3, 1, v7")
    A("v_and_b32 v5, 1, v4"); A("v_add_u32 v7, v7, v5"); A("v_lshlrev_b32 v7, 3, v7")
    A("v_lshl_add_u32 v7, v6, 7, v7"); A("v_bfe_u32 v5, v0, 3, 1"); A(f"v_lshl_add_u32 v{dst}, v5, 6, v7")

def as_queue(B):
    return [(x.text, x.tag, 1 if x.cls == "vmem" else 0, x.glue) for x in B.ins]

def stats_load(A):
    A(f"s_lshl_b32 s{sP0}, s{sM}, 2"); A(f"s_add_u32 s{sP0}, s{sP0}, s{sWAVE}"); A(f"s_lshl_b32 s{sP0}, s{sP0}, 8")
    A(f"s_add_u32 s{sP0}, s{sP0}, {ST_OFF}")
    A(f"v_and_b32 v{vPT}, 31, v0"); A(f"v_lshlrev_b32 v{vPT}, 3, v{vPT}")
    A(f"buffer_load_dwordx2 {v(vST,2)}, v{vPT}, {srdr(SWS)}, s{sP0} offen sc1")

def epoch_load(A):
    A(f"v_mov_b32 v{vEP}, 0")
    A(f"buffer_load_dword v{vEP}, v{vEP}, {srdr(SWS)}, 0 offen sc1")

def role_kv(A, C):
    L = C.L
    ACC_A = 176; ACC_Q = 64; KP = 96; PAK = 120; VP = 184; EP = 216; PK = 184; KVA = 184; CR = 120
    A(f"s_lshl_b32 s{sT0}, s{sWAVE}, 3")
    A(f"s_mul_i32 s{sT1}, s{sU}, 160"); A(f"s_add_u32 s{sT1}, s{sT1}, 1280")
    for i in range(3):
        A(f"v_add_u32 v1, {64*i}, v0")
        A("v_mul_u32_u24 v2, 3277, v1"); A("v_lshrrev_b32 v2, 16, v2")
        A("v_mul_u32_u24 v3, 20, v2"); A("v_sub_u32 v3, v1, v3")
        A("v_mul_u32_u24 v4, 13108, v3"); A("v_lshrrev_b32 v4, 16, v4")
        A("v_and_b32 v5, 1, v4"); A("v_lshrrev_b32 v4, 1, v4")
        A("v_mul_u32_u24 v5, 1200, v5"); A("v_mul_u32_u24 v4, 80, v4")
        A(f"v_add_u32 v2, s{sT0}, v2"); A("v_mul_u32_u24 v2, 3840, v2"); A("v_lshl_add_u32 v2, v3, 4, v2")
        A("v_add_u32 v2, v2, v5"); A("v_sub_u32 v2, v2, v4")
        A(f"v_add_u32 v{vAD+i}, s{sT1}, v2")
        if i: A(f"v_subrev_u32 v{vAD+i}, {1024*i}, v{vAD+i}")
    A(f"v_mov_b32 v1, {hex(OOB)}"); A("v_cmp_gt_u32 vcc, 32, v0"); A(f"v_cndmask_b32 v{vAD+2}, v1, v{vAD+2}, vcc")
    A(f"s_mul_i32 s{sWB}, s{sWAVE}, 3072"); A(f"s_add_u32 s{sWB}, s{sWB}, {WR}")
    pair_lane(A)
    A(f"v_add_u32 v4, s{sT0}, v1"); A("v_mul_u32_u24 v4, 3840, v4")
    A(f"v_lshl_add_u32 v4, v3, 4, v4"); A(f"s_lshl_b32 s{sT1}, s{sU}, 7")
    A(f"v_add_u32 v{vPD}, s{sT1}, v4")
    A("s_waitcnt lgkmcnt(0)")
    srd(A, SX, 4, 2048 * 1280)
    srd(A, SWS, 20, WS_SIZE)
    A0 = A; A = Asm()
    srd(A, SWA, 6, 640 * 3840)
    A(f"s_lshl_b32 s{sWQ}, s{sWAVE}, 10"); A(f"s_add_u32 s{sWQ}, s{sWQ}, {WR + 12288}")
    build_srds(A, False)
    spread(A0, A, x_dma(0), 3, first=3)
    A = Asm()
    common_addr(A)
    vCA = 40
    A("v_mul_u32_u24 v4, 40, v2"); A("v_lshl_add_u32 v4, v3, 2, v4"); A("v_add_u32 v4, v4, v1")
    A(f"v_lshlrev_b32 v{vCA}, 4, v4"); A(f"v_add_u32 v{vCA+2}, {600*16}, v{vCA}")
    A("v_cmp_lt_u32 vcc, 1, v3"); A(f"v_cndmask_b32 v{vCA+1}, v{vCA}, v{vCA+2}, vcc")
    common_lane(A)
    A("v_mul_u32_u24 v7, 320, v6"); A(f"v_mul_u32_u24 v{vAR}, 160, v3"); A(f"v_add_u32 v{vAR}, v{vAR}, v7")
    A(f"v_lshl_add_u32 v{vAR}, v1, 9, v{vAR}")
    A(f"v_lshl_add_u32 v{vAR}, v4, 3, v{vAR}"); A(f"v_add_u32 v{vAR}, {WR}, v{vAR}"); A(f"v_add_u32 v{vAR+1}, 65536, v{vAR}")
    pair_read_base(A, vPR)
    A(f"v_add_u32 v{vPR}, {WR + 12288}, v{vPR}")
    A(f"v_xor_b32 v{vPR+1}, 64, v{vPR}")
    A(f"v_add_u32 v{vPR+2}, 65536, v{vPR}"); A(f"v_add_u32 v{vPR+3}, 65536, v{vPR+1}")
    spread(A0, A, kv_dma(0) + kv_dma(1), 10, first=10)
    A = A0
    epoch_load(A)
    phi_loads(A, True, aPH)
    emit(A, x_dma(1) + kv_dma(2) + kv_dma(3))
    pt(A, "pro")
    S1 = OPT.get("s1kv", 9); HB = OPT.get("hbkv", 1)
    KW = OPT.get("kw", ((5,), (6, 7, 0, 1), (2, 3, 4, 8, 9, 10, 11)))
    steps = []
    accs = [ACC_A + 16 * t for t in range(5)] + [ACC_Q, ACC_Q + 16]
    for s in range(40):
        c, sp = divmod(s, 4)
        h = s >> 1; sl = h % 6; hi = sl >= 4
        fr = aW + 28 * (s & 1)
        rd = []
        for t in range(5):
            for rho in range(2):
                off = (sl & 3 if hi else sl) * HS + (s & 1) * 6144 + rho * 1280 + t * 32
                rd.append(f"ds_read_b64_tr_b16 {a(fr + 4*t + 2*rho, 2)}, v{vAR + hi} offset:{off}")
        for t in range(2):
            for rho in range(2):
                off = (sl & 3 if hi else sl) * HS + (s & 1) * 2048 + rho * 512
                rd.append(f"ds_read_b64_tr_b16 {a(fr + 20 + 4*t + 2*rho, 2)}, v{vPR + t + 2*hi} offset:{off}")
        q = []
        if HB:
            if s == 0: q += kv_dma(4) + x_dma(2)
            if sp in (0, 2): q += kv_dma(h + 5)
            if sp == 2: q += x_dma(c + 3)
        elif sp == 0: q += x_dma(c + 2) + kv_dma(h + 4) + kv_dma(h + 5)
        steps.append(dict(nt=7, acc=accs, first=(s == 0), xreg=aX + 16 * (c & 1) + 4 * sp, frag=fr, reads=rd,
                          chunk=h if sp == 0 or (HB and sp == 2) else None, xj=c if sp == 0 else None, queue=q,
                          tags=[] if HB else [f"w{h+1}"]))
    def pre(A, c):
        if c == S1: poll_check(A, C, 1)
    def post(A, c, dq):
        pt(A, f"c{c}")
        if c == 1: A(f"v_readfirstlane_b32 s{sE}, v{vEP}")
        if c == S1 - 1: poll_issue(A)
        if c == S1:
            A = Asm()
            stats_load(A)
            A(f"s_mul_i32 s{sP0}, s{sU}, {80*16}"); A(f"s_add_u32 s{sP0}, s{sP0}, {CS_OFF + 640*16}")
            for t in range(5):
                A(f"buffer_load_dwordx4 {v(CR+4*t,4)}, v{vCA+[0,0,1,2,2][t]}, {srdr(SWS)}, s{sP0} offen offset:{256*t} sc1")
            A(f"s_lshl_b32 s{sP0}, s{sU}, 10"); A(f"s_add_u32 s{sP0}, s{sP0}, {CS_OFF}")
            for t in range(2):
                A(f"buffer_load_dwordx4 {v(vQC+4*t,4)}, v{vCP}, {srdr(SWS)}, s{sP0} offen offset:{512*t} sc1")
            dq.add(as_queue(A), front=True)
            dq.add(wl(*KW[0]))
    M = Asm(); dq = DQ()
    gemm_steps(M, steps, 1, dq, pre, post, every=OPT.get("kvevery", [2] * 9 + [1]))
    dq.pop(M, 99)
    F = Asm(); phi_writes(F, True, aPH)
    ins, left = weave(M, F, start=30, per=2); assert not left
    F = Asm()
    common_lane(F)
    F("v_mul_u32_u24 v7, 1920, v3"); F(f"v_add_u32 v7, {PHI1}, v7"); F(f"v_mov_b32 v5, {PZERO}")
    F("v_cmp_eq_u32 vcc, v1, v3"); F.g("v_cndmask_b32 v7, v5, v7, vcc")
    F("v_mul_u32_u24 v5, 40, v2"); F("v_add_u32 v7, v7, v5"); F("v_lshl_add_u32 v6, v4, 3, v7"); F("v_add_u32 v7, 32, v7")
    F(f"s_lshl_b32 s{sPKD}, s{sU}, 11"); F(f"s_add_u32 s{sPKD}, s{sPKD}, s{sACT}"); F(f"s_add_u32 s{sPKD}, s{sPKD}, {74*1024}")
    bufs = [0, 4, 8, 12, 16, 20, 24, 28, 32, 36, 40, 44]
    seq = [(sg, tau, st) for sg in range(2) for st in range(3) for tau in range(2)]
    for n in range(12):
        sg, tau, st = seq[n]
        for rho in range(2):
            F(f"ds_read_b64_tr_b16 {a(bufs[n]+2*rho,2)}, v{6+tau} offset:{sg*960+(8*st+4*rho)*40}")
    ins, left = weave(ins, F, start=200, per=1.5); assert not left
    FC = Asm()
    stats_frag(FC, 1)
    for t in range(5): corr_frag(FC, CR + 4 * t, 1 + (t & 1))
    for t in range(2): corr_frag(FC, vQC + 4 * t, 1 + (t & 1))
    if S1 < 9:
        ins, left = weave(ins, FC, start=256, per=3); FC.ins = left
    A.extend(ins)
    pt(A, "p1end")
    A0 = A; A = Asm()
    A.extend(FC)
    for t in range(5):
        A(f"v_mfma_f32_32x32x16_bf16 {v(ACC_A+16*t,16)}, {v(CR+4*t,4)}, {v(vCB,4)}, {v(ACC_A+16*t,16)}")
    for t in range(2):
        A(f"v_mfma_f32_32x32x16_bf16 {v(ACC_Q+16*t,16)}, {v(vQC+4*t,4)}, {v(vCB,4)}, {v(ACC_Q+16*t,16)}")
    for i in range(20):
        A(f"v_cvt_pk_bf16_f32 v{KP+i}, v{ACC_A+2*i}, v{ACC_A+2*i+1}")
    A(f"v_mov_b32 v{KP+20}, 0"); A(f"v_mov_b32 v{KP+21}, 0")
    vs = Asm()
    for t in range(2):
        for p in range(2):
            for i in range(4):
                r = ACC_Q + 16 * t + 8 * p
                vs(f"v_cvt_pk_bf16_f32 v{r+i}, v{r+2*i}, v{r+2*i+1}")
            pair_store(vs, ACC_Q, sPKD, "qst", t, p)
    vs("v_and_b32 v1, 31, v0"); vs(f"s_lshl_b32 s{sF0}, s{sWAVE}, 5"); vs(f"v_add_u32 v1, s{sF0}, v1")
    vs("v_lshrrev_b32 v2, 5, v0")
    vs("v_mul_u32_u24 v3, 48, v1"); vs("v_mul_u32_u24 v5, 12288, v2"); vs("v_add_u32 v3, v3, v5"); vs(f"v_add_u32 v{vAR+1}, {VIM}, v3")
    vs("v_mul_u32_u24 v3, 80, v1"); vs("v_mul_u32_u24 v4, 20480, v2"); vs("v_add_u32 v3, v3, v4"); vs(f"v_add_u32 v{vAR}, {PHIK}, v3")
    for sg in range(2):
        for i in range(10):
            r = ACC_A + 40 + 20 * sg + 2 * i
            vs(f"v_mul_f32 v{r}, v{r}, v{vRS}"); vs(f"v_mul_f32 v{r+1}, v{r+1}, v{vRS}")
            vs(f"v_cvt_pk_bf16_f32 v{VP+12*sg+i}, v{r}, v{r+1}")
        vs(f"v_mov_b32 v{VP+12*sg+10}, 0x3f80"); vs(f"v_mov_b32 v{VP+12*sg+11}, 0")
        for i in range(3):
            vs(f"ds_write_b128 v{vAR+1}, {v(VP+12*sg+4*i,4)} offset:{6144*sg+16*i}")
    K = Asm()
    for n in range(12):
        sg, tau, st = seq[n]
        d = v(PAK + 32 * sg + 16 * tau, 16)
        K(f"v_mfma_f32_32x32x16_bf16 {d}, {a(bufs[n],4)}, {v(KP+10*sg+4*st,4)}, {'0' if st == 0 else d}")
    ins, left = weave(K, vs, per=5)
    A.extend(ins); A.extend(left)
    if OPT.get("verbose"): print("kv epilogue head", len(A.ins))
    spread(A0, A, wl(*KW[1]), OPT.get("kvsp0", 9), first=OPT.get("kvf0", 0))
    A = A0
    wq = wl(*KW[2])
    F = Asm()
    for sg in range(2):
        softmax_pair_pk(F, PAK + 32 * sg, EP, EP + 20, PK, vS1, 2)
        for i in range(5):
            F(f"ds_write_b128 v{vAR}, {v(PK+4*i,4)} offset:{10240*sg+16*i}")
        if sg == 0:
            F.wait(vm="qst"); F.g("s_barrier"); signal(F, 2)
    poll_addr(F, "q", 1, 2)
    F("v_lshrrev_b32 v1, 5, v0"); F("v_bfe_u32 v2, v0, 2, 2"); F("v_lshlrev_b32 v2, 2, v2"); F("v_lshl_add_u32 v2, v1, 1, v2")
    F("v_and_b32 v3, 3, v0"); F("v_bfe_u32 v4, v0, 4, 1"); F("v_lshl_add_u32 v3, v4, 2, v3")
    F(f"s_mul_i32 s{sF0}, s{sWAVE}, 10240"); F(f"s_add_u32 s{sF0}, s{sF0}, {PHIK}")
    F("v_mul_u32_u24 v4, 80, v2"); F(f"v_add_u32 v4, s{sF0}, v4"); F("v_lshl_add_u32 v5, v3, 3, v4")
    F("v_and_b32 v6, 1, v3"); F("v_lshl_add_u32 v6, v6, 3, v4"); F("v_add_u32 v6, 64, v6")
    F(f"s_mul_i32 s{sF0}, s{sWAVE}, 6144"); F(f"s_add_u32 s{sF0}, s{sF0}, {VIM}")
    F("v_mul_u32_u24 v4, 48, v2"); F(f"v_add_u32 v4, s{sF0}, v4"); F("v_min_u32 v7, 5, v3"); F("v_lshl_add_u32 v7, v7, 3, v4")
    if OPT.get("verbose"): print("kv epilogue F", len(F.ins))
    spread(A, F, wq, OPT.get("kvsp", 9))
    pt(A, "p2end")
    if OPT.get("kvqp", 0) == 0: poll_issue(A)
    A.wait(lgkm="all")
    A("s_barrier")
    fb = [120, 132, 144, 156]
    def krd(st):
        fr = fb[st % 4]
        for rho in range(2):
            A(f"ds_read_b64_tr_b16 {v(fr+2*rho,2)}, v5 offset:{(16*st+rho)*80}")
            A(f"ds_read_b64_tr_b16 {v(fr+8+2*rho,2)}, v7 offset:{(16*st+rho)*48}")
            A(f"ds_read_b64_tr_b16 {v(fr+4+2*rho,2)}, v6 offset:{(16*st+rho)*80}")
    for st in range(4): krd(st)
    if OPT.get("kvqp", 0) == 1: poll_issue(A)
    G = Asm()
    p2_addr_early(G)
    G(f"s_mul_i32 s{sT1}, s{sWAVE}, 10240"); G(f"s_add_u32 s{sT1}, s{sT1}, {PHIK}")
    G("v_and_b32 v1, 31, v0"); G("v_lshrrev_b32 v2, 5, v0"); G("v_mul_u32_u24 v2, 384, v2"); G("v_lshl_add_u32 v2, v1, 2, v2")
    G("v_add_u32 v3, 4096, v2"); G("v_cmp_gt_u32 vcc, 24, v1"); G.g("v_cndmask_b32 v2, v3, v2, vcc")
    G(f"v_add_u32 v{vKA+1}, s{sT1}, v2")
    G(f"v_lshlrev_b32 v{vKA}, 2, v0"); G(f"v_add_u32 v{vKA+2}, s{sT1}, v{vKA}")
    G(f"s_lshl_b32 s{sT0}, s{sU}, 2"); G(f"s_add_u32 s{sT0}, s{sT0}, s{sWAVE}"); G(f"s_mul_i32 s{sT0}, s{sT0}, {KVH}")
    G(f"s_and_b32 s{sT1}, s{sM}, 1"); G(f"s_mul_i32 s{sT1}, s{sT1}, {KVC}"); G(f"s_add_u32 s{sT0}, s{sT0}, s{sT1}")
    G(f"s_add_u32 s{sT0}, s{sT0}, {KV_OFF}")
    K = Asm()
    sv = A.ins; A.ins = K.ins
    for st in range(8):
        fr = fb[st % 4]
        for tau in range(2):
            d = v(KVA + 16 * tau, 16)
            A(f"v_mfma_f32_32x32x16_bf16 {d}, {v(fr+4*tau,4)}, {v(fr+8,4)}, {'0' if st == 0 else d}")
        if st + 4 < 8: krd(st + 4)
    A.ins = sv
    ins, left = weave(K, G, start=8, per=6)
    A.extend(ins); A.extend(left)
    DN = 120
    def relayout(A):
        for r in range(20):
            A(f"ds_write_b32 v{vKA+1}, v{KVA+r} offset:{(8 * (r >> 2) + (r & 3)) * 96}")
        for i in range(0, 14, 2):
            A(f"ds_read2st64_b32 {v(DN+i,2)}, v{vKA+2} offset0:{i} offset1:{i+1}")
        A(f"ds_read_b32 v{DN+14}, v{vKA+2} offset:{14*256}")
    if OPT.get("kvrl", 0): relayout(A)
    poll_check(A, C, 2)
    p2_first_loads(A)
    pt(A, "sig2")
    if not OPT.get("kvrl", 0): relayout(A)
    for r in range(15):
        A(f"buffer_atomic_add_f32 v{DN+r}, v{vKA}, {srdr(SWS)}, s{sT0} offen offset:{r*256} sc1", "fin")
    pt(A, "first")
    part1_head(A)
    A(f"s_branch {L('tail')}")

def pinfo(A, sl, J, qf):
    if isinstance(sl, int):
        if sl == 0:
            A(f"s_cmp_lt_u32 s{sU}, 2"); A.g(f"s_cselect_b32 s{J}, 8, -2"); A.g(f"s_cselect_b32 s{qf}, 1, 0")
        else:
            A(f"s_mov_b32 s{J}, {8*sl - 2}"); A(f"s_mov_b32 s{qf}, 0")
        A(f"s_add_u32 s{J}, s{J}, s{sU}")

def role_p(A, C):
    L = C.L
    ACC = 128; CR = 64; MT = 64
    A.label(L("prole"))
    A(f"s_lshl_b32 s{sT0}, s{sWAVE}, 3"); A(f"s_add_u32 s{sT0}, s{sT0}, s{sU}")
    A(f"s_cmp_lt_u32 s{sT0}, 2"); A(f"s_cselect_b32 s{sT1}, 8, -2"); A(f"s_cselect_b32 s{sT2}, 1, 0")
    csel(A, sT3, 3840, 3456)
    A(f"s_add_u32 s{sT0}, s{sT0}, s{sT1}"); A(f"s_lshl_b32 s{sT1}, s{sT0}, 7")
    A(f"s_cmp_lt_u32 s{sT0}, 27"); A(f"s_cselect_b32 s{sT1}, s{sT1}, {hex(OOB)}")
    pair_lane(A)
    A(f"v_mul_u32_u24 v5, s{sT3}, v1"); A(f"v_lshl_add_u32 v{vP1}, v3, 4, v5")
    A(f"s_lshl_b32 s{sT0}, s{sT3}, 3"); A(f"s_sub_u32 s{sT0}, s{sT0}, 1024")
    for i in range(1, 4):
        A(f"v_add_u32 v{vP1+i}, s{sT0}, v{vP1+i-1}")
    A(f"s_lshl_b32 s{sWB}, s{sWAVE}, 12"); A(f"s_add_u32 s{sWB}, s{sWB}, {WR}")
    A("s_waitcnt lgkmcnt(0)")
    srd(A, SX, 4, 2048 * 1280)
    srd(A, SWS, 20, WS_SIZE)
    A(f"s_cmp_eq_u32 s{sT2}, 1")
    A(f"s_cselect_b64 s[{SWA}:{SWA+1}], s[6:7], s[14:15]")
    csel(A, SWA + 2, 640*3840, 640*3456)
    A(f"s_and_b32 s{SWA+1}, s{SWA+1}, 0xffff"); A(f"s_mov_b32 s{SWA+3}, 0x20000")
    A(f"s_mov_b32 s{sWO}, s{sT1}"); A(f"s_lshl_b32 s{sWS}, s{sT3}, 5")
    A0 = A; A = Asm()
    build_srds(A, True)
    spread(A0, A, x_dma(0), 8, first=8)
    A = Asm(); pack_setup(A)
    spread(A0, A, p_dma(0) + p_dma(1), 16, first=16)
    epoch_load(A0)
    A = Asm()
    common_addr(A)
    common_lane(A)
    pair_read_base(A, vPRP)
    A(f"v_add_u32 v{vPRP}, {WR}, v{vPRP}")
    A(f"v_xor_b32 v{vPRP+1}, 64, v{vPRP}")
    A(f"v_add_u32 v{vPRP+2}, 65536, v{vPRP}"); A(f"v_add_u32 v{vPRP+3}, 65536, v{vPRP+1}")
    pack_read_addr(A)
    prep_setup(A)
    phi_loads(A, False, aPH)
    spread(A0, A, pack_dma() + x_dma(1) + p_dma(2) + p_dma(3), 7, first=7)
    A = A0
    pt(A, "pro")
    S1 = OPT.get("s1p", 8); SG = OPT.get("sig1", 5); HB = OPT.get("hbp", 1)
    PW = OPT.get("pw", ((2, 3, 4, 5), (0, 1, 6), (7, 8), (9,), (10, 11)))
    steps = []
    for s in range(40):
        g, sp = divmod(s, 4)
        h = s >> 1; sl = h % 6; hi = sl >= 4
        fr = aW + 32 * (s & 1)
        rd = []
        for t in range(8):
            for rho in range(2):
                off = (sl & 3 if hi else sl) * HS + (t >> 1) * 4096 + (s & 1) * 2048 + rho * 512
                rd.append(f"ds_read_b64_tr_b16 {a(fr + 4*t + 2*rho, 2)}, v{vPRP + (t & 1) + 2*hi} offset:{off}")
        q = []
        NP = OPT.get("noprep")
        if s == 0: q += ([] if NP else cs_loads()) + p_dma(4) + pack_reads() + ([] if NP else stats_loads()) + [("WAIT:lgkm:pkr", None, 0)] + x_dma(2) + p_dma(5)
        elif HB:
            if sp in (0, 2): q += p_dma(h + 5)
            if sp == 2: q += x_dma(g + 3)
        elif sp == 0: q += x_dma(g + 2) + p_dma(h + 4) + p_dma(h + 5)
        if s == 4 and not NP: q += pack_stores() + pack_shared()
        steps.append(dict(nt=8, acc=[ACC + 16 * t for t in range(8)], first=(s == 0), xreg=aX + 16 * (g & 1) + 4 * sp, frag=fr,
                          reads=rd, chunk=h if sp == 0 or (HB and sp == 2) else None, xj=g if sp == 0 else None, queue=q,
                          tags=(["prep"] if s == 4 * SG else (["pkx"] if s == 4 else [])) + ([] if HB else [f"w{h+1}"])))
    def pre(A, c):
        if c == S1: poll_check(A, C, 1)
    def post(A, c, dq):
        pt(A, f"c{c}")
        if c == 1: A(f"v_readfirstlane_b32 s{sE}, v{vEP}")
        if c == SG: signal(A, 1)
        if c == S1 - 1: poll_issue(A)
        if c == S1:
            A = Asm()
            stats_load(A)
            for sl in range(4):
                pinfo(A, sl, sT0, sT1)
                A(f"s_lshl_b32 s{sT0}, s{sT0}, 10"); A(f"s_mul_i32 s{sT1}, s{sT1}, {-1920*16}")
                A(f"s_add_u32 s{sT0}, s{sT0}, s{sT1}"); A(f"s_add_u32 s{sT0}, s{sT0}, {CS_OFF + 1920*16}")
                for t in range(2):
                    A(f"buffer_load_dwordx4 {v(CR+8*sl+4*t,4)}, v{vCP}, {srdr(SWS)}, s{sT0} offen offset:{512*t} sc1")
            dq.add(as_queue(A), front=True)
            dq.add(wl(*PW[0]))
    M = Asm(); dq = DQ()
    gemm_steps(M, steps, 1, dq, pre, post, every=OPT.get("pevery", [1.4, 1.4, 1.6, 2]))
    dq.pop(M, 99)
    g0 = OPT.get("pw0", 30); cb = OPT.get("csbar", 5 if HB else 6)
    F = Asm(); cs_setup(F); zero_kv(F)
    ins, left = weave32(M, F, start=2, stop=25, budget=5.5); assert not left, len(left)
    FS = Asm(); stats_compute(FS)
    k = OPT.get("stk", 40)
    F = Asm(); phi_writes(F, False, aPH); cs_compute(F); F.extend(FS.ins[:k]); cs_write(F)
    ins, left = weave32(ins, F, start=g0, stop=16 * cb - 6, budget=OPT.get("pbud", 5.5)); assert not left, len(left)
    F = Asm(); cs_finish(F); F.extend(FS.ins[k:])
    ins, left = weave32(ins, F, start=16 * cb - 5, stop=32 * SG - 6, budget=OPT.get("pbud", 5.5)); assert not left
    F = Asm()
    stats_frag(F, 1)
    for t in range(8): corr_frag(F, CR + 4 * t, 1 + (t & 1))
    for sl, d in enumerate((sPKO, sPKD, sPX0, sPX1)):
        pinfo(F, sl, d, sF0)
        if sl == 0: F(f"s_mov_b32 s{sQF}, s{sF0}"); F(f"s_mul_i32 s{sF0}, s{sF0}, {74*1024}")
        F(f"s_lshl_b32 s{d}, s{d}, 11"); F(f"s_add_u32 s{d}, s{d}, s{sACT}")
        if sl == 0: F(f"s_add_u32 s{d}, s{d}, s{sF0}")
    ins, left = weave32(ins, F, start=32 * (S1 + 1) - 4, budget=5.5)
    A.extend(ins)
    pt(A, "p1end")
    A.extend(left)
    for t in range(8):
        A(f"v_mfma_f32_32x32x16_bf16 {v(ACC+16*t,16)}, {v(CR+4*t,4)}, {v(vCB,4)}, {v(ACC+16*t,16)}")
    poll_addr(A, "q", 1, 2)
    p2_addr_early(A)
    def mslot(A, sl, so, tag, ts=(0, 1)):
        for t in ts:
            for p in range(2):
                mish_pk(A, ACC + 32 * sl + 16 * t + 8 * p, 8, MT)
                pair_store(A, ACC + 32 * sl, so, tag, t, p)
    sp = OPT.get("psp", 14)
    A(f"s_cmp_eq_u32 s{sQF}, 1")
    A(f"s_cbranch_scc0 {L('noq')}")
    for t in range(2):
        for p in range(2):
            r = ACC + 16 * t + 8 * p
            for i in range(4): A(f"v_cvt_pk_bf16_f32 v{r+i}, v{r+2*i}, v{r+2*i+1}")
            pair_store(A, ACC, sPKO, "qst", t, p)
    F = Asm(); mslot(F, 1, sPKD, "stA", (0,))
    spread(A, F, wl(*PW[1][:1]), sp)
    A.wait(vm="qst"); A.g("s_barrier"); signal(A, 2)
    emit(A, wl(*PW[1][1:]))
    A(f"s_branch {L('q9')}")
    A.label(L("noq"))
    F = Asm(); mslot(F, 0, sPKO, "stA"); mslot(F, 1, sPKD, "stA", (0,))
    spread(A, F, wl(*PW[1]), sp)
    A.label(L("q9"))
    F = Asm(); mslot(F, 1, sPKD, "stA", (1,))
    poll_issue(F)
    mslot(F, 2, sPX0, "fin", (0,))
    spread(A, F, wl(*PW[2]), sp)
    A.wait(vm="stA"); A.g("s_barrier"); signal(A, 3)
    pt(A, "p2end")
    F = Asm(); mslot(F, 2, sPX0, "fin", (1,))
    spread(A, F, wl(*PW[3]), sp)
    poll_check(A, C, 2)
    p2_first_loads(A)
    pt(A, "sig2")
    A(f"s_cmp_lt_u32 s{sU}, 5")
    A(f"s_cbranch_scc1 {L('h3')}")
    emit(A, wl(*PW[4]))
    A(f"s_branch {L('h9')}")
    A.label(L("h3"))
    F = Asm(); mslot(F, 3, sPX1, "fin")
    spread(A, F, wl(*PW[4]), sp)
    A.label(L("h9"))
    pt(A, "first")
    part1_head(A)

def phase2(A, C):
    L = C.L
    A.label(L("tail"))
    OWN = OPT.get("own", 1)
    vWL = 36
    WOB = [0, 61440, 81920, 102400, 122880]
    def wdma(g):
        o = [(f"s_add_u32 m0, s{sWB}, {WOB[g]}", None, 0), (f"s_add_u32 s{sXD}, s{sPV}, {5120*g}", None, 0)]
        for nt in range(5):
            if nt == 4: o.append((f"s_add_u32 m0, s{sWB}, {WOB[g] + 4096}", None, 0))
            o.append((f"buffer_load_dwordx4 v{vW+(nt>>2)}, {srdr(SWS)}, s{sXD} offen offset:{1024*(nt&3)} sc1 lds", f"WL{g}", 1))
        return o
    EX = [a(240,4), a(244,4), a(248,4), a(252,4), v(100,4), v(104,4), v(108,4), v(40,4), v(80,4), v(84,4)] + [v(44+4*i,4) for i in range(5)]
    def wo(j, nt):
        if j < 9: return a(slot(2 + j) + 4 * nt, 4)
        if j < 12: return EX[5 * (j - 9) + nt]
        if j < 15: return a(slot(j - 1) + 4 * nt, 4)
        return a(slot(j - 13) + 4 * nt, 4)
    def wrd(j, nt):
        g, w = j >> 2, j & 3
        b, off = (vW, 0) if g == 0 else (vWL + (g >= 3), WOB[g] - (61440 if g < 3 else 102400))
        return (f"ds_read_b128 {wo(j,nt)}, v{b} offset:{off + 5120*w + 1024*nt}", None, 1)
    def place(e, lst, gaps):
        k = 0
        for x in lst:
            e.setdefault(gaps[k], []).append(x)
            k += x[2]
        return e
    LW = OPT.get("lw", {1: (0,), 2: (1,), 3: (2,), 4: (3, 4)})
    SG = 5 + OPT.get("osig", 0)
    RS = {}
    EARLY = [g for n in LW for g in LW[n] if n < OPT.get("na", 2)]
    LS = {g: n for n in LW for g in LW[n]}
    LATE = [g for g in range(5) if LS[g] > 4]
    assert LS[0] <= 4 and LS[1] <= 4 and max(LW) <= 9
    def plan_reads():
        todo = [j for j in list(range(8)) + [9, 10, 11] if (j >> 2) not in LATE]
        q = [(j, nt) for j in todo for nt in range(5)]
        for n in range(5, 11):
            ok = [x for x in q if ((x[0] >> 2) in EARLY or n > SG) and (x[0] > 8 or x[0] + 2 < n)]
            cap = len(ok) if n == 10 else min(len(ok), -(-len(q) // (11 - n)) + OPT.get("rsx", 0))
            RS[n] = [wrd(*x) for x in ok[:cap]]
            q = [x for x in q if x not in ok[:cap]]
        assert not q
    plan_reads()
    XH = [32, 33, 34, 35, 20, 21, 22, 23, 98, 99]
    def step(M, n, extra, order=range(4)):
        if OWN:
            for gi, k in enumerate(order):
                for nt in range(5):
                    d = v(ACCO + 4 * (5 * k + nt), 4)
                    M(f"v_mfma_f32_16x16x32_bf16 {d}, {a(slot(n)+4*nt,4)}, {v(ACT + 16 * (n % 4) + 4 * k, 4)}, {'0' if n == 0 else d}")
                    emit(M, extra.get(5 * gi + nt, []))
                if n + 4 < 14: emit(M, act_load(n + 4, k))
            return
        for k in range(4):
            b = v(ACT + 16 * (n % 4) + 4 * k, 4) if n < 14 else a(aO + 16 * (n - 14) + 4 * k, 4)
            for nt in range(5):
                d = v(ACCO + 4 * (5 * k + nt), 4)
                M(f"v_mfma_f32_16x16x32_bf16 {d}, {a(slot(n)+4*nt,4)}, {b}, {'0' if n == 0 else d}")
                emit(M, extra.get(5 * k + nt, []))
            if n + 4 < 14: emit(M, act_load(n + 4, k))
    def wext(n):
        e = {}
        if 1 <= n and n + 11 <= (13 if OWN else 18):
            lst = w2p_loads(n + 11)
            k = 0
            for x in lst:
                e.setdefault(1 + 4 * k, []).append(x)
                k += x[2]
        if OWN:
            gs = LW.get(n, ())
            if gs: place(e, sum((wdma(g) for g in gs), []), [(20 * i) // (5 * len(gs)) + (2 if len(gs) == 1 else 0) for i in range(5 * len(gs))])
            rd = RS.get(n, [])
            if rd: place(e, rd, [(17 * i) // len(rd) for i in range(len(rd))])
            if n == 9:
                for i in range(10):
                    e.setdefault(2 * i, []).append((f"v_and_b32 v{XH[i]}, 0xffff0000, v{XRS+i}", None, 0))
                    e.setdefault(2 * i + 1, []).append((f"v_lshlrev_b32 v{XRS+i}, 16, v{XRS+i}", None, 0))
        return e
    F = Asm()
    for n in range(15):
        st, ch = P1SEQ[n]
        d = v(PA2 + 4 * ch, 4)
        F(f"v_mfma_f32_16x16x32_bf16 {d}, {reg(n,0,4)}, {v(QR+4*st,4)}, {'0' if st == 0 else d}")
        if n + 7 < 15: prd(F, n + 7)
    F(f"v_rsq_f32 v{ST2}, v{ST2+1}"); F("s_nop 0")
    F(f"v_mul_f32 v{ST2}, {hex(LOG2E)}, v{ST2}")
    G = Asm()
    softmax_pair_pk(G, PA2, PK2, PA2, PK2, ST2, 2)
    kp = OPT.get("p1poll", 110)
    H = Asm(); poll_issue(H)
    G.ins[kp:kp] = H.ins
    F.extend(G)
    if OPT.get("verbose"): print("part1", len(F.ins), len(G.ins))
    A.extend(F)
    pt(A, "sm")
    A.wait(vm="fin"); A("s_barrier"); signal(A, 4)
    pt(A, "fin")
    poll_check(A, C, 3)
    F = Asm()
    poll_addr(F, "kvp", 1, 2)
    F(f"v_lshlrev_b32 v{vKA}, 4, v{vTID}")
    for j in range(1, 4): F(f"v_add_u32 v{vKA+j}, {4096*j}, v{vKA}")
    if OWN:
        F(f"s_mul_i32 s{sWB}, s{sWAVE}, 5120"); F(f"v_add_u32 v{vWL}, 61440, v{vW}"); F(f"v_add_u32 v{vWL+1}, 102400, v{vW}")
    spread(A, F, sum((act_load(n, k) for n in range(4) for k in range(4)), []), 2, first=2)
    if OWN: emit(A, sum((wdma(g) for g in LW.get(-1, ())), []))
    pt(A, "part1")
    NA = OPT.get("na", 2); NB = OPT.get("nb", 2)
    assert NA <= 3
    kq = OPT.get("kvpoll", 1)
    if kq == 0: poll_issue(A)
    for n in range(NA):
        step(A, n, wext(n))
        if kq == n + 1: poll_issue(A)
    poll_check(A, C, 4)
    pt(A, "kvchk")
    A(f"s_mul_i32 s{sP0}, s{sC}, {4*KVH}"); A(f"s_add_u32 s{sP0}, s{sP0}, {KV_OFF}"); A(f"s_add_u32 s{sP1}, s{sP0}, {KVC}")
    for j in range(4):
        A(f"buffer_load_dwordx4 {v(KVR+4*j,4)}, v{vKA+j}, {srdr(SWS)}, s{sP0} offen sc1")
        A(f"buffer_load_dwordx4 {v(NU+4*j,4)}, v{vKA+j}, {srdr(SWS)}, s{sP1} offen sc1")
    F = Asm()
    F(f"s_lshr_b32 s{sT0}, s{sC}, 1"); F(f"s_mul_i32 s{sT0}, s{sT0}, 5"); F(f"s_add_u32 s{sT0}, s{sT0}, 54"); F(f"s_lshl_b32 s{sT0}, s{sT0}, 10")
    F(f"s_mul_i32 s{sT1}, s{sWAVE}, {ACT_BLK}"); F(f"s_add_u32 s{sT0}, s{sT0}, s{sT1}"); F(f"s_add_u32 s{sT0}, s{sT0}, s{sAB}")
    F(f"s_and_b32 s{sT1}, s{sC}, 1"); F(f"s_lshl_b32 s{sT2}, s{sT1}, 11"); F(f"s_add_u32 s{sT2}, s{sT2}, s{sT0}")
    F(f"s_lshl_b32 s{sT1}, s{sT1}, 9"); F(f"s_add_u32 s{sT1}, s{sT1}, s{sT0}"); F(f"s_add_u32 s{sT1}, s{sT1}, 4096")
    F("v_lshrrev_b32 v3, 5, v0"); F("v_lshlrev_b32 v3, 8, v3"); F("v_and_b32 v4, 15, v0"); F("v_lshl_add_u32 v3, v4, 4, v3")
    F("v_bfe_u32 v4, v0, 4, 1"); F(f"v_lshl_add_u32 v{vOA}, v4, 3, v3")
    F(f"v_lshlrev_b32 v2, 3, v{vTID}"); F(f"v_add_u32 v2, {KVI}, v2")
    OPF = OPT.get("opf", 0)
    if OPF:
        F(f"v_min_u32 v{vQA}, 19, v0"); F(f"v_lshlrev_b32 v{vQA}, 7, v{vQA}")
        F(f"s_sub_u32 s{sT3}, s{sT1}, 2048"); F(f"v_mov_b32 v{vQA+1}, s{sT2}"); F(f"v_mov_b32 v{vQA+2}, s{sT3}")
        F("v_cmp_gt_u32 vcc, 16, v0"); F.g(f"v_cndmask_b32 v{vQA+1}, v{vQA+2}, v{vQA+1}, vcc")
        F(f"v_add_u32 v{vQA}, v{vQA}, v{vQA+1}")
    n0 = NA + NB - 1
    M = Asm()
    for n in range(NA, NA + NB): step(M, n, wext(n))
    ins, left = weave(M, F, per=2); A.extend(ins); A.extend(left)
    for j in range(4):
        for h in range(2): A(f"v_pk_add_f32 {v(KVR+4*j+2*h,2)}, {v(KVR+4*j+2*h,2)}, {v(NU+4*j+2*h,2)}")
        A(f"v_cvt_pk_bf16_f32 v{KVR+4*j}, v{KVR+4*j}, v{KVR+4*j+1}")
        A(f"v_cvt_pk_bf16_f32 v{KVR+4*j+1}, v{KVR+4*j+2}, v{KVR+4*j+3}")
        A(f"ds_write_b64 v2, {v(KVR+4*j,2)} offset:{2048*j}")
    A.wait(lgkm="all")
    A("s_barrier")
    pt(A, "stage")
    F = Asm()
    seq2 = [(st, ch) for st in range(5) for ch in range(6)]
    def krd(n):
        st, ch = seq2[n]
        for rho in range(2):
            F(f"ds_read_b64_tr_b16 {reg(n,2*rho,2)}, v{vF2} offset:{(8*st+4*rho)*48+ch*8}")
    for n in range(7): krd(n)
    for n in range(30):
        st, ch = seq2[n]
        d = v(NU + 4 * ch, 4)
        F(f"v_mfma_f32_16x16x32_bf16 {d}, {reg(n,0,4)}, {v(PK2+4*st,4)}, {'0' if st == 0 else d}")
        if n + 7 < 30: krd(n + 7)
    F(f"v_add_f32 v1, 0x358637bd, v{NU+20}"); F("v_rcp_f32 v1, v1"); F(f"v_mul_f32 v1, {hex(LOG2E)}, v1")
    for i in range(10):
        F(f"v_mul_f32 v{NU+2*i}, v{NU+2*i}, v1"); F(f"v_mul_f32 v{NU+2*i+1}, v{NU+2*i+1}, v1")
        F(f"v_cvt_pk_bf16_f32 v{NU+i}, v{NU+2*i}, v{NU+2*i+1}")
    F(f"buffer_store_dwordx4 {v(NU,4)}, v{vW}, {srdr(SWS)}, s{sT2} offen sc1", "ost")
    F(f"buffer_store_dwordx4 {v(NU+4,4)}, v{vW}, {srdr(SWS)}, s{sT2} offen offset:1024 sc1", "ost")
    F(f"buffer_store_dwordx2 {v(NU+8,2)}, v{vOA}, {srdr(SWS)}, s{sT1} offen sc1", "ost")
    M = Asm()
    P2 = OPT.get("p2steps", 1)
    for n in range(n0 + 1, n0 + 1 + P2): step(M, n, wext(n))
    tot = sum((2 if x.cls == "mfma" else x.cost) for x in F.ins)
    if P2: ins, left = weave(M, F, per=tot / (20 * P2) + 0.05); A.extend(ins); A.extend(left)
    else: A.extend(F)
    pt(A, "part2")
    n1 = n0 + 1 + P2
    F = Asm()
    poll_addr(F, "o", 1, 2)
    F("v_and_b32 v1, 15, v0"); F(f"s_lshl_b32 s{sT0}, s{sWAVE}, 4"); F(f"v_add_u32 v1, s{sT0}, v1"); F("v_mul_u32_u24 v1, 1280, v1")
    F("v_lshrrev_b32 v2, 4, v0"); F(f"v_lshl_add_u32 v{vXO}, v2, 4, v1"); F(f"v_lshl_add_u32 v{vXO+1}, v2, 3, v1")
    F(f"s_mul_i32 s{sXO}, s{sR}, {64*1280}"); F(f"s_mul_i32 s{sT0}, s{sC}, 160"); F(f"s_add_u32 s{sXO}, s{sXO}, s{sT0}")
    for k in range(1, 4):
        F(f"s_add_u32 s{sT0}, s{sWAVE}, {k}"); F(f"s_and_b32 s{sT0}, s{sT0}, 3"); F(f"s_mul_i32 s{sT0}, s{sT0}, 15360")
        F(f"s_add_u32 s{sT0}, s{sT0}, {RED + (k-1)*5120}"); F(f"v_add_u32 v{vRW+k-1}, s{sT0}, v{vW}")
    F(f"s_mul_i32 s{sT0}, s{sWAVE}, 15360"); F(f"v_add_u32 v{vRR}, s{sT0}, v{vW}")
    F(f"buffer_load_dwordx4 {v(XRS,4)}, v{vXO}, {srdr(SX)}, s{sXO} offen")
    F(f"buffer_load_dwordx4 {v(XRS+4,4)}, v{vXO}, {srdr(SX)}, s{sXO} offen offset:64")
    F(f"buffer_load_dwordx2 {v(XRS+8,2)}, v{vXO+1}, {srdr(SX)}, s{sXO} offen offset:128")
    M = Asm()
    SIG = n1 + OPT.get("osig", 0); POLL = OPT.get("opoll", 10)
    ol = [(f"buffer_load_dwordx4 {a(aO+16*i+4*k,4)}, v{vA+k}, {srdr(SWS)}, s{sA if i < 4 else sP1} offen offset:{1024*(i&3)} sc1", None, 1)
          for i in range(5) for k in range(4)]
    KM = OPT.get("kmaj", 1)
    if KM: ol = [ol[4 * i + k] for k in (1, 2, 3, 0) for i in range(5)]
    osp = OPT.get("osp", 3); o0 = OPT.get("o0", 2)
    O13 = (1, 2, 3, 0)
    def oreg(j):
        if j < 4: return 64 + 4 * j
        if j < 8: return ACT + 32 + 4 * (j & 3)
        return ACT + 16 * ((11 + (j - 8) % 3) % 4) + 4 * O13[(j - 8) // 3]
    def ow(k, nt): return (f"ds_write_b128 v{vRW+k-1}, {v(ACCO+4*(5*k+nt),4)} offset:{1024*nt}", None, 1)
    rw = [ow(k, nt) for k in (1, 2, 3) for nt in range(5)]
    wsp = OPT.get("wsp", 3)
    if OWN:
        assert POLL == 10 and n0 + P2 == 4 and SIG == SG
        ol = [(f"buffer_load_dwordx4 {v(oreg(j),4)}, v{vA+(j&3)}, {srdr(SWS)}, s{sA if j < 16 else sP1} offen offset:{1024*((j>>2)&3)} sc1", None, 1)
              for j in range(20)]
        og = {}; g = osp - 1
        for j in range(o0, 20):
            g = max(g, 0 if j < 8 else 5 * (j - 8) + 4)
            og.setdefault(min(g, 59), []).append(ol[j]); g += osp
        del ol[o0:]
    for n in range(n1, 14):
        e = wext(n)
        if OWN:
            if n > POLL:
                if n > 11: continue
                w8 = [wrd(8, nt) for nt in range(5)]
                for g in range(60):
                    k = O13[g // 15]; m = 11 + (g % 15) // 5; nt = g % 5
                    d = v(ACCO + 4 * (5 * k + nt), 4)
                    M(f"v_mfma_f32_16x16x32_bf16 {d}, {a(slot(m)+4*nt,4)}, {v(ACT + 16 * (m % 4) + 4 * k, 4)}, {d}")
                    emit(M, og.get(g, []))
                    if g < 15 and g % 3 == 0: emit1(M, w8.pop(0))
                    if g >= 17 and (g - 17) % 3 == 0: emit1(M, rw.pop(0))
                continue
            step(M, n, e)
            if n == SIG:
                M.wait(vm=["ost"] + [f"WL{g}" for g in range(5) if g not in LATE]); M("s_barrier"); signal(M, 5)
                pt(M, "osig")
            if n == OPT.get("opi", 7): poll_issue(M)
            if n == POLL:
                M(f"s_add_u32 s{sA}, s{sAB}, {54*1024}")
                for k in range(1, 4): M(f"v_add_u32 v{vA+k}, {5120*k}, v{vA}")
                poll_check(M, C, 5)
                M(f"s_add_u32 s{sP1}, s{sA}, 4096")
                emit(M, ol); del ol[:]
                if LATE: M.wait(vm=[f"WL{g}" for g in LATE])
                M.wait(lgkm="all"); M("s_barrier")
                pt(M, "ochk")
            continue
        if n > POLL:
            for g in range(20):
                if (20 * (n - POLL - 1) + g) % osp == osp - 1 and ol: e.setdefault(g, []).append(ol.pop(0))
        step(M, n, e)
        if n == SIG:
            M.wait(vm="ost")
            if OPF == 1: M.g(f"buffer_load_dword v{vQA+1}, v{vQA}, {srdr(SWS)}, 0 offen sc1")
            M("s_barrier"); signal(M, 5)
            if OPF == 2: M(f"buffer_load_dword v{vQA+1}, v{vQA}, {srdr(SWS)}, 0 offen sc1")
            pt(M, "osig")
        if n == POLL - 1: poll_issue(M)
        if n == POLL:
            poll_check(M, C, 5)
            pt(M, "ochk")
            M(f"s_mul_i32 s{sA}, s{sWAVE}, 5120"); M(f"s_add_u32 s{sA}, s{sA}, s{sAB}"); M(f"s_add_u32 s{sA}, s{sA}, {54*1024}")
            M(f"s_add_u32 s{sP1}, s{sA}, 4096")
            emit(M, ol[:o0]); del ol[:o0]
    emit(M, ol)
    ins, left = weave(M, F, per=2); A.extend(ins); assert not left
    pt(A, "s13")
    if OWN:
        A(f"s_mov_b32 s{sT0}, {hex(LN2)}"); A(f"s_mov_b32 s{sT0+1}, {hex(LN2)}")
        RB = ACCO + 20
        rr = [(f"ds_read_b128 {v(RB+12*nt+4*sl,4)}, v{vRR} offset:{sl*5120+nt*1024}", None, 1) for nt in range(5) for sl in range(3)]
        post = rr + [wrd(j, nt) for j in range(9 if 2 in LATE else 12, 20) for nt in range(5)]
        fs = []
        for nt in range(5):
            b = RB + 12 * nt
            for c in range(4): fs.append(f"v_add_f32 v{b+c}, v{b+c}, v{b+4+c}")
            for c in range(4): fs.append(f"v_add_f32 v{b+c}, v{b+c}, v{b+8+c}")
            for c in range(4):
                x = XH[2 * nt + c // 2] if c & 1 else XRS + 2 * nt + c // 2
                fs.append(f"v_fma_f32 v{b+4+c}, v{b+c}, s{sT0}, v{x}")
        bar = OPT.get("bard", 2); fst = OPT.get("fst", 12); rend = OPT.get("rend", 84); np_ = len(post)
        for q in range(100):
            j, nt = divmod(q, 5)
            d = v(ACCO + 4 * nt, 4)
            A(f"v_mfma_f32_16x16x32_bf16 {d}, {wo(j,nt)}, {v(oreg(j),4)}, {d}")
            if q == bar: A.wait(lgkm="all"); A("s_barrier"); pt(A, "red")
            if q >= bar:
                while post and (q < bar + 15 and np_ - len(post) <= q - bar or np_ - len(post) - 15 <= (q - bar - 15) * (np_ - 15) / (rend - bar - 15) and q >= bar + 15):
                    emit1(A, post.pop(0))
                if q >= bar + fst and fs: A(fs.pop(0))
            if q == 49: pt(A, "b0a")
        assert not post and not fs and not rw
        pt(A, "b0")
        for nt in range(5):
            o = ACCO + 4 * nt
            for h in range(2):
                A(f"v_pk_fma_f32 {v(o+2*h,2)}, {v(o+2*h,2)}, s[{sT0}:{sT0+1}], {v(RB+12*nt+4+2*h,2)}")
            for h in range(2):
                A(f"v_cvt_pk_bf16_f32 v{64+2*nt+h}, v{o+2*h}, v{o+2*h+1}")
            if nt == 1: A(f"buffer_store_dwordx4 {v(64,4)}, v{vXO}, {srdr(SOUT)}, s{sXO} offen")
            if nt == 3: A(f"buffer_store_dwordx4 {v(68,4)}, v{vXO}, {srdr(SOUT)}, s{sXO} offen offset:64")
            if nt == 4: A(f"buffer_store_dwordx2 {v(72,2)}, v{vXO+1}, {srdr(SOUT)}, s{sXO} offen offset:128")
    elif KM:
        def om(k, n, nt):
            d = v(ACCO + 4 * (5 * k + nt), 4)
            A(f"v_mfma_f32_16x16x32_bf16 {d}, {a(slot(n)+4*nt,4)}, {a(aO+16*(n-14)+4*k,4)}, {d}")
        def ow(k, nt): A(f"ds_write_b128 v{vRW+k-1}, {v(ACCO+4*(5*k+nt),4)} offset:{1024*nt}")
        A(f"s_mov_b32 s{sT0}, {hex(LN2)}"); A(f"s_mov_b32 s{sT0+1}, {hex(LN2)}")
        xs = []
        for i in range(10):
            xs += [f"v_lshlrev_b32 v{44+2*i}, 16, v{XRS+i}", f"v_and_b32 v{45+2*i}, 0xffff0000, v{XRS+i}"]
        for k in (1, 2, 3):
            for n in range(14, 19):
                for nt in range(5):
                    om(k, n, nt)
                    if k > 1 and n == 14 and nt >= 2: ow(k - 1, nt - 2)
                    if k > 1 and n == 15 and nt < 2: ow(k - 1, nt + 3)
                    if n >= 16 and xs: A(xs.pop(0))
                if k == 1 and n == 14: pt(A, "b1a")
            pt(A, f"b{k}")
        NB0 = OPT.get("nb0", 0)
        for n in range(14, 14 + NB0):
            for nt in range(5):
                om(0, n, nt)
                if n == 14 and nt >= 2: ow(3, nt - 2)
        for nt in range(3 if NB0 else 0, 5): ow(3, nt)
        A.wait(lgkm="all")
        A("s_barrier")
        pt(A, "red")
        for nt in range(5):
            for sl in range(3):
                A(f"ds_read_b128 {v(ACT+12*nt+4*sl,4)}, v{vRR} offset:{sl*5120+nt*1024}")
        fs = []
        for nt in range(5):
            b = ACT + 12 * nt
            for h in range(2): fs.append(f"v_pk_add_f32 {v(b+2*h,2)}, {v(b+2*h,2)}, {v(b+4+2*h,2)}")
            for h in range(2): fs.append(f"v_pk_add_f32 {v(b+2*h,2)}, {v(b+2*h,2)}, {v(b+8+2*h,2)}")
            for h in range(2): fs.append(f"v_pk_fma_f32 {v(44+4*nt+2*h,2)}, {v(b+2*h,2)}, s[{sT0}:{sT0+1}], {v(44+4*nt+2*h,2)}")
        for n in range(14 + NB0, 18):
            for nt in range(5): om(0, n, nt)
        pt(A, "b0a")
        for x in fs: A(x)
        for nt in range(5): om(0, 18, nt)
        pt(A, "b0")
        for nt in range(5):
            o = ACCO + 4 * nt
            for h in range(2):
                A(f"v_pk_fma_f32 {v(o+2*h,2)}, {v(o+2*h,2)}, s[{sT0}:{sT0+1}], {v(44+4*nt+2*h,2)}")
            for h in range(2):
                A(f"v_cvt_pk_bf16_f32 v{64+2*nt+h}, v{o+2*h}, v{o+2*h+1}")
            if nt == 1: A(f"buffer_store_dwordx4 {v(64,4)}, v{vXO}, {srdr(SOUT)}, s{sXO} offen")
            if nt == 3: A(f"buffer_store_dwordx4 {v(68,4)}, v{vXO}, {srdr(SOUT)}, s{sXO} offen offset:64")
            if nt == 4: A(f"buffer_store_dwordx2 {v(72,2)}, v{vXO+1}, {srdr(SOUT)}, s{sXO} offen offset:128")
    else:
        for n in range(14, 18): step(A, n, {})
        n = 18
        order = [1, 2, 3, 0]
        for idx, k in enumerate(order):
            for nt in range(5):
                d = v(ACCO + 4 * (5 * k + nt), 4)
                A(f"v_mfma_f32_16x16x32_bf16 {d}, {a(slot(n)+4*nt,4)}, {a(aO+64+4*k,4)}, {d}")
                if idx >= 2 or (idx == 1 and nt >= 2):
                    j = 5 * (idx - 1) + nt - 2
                    kk = order[j // 5]
                    A(f"ds_write_b128 v{vRW+kk-1}, {v(ACCO+4*(5*kk+j%5),4)} offset:{1024*(j%5)}")
        for j in range(13, 15):
            A(f"ds_write_b128 v{vRW+2}, {v(ACCO+4*(15+j%5),4)} offset:{1024*(j%5)}")
        XF = 100
        A(f"s_mov_b32 s{sT0}, {hex(LN2)}"); A(f"s_mov_b32 s{sT0+1}, {hex(LN2)}")
        for i in range(10):
            A(f"v_lshlrev_b32 v{44+2*i}, 16, v{XRS+i}"); A(f"v_and_b32 v{45+2*i}, 0xffff0000, v{XRS+i}")
        A.wait(lgkm="all")
        A("s_barrier")
        pt(A, "red")
        for nt in range(5):
            for sl in range(3):
                A(f"ds_read_b128 {v(ACT+12*nt+4*sl,4)}, v{vRR} offset:{sl*5120+nt*1024}")
        for nt in range(5):
            b = ACT + 12 * nt; o = ACCO + 4 * nt
            for h in range(2):
                A(f"v_pk_add_f32 {v(o+2*h,2)}, {v(o+2*h,2)}, {v(b+2*h,2)}")
                A(f"v_pk_add_f32 {v(b+4+2*h,2)}, {v(b+4+2*h,2)}, {v(b+8+2*h,2)}")
            for h in range(2):
                A(f"v_pk_add_f32 {v(o+2*h,2)}, {v(o+2*h,2)}, {v(b+4+2*h,2)}")
            for h in range(2):
                A(f"v_pk_fma_f32 {v(o+2*h,2)}, {v(o+2*h,2)}, s[{sT0}:{sT0+1}], {v(44+4*nt+2*h,2)}")
            for h in range(2):
                A(f"v_cvt_pk_bf16_f32 v{64+2*nt+h}, v{o+2*h}, v{o+2*h+1}")
            if nt == 1: A(f"buffer_store_dwordx4 {v(64,4)}, v{vXO}, {srdr(SOUT)}, s{sXO} offen")
            if nt == 3: A(f"buffer_store_dwordx4 {v(68,4)}, v{vXO}, {srdr(SOUT)}, s{sXO} offen offset:64")
            if nt == 4: A(f"buffer_store_dwordx2 {v(72,2)}, v{vXO+1}, {srdr(SOUT)}, s{sXO} offen offset:128")
    A(f"s_add_u32 s{sP0}, s{sE}, 16"); A(f"v_mov_b32 v1, s{sP0}")
    A(f"s_cmp_eq_u32 s2, 0"); A(f"s_cselect_b32 s{sP1}, 0, {hex(OOB)}")
    A(f"v_subrev_u32 v2, {FLG_OFF}, v{vFL}")
    A(f"buffer_store_dword v1, v2, {srdr(SWS)}, s{sP1} offen sc1")
    prof_flush(A, 0, SWS, sWAVE)

OPT = {}
DEFST = ["p1end", "p2end", "first", "fin", "kvchk", "stage", "part2", "osig", "ochk", "s13"]
def pt(A, name):
    L = OPT.get("stamps", DEFST)
    if name in L: stamp(A, 2 + L.index(name))

def gen(name=MAIN, **opt):
    OPT.clear(); OPT.update(opt)
    C = Ctx("f")
    A = Asm()
    prologue(A, C)
    role_kv(A, C)
    role_p(A, C)
    phase2(A, C)
    A("s_endpgm")
    A.extend(C.spins)
    A.label(C.L("end"))
    A("s_endpgm")
    return dict(name=name, ins=render(finalize(A)), grid=256, block=256, lds=LDSZ, vgpr=512, accum=256)

if __name__ == "__main__":
    for P in range(320): assert (P * 3277) >> 16 == P // 20 and (P * 6554) >> 16 == P // 10
    for P in range(20): assert (P * 13108) >> 16 == P // 5 and (P * 52) >> 8 == P // 5
    for P in range(1024): assert (P * 10923) >> 16 == P // 6
    open("g_test.s", "w").write(build_file([gen()]))
    PROF["on"] = True
    st = sys.argv[1].split(",") if len(sys.argv) > 1 and sys.argv[1] != "-" else DEFST
    if st == ["C"]: st = [f"c{i}" for i in range(10)]
    opt = eval("dict(" + sys.argv[2] + ")") if len(sys.argv) > 2 else {}
    open(sys.argv[3] if len(sys.argv) > 3 else "g_prof.s", "w").write(build_file([gen(stamps=st, **opt)]))
    if len(sys.argv) > 4:
        PROF["on"] = False
        open(sys.argv[4], "w").write(build_file([gen(**opt)]))
```

```python
from common import *
import common, sys

E_OFF = 0; FLG_OFF = 0x1000; W2P_OFF = 0x20000; ACT_OFF = 0x320000; ACT_BLK = 94 * 1024
KV_OFF = 0xEE0000; ST_OFF = 0xF20000; CS_OFF = 0xF30000
KVH = 3840; KVC = 32 * KVH
common.PROF_OFF = 0xF80000
XW = 13312; WR = 4 * XW; XR = 86016; SPARE = 151552
HS = 16384
PHI2 = SPARE; PZERO = SPARE + 3840; PHI1 = SPARE + 5760; PKX = SPARE + 5760; CSR = SPARE + 10880
PHIK = XR; VIM = XR + 40960; KVI = 20480; RED = 0
LDSZ = 163840
sWAVE = 3
SX, SWA, SWB, SWS, SB1, SPH, SOUT, SPK, SCS = 24, 28, 32, 36, 40, 44, 48, 52, 56
sM, sU, sR, sC, sE, sXO, sXM, sWB = 60, 61, 62, 63, 64, 65, 66, 67
sT0, sT1, sT2, sT3 = 68, 69, 70, 71
sWO, sWS, sACT, sA, sW, sAB = 4, 5, 6, 7, 8, 9
sEX = 10
sPKO, sPKD, sQF, sCS3, sB3, sACT3, sP0, sP1 = 12, 13, 14, 15, 16, 17, 18, 19
sPC = 100
sX1, sXD = 20, 21
sWT = 22; sPV = 23
sF0, sF1 = 0, 1
sSTO, sCSO, sCSP, sPX0, sPX1, sWQ, sCSL = 7, 9, 15, 16, 17, 12, 22
vTID, vFL, vPOLL, vPA, vW = 8, 9, 10, 11, 12
vPT = 14
vXD = 16; vXRD = 20
vAD = 24; vPD = 29; vAR = 34; vPR = 36
vP1 = 24; vPX = 28; vPRP = 32; vCSA = 36
vSA = 15; vCL = 54
vAST = 44; vS1 = 45; vRS = 46; vCP = 47; vCB = 48; vST = 52; vEP = 55
vQC = 56
aX = 224; aW = 160; aF = 240

def srdr(n): return f"s[{n}:{n+3}]"
def slot(n): return 20 * ((n + 10) % 12)

def csel(A, dst, x, y):
    A(f"s_mov_b32 s{dst}, {y}"); A(f"s_cselect_b32 s{dst}, {x}, s{dst}")

class Ctx:
    def __init__(self, name):
        self.name = name; self.spins = Asm(); self.n = 0
    def L(self, x): return f"{self.name}_{x}"

def signal(A, level):
    A(f"s_add_u32 s{sP0}, s{sE}, {level}")
    A(f"v_mov_b32 v{vPT}, s{sP0}")
    A(f"buffer_store_dword v{vPT}, v{vFL}, {srdr(SWS)}, 0 offen sc1", "flag")

def poll_issue(A):
    A(f"buffer_load_dword v{vPOLL}, v{vPA}, {srdr(SWS)}, 0 offen sc1", "poll")

def poll_check(A, C, level):
    C.n += 1
    k = C.n
    A(f"s_add_u32 s{sP0}, s{sE}, {level}")
    A.g(f"v_subrev_u32 v{vPT}, s{sP0}, v{vPOLL}")
    A.g(f"v_cmp_gt_u32_e64 s[{sPC}:{sPC+1}], 8, v{vPT}")
    A.g(f"s_cmp_eq_u64 s[{sPC}:{sPC+1}], -1")
    A.g(f"s_cbranch_scc0 {C.L(f'spin{k}')}")
    A.label(C.L(f"back{k}")); A.ins[-1].glue = True
    S = C.spins
    S.label(C.L(f"spin{k}"))
    S(f"s_mov_b32 s{sP1}, 0")
    S.label(C.L(f"loop{k}"))
    poll_issue(S)
    S(f"s_add_u32 s{sP1}, s{sP1}, 1")
    S(f"s_cmp_gt_u32 s{sP1}, 0x8000")
    S(f"s_cbranch_scc1 {C.L(f'back{k}')}")
    S(f"v_subrev_u32 v{vPT}, s{sP0}, v{vPOLL}")
    S(f"v_cmp_gt_u32_e64 s[{sPC}:{sPC+1}], 8, v{vPT}")
    S(f"s_cmp_eq_u64 s[{sPC}:{sPC+1}], -1")
    S(f"s_cbranch_scc0 {C.L(f'loop{k}')}")
    S(f"s_branch {C.L(f'back{k}')}")

def poll_addr(A, kind, t0, t1):
    if kind == "all":
        A(f"v_and_b32 v{vPA}, 127, v{vTID}"); A(f"v_lshlrev_b32 v{vPA}, 8, v{vPA}")
        A(f"v_add_u32 v{vPA}, {FLG_OFF + 128*256}, v{vPA}")
        return
    if kind == "grp":
        A(f"s_lshr_b32 s{sF0}, s{sR}, 4"); A(f"s_lshl_b32 s{sF0}, s{sF0}, 2")
        A(f"s_bfe_u32 s{sF1}, s{sR}, 0x30001"); A(f"s_lshl_b32 s{sF1}, s{sF1}, 3")
        A(f"v_bfe_u32 v{t0}, v0, 2, 2"); A(f"v_and_b32 v{t1}, 3, v0")
        A(f"v_lshl_add_u32 v{t0}, v{t0}, 6, v{t1}")
    elif kind in ("pgrp", "q"):
        A(f"s_lshr_b32 s{sF0}, s{sR}, 4"); A(f"s_lshl_b32 s{sF0}, s{sF0}, 2")
        A(f"s_bfe_u32 s{sF1}, s{sR}, 0x30001"); A(f"s_lshl_b32 s{sF1}, s{sF1}, 3")
        A(f"s_add_u32 s{sF0}, s{sF0}, s{sF1}")
        if kind == "pgrp":
            A(f"s_mov_b32 s{sF1}, 128")
            A(f"v_bfe_u32 v{t0}, v0, 2, 1"); A(f"v_and_b32 v{t1}, 3, v0")
        else:
            A(f"s_mul_i32 s{sF1}, s{sC}, 5"); A(f"s_lshr_b32 s{sF1}, s{sF1}, 2")
            A(f"v_and_b32 v{t0}, 1, v0"); A(f"v_add_u32 v{t0}, s{sF1}, v{t0}")
            A(f"v_lshrrev_b32 v{vPA}, 3, v{t0}"); A(f"v_bfe_u32 v{t1}, v{t0}, 1, 2"); A(f"v_and_b32 v{t0}, 1, v{t0}")
            A(f"v_lshl_add_u32 v{t0}, v{vPA}, 1, v{t0}")
            A(f"s_mov_b32 s{sF1}, 0")
        A(f"v_lshl_add_u32 v{t0}, v{t0}, 6, v{t1}")
    elif kind == "kvp":
        A(f"s_and_b32 s{sF0}, s{sC}, 1"); A(f"s_lshl_b32 s{sF0}, s{sF0}, 6")
        A(f"s_lshr_b32 s{sF1}, s{sC}, 1")
        A(f"s_add_u32 s{sF0}, s{sF0}, s{sF1}"); A(f"s_lshl_b32 s{sF0}, s{sF0}, 8"); A(f"s_add_u32 s{sF0}, s{sF0}, {FLG_OFF}")
        A(f"v_and_b32 v{t0}, 15, v0")
        A(f"v_lshl_add_u32 v{t0}, v{t0}, 10, s{sF0}")
        A("v_cmp_gt_u32 vcc, 32, v0"); A.g(f"v_cndmask_b32 v{vPA}, v{vPA}, v{t0}, vcc")
        return
    elif kind == "o":
        A(f"s_and_b32 s{sF0}, s{sR}, 7"); A(f"s_lshl_b32 s{sF0}, s{sF0}, 5")
        A(f"s_lshr_b32 s{sF1}, s{sR}, 3"); A(f"s_lshl_b32 s{sF1}, s{sF1}, 1")
        A(f"v_bfe_u32 v{t0}, v0, 1, 2"); A(f"v_and_b32 v{t1}, 1, v0")
        A(f"v_lshl_add_u32 v{t0}, v{t0}, 3, v{t1}")
    A(f"s_add_u32 s{sF0}, s{sF0}, s{sF1}")
    A(f"s_lshl_b32 s{sF0}, s{sF0}, 8")
    A(f"s_add_u32 s{sF0}, s{sF0}, {FLG_OFF}")
    A(f"v_lshl_add_u32 v{vPA}, v{t0}, 8, s{sF0}")

def x_dma(j):
    if j >= 10 or (OPT.get("nodma") and j >= 2): return []
    o = [(f"s_add_u32 m0, s{sXM}, {(j % 3) * 4096}", None, 0), (f"s_add_u32 s{sXD}, s{sXO}, {0 if OPT.get('samedma') else j*128}", None, 0)]
    for i in range(4):
        o.append((f"buffer_load_dwordx4 v{vXD+i}, {srdr(SX)}, s{sXD} offen offset:{1024*i} lds", f"x{j}", 1))
    return o

def kv_dma(h):
    if h >= 20 or (OPT.get("nodma") and h >= 4): return []
    o = [(f"s_mov_b32 s{sWO}, {0 if OPT.get('samedma') else h*32*3840}", None, 0), (f"s_add_u32 m0, s{sWB}, {(h % 6) * HS}", None, 0)]
    for i in range(3):
        o.append((f"buffer_load_dwordx4 v{vAD+i}, {srdr(SWA)}, s{sWO} offen offset:{1024*i} lds", f"w{h}", 1))
    o.append((f"s_add_u32 m0, s{sWQ}, {(h % 6) * HS}", None, 0))
    o.append((f"buffer_load_dwordx4 v{vPD}, {srdr(SWA)}, s{sWO} offen lds", f"w{h}", 1))
    return o

def p_dma(h):
    if h >= 20 or (OPT.get("nodma") and h >= 4): return []
    o = [(f"s_add_u32 m0, s{sWB}, {(h % 6) * HS}", None, 0)]
    if h and not OPT.get("samedma"): o.append((f"s_add_u32 s{sWO}, s{sWO}, s{sWS}", None, 0))
    for i in range(4):
        o.append((f"buffer_load_dwordx4 v{vP1+i}, {srdr(SWA)}, s{sWO} offen offset:{1024*i} lds", f"w{h}", 1))
    return o

def w2p_loads(n):
    o = []
    so = sWT
    if n == 0: so = sW
    elif n == 13: so = sX1
    elif n == 14: so = sPV
    elif n < 13: o.append((f"s_add_u32 s{sWT}, s{sW}, {20480*n}", None, 0))
    else: o.append((f"s_add_u32 s{sWT}, s{sPV}, {5120*(n-14)}", None, 0))
    for nt in range(5):
        o.append((f"buffer_load_dwordx4 {a(slot(n)+4*nt,4)}, v{vW+(nt>>2)}, {srdr(SWS)}, s{so} offen offset:{1024*(nt&3)} sc1", f"W2{n}", 1))
    return o
def wl(*ns): return sum((w2p_loads(n) for n in ns), [])

def emit1(A, e):
    if e[0].startswith("WAIT:"):
        _, k, t = e[0].split(":")
        A.wait(**{k: t})
    elif len(e) > 3 and e[3]: A.g(e[0], e[1])
    else: A(e[0], e[1])

def emit(A, lst):
    for e in lst: emit1(A, e)

class DQ:
    def __init__(self): self.q = []; self.gap = 0
    def add(self, lst, front=False):
        if front:
            k = 0
            while k < len(self.q) and self.q[k][2] == 0: k += 1
            while k < len(self.q) and not (self.q[k][2] == 0 and "m0, m0" not in self.q[k][0] and "m0, m0" not in self.q[k-1][0]
                                           and "exec" not in self.q[k][0]): k += 1
            self.q[k:k] = list(lst)
        else: self.q += list(lst)
    def pop(self, A, n=1, ahead=True):
        while self.q and n > 0.01:
            e = self.q.pop(0)
            emit1(A, e); n -= e[2]
        while self.q and self.q[0][2] == 0 and self.q[0][0].startswith("s_") and (ahead or "exec" in self.q[0][0]) \
                and not self.q[0][0].startswith("s_mov_b64 exec, s"):
            emit1(A, self.q.pop(0))
    def count(self): return sum(e[2] for e in self.q)

def spread(A, code, lst, every, first=0):
    dq = DQ(); dq.add(lst)
    n = first
    scc_live = False
    for x in code.ins:
        if n >= every and dq.q and not x.glue and not (x.op.startswith(("s_cselect", "s_cbranch_scc", "s_addc")) or scc_live):
            dq.pop(A, 1); n = 0
        A.ins.append(x)
        if x.op.startswith("s_cmp"): scc_live = True
        elif x.cls == "salu" and not x.op.startswith(("s_cselect", "s_mov", "s_mul_i32")) : scc_live = False
        elif x.cls != "salu": scc_live = False if not scc_live else scc_live
        n += 1
    dq.pop(A, 99)

def gemm_steps(A, steps, D, dq, pre_barrier=None, post_barrier=None, every=2):
    n = len(steps)
    late = []
    for s in range(n + 1):
        rd = []
        bar = None
        if s < n:
            st = steps[s]
            if st["chunk"] is not None:
                def bar(st=st):
                    if pre_barrier and st["xj"] is not None: pre_barrier(A, st["xj"])
                    tags = [f"w{st['chunk']}"]
                    if st["xj"] is not None: tags.append(f"x{st['xj']}")
                    tags += st.get("tags", [])
                    nf = 0
                    while any(e[1] in tags for e in dq.q): dq.pop(A, 1); nf += 1
                    if nf and OPT.get("verbose"): print("forced", nf, "before chunk", st["chunk"])
                    A.wait(vm=tags, lgkm="all")
                    A("s_barrier")
                    if post_barrier and st["xj"] is not None: post_barrier(A, st["xj"], dq)
                    dq.add(st.get("queue", []))
            rd = [(t, f"r{s}_{i // (2 * OPT.get('wgrp', 2))}") for i, t in enumerate(st["reads"])]
            if st["xj"] is not None:
                j = st["xj"]
                xr = [(f"ds_read_b128 {a(aX + 16*(j&1) + 4*q, 4)}, v{vXRD+q} offset:{(j % 3) * 4096}", "xr") for q in range(4)]
                rd = xr[:1] + rd + xr[1:2]
                late = xr[2:]
            else:
                rd = rd + late; late = []
                if not bar: dq.add(st.get("queue", []))
        if s == 0:
            bar()
            for t, tag in rd: A(t, tag)
            continue
        m = steps[s - 1]
        nt = m["nt"]
        bd = OPT.get("bdelay", 3) if bar else 0
        if bar and bd == 0: bar()
        for t in range(nt):
            acc = m["acc"][t]
            cin = "0" if m["first"] else v(acc, 16)
            if t % OPT.get("wgrp", 2) == 0: A.wait(lgkm=f"r{s-1}_{t // OPT.get('wgrp', 2)}")
            A(f"v_mfma_f32_32x32x16_bf16 {v(acc,16)}, {a(m['frag']+4*t,4)}, {a(m['xreg'],4)}, {cin}")
            if bar and t == bd - 1: bar()
            if t >= bd - 1:
                per = -(-len(rd) // (nt - t))
                take = rd[:per]; rd = rd[per:]
                for tx, tag in take: A(tx, tag)
            dq.gap += 1
            ev = every[min((s - 1) // 4, len(every) - 1)] if isinstance(every, (list, tuple)) else every
            if dq.q and dq.gap >= ev - 0.01:
                dq.pop(A, 1); dq.gap = min(dq.gap - ev, 0.99)
        pt(A, f"g{s-1}")

def corr_frag(A, raw, tmp):
    A(f"v_add_f32 v{tmp}, v{raw}, v{raw+2}")
    A(f"v_lshrrev_b32 v{raw+2}, 16, v{raw+1}")
    A(f"v_cvt_pk_bf16_f32 v{raw}, v{tmp}, v{tmp}")
    A(f"v_and_b32 v{raw+3}, 0xffff0000, v{raw}")
    A(f"v_sub_f32 v{tmp}, v{tmp}, v{raw+3}")
    A(f"v_mov_b32 v{raw+3}, 0")
    A(f"v_cvt_pk_bf16_f32 v{raw+1}, v{tmp}, v{raw+1}")

def stats_frag(A, t):
    m, ve = vST, vST + 1
    A(f"v_rsq_f32 v{vRS}, v{ve}")
    A(f"v_sub_f32 v{t}, 0, v{m}")
    A(f"v_mul_f32 v{t+1}, v{ve}, v{vRS}")
    A(f"v_mul_f32 v{vS1}, {hex(LOG2E)}, v{vRS}")
    A(f"v_cvt_pk_bf16_f32 v{vCB+1}, v{t}, v{t+1}")
    A(f"v_lshlrev_b32 v{t+2}, 16, v{vCB+1}")
    A(f"v_and_b32 v{t+3}, 0xffff0000, v{vCB+1}")
    A(f"v_sub_f32 v{t+2}, v{t}, v{t+2}")
    A(f"v_sub_f32 v{t+3}, v{t+1}, v{t+3}")
    A(f"v_cvt_pk_bf16_f32 v{vCB}, v{t}, v{t+2}")
    A(f"v_cvt_pk_bf16_f32 v{vCB+2}, v{t+3}, 0")
    A(f"v_mov_b32 v{vCB+3}, 0")
    A(f"v_cmp_gt_u32 vcc, 32, v0")
    for i in range(3):
        A.g(f"v_cndmask_b32 v{vCB+i}, 0, v{vCB+i}, vcc")

def mish(A, acc, n, e, G=4):
    for g0 in range(0, n, G):
        t = acc + g0
        for i in range(G): A(f"v_mul_f32 v{t+i}, v{t+i}, v{vS1}")
        for i in range(G): A(f"v_exp_f32 v{e+i}, v{t+i}")
        for i in range(G): A(f"v_fma_f32 v{e+G+i}, v{e+i}, 0.5, 1.0")
        for i in range(G): A(f"v_fma_f32 v{e+i}, v{e+i}, v{e+G+i}, 1.0")
        for i in range(G): A(f"v_rcp_f32 v{e+i}, v{e+i}")
        for i in range(G): A(f"v_fma_f32 v{e+i}, -v{t+i}, v{e+i}, v{t+i}")
        o = acc + (g0 & ~7) + (g0 & 7) // 2
        for i in range(0, G, 2): A(f"v_cvt_pk_bf16_f32 v{o+i//2}, v{e+i}, v{e+i+1}")

def mish_pk(A, acc, n, e):
    G = 8
    s1 = f"v[{vS1-1}:{vS1}]"
    for g0 in range(0, n, G):
        t = acc + g0
        for i in range(0, G, 2): A(f"v_pk_mul_f32 {v(t+i,2)}, {v(t+i,2)}, {s1} op_sel:[0,1] op_sel_hi:[1,1]")
        for i in range(G): A(f"v_exp_f32 v{e+i}, v{t+i}")
        for i in range(0, G, 2): A(f"v_pk_fma_f32 {v(e+G+i,2)}, {v(e+i,2)}, 0.5, 1.0 op_sel_hi:[1,0,0]")
        for i in range(0, G, 2): A(f"v_pk_fma_f32 {v(e+i,2)}, {v(e+i,2)}, {v(e+G+i,2)}, 1.0 op_sel_hi:[1,1,0]")
        for i in range(G): A(f"v_rcp_f32 v{e+i}, v{e+i}")
        for i in range(0, G, 2): A(f"v_pk_fma_f32 {v(e+i,2)}, {v(t+i,2)}, {v(e+i,2)}, {v(t+i,2)} neg_lo:[1,0,0] neg_hi:[1,0,0]")
        for i in range(0, G, 2): A(f"v_cvt_pk_bf16_f32 v{t+i//2}, v{e+i}, v{e+i+1}")

def pair_store(A, acc, soff, tag, t, p):
    A(f"buffer_store_dwordx4 {v(acc+16*t+8*p,4)}, v{vAST}, {srdr(SWS)}, s{soff} offen offset:{1024*t+512*p} sc1", tag)

def softmax_pair(A, p, EP, EN, PK, s1, t0):
    a0, a1 = t0, t0 + 1
    A(f"v_max3_f32 v{a0}, v{p}, v{p+1}, v{p+2}")
    A(f"v_min3_f32 v{a1}, v{p}, v{p+1}, v{p+2}")
    for i in range(3, 19, 2):
        A(f"v_max3_f32 v{a0}, v{a0}, v{p+i}, v{p+i+1}")
        A(f"v_min3_f32 v{a1}, v{a1}, v{p+i}, v{p+i+1}")
    A(f"v_max_f32 v{a0}, v{a0}, v{p+19}")
    A(f"v_min_f32 v{a1}, v{a1}, v{p+19}")
    A(f"v_mul_f32 v{a0}, v{a0}, v{s1}")
    A(f"v_mul_f32 v{a1}, v{a1}, v{s1}")
    for i in range(20):
        A(f"v_fma_f32 v{EP+i}, v{p+i}, v{s1}, -v{a0}")
        A(f"v_fma_f32 v{EN+i}, -v{p+i}, v{s1}, v{a1}")
        A(f"v_exp_f32 v{EP+i}, v{EP+i}")
        A(f"v_exp_f32 v{EN+i}, v{EN+i}")
    A(f"v_add_f32 v{a0}, v{EP}, v{EP+1}")
    A(f"v_add_f32 v{a1}, v{EN}, v{EN+1}")
    for i in range(2, 20):
        A(f"v_add_f32 v{a0}, v{a0}, v{EP+i}")
        A(f"v_add_f32 v{a1}, v{a1}, v{EN+i}")
    A(f"v_rcp_f32 v{a0}, v{a0}")
    A(f"v_rcp_f32 v{a1}, v{a1}")
    for i in range(10):
        A(f"v_mul_f32 v{EP+2*i}, v{EP+2*i}, v{a0}")
        A(f"v_mul_f32 v{EP+2*i+1}, v{EP+2*i+1}, v{a0}")
        A(f"v_cvt_pk_bf16_f32 v{PK+i}, v{EP+2*i}, v{EP+2*i+1}")
    for i in range(10):
        A(f"v_mul_f32 v{EN+2*i}, v{EN+2*i}, v{a1}")
        A(f"v_mul_f32 v{EN+2*i+1}, v{EN+2*i+1}, v{a1}")
        A(f"v_cvt_pk_bf16_f32 v{PK+10+i}, v{EN+2*i}, v{EN+2*i+1}")

def softmax_pair_pk(A, p, EP, EN, PK, s1, t0):
    a0, a1 = t0, t0 + 1
    sp = v(s1 & ~1, 2); sh = s1 & 1
    A(f"v_max3_f32 v{a0}, v{p}, v{p+1}, v{p+2}")
    A(f"v_min3_f32 v{a1}, v{p}, v{p+1}, v{p+2}")
    for i in range(3, 19, 2):
        A(f"v_max3_f32 v{a0}, v{a0}, v{p+i}, v{p+i+1}")
        A(f"v_min3_f32 v{a1}, v{a1}, v{p+i}, v{p+i+1}")
    A(f"v_max_f32 v{a0}, v{a0}, v{p+19}")
    A(f"v_min_f32 v{a1}, v{a1}, v{p+19}")
    A(f"v_mul_f32 v{a0}, v{a0}, v{s1}")
    A(f"v_mul_f32 v{a1}, v{a1}, v{s1}")
    ap = v(a0, 2)
    for i in range(0, 20, 2):
        A(f"v_pk_fma_f32 {v(EP+i,2)}, {v(p+i,2)}, {sp}, {ap} op_sel:[0,{sh},0] op_sel_hi:[1,{sh},0] neg_lo:[0,0,1] neg_hi:[0,0,1]")
        A(f"v_pk_fma_f32 {v(EN+i,2)}, {v(p+i,2)}, {sp}, {ap} op_sel:[0,{sh},1] op_sel_hi:[1,{sh},1] neg_lo:[1,0,0] neg_hi:[1,0,0]")
        for k in range(2):
            A(f"v_exp_f32 v{EP+i+k}, v{EP+i+k}")
        for k in range(2):
            A(f"v_exp_f32 v{EN+i+k}, v{EN+i+k}")
    sP, sN = v(t0 + 2, 2), v(t0 + 4, 2)
    A(f"v_pk_add_f32 {sP}, {v(EP,2)}, {v(EP+2,2)}")
    A(f"v_pk_add_f32 {sN}, {v(EN,2)}, {v(EN+2,2)}")
    for i in range(4, 20, 2):
        A(f"v_pk_add_f32 {sP}, {sP}, {v(EP+i,2)}")
        A(f"v_pk_add_f32 {sN}, {sN}, {v(EN+i,2)}")
    A(f"v_add_f32 v{a0}, v{t0+2}, v{t0+3}")
    A(f"v_add_f32 v{a1}, v{t0+4}, v{t0+5}")
    A(f"v_rcp_f32 v{a0}, v{a0}")
    A(f"v_rcp_f32 v{a1}, v{a1}")
    A("s_nop 0")
    for i in range(10):
        A(f"v_pk_mul_f32 {v(EP+2*i,2)}, {v(EP+2*i,2)}, {ap} op_sel:[0,0] op_sel_hi:[1,0]")
        if i: A(f"v_cvt_pk_bf16_f32 v{PK+i-1}, v{EP+2*i-2}, v{EP+2*i-1}")
    for i in range(10):
        A(f"v_pk_mul_f32 {v(EN+2*i,2)}, {v(EN+2*i,2)}, {ap} op_sel:[0,1] op_sel_hi:[1,1]")
        if i == 0: A(f"v_cvt_pk_bf16_f32 v{PK+9}, v{EP+18}, v{EP+19}")
        else: A(f"v_cvt_pk_bf16_f32 v{PK+10+i-1}, v{EN+2*i-2}, v{EN+2*i-1}")
    A(f"v_cvt_pk_bf16_f32 v{PK+19}, v{EN+18}, v{EN+19}")

def weave32(main, fill, **kw):
    main = list(main.ins if isinstance(main, Asm) else main)
    small = [x for x in main if x.cls == "mfma" and "16x16" in x.op]
    for x in small: x.cls = "mfma16"
    r = weave(main, fill, **kw)
    for x in small: x.cls = "mfma"
    return r

def common_lane(A):
    A("v_lshrrev_b32 v1, 5, v0")
    A("v_bfe_u32 v2, v0, 2, 2")
    A("v_and_b32 v3, 1, v0")
    A("v_bfe_u32 v4, v0, 1, 1")
    A("v_bfe_u32 v5, v0, 4, 1")
    A("v_lshl_add_u32 v4, v5, 1, v4")
    A("v_lshl_add_u32 v6, v1, 3, v2")

PRS = 64; PRC = 84; PRT = 124
vBI = 63; aPK = 0; aPH = 28

def wo_rows(A, t, b, qs, hi, t0, t1):
    A(f"s_mul_i32 s{t1}, s{t}, 52"); A(f"s_lshr_b32 s{t1}, s{t1}, 8")
    A(f"s_mul_i32 s{b}, s{t1}, 5"); A(f"s_sub_u32 s{t0}, s{t}, s{b}")
    A(f"s_mul_i32 s{b}, s{t1}, 160")
    A(f"s_lshr_b32 s{t1}, s{t0}, 1"); A(f"s_mul_i32 s{t1}, s{t1}, 80")
    A(f"s_and_b32 s{qs}, s{t0}, 1"); A(f"s_lshl_b32 s{qs}, s{qs}, 3"); A(f"s_add_u32 s{t1}, s{t1}, s{qs}")
    A(f"s_cmp_eq_u32 s{t0}, 4")
    A(f"s_cselect_b32 s{t1}, 16, s{t1}")
    A(f"s_cselect_b32 s{qs}, 40, 20")
    A(f"s_cselect_b32 s{hi}, 20, 4")
    A(f"s_add_u32 s{b}, s{b}, s{t1}")

def pack_addr(A, dst, qs, hi):
    A("v_mul_u32_u24 v2, 6554, v1"); A("v_lshrrev_b32 v2, 16, v2")
    A("v_mul_u32_u24 v3, 10, v2"); A("v_sub_u32 v3, v1, v3")
    A("v_lshrrev_b32 v4, 3, v2"); A(f"v_mul_u32_u24 v4, s{qs}, v4")
    A("v_bfe_u32 v5, v2, 2, 1"); A(f"v_mad_u32_u24 v4, v5, s{hi}, v4")
    A("v_and_b32 v5, 3, v2"); A("v_add_u32 v4, v4, v5")
    A("v_mul_u32_u24 v4, 1280, v4")
    A(f"v_lshl_add_u32 v{dst}, v3, 4, v4")

def pack_T(A, T, t):
    A(f"s_bfe_u32 s{T}, s2, 0x10006"); A(f"s_and_b32 s{t}, s2, 7"); A(f"s_lshl_b32 s{t}, s{t}, 1"); A(f"s_add_u32 s{T}, s{T}, s{t}")
    A(f"s_lshl_b32 s{t}, s{sWAVE}, 4"); A(f"s_add_u32 s{T}, s{T}, s{t}")

def cs_line(A, Lr, t0, t1):
    A(f"s_and_b32 s{t0}, s2, 3"); A(f"s_lshl_b32 s{t0}, s{t0}, 1"); A(f"s_bfe_u32 s{t1}, s2, 0x10003"); A(f"s_add_u32 s{t0}, s{t0}, s{t1}")
    A(f"s_bfe_u32 s{t1}, s2, 0x30004"); A(f"s_lshl_b32 s{Lr}, s{t1}, 3"); A(f"s_add_u32 s{Lr}, s{Lr}, s{t0}")
    A(f"s_cmp_lt_u32 s{Lr}, 2"); A(f"s_cselect_b32 s{t1}, 8, 28"); A(f"s_add_u32 s{Lr}, s{Lr}, s{t1}")
    A(f"s_bfe_u32 s{t1}, s2, 0x40003")
    A(f"s_cmp_ge_u32 s{t1}, 8"); A(f"s_cselect_b32 s{Lr}, s{t0}, s{Lr}")
    A(f"s_cmp_ge_u32 s{t1}, 13"); A(f"s_cselect_b32 s{t0}, 7, 0"); A(f"s_add_u32 s{t0}, s{t0}, s{t1}")
    A(f"s_cmp_ge_u32 s{t1}, 10"); A(f"s_cselect_b32 s{Lr}, s{t0}, s{Lr}")
    A(f"s_cselect_b32 s{t1}, 1, 0")
    A(f"s_bfe_u32 s{t0}, s2, 0x10001"); A(f"s_mul_i32 s{t0}, s{t0}, 5"); A(f"s_mul_i32 s{t0}, s{t0}, s{t1}"); A(f"s_add_u32 s{Lr}, s{Lr}, s{t0}")
    A(f"s_and_b32 s{t0}, s2, s{t1}"); A(f"s_mul_i32 s{t0}, s{t0}, 3"); A(f"s_add_u32 s{Lr}, s{Lr}, s{t0}")
    A(f"s_bfe_u32 s{t1}, s2, 0x40003"); A(f"s_lshl_b32 s{t1}, 1, s{t1}"); A(f"s_and_b32 s{t1}, s{t1}, 0x9000")
    A(f"s_mul_i32 s{t1}, s{t1}, s{t0}"); A(f"s_add_u32 s{Lr}, s{Lr}, s{t1}")
    A(f"s_min_u32 s{Lr}, s{Lr}, 63")

def pack_setup(A):
    T, b, qs, hi = sT0, sT1, sT2, sT3
    pack_T(A, T, b)
    A(f"s_bfe_u32 s{sPX0}, s2, 0x30003")
    A(f"s_mul_i32 s{sPX1}, s{sPX0}, 74"); A(f"s_add_u32 s{sPKD}, s{sPX1}, s{T}")
    A(f"s_mul_i32 s{sPKD}, s{sPKD}, 5120"); A(f"s_add_u32 s{sPKD}, s{sPKD}, {W2P_OFF}")
    A(f"s_sub_u32 s{sPKO}, s{T}, 54")
    wo_rows(A, sPKO, b, qs, hi, sP0, sP1)
    A(f"s_lshl_b32 s{sP1}, s{T}, 5")
    A(f"s_cmp_lt_u32 s{T}, 54")
    A(f"s_cselect_b32 s{b}, s{sP1}, s{b}")
    A(f"s_cselect_b32 s{qs}, 8, s{qs}")
    A(f"s_cselect_b32 s{hi}, 4, s{hi}")
    A(f"s_mul_i32 s{b}, s{b}, 1280")
    A(f"s_mul_i32 s{sPX0}, s{sPX0}, 160"); A(f"s_add_u32 s{sPKO}, s{sPX0}, s{b}")
    for i in range(5):
        A(f"v_add_u32 v1, {64*i}, v0")
        pack_addr(A, vQC + i, qs, hi)
        if 0 < i < 4: A(f"v_subrev_u32 v{vQC+i}, {1024*i}, v{vQC+i}")
    A(f"s_bfe_u32 s{T}, s2, 0x10006"); A(f"s_lshl_b32 s{T}, s{T}, 3"); A(f"s_and_b32 s{b}, s2, 7"); A(f"s_add_u32 s{T}, s{T}, s{b}")
    A(f"s_add_u32 s{T}, s{T}, 10")
    A(f"s_add_u32 s{sPX1}, s{sPX1}, s{T}"); A(f"s_add_u32 s{sPX1}, s{sPX1}, 54")
    A(f"s_mul_i32 s{sPX1}, s{sPX1}, 5120"); A(f"s_add_u32 s{sPX1}, s{sPX1}, {W2P_OFF}")
    wo_rows(A, T, b, qs, hi, sP0, sP1)
    A(f"s_mul_i32 s{b}, s{b}, 1280"); A(f"s_add_u32 s{sPX0}, s{sPX0}, s{b}")
    A(f"s_cmp_lt_u32 s{T}, 20")
    A(f"s_cselect_b32 s{sPX1}, s{sPX1}, {hex(OOB)}")
    A(f"s_cselect_b32 s{sPX0}, s{sPX0}, {hex(OOB)}")
    A(f"s_cmp_eq_u32 s{sWAVE}, 0")
    A(f"s_cselect_b64 s[{sEX}:{sEX+1}], -1, 0")
    A(f"s_lshl_b32 s{sP0}, s{sWAVE}, 6"); A(f"v_add_u32 v1, s{sP0}, v0")
    pack_addr(A, vPX, qs, hi)
    A("v_add_u32 v1, 256, v0")
    pack_addr(A, vPX + 1, qs, hi)

def pack_dma():
    o = [(f"s_add_u32 m0, s{sXM}, 8192", None, 0)]
    for i in range(4):
        o.append((f"buffer_load_dwordx4 v{vQC+i}, {srdr(SPK)}, s{sPKO} offen offset:{1024*i} lds", "pk", 1))
    o.append(("s_add_u32 m0, m0, 4096", None, 0))
    o.append((f"buffer_load_dwordx4 v{vQC+4}, {srdr(SPK)}, s{sPKO} offen lds", "pk", 1))
    o.append((f"s_lshl_b32 m0, s{sWAVE}, 10", None, 0))
    o.append((f"s_add_u32 m0, m0, {PKX}", None, 0))
    o.append((f"buffer_load_dwordx4 v{vPX}, {srdr(SWB)}, s{sPX0} offen lds", "pkx", 1))
    o.append((f"s_mov_b32 m0, {PKX + 4096}", None, 0))
    o.append((f"s_mov_b64 exec, s[{sEX}:{sEX+1}]", None, 0))
    o.append((f"buffer_load_dwordx4 v{vPX+1}, {srdr(SWB)}, s{sPX0} offen lds", "pkx", 1))
    o.append(("s_mov_b64 exec, -1", None, 0))
    return o

def pack_read_addr(A):
    A("v_lshrrev_b32 v1, 4, v0"); A("v_bfe_u32 v2, v0, 2, 2"); A("v_lshl_add_u32 v1, v1, 3, v2")
    A("v_mul_u32_u24 v1, 160, v1")
    A("v_and_b32 v2, 3, v0")
    A(f"v_lshl_add_u32 v3, v2, 4, v1"); A(f"v_lshl_add_u32 v4, v2, 3, v1")
    A(f"s_add_u32 s{sT0}, s{sXM}, 8192")
    A(f"v_add_u32 v{vQC+5}, s{sT0}, v3"); A(f"v_add_u32 v{vQC+6}, s{sT0}, v4")
    A(f"s_lshr_b32 s{sT0}, s{sWAVE}, 1"); A(f"s_lshl_b32 s{sT0}, s{sT0}, 6")
    A(f"s_and_b32 s{sT1}, s{sWAVE}, 1"); A(f"s_lshl_b32 s{sT1}, s{sT1}, 3"); A(f"s_add_u32 s{sT0}, s{sT0}, s{sT1}")
    A(f"s_add_u32 s{sT0}, s{sT0}, {PKX}")
    A(f"v_add_u32 v{vPX+2}, s{sT0}, v3"); A(f"v_add_u32 v{vPX+3}, {PKX}, v4")

def pack_reads():
    o = [("WAIT:vm:pk", None, 0)]
    for nt in range(5):
        for rho in range(2):
            if nt < 4: t = f"ds_read_b64_tr_b16 {a(aPK+4*nt+2*rho,2)}, v{vQC+5} offset:{rho*640 + 64*(nt>>1) + 8*(nt&1)}"
            else: t = f"ds_read_b64_tr_b16 {a(aPK+4*nt+2*rho,2)}, v{vQC+6} offset:{rho*640 + 128}"
            o.append((t, "pkr", 0.34))
    return o

def pack_stores():
    return [(f"buffer_store_dwordx4 {a(aPK+4*nt,4)}, v{vW+(nt>>2)}, {srdr(SWS)}, s{sPKD} offen offset:{1024*(nt&3)} sc1", "prep", 1)
            for nt in range(5)]

def pack_shared():
    X = aPK + 20
    o = []
    for rho in range(2):
        o.append((f"ds_read_b64_tr_b16 {a(X+2*rho,2)}, v{vPX+2} offset:{rho*640}", None, 0.25))
        o.append((f"ds_read_b64_tr_b16 {a(X+4+2*rho,2)}, v{vPX+3} offset:{rho*640 + 128}", None, 0.25))
    o.append((f"s_lshl_b32 s{sP0}, s{sWAVE}, 10", None, 0)); o.append((f"s_add_u32 s{sP0}, s{sP0}, s{sPX1}", None, 0))
    o.append((f"s_cmp_eq_u32 s{sWAVE}, 0", None, 0)); o.append((f"s_cselect_b32 s{sP1}, s{sPX1}, {hex(OOB)}", None, 0, True))
    o.append((f"buffer_store_dwordx4 {a(X,4)}, v{vW}, {srdr(SWS)}, s{sP0} offen sc1", "prep", 1))
    o.append((f"buffer_store_dwordx4 {a(X+4,4)}, v{vW+1}, {srdr(SWS)}, s{sP1} offen sc1", "prep", 1))
    return o

def prep_setup(A):
    A(f"s_lshl_b32 s{sT0}, s{sM}, 7"); A(f"s_lshl_b32 s{sT1}, s{sU}, 4"); A(f"s_add_u32 s{sT0}, s{sT0}, s{sT1}")
    A(f"s_lshl_b32 s{sT1}, s{sWAVE}, 2"); A(f"s_add_u32 s{sT0}, s{sT0}, s{sT1}")
    A(f"s_mul_i32 s{sSTO}, s{sT0}, 1280")
    A("v_lshrrev_b32 v1, 4, v0"); A("v_and_b32 v2, 15, v0")
    A("v_mul_u32_u24 v1, 1280, v1"); A(f"v_lshl_add_u32 v{vSA}, v2, 4, v1")
    A(f"s_cmp_lt_u32 s{sCSL}, 30")
    csel(A, sT2, 3840, 3456)
    A(f"s_cselect_b32 s{sT3}, 0, 30")
    A(f"s_sub_u32 s{sT0}, s{sCSL}, s{sT3}")
    A(f"s_lshl_b32 s{sT0}, s{sT0}, 7")
    A(f"s_bfe_u32 s{sT1}, s2, 0x10002"); A(f"s_lshl_b32 s{sT3}, s{sWAVE}, 1"); A(f"s_add_u32 s{sT1}, s{sT1}, s{sT3}")
    A(f"s_mul_i32 s{sT1}, s{sT1}, 80"); A(f"s_mul_i32 s{sT1}, s{sT1}, s{sT2}")
    A(f"s_add_u32 s{sT0}, s{sT0}, s{sT1}")
    A(f"s_cmp_lt_u32 s{sCSL}, 57")
    A(f"s_cselect_b32 s{sCSO}, s{sT0}, {hex(OOB)}")
    A("v_lshrrev_b32 v1, 3, v0"); A("v_and_b32 v2, 7, v0")
    A(f"v_mul_u32_u24 v1, s{sT2}, v1")
    A(f"v_lshl_add_u32 v{vCL}, v2, 4, v1")
    A(f"s_lshl_b32 s{sCSP}, s{sT2}, 3")

def stats_loads():
    return [(f"buffer_load_dwordx4 {v(PRS+4*j,4)}, v{vSA}, {srdr(SX)}, s{sSTO} offen offset:{256*j}", None, 1) for j in range(5)]

def cs_loads():
    o = []
    for j in range(10):
        if j: o.append((f"s_add_u32 s{sCSO}, s{sCSO}, s{sCSP}", None, 0))
        o.append((f"buffer_load_dwordx4 {v(PRC+4*j,4)}, v{vCL}, {srdr(SCS)}, s{sCSO} offen", None, 1))
    o.append((f"s_sub_u32 s{sP0}, s{sCSL}, 30", None, 0))
    o.append((f"s_lshl_b32 s{sP0}, s{sP0}, 7", None, 0)); o.append((f"s_min_u32 s{sP0}, s{sP0}, {hex(OOB)}", None, 0))
    o.append((f"v_lshlrev_b32 v{vPT}, 1, v0", None, 0))
    o.append((f"buffer_load_ushort v{vBI}, v{vPT}, {srdr(SB1)}, s{sP0} offen", None, 1))
    return o

def rowsum(A, reg):
    for sh in (8, 4, 2, 1):
        A(f"v_add_f32_dpp v{reg}, v{reg}, v{reg} row_ror:{sh} row_mask:0xf bank_mask:0xf")

def zero_kv(A):
    for r in range(4): A(f"v_mov_b32 v{4+r}, 0")
    A(f"s_and_b32 s{sF0}, s2, 127"); A(f"s_lshl_b32 s{sF0}, s{sF0}, 2"); A(f"s_add_u32 s{sF0}, s{sF0}, s{sWAVE}")
    A(f"s_mul_i32 s{sF0}, s{sF0}, 480"); A(f"s_add_u32 s{sF0}, s{sF0}, {KV_OFF}")
    A(f"v_mov_b32 v1, {hex(OOB)}")
    A("v_cmp_gt_u32 vcc, 30, v0")
    A.g(f"v_cndmask_b32 v1, v1, v{vW}, vcc")
    A(f"buffer_store_dwordx4 v[4:7], v1, {srdr(SWS)}, s{sF0} offen sc1", "prep")

def stats_compute(A):
    U = PRC
    for r in range(20):
        A(f"v_lshlrev_b32 v{U+2*r}, 16, v{PRS+r}")
        A(f"v_and_b32 v{U+2*r+1}, 0xffff0000, v{PRS+r}")
        if r == 1: A(f"v_add_f32 v2, v{U}, v{U+1}")
        if r == 2: A(f"v_add_f32 v3, v{U+2}, v{U+3}")
        if r > 2: A(f"v_add_f32 v2, v2, v{U+2*r-2}"); A(f"v_add_f32 v3, v3, v{U+2*r-1}")
    A(f"v_add_f32 v2, v2, v{U+38}"); A(f"v_add_f32 v3, v3, v{U+39}")
    A(f"s_lshr_b32 s{sF0}, s{sSTO}, 5"); A(f"s_mul_hi_u32 s{sF0}, s{sF0}, 0x33333334")
    A("v_add_f32 v2, v2, v3")
    ad = Asm()
    ad("v_lshrrev_b32 v1, 4, v0"); ad("v_lshlrev_b32 v1, 3, v1")
    ad("v_and_b32 v6, 15, v0"); ad(f"v_mov_b32 v7, {hex(OOB)}")
    ad(f"s_add_u32 s{sF0}, s{sF0}, {ST_OFF}"); ad("v_mov_b32 v5, 0x3727c5ac")
    ad("v_cmp_eq_u32 vcc, 0, v6"); ad("s_nop 0")
    for k, sh in enumerate((8, 4, 2, 1)):
        A.extend(ad.ins[2*k:2*k+2])
        A(f"v_add_f32_dpp v2, v2, v2 row_ror:{sh} row_mask:0xf bank_mask:0xf")
    A("v_cndmask_b32 v1, v7, v1, vcc")
    A("v_mul_f32 v4, 0x3acccccd, v2")
    for r in range(40):
        A(f"v_sub_f32 v{U+r}, v{U+r}, v4")
        if r in (1, 2): A(f"v_mul_f32 v{2+(r&1)}, v{U+r-1}, v{U+r-1}")
        if r > 2: A(f"v_fmac_f32 v{2+(r&1)}, v{U+r-1}, v{U+r-1}")
    A(f"v_fmac_f32 v2, v{U+39}, v{U+39}")
    A("v_add_f32 v2, v2, v3")
    rowsum(A, 2)
    A("v_fmac_f32 v5, 0x3acccccd, v2")
    A(f"buffer_store_dwordx2 v[4:5], v1, {srdr(SWS)}, s{sF0} offen sc1", "prep")

def cs_setup(A):
    sel = vCSA; acc = vCSA + 4
    A("v_and_b32 v1, 15, v0"); A("v_lshrrev_b32 v2, 1, v1"); A("v_and_b32 v3, 1, v0")
    A("v_lshlrev_b32 v3, 4, v3"); A("v_mov_b32 v4, 0x3f80"); A("v_lshlrev_b32 v4, v3, v4")
    for r in range(4):
        A(f"v_cmp_eq_u32 vcc, {r}, v2"); A.g("s_nop 1"); A.g(f"v_cndmask_b32 v{sel+r}, 0, v4, vcc")
    A("v_and_b32 v2, 7, v0"); A("v_bfe_u32 v3, v0, 4, 1")
    A("v_lshlrev_b32 v2, 7, v2"); A("v_lshl_add_u32 v2, v3, 6, v2")
    A(f"s_lshl_b32 s{sF0}, s{sWAVE}, 2"); A(f"s_add_u32 s{sF0}, s{sF0}, {CSR}")
    A(f"v_add_u32 v{PRT}, s{sF0}, v2")

def cs_compute(A):
    sel = vCSA; acc = vCSA + 4
    for j in range(10):
        A(f"v_mfma_f32_16x16x32_bf16 {v(acc,4)}, {v(sel,4)}, {v(PRC+4*j,4)}, {'0' if j == 0 else v(acc,4)}")

def cs_write(A):
    acc = vCSA + 4
    for r in range(4):
        A(f"v_add_f32_dpp v{acc+r}, v{acc+r}, v{acc+r} row_ror:8 row_mask:0xf bank_mask:0xf")
    A("s_mov_b64 exec, 0xffffffff")
    for r in range(4):
        A.g(f"ds_write_b32 v{PRT}, v{acc+r} offset:{16*r}")
    A.g("s_mov_b64 exec, -1")

def cs_finish(A):
    R = vCSA; t0, t1 = sF1, sCSP
    A(f"v_add_u32 v{PRT}, {CSR}, v{vW}")
    A(f"ds_read_b128 {v(R,4)}, v{PRT}")
    A(f"s_lshl_b32 s{t0}, s{sCSL}, 10")
    A(f"s_bfe_u32 s{t1}, s2, 0x10002"); A(f"s_lshl_b32 s{t1}, s{t1}, 3")
    A(f"s_add_u32 s{t0}, s{t0}, s{t1}"); A(f"s_add_u32 s{t0}, s{t0}, {CS_OFF}")
    A(f"s_cmp_lt_u32 s{sCSL}, 57"); A.g(f"s_cselect_b32 s{t0}, s{t0}, {hex(OOB)}")
    A(f"s_cmp_eq_u32 s{sWAVE}, 0"); A.g(f"s_cselect_b32 s{t0}, s{t0}, {hex(OOB)}")
    A(f"v_lshlrev_b32 v{R+5}, 16, v{vBI}")
    A(f"v_add_f32 v{R}, v{R}, v{R+1}"); A(f"v_add_f32 v{R+2}, v{R+2}, v{R+3}")
    A(f"v_add_f32 v{R+4}, v{R}, v{R+2}")
    A(f"buffer_store_dwordx2 {v(R+4,2)}, v{vW}, {srdr(SWS)}, s{t0} offen sc1", "prep")

def phi_loads(A, kv, R, v=a):
    A(f"s_lshl_b32 s{sF0}, s{sC}, 2"); A(f"s_add_u32 s{sF0}, s{sF0}, s{sWAVE}"); A(f"s_mul_i32 s{sF0}, s{sF0}, 800")
    A(f"s_and_b32 s{sF1}, s{sWAVE}, 1"); A(f"s_mul_i32 s{sF1}, s{sF1}, 10")
    A(f"v_add_u32 v1, s{sF1}, v0"); A("v_subrev_u32 v2, 50, v1"); A("v_min_u32 v1, v1, v2")
    A("v_lshlrev_b32 v1, 4, v1")
    A(f"v_mov_b32 v2, {hex(OOB)}")
    A("v_cmp_gt_u32 vcc, 50, v0")
    A.g("v_cndmask_b32 v1, v2, v1, vcc")
    A.g(f"v_cndmask_b32 v3, v2, v{vW}, vcc")
    A(f"buffer_load_dwordx4 {v(R,4)}, v1, {srdr(SPH)}, s{sF0} offen")
    if kv:
        A(f"s_lshl_b32 s{sF0}, s{sU}, 2"); A(f"s_add_u32 s{sF0}, s{sF0}, s{sWAVE}"); A(f"s_mul_i32 s{sF0}, s{sF0}, 800")
        A(f"buffer_load_dwordx4 {v(R+4,4)}, v3, {srdr(SPH)}, s{sF0} offen")

def phi_writes(A, kv, R, v=a):
    A(f"s_mul_i32 s{sF0}, s{sWAVE}, 960"); A(f"s_add_u32 s{sF0}, s{sF0}, {PHI2}")
    A(f"v_add_u32 v1, s{sF0}, v{vW}")
    A(f"s_mul_i32 s{sF0}, s{sWAVE}, 480"); A(f"s_add_u32 s{sF0}, s{sF0}, {PZERO}")
    A(f"v_lshl_add_u32 v2, v0, 3, s{sF0}")
    A("v_mov_b32 v4, 0"); A("v_mov_b32 v5, 0")
    A(f"s_bfm_b64 exec, 60, 0")
    A.g(f"ds_write_b128 v1, {v(R,4)}")
    if kv: A.g(f"ds_write_b128 v1, {v(R+4,4)} offset:{PHI1 - PHI2}")
    A.g("ds_write_b64 v2, v[4:5]")
    A.g("s_mov_b64 exec, -1")

vA = 16; vQA = 20; vOA = 23; vF1 = 24; vF2 = 25; vXO = 26; vRW = 28; vRR = 31; vKA = 32
QR = 84; ST2 = 96; PA2 = 64; PK2 = 44; NU = 64; KVR = 88; XRS = 88
ACT = 112; ACCO = 176; aO = 100

def p2_addr_early(A):
    for k in range(4):
        A(f"s_add_u32 s{sF0}, s{sWAVE}, {k}"); A(f"s_and_b32 s{sF0}, s{sF0}, 3"); A(f"s_mul_i32 s{sF0}, s{sF0}, {ACT_BLK}")
        A(f"v_add_u32 v{vA+k}, s{sF0}, v{vW}")
    A("v_lshrrev_b32 v1, 4, v0")
    A("v_and_b32 v2, 1, v1")
    A("v_lshrrev_b32 v3, 1, v1"); A("v_mul_u32_u24 v3, 5, v3")
    A(f"s_mul_i32 s{sF0}, s{sC}, 10")
    A(f"v_add_u32 v3, s{sF0}, v3")
    A("v_and_b32 v4, 15, v0"); A("v_lshlrev_b32 v4, 4, v4")
    A("v_lshl_add_u32 v4, v3, 8, v4")
    A("v_mul_u32_u24 v5, 768, v2")
    A(f"v_add_u32 v{vQA}, v4, v5")
    A(f"v_lshl_add_u32 v{vQA+1}, v2, 3, v4")
    A("v_and_b32 v4, 15, v0"); A(f"v_lshlrev_b32 v{vQA+2}, 3, v4")
    A(f"s_mul_i32 s{sAB}, s{sR}, {4*ACT_BLK}"); A(f"s_add_u32 s{sAB}, s{sAB}, {ACT_OFF}")
    A(f"s_lshl_b32 s{sF0}, s{sWAVE}, 10"); A(f"s_add_u32 s{sA}, s{sAB}, s{sF0}")

def act_load(n, k):
    o = []
    if k == 0 and n > 0:
        o.append((f"s_add_u32 s{sA}, s{sA}, 4096", None, 0))
        if n == 13:
            o.append((f"s_cmp_lt_u32 s{sWAVE}, 2\ns_cselect_b32 s{sA}, s{sA}, {hex(OOB)}", None, 0))
    o.append((f"buffer_load_dwordx4 {v(ACT+16*(n%4)+4*k,4)}, v{vA+k}, {srdr(SWS)}, s{sA} offen sc1", f"A{n}", 1))
    return o

def p2_first_loads(A):
    A(f"s_mul_i32 s{sP0}, s{sWAVE}, {ACT_BLK}"); A(f"s_add_u32 s{sP0}, s{sP0}, s{sAB}")
    A(f"s_add_u32 s{sP0}, s{sP0}, {74*1024}")
    A(f"buffer_load_dwordx4 {v(QR,4)}, v{vQA}, {srdr(SWS)}, s{sP0} offen sc1")
    A(f"buffer_load_dwordx4 {v(QR+4,4)}, v{vQA}, {srdr(SWS)}, s{sP0} offen offset:256 sc1")
    A(f"buffer_load_dwordx2 {v(QR+8,2)}, v{vQA+1}, {srdr(SWS)}, s{sP0} offen offset:512 sc1")
    A(f"s_lshl_b32 s{sP0}, s{sR}, 2"); A(f"s_add_u32 s{sP0}, s{sP0}, s{sWAVE}"); A(f"s_lshl_b32 s{sP0}, s{sP0}, 7")
    A(f"s_add_u32 s{sP0}, s{sP0}, {ST_OFF}")
    A(f"buffer_load_dwordx2 {v(ST2,2)}, v{vQA+2}, {srdr(SWS)}, s{sP0} offen sc1", "q")

P2FB = [("a", 240), ("a", 244), ("a", 248), ("a", 252), ("v", 100), ("v", 104), ("v", 108)]
def reg(n, off, cnt):
    k, r = P2FB[n % 7]
    return R(k, r + off, cnt)
P1SEQ = [(st, ch) for st in range(3) for ch in range(5)]
def prd(F, n):
    st, ch = P1SEQ[n]
    for rho in range(2):
        F(f"ds_read_b64_tr_b16 {reg(n,2*rho,2)}, v{vF1} offset:{(8*st+4*rho)*40+ch*8}")

def part1_head(F):
    F("v_lshrrev_b32 v1, 4, v0"); F("v_and_b32 v2, 3, v0"); F("v_bfe_u32 v3, v0, 2, 2")
    F("v_mul_u32_u24 v4, 960, v1"); F(f"v_add_u32 v4, {PHI2}, v4")
    F("v_mul_u32_u24 v5, 1920, v1"); F(f"v_add_u32 v5, {KVI}, v5"); F(f"v_mov_b32 v6, {PZERO}")
    F("v_cmp_eq_u32 vcc, v1, v2"); F.g("v_cndmask_b32 v4, v6, v4, vcc"); F.g("v_cndmask_b32 v5, v6, v5, vcc")
    F(f"v_mad_u32_u24 v{vF1}, v3, 40, v4"); F(f"v_mad_u32_u24 v{vF2}, v3, 48, v5")
    F(f"v_mov_b32 v{QR+10}, 0"); F(f"v_mov_b32 v{QR+11}, 0")
    for n in range(7): prd(F, n)
    poll_addr(F, "pgrp", 1, 2)
    F.wait(vm="q")

def part1(A, wq):
    F = Asm()
    for n in range(15):
        st, ch = P1SEQ[n]
        d = v(PA2 + 4 * ch, 4)
        F(f"v_mfma_f32_16x16x32_bf16 {d}, {reg(n,0,4)}, {v(QR+4*st,4)}, {'0' if st == 0 else d}")
        if n + 7 < 15: prd(F, n + 7)
    F(f"v_rsq_f32 v{ST2}, v{ST2+1}"); F("s_nop 0")
    F(f"v_mul_f32 v{ST2}, {hex(LOG2E)}, v{ST2}")
    G = Asm()
    softmax_pair_pk(G, PA2, PK2, PA2, PK2, ST2, 2)
    kp = OPT.get("p1poll", 110)
    H = Asm(); poll_issue(H)
    G.ins[kp:kp] = H.ins
    F.extend(G)
    if OPT.get("verbose"): print("part1", len(F.ins), len(G.ins))
    spread(A, F, wq, OPT.get("p1sp", 9), first=OPT.get("p1f", 0))
    pt(A, "sm")

def prologue(A, C):
    L = C.L
    A.label(L("start"))
    A(f"s_getpc_b64 s[{sT0}:{sT0+1}]")
    A("s_cmp_ge_u32 s2, 256")
    A(f"s_cbranch_scc1 {L('end')}")
    if OPT.get("swap", 1): A("s_xor_b32 s2, s2, 128")
    A("s_load_dwordx16 s[4:19], s[0:1], 0")
    A("s_load_dwordx2 s[20:21], s[0:1], 80")
    A("s_load_dwordx2 s[22:23], s[0:1], 64")
    stamp(A, 0, True); stamp(A, 1)
    A(f"s_bfe_u32 s{sT2}, s2, 0x30003"); A(f"s_lshl_b32 s{sT2}, s{sT2}, 13")
    A("v_lshrrev_b32 v1, 6, v0"); A("v_and_b32 v2, 15, v0"); A("v_lshl_add_u32 v2, v1, 4, v2")
    A(f"v_lshl_add_u32 v2, v2, 7, s{sT2}")
    A(f"v_min_u32 v2, {L('end')}-{L('start')}-8, v2")
    A(f"v_mov_b32 v3, s{sT0+1}")
    A(f"v_add_co_u32 v2, vcc, s{sT0}, v2")
    A("v_addc_co_u32 v3, vcc, 0, v3, vcc")
    A("global_load_dword v255, v[2:3], off")
    A(f"v_readfirstlane_b32 s{sWAVE}, v1")
    A(f"v_mov_b32 v{vTID}, v0")
    A("v_and_b32 v0, 63, v0")
    A(f"s_and_b32 s{sT0}, s2, 7"); A(f"s_lshr_b32 s{sT1}, s2, 3")
    A(f"s_lshr_b32 s{sM}, s{sT0}, 2"); A(f"s_lshl_b32 s{sM}, s{sM}, 3"); A(f"s_and_b32 s{sT2}, s{sT1}, 7"); A(f"s_add_u32 s{sM}, s{sM}, s{sT2}")
    A(f"s_and_b32 s{sU}, s{sT0}, 3"); A(f"s_lshl_b32 s{sU}, s{sU}, 1"); A(f"s_bfe_u32 s{sT2}, s{sT1}, 0x10003"); A(f"s_add_u32 s{sU}, s{sU}, s{sT2}")
    A(f"s_lshr_b32 s{sR}, s{sT0}, 1"); A(f"s_lshl_b32 s{sR}, s{sR}, 3"); A(f"s_lshr_b32 s{sT2}, s{sT1}, 2"); A(f"s_add_u32 s{sR}, s{sR}, s{sT2}")
    A(f"s_and_b32 s{sC}, s{sT0}, 1"); A(f"s_lshl_b32 s{sC}, s{sC}, 2"); A(f"s_and_b32 s{sT2}, s{sT1}, 3"); A(f"s_add_u32 s{sC}, s{sC}, s{sT2}")
    A("v_lshrrev_b32 v1, 3, v0"); A("v_and_b32 v2, 7, v0")
    A(f"s_lshl_b32 s{sT0}, s{sWAVE}, 5")
    A("v_lshrrev_b32 v4, 4, v0"); A("v_xor_b32 v4, v4, v2")
    A(f"v_add_u32 v3, s{sT0}, v1"); A("v_mul_u32_u24 v3, 1280, v3")
    A(f"v_lshl_add_u32 v{vXD}, v4, 4, v3")
    A(f"v_xor_b32 v5, 64, v{vXD}")
    A(f"v_add_u32 v{vXD+1}, {8*1280-1024}, v5")
    A(f"v_add_u32 v{vXD+2}, {16*1280-2048}, v{vXD}")
    A(f"v_add_u32 v{vXD+3}, {24*1280-3072}, v5")
    A(f"s_mul_i32 s{sXO}, s{sM}, {128*1280}")
    A(f"s_mul_i32 s{sXM}, s{sWAVE}, {XW}")
    A(f"v_lshlrev_b32 v{vW}, 4, v0"); A(f"v_add_u32 v{vW+1}, 4096, v{vW}")
    A(f"s_cmp_ge_u32 s2, 128")
    A(f"s_cbranch_scc1 {L('prole')}")

def pair_lane(A):
    A("v_lshrrev_b32 v1, 3, v0"); A("v_and_b32 v2, 7, v0")
    A("v_bfe_u32 v3, v0, 4, 1"); A("v_lshlrev_b32 v3, 2, v3"); A("v_xor_b32 v3, v3, v2")

def build_srds(A, p):
    if p:
        srd(A, SOUT, 22, 2048 * 1280)
        cs_line(A, sCSL, sT0, sT1)
        A(f"s_cmp_lt_u32 s{sCSL}, 30")
        A(f"s_cselect_b64 s[{SCS}:{SCS+1}], s[6:7], s[14:15]")
        csel(A, SCS + 2, 640*3840, 640*3456)
        A(f"s_and_b32 s{SCS+1}, s{SCS+1}, 0xffff"); A(f"s_mov_b32 s{SCS+3}, 0x20000")
        pack_T(A, sT0, sT1)
        A(f"s_cmp_lt_u32 s{sT0}, 54")
        A(f"s_cselect_b64 s[{SPK}:{SPK+1}], s[18:19], s[10:11]")
        csel(A, SPK + 2, 1728*1280, 640*1280)
        A(f"s_and_b32 s{SPK+1}, s{SPK+1}, 0xffff"); A(f"s_mov_b32 s{SPK+3}, 0x20000")
        srd(A, SWB, 10, 640 * 1280)
        srd(A, SB1, 16, 1728 * 2)
    srd(A, SPH, 8, 32 * 800)
    if not p: srd(A, SOUT, 22, 2048 * 1280)

def common_addr(A):
    A("v_and_b32 v1, 31, v0"); A("v_lshrrev_b32 v2, 5, v0"); A("v_bfe_u32 v3, v0, 1, 3")
    A("v_lshlrev_b32 v4, 7, v1"); A(f"v_add_u32 v4, s{sXM}, v4")
    for q in range(4):
        A(f"v_add_u32 v5, {2*q}, v2"); A("v_xor_b32 v5, v5, v3")
        A(f"v_lshl_add_u32 v{vXRD+q}, v5, 4, v4")
    A("v_lshrrev_b32 v3, 4, v1"); A(f"v_mul_u32_u24 v3, {ACT_BLK}, v3"); A("v_lshl_add_u32 v3, v2, 8, v3")
    A("v_and_b32 v4, 15, v0"); A(f"v_lshl_add_u32 v{vAST}, v4, 4, v3")
    A(f"s_lshl_b32 s{sT0}, s{sM}, 3"); A(f"s_lshl_b32 s{sT1}, s{sWAVE}, 1"); A(f"s_add_u32 s{sT0}, s{sT0}, s{sT1}")
    A(f"s_mul_i32 s{sACT}, s{sT0}, {ACT_BLK}"); A(f"s_add_u32 s{sACT}, s{sACT}, {ACT_OFF}")
    A(f"s_lshl_b32 s{sT0}, s2, 8"); A(f"s_add_u32 s{sT0}, s{sT0}, {FLG_OFF}")
    A(f"v_mov_b32 v3, s{sT0}"); A(f"v_mov_b32 v4, {hex(OOB)}")
    A(f"v_cmp_eq_u32 vcc, 0, v{vTID}"); A(f"v_cndmask_b32 v{vFL}, v4, v3, vcc")
    poll_addr(A, "all", 3, 4)
    A(f"s_mul_i32 s{sW}, s{sC}, 74"); A(f"s_add_u32 s{sW}, s{sW}, s{sWAVE}"); A(f"s_mul_i32 s{sW}, s{sW}, 5120")
    A(f"s_add_u32 s{sW}, s{sW}, {W2P_OFF}")
    A(f"s_add_u32 s{sX1}, s{sW}, {13*20480}")
    A(f"s_cmp_lt_u32 s{sWAVE}, 2"); A(f"s_cselect_b32 s{sX1}, s{sX1}, {hex(OOB)}")
    A(f"s_mul_i32 s{sPV}, s{sWAVE}, {4*5120}"); A(f"s_add_u32 s{sPV}, s{sPV}, {6*5120 + 12*20480}")
    A(f"s_add_u32 s{sPV}, s{sPV}, s{sW}")
    A("v_and_b32 v1, 3, v0"); A("v_bfe_u32 v2, v0, 2, 1"); A("v_bfe_u32 v3, v0, 3, 2")
    A("v_lshrrev_b32 v4, 1, v3"); A("v_lshl_add_u32 v4, v4, 1, v2")
    A("v_and_b32 v5, 1, v3"); A("v_lshl_add_u32 v5, v5, 2, v1"); A("v_lshl_add_u32 v4, v4, 3, v5")
    A(f"v_lshlrev_b32 v{vCP}, 4, v4")

def pair_read_base(A, dst):
    A("v_lshrrev_b32 v7, 1, v4"); A("v_lshlrev_b32 v7, 2, v7"); A("v_lshl_add_u32 v7, v3, 1, v7")
    A("v_and_b32 v5, 1, v4"); A("v_add_u32 v7, v7, v5"); A("v_lshlrev_b32 v7, 3, v7")
    A("v_lshl_add_u32 v7, v6, 7, v7"); A("v_bfe_u32 v5, v0, 3, 1"); A(f"v_lshl_add_u32 v{dst}, v5, 6, v7")

def as_queue(B):
    return [(x.text, x.tag, 1 if x.cls == "vmem" else 0, x.glue) for x in B.ins]

def stats_load(A):
    A(f"s_lshl_b32 s{sP0}, s{sM}, 2"); A(f"s_add_u32 s{sP0}, s{sP0}, s{sWAVE}"); A(f"s_lshl_b32 s{sP0}, s{sP0}, 8")
    A(f"s_add_u32 s{sP0}, s{sP0}, {ST_OFF}")
    A(f"v_and_b32 v{vPT}, 31, v0"); A(f"v_lshlrev_b32 v{vPT}, 3, v{vPT}")
    A(f"buffer_load_dwordx2 {v(vST,2)}, v{vPT}, {srdr(SWS)}, s{sP0} offen sc1")

def epoch_load(A):
    A(f"v_mov_b32 v{vEP}, 0")
    A(f"buffer_load_dword v{vEP}, v{vEP}, {srdr(SWS)}, 0 offen sc1")

def role_kv(A, C):
    L = C.L
    ACC_A = 176; ACC_Q = 64; KP = 96; PAK = 120; VP = 184; EP = 216; PK = 184; KVA = 184; CR = 120
    A(f"s_lshl_b32 s{sT0}, s{sWAVE}, 3")
    A(f"s_mul_i32 s{sT1}, s{sU}, 160"); A(f"s_add_u32 s{sT1}, s{sT1}, 1280")
    for i in range(3):
        A(f"v_add_u32 v1, {64*i}, v0")
        A("v_mul_u32_u24 v2, 3277, v1"); A("v_lshrrev_b32 v2, 16, v2")
        A("v_mul_u32_u24 v3, 20, v2"); A("v_sub_u32 v3, v1, v3")
        A("v_mul_u32_u24 v4, 13108, v3"); A("v_lshrrev_b32 v4, 16, v4")
        A("v_and_b32 v5, 1, v4"); A("v_lshrrev_b32 v4, 1, v4")
        A("v_mul_u32_u24 v5, 1200, v5"); A("v_mul_u32_u24 v4, 80, v4")
        A(f"v_add_u32 v2, s{sT0}, v2"); A("v_mul_u32_u24 v2, 3840, v2"); A("v_lshl_add_u32 v2, v3, 4, v2")
        A("v_add_u32 v2, v2, v5"); A("v_sub_u32 v2, v2, v4")
        A(f"v_add_u32 v{vAD+i}, s{sT1}, v2")
        if i: A(f"v_subrev_u32 v{vAD+i}, {1024*i}, v{vAD+i}")
    A(f"v_mov_b32 v1, {hex(OOB)}"); A("v_cmp_gt_u32 vcc, 32, v0"); A(f"v_cndmask_b32 v{vAD+2}, v1, v{vAD+2}, vcc")
    A(f"s_mul_i32 s{sWB}, s{sWAVE}, 3072"); A(f"s_add_u32 s{sWB}, s{sWB}, {WR}")
    pair_lane(A)
    A(f"v_add_u32 v4, s{sT0}, v1"); A("v_mul_u32_u24 v4, 3840, v4")
    A(f"v_lshl_add_u32 v4, v3, 4, v4"); A(f"s_lshl_b32 s{sT1}, s{sU}, 7")
    A(f"v_add_u32 v{vPD}, s{sT1}, v4")
    A("s_waitcnt lgkmcnt(0)")
    srd(A, SX, 4, 2048 * 1280)
    srd(A, SWS, 20, WS_SIZE)
    A0 = A; A = Asm()
    srd(A, SWA, 6, 640 * 3840)
    A(f"s_lshl_b32 s{sWQ}, s{sWAVE}, 10"); A(f"s_add_u32 s{sWQ}, s{sWQ}, {WR + 12288}")
    build_srds(A, False)
    spread(A0, A, x_dma(0), 3, first=3)
    A = Asm()
    common_addr(A)
    vCA = 40
    A("v_mul_u32_u24 v4, 40, v2"); A("v_lshl_add_u32 v4, v3, 2, v4"); A("v_add_u32 v4, v4, v1")
    A(f"v_lshlrev_b32 v{vCA}, 4, v4"); A(f"v_add_u32 v{vCA+2}, {600*16}, v{vCA}")
    A("v_cmp_lt_u32 vcc, 1, v3"); A(f"v_cndmask_b32 v{vCA+1}, v{vCA}, v{vCA+2}, vcc")
    common_lane(A)
    A("v_mul_u32_u24 v7, 320, v6"); A(f"v_mul_u32_u24 v{vAR}, 160, v3"); A(f"v_add_u32 v{vAR}, v{vAR}, v7")
    A(f"v_lshl_add_u32 v{vAR}, v1, 9, v{vAR}")
    A(f"v_lshl_add_u32 v{vAR}, v4, 3, v{vAR}"); A(f"v_add_u32 v{vAR}, {WR}, v{vAR}"); A(f"v_add_u32 v{vAR+1}, 65536, v{vAR}")
    pair_read_base(A, vPR)
    A(f"v_add_u32 v{vPR}, {WR + 12288}, v{vPR}")
    A(f"v_xor_b32 v{vPR+1}, 64, v{vPR}")
    A(f"v_add_u32 v{vPR+2}, 65536, v{vPR}"); A(f"v_add_u32 v{vPR+3}, 65536, v{vPR+1}")
    spread(A0, A, kv_dma(0) + kv_dma(1), 10, first=10)
    A = A0
    epoch_load(A)
    phi_loads(A, True, aPH)
    emit(A, x_dma(1) + kv_dma(2) + kv_dma(3))
    pt(A, "pro")
    S1 = OPT.get("s1kv", 9); HB = OPT.get("hbkv", 1)
    KW = OPT.get("kw", ((5,), (6, 7, 0, 1), (2, 3, 4, 8, 9, 10, 11), ()))
    steps = []
    accs = [ACC_A + 16 * t for t in range(5)] + [ACC_Q, ACC_Q + 16]
    for s in range(40):
        c, sp = divmod(s, 4)
        h = s >> 1; sl = h % 6; hi = sl >= 4
        fr = aW + 28 * (s & 1)
        rd = []
        for t in range(5):
            for rho in range(2):
                off = (sl & 3 if hi else sl) * HS + (s & 1) * 6144 + rho * 1280 + t * 32
                rd.append(f"ds_read_b64_tr_b16 {a(fr + 4*t + 2*rho, 2)}, v{vAR + hi} offset:{off}")
        for t in range(2):
            for rho in range(2):
                off = (sl & 3 if hi else sl) * HS + (s & 1) * 2048 + rho * 512
                rd.append(f"ds_read_b64_tr_b16 {a(fr + 20 + 4*t + 2*rho, 2)}, v{vPR + t + 2*hi} offset:{off}")
        q = []
        if HB:
            if s == 0: q += kv_dma(4) + x_dma(2)
            if sp in (0, 2): q += kv_dma(h + 5)
            if sp == 2: q += x_dma(c + 3)
        elif sp == 0: q += x_dma(c + 2) + kv_dma(h + 4) + kv_dma(h + 5)
        steps.append(dict(nt=7, acc=accs, first=(s == 0), xreg=aX + 16 * (c & 1) + 4 * sp, frag=fr, reads=rd,
                          chunk=h if sp == 0 or (HB and sp == 2) else None, xj=c if sp == 0 else None, queue=q,
                          tags=[] if HB else [f"w{h+1}"]))
    def pre(A, c):
        if c == S1: poll_check(A, C, 1)
    def post(A, c, dq):
        pt(A, f"c{c}")
        if c == 1: A(f"v_readfirstlane_b32 s{sE}, v{vEP}")
        if c == S1 - 1: poll_issue(A)
        if c == S1:
            A = Asm()
            stats_load(A)
            A(f"s_mul_i32 s{sP0}, s{sU}, {80*16}"); A(f"s_add_u32 s{sP0}, s{sP0}, {CS_OFF + 640*16}")
            for t in range(5):
                A(f"buffer_load_dwordx4 {v(CR+4*t,4)}, v{vCA+[0,0,1,2,2][t]}, {srdr(SWS)}, s{sP0} offen offset:{256*t} sc1")
            A(f"s_lshl_b32 s{sP0}, s{sU}, 10"); A(f"s_add_u32 s{sP0}, s{sP0}, {CS_OFF}")
            for t in range(2):
                A(f"buffer_load_dwordx4 {v(vQC+4*t,4)}, v{vCP}, {srdr(SWS)}, s{sP0} offen offset:{512*t} sc1")
            dq.add(as_queue(A), front=True)
            dq.add(wl(*KW[0]))
    M = Asm(); dq = DQ()
    gemm_steps(M, steps, 1, dq, pre, post, every=OPT.get("kvevery", [2] * 9 + [1]))
    dq.pop(M, 99)
    F = Asm(); phi_writes(F, True, aPH)
    ins, left = weave(M, F, start=30, per=2); assert not left
    F = Asm()
    common_lane(F)
    F("v_mul_u32_u24 v7, 1920, v3"); F(f"v_add_u32 v7, {PHI1}, v7"); F(f"v_mov_b32 v5, {PZERO}")
    F("v_cmp_eq_u32 vcc, v1, v3"); F.g("v_cndmask_b32 v7, v5, v7, vcc")
    F("v_mul_u32_u24 v5, 40, v2"); F("v_add_u32 v7, v7, v5"); F("v_lshl_add_u32 v6, v4, 3, v7"); F("v_add_u32 v7, 32, v7")
    F(f"s_lshl_b32 s{sPKD}, s{sU}, 11"); F(f"s_add_u32 s{sPKD}, s{sPKD}, s{sACT}"); F(f"s_add_u32 s{sPKD}, s{sPKD}, {74*1024}")
    bufs = [0, 4, 8, 12, 16, 20, 24, 28, 32, 36, 40, 44]
    seq = [(sg, tau, st) for sg in range(2) for st in range(3) for tau in range(2)]
    for n in range(12):
        sg, tau, st = seq[n]
        for rho in range(2):
            F(f"ds_read_b64_tr_b16 {a(bufs[n]+2*rho,2)}, v{6+tau} offset:{sg*960+(8*st+4*rho)*40}")
    ins, left = weave(ins, F, start=200, per=1.5); assert not left
    FC = Asm()
    stats_frag(FC, 1)
    for t in range(5): corr_frag(FC, CR + 4 * t, 1 + (t & 1))
    for t in range(2): corr_frag(FC, vQC + 4 * t, 1 + (t & 1))
    if S1 < 9:
        ins, left = weave(ins, FC, start=256, per=3); FC.ins = left
    A.extend(ins)
    pt(A, "p1end")
    A0 = A; A = Asm()
    A.extend(FC)
    pt(A, "fc")
    for t in range(5):
        A(f"v_mfma_f32_32x32x16_bf16 {v(ACC_A+16*t,16)}, {v(CR+4*t,4)}, {v(vCB,4)}, {v(ACC_A+16*t,16)}")
    for t in range(2):
        A(f"v_mfma_f32_32x32x16_bf16 {v(ACC_Q+16*t,16)}, {v(vQC+4*t,4)}, {v(vCB,4)}, {v(ACC_Q+16*t,16)}")
    for i in range(20):
        A(f"v_cvt_pk_bf16_f32 v{KP+i}, v{ACC_A+2*i}, v{ACC_A+2*i+1}")
    A(f"v_mov_b32 v{KP+20}, 0"); A(f"v_mov_b32 v{KP+21}, 0")
    vs = Asm()
    for t in range(2):
        for p in range(2):
            for i in range(4):
                r = ACC_Q + 16 * t + 8 * p
                vs(f"v_cvt_pk_bf16_f32 v{r+i}, v{r+2*i}, v{r+2*i+1}")
            pair_store(vs, ACC_Q, sPKD, "qst", t, p)
    vs("v_and_b32 v1, 31, v0"); vs(f"s_lshl_b32 s{sF0}, s{sWAVE}, 5"); vs(f"v_add_u32 v1, s{sF0}, v1")
    vs("v_lshrrev_b32 v2, 5, v0")
    vs("v_mul_u32_u24 v3, 48, v1"); vs("v_mul_u32_u24 v5, 12288, v2"); vs("v_add_u32 v3, v3, v5"); vs(f"v_add_u32 v{vAR+1}, {VIM}, v3")
    vs("v_mul_u32_u24 v3, 80, v1"); vs("v_mul_u32_u24 v4, 20480, v2"); vs("v_add_u32 v3, v3, v4"); vs(f"v_add_u32 v{vAR}, {PHIK}, v3")
    for sg in range(2):
        for i in range(10):
            r = ACC_A + 40 + 20 * sg + 2 * i
            vs(f"v_mul_f32 v{r}, v{r}, v{vRS}"); vs(f"v_mul_f32 v{r+1}, v{r+1}, v{vRS}")
            vs(f"v_cvt_pk_bf16_f32 v{VP+12*sg+i}, v{r}, v{r+1}")
        vs(f"v_mov_b32 v{VP+12*sg+10}, 0x3f80"); vs(f"v_mov_b32 v{VP+12*sg+11}, 0")
        for i in range(3):
            vs(f"ds_write_b128 v{vAR+1}, {v(VP+12*sg+4*i,4)} offset:{6144*sg+16*i}")
    K = Asm()
    for n in range(12):
        sg, tau, st = seq[n]
        d = v(PAK + 32 * sg + 16 * tau, 16)
        K(f"v_mfma_f32_32x32x16_bf16 {d}, {a(bufs[n],4)}, {v(KP+10*sg+4*st,4)}, {'0' if st == 0 else d}")
    ins, left = weave(K, vs, per=5)
    A.extend(ins); A.extend(left)
    pt(A, "head")
    if OPT.get("verbose"): print("kv epilogue head", len(A.ins))
    spread(A0, A, wl(*KW[1]), OPT.get("kvsp0", 9), first=OPT.get("kvf0", 0))
    A = A0
    wq = wl(*KW[2])
    F = Asm()
    for sg in range(2):
        softmax_pair_pk(F, PAK + 32 * sg, EP, EP + 20, PK, vS1, 2)
        for i in range(5):
            F(f"ds_write_b128 v{vAR}, {v(PK+4*i,4)} offset:{10240*sg+16*i}")
        if sg == 0:
            F.wait(vm="qst"); F.g("s_barrier"); signal(F, 2)
    poll_addr(F, "q", 1, 2)
    F("v_lshrrev_b32 v1, 5, v0"); F("v_bfe_u32 v2, v0, 2, 2"); F("v_lshlrev_b32 v2, 2, v2"); F("v_lshl_add_u32 v2, v1, 1, v2")
    F("v_and_b32 v3, 3, v0"); F("v_bfe_u32 v4, v0, 4, 1"); F("v_lshl_add_u32 v3, v4, 2, v3")
    F(f"s_mul_i32 s{sF0}, s{sWAVE}, 10240"); F(f"s_add_u32 s{sF0}, s{sF0}, {PHIK}")
    F("v_mul_u32_u24 v4, 80, v2"); F(f"v_add_u32 v4, s{sF0}, v4"); F("v_lshl_add_u32 v5, v3, 3, v4")
    F("v_and_b32 v6, 1, v3"); F("v_lshl_add_u32 v6, v6, 3, v4"); F("v_add_u32 v6, 64, v6")
    F(f"s_mul_i32 s{sF0}, s{sWAVE}, 6144"); F(f"s_add_u32 s{sF0}, s{sF0}, {VIM}")
    F("v_mul_u32_u24 v4, 48, v2"); F(f"v_add_u32 v4, s{sF0}, v4"); F("v_min_u32 v7, 5, v3"); F("v_lshl_add_u32 v7, v7, 3, v4")
    if OPT.get("verbose"): print("kv epilogue F", len(F.ins))
    spread(A, F, wq, OPT.get("kvsp", 9))
    pt(A, "p2end")
    if OPT.get("kvqp", 0) == 0: poll_issue(A)
    A.wait(lgkm="all")
    A("s_barrier")
    fb = [120, 132, 144, 156]
    def krd(st):
        fr = fb[st % 4]
        for rho in range(2):
            A(f"ds_read_b64_tr_b16 {v(fr+2*rho,2)}, v5 offset:{(16*st+rho)*80}")
            A(f"ds_read_b64_tr_b16 {v(fr+8+2*rho,2)}, v7 offset:{(16*st+rho)*48}")
            A(f"ds_read_b64_tr_b16 {v(fr+4+2*rho,2)}, v6 offset:{(16*st+rho)*80}")
    for st in range(4): krd(st)
    if OPT.get("kvqp", 0) == 1: poll_issue(A)
    G = Asm()
    p2_addr_early(G)
    G(f"s_mul_i32 s{sT1}, s{sWAVE}, 10240"); G(f"s_add_u32 s{sT1}, s{sT1}, {PHIK}")
    G("v_and_b32 v1, 31, v0"); G("v_lshrrev_b32 v2, 5, v0"); G("v_mul_u32_u24 v2, 384, v2"); G("v_lshl_add_u32 v2, v1, 2, v2")
    G("v_add_u32 v3, 4096, v2"); G("v_cmp_gt_u32 vcc, 24, v1"); G.g("v_cndmask_b32 v2, v3, v2, vcc")
    G(f"v_add_u32 v{vKA+1}, s{sT1}, v2")
    G(f"v_lshlrev_b32 v{vKA}, 2, v0"); G(f"v_add_u32 v{vKA+2}, s{sT1}, v{vKA}")
    G(f"s_lshl_b32 s{sT0}, s{sU}, 2"); G(f"s_add_u32 s{sT0}, s{sT0}, s{sWAVE}"); G(f"s_mul_i32 s{sT0}, s{sT0}, {KVH}")
    G(f"s_and_b32 s{sT1}, s{sM}, 1"); G(f"s_mul_i32 s{sT1}, s{sT1}, {KVC}"); G(f"s_add_u32 s{sT0}, s{sT0}, s{sT1}")
    G(f"s_add_u32 s{sT0}, s{sT0}, {KV_OFF}")
    K = Asm()
    sv = A.ins; A.ins = K.ins
    for st in range(8):
        fr = fb[st % 4]
        for tau in range(2):
            d = v(KVA + 16 * tau, 16)
            A(f"v_mfma_f32_32x32x16_bf16 {d}, {v(fr+4*tau,4)}, {v(fr+8,4)}, {'0' if st == 0 else d}")
        if st + 4 < 8: krd(st + 4)
    A.ins = sv
    ins, left = weave(K, G, start=8, per=6)
    A.extend(ins); A.extend(left)
    DN = 120
    def relayout(A):
        for r in range(20):
            A(f"ds_write_b32 v{vKA+1}, v{KVA+r} offset:{(8 * (r >> 2) + (r & 3)) * 96}")
        for i in range(0, 14, 2):
            A(f"ds_read2st64_b32 {v(DN+i,2)}, v{vKA+2} offset0:{i} offset1:{i+1}")
        A(f"ds_read_b32 v{DN+14}, v{vKA+2} offset:{14*256}")
    pt(A, "kvm")
    if OPT.get("kvrl", 0): relayout(A)
    poll_check(A, C, 2)
    p2_first_loads(A)
    pt(A, "sig2")
    if not OPT.get("kvrl", 0): relayout(A)
    for r in range(15):
        A(f"buffer_atomic_add_f32 v{DN+r}, v{vKA}, {srdr(SWS)}, s{sT0} offen offset:{r*256} sc1", "fin")
    pt(A, "first")
    part1_head(A)
    part1(A, wl(*KW[3]))
    A(f"s_branch {L('tail')}")

def pinfo(A, sl, J, qf):
    if isinstance(sl, int):
        if sl == 0:
            A(f"s_cmp_lt_u32 s{sU}, 2"); A.g(f"s_cselect_b32 s{J}, 8, -2"); A.g(f"s_cselect_b32 s{qf}, 1, 0")
        else:
            A(f"s_mov_b32 s{J}, {8*sl - 2}"); A(f"s_mov_b32 s{qf}, 0")
        A(f"s_add_u32 s{J}, s{J}, s{sU}")

def role_p(A, C):
    L = C.L
    ACC = 128; CR = 64; MT = 64
    A.label(L("prole"))
    A(f"s_lshl_b32 s{sT0}, s{sWAVE}, 3"); A(f"s_add_u32 s{sT0}, s{sT0}, s{sU}")
    A(f"s_cmp_lt_u32 s{sT0}, 2"); A(f"s_cselect_b32 s{sT1}, 8, -2"); A(f"s_cselect_b32 s{sT2}, 1, 0")
    csel(A, sT3, 3840, 3456)
    A(f"s_add_u32 s{sT0}, s{sT0}, s{sT1}"); A(f"s_lshl_b32 s{sT1}, s{sT0}, 7")
    A(f"s_cmp_lt_u32 s{sT0}, 27"); A(f"s_cselect_b32 s{sT1}, s{sT1}, {hex(OOB)}")
    pair_lane(A)
    A(f"v_mul_u32_u24 v5, s{sT3}, v1"); A(f"v_lshl_add_u32 v{vP1}, v3, 4, v5")
    A(f"s_lshl_b32 s{sT0}, s{sT3}, 3"); A(f"s_sub_u32 s{sT0}, s{sT0}, 1024")
    for i in range(1, 4):
        A(f"v_add_u32 v{vP1+i}, s{sT0}, v{vP1+i-1}")
    A(f"s_lshl_b32 s{sWB}, s{sWAVE}, 12"); A(f"s_add_u32 s{sWB}, s{sWB}, {WR}")
    A("s_waitcnt lgkmcnt(0)")
    srd(A, SX, 4, 2048 * 1280)
    srd(A, SWS, 20, WS_SIZE)
    A(f"s_cmp_eq_u32 s{sT2}, 1")
    A(f"s_cselect_b64 s[{SWA}:{SWA+1}], s[6:7], s[14:15]")
    csel(A, SWA + 2, 640*3840, 640*3456)
    A(f"s_and_b32 s{SWA+1}, s{SWA+1}, 0xffff"); A(f"s_mov_b32 s{SWA+3}, 0x20000")
    A(f"s_mov_b32 s{sWO}, s{sT1}"); A(f"s_lshl_b32 s{sWS}, s{sT3}, 5")
    A0 = A; A = Asm()
    build_srds(A, True)
    spread(A0, A, x_dma(0), 8, first=8)
    A = Asm(); pack_setup(A)
    spread(A0, A, p_dma(0) + p_dma(1), 16, first=16)
    epoch_load(A0)
    A = Asm()
    common_addr(A)
    common_lane(A)
    pair_read_base(A, vPRP)
    A(f"v_add_u32 v{vPRP}, {WR}, v{vPRP}")
    A(f"v_xor_b32 v{vPRP+1}, 64, v{vPRP}")
    A(f"v_add_u32 v{vPRP+2}, 65536, v{vPRP}"); A(f"v_add_u32 v{vPRP+3}, 65536, v{vPRP+1}")
    pack_read_addr(A)
    prep_setup(A)
    phi_loads(A, False, aPH)
    spread(A0, A, pack_dma() + x_dma(1) + p_dma(2) + p_dma(3), 7, first=7)
    A = A0
    pt(A, "pro")
    S1 = OPT.get("s1p", 8); SG = OPT.get("sig1", 5); HB = OPT.get("hbp", 1)
    PW = OPT.get("pw", ((2, 3, 4, 5), (0, 1, 6), (7, 8), (9,), (10, 11)))
    steps = []
    for s in range(40):
        g, sp = divmod(s, 4)
        h = s >> 1; sl = h % 6; hi = sl >= 4
        fr = aW + 32 * (s & 1)
        rd = []
        for t in range(8):
            for rho in range(2):
                off = (sl & 3 if hi else sl) * HS + (t >> 1) * 4096 + (s & 1) * 2048 + rho * 512
                rd.append(f"ds_read_b64_tr_b16 {a(fr + 4*t + 2*rho, 2)}, v{vPRP + (t & 1) + 2*hi} offset:{off}")
        q = []
        NP = OPT.get("noprep")
        if s == 0: q += ([] if NP else cs_loads()) + p_dma(4) + pack_reads() + ([] if NP else stats_loads()) + [("WAIT:lgkm:pkr", None, 0)] + x_dma(2) + p_dma(5)
        elif HB:
            if sp in (0, 2): q += p_dma(h + 5)
            if sp == 2: q += x_dma(g + 3)
        elif sp == 0: q += x_dma(g + 2) + p_dma(h + 4) + p_dma(h + 5)
        if s == 4 and not NP: q += pack_stores() + pack_shared()
        steps.append(dict(nt=8, acc=[ACC + 16 * t for t in range(8)], first=(s == 0), xreg=aX + 16 * (g & 1) + 4 * sp, frag=fr,
                          reads=rd, chunk=h if sp == 0 or (HB and sp == 2) else None, xj=g if sp == 0 else None, queue=q,
                          tags=(["prep"] if s == 4 * SG else (["pkx"] if s == 4 else [])) + ([] if HB else [f"w{h+1}"])))
    def pre(A, c):
        if c == S1: poll_check(A, C, 1)
    def post(A, c, dq):
        pt(A, f"c{c}")
        if c == 1: A(f"v_readfirstlane_b32 s{sE}, v{vEP}")
        if c == SG: signal(A, 1)
        if c == S1 - 1: poll_issue(A)
        if c == S1:
            A = Asm()
            stats_load(A)
            for sl in range(4):
                pinfo(A, sl, sT0, sT1)
                A(f"s_lshl_b32 s{sT0}, s{sT0}, 10"); A(f"s_mul_i32 s{sT1}, s{sT1}, {-1920*16}")
                A(f"s_add_u32 s{sT0}, s{sT0}, s{sT1}"); A(f"s_add_u32 s{sT0}, s{sT0}, {CS_OFF + 1920*16}")
                for t in range(2):
                    A(f"buffer_load_dwordx4 {v(CR+8*sl+4*t,4)}, v{vCP}, {srdr(SWS)}, s{sT0} offen offset:{512*t} sc1")
            dq.add(as_queue(A), front=True)
            dq.add(wl(*PW[0]))
    M = Asm(); dq = DQ()
    gemm_steps(M, steps, 1, dq, pre, post, every=OPT.get("pevery", [1.4, 1.4, 1.6, 2]))
    dq.pop(M, 99)
    g0 = OPT.get("pw0", 30); cb = OPT.get("csbar", 5 if HB else 6)
    F = Asm(); cs_setup(F); zero_kv(F)
    ins, left = weave32(M, F, start=2, stop=25, budget=5.5); assert not left, len(left)
    FS = Asm(); stats_compute(FS)
    k = OPT.get("stk", 40)
    F = Asm(); phi_writes(F, False, aPH); cs_compute(F); F.extend(FS.ins[:k]); cs_write(F)
    ins, left = weave32(ins, F, start=g0, stop=16 * cb - 6, budget=OPT.get("pbud", 5.5)); assert not left, len(left)
    F = Asm(); cs_finish(F); F.extend(FS.ins[k:])
    ins, left = weave32(ins, F, start=16 * cb - 5, stop=32 * SG - 6, budget=OPT.get("pbud", 5.5)); assert not left
    F = Asm()
    stats_frag(F, 1)
    for t in range(8): corr_frag(F, CR + 4 * t, 1 + (t & 1))
    for sl, d in enumerate((sPKO, sPKD, sPX0, sPX1)):
        pinfo(F, sl, d, sF0)
        if sl == 0: F(f"s_mov_b32 s{sQF}, s{sF0}"); F(f"s_mul_i32 s{sF0}, s{sF0}, {74*1024}")
        F(f"s_lshl_b32 s{d}, s{d}, 11"); F(f"s_add_u32 s{d}, s{d}, s{sACT}")
        if sl == 0: F(f"s_add_u32 s{d}, s{d}, s{sF0}")
    ins, left = weave32(ins, F, start=32 * (S1 + 1) - 4, budget=5.5)
    A.extend(ins)
    pt(A, "p1end")
    A.extend(left)
    for t in range(8):
        A(f"v_mfma_f32_32x32x16_bf16 {v(ACC+16*t,16)}, {v(CR+4*t,4)}, {v(vCB,4)}, {v(ACC+16*t,16)}")
    poll_addr(A, "q", 1, 2)
    p2_addr_early(A)
    def mslot(A, sl, so, tag, ts=(0, 1)):
        for t in ts:
            for p in range(2):
                mish_pk(A, ACC + 32 * sl + 16 * t + 8 * p, 8, MT)
                pair_store(A, ACC + 32 * sl, so, tag, t, p)
    sp = OPT.get("psp", 14)
    A(f"s_cmp_eq_u32 s{sQF}, 1")
    A(f"s_cbranch_scc0 {L('noq')}")
    for t in range(2):
        for p in range(2):
            r = ACC + 16 * t + 8 * p
            for i in range(4): A(f"v_cvt_pk_bf16_f32 v{r+i}, v{r+2*i}, v{r+2*i+1}")
            pair_store(A, ACC, sPKO, "qst", t, p)
    F = Asm(); mslot(F, 1, sPKD, "stA", (0,))
    spread(A, F, wl(*PW[1][:1]), sp)
    A.wait(vm="qst"); A.g("s_barrier"); signal(A, 2)
    emit(A, wl(*PW[1][1:]))
    A(f"s_branch {L('q9')}")
    A.label(L("noq"))
    F = Asm(); mslot(F, 0, sPKO, "stA"); mslot(F, 1, sPKD, "stA", (0,))
    spread(A, F, wl(*PW[1]), sp)
    A.label(L("q9"))
    F = Asm(); mslot(F, 1, sPKD, "stA", (1,))
    poll_issue(F)
    mslot(F, 2, sPX0, "fin", (0,))
    spread(A, F, wl(*PW[2]), sp)
    A.wait(vm="stA"); A.g("s_barrier"); signal(A, 3)
    pt(A, "p2end")
    F = Asm(); mslot(F, 2, sPX0, "fin", (1,))
    spread(A, F, wl(*PW[3]), sp)
    poll_check(A, C, 2)
    p2_first_loads(A)
    pt(A, "sig2")
    A(f"s_cmp_lt_u32 s{sU}, 5")
    A(f"s_cbranch_scc1 {L('h3')}")
    emit(A, wl(*PW[4]))
    A(f"s_branch {L('h9')}")
    A.label(L("h3"))
    F = Asm(); mslot(F, 3, sPX1, "fin")
    spread(A, F, wl(*PW[4]), sp)
    A.label(L("h9"))
    pt(A, "first")
    part1_head(A)
    part1(A, [])

def phase2(A, C):
    L = C.L
    A.label(L("tail"))
    OWN = OPT.get("own", 1)
    vWL = 36
    WOB = [0, 61440, 81920, 102400, 122880]
    def wdma(g):
        o = [(f"s_add_u32 m0, s{sWB}, {WOB[g]}", None, 0), (f"s_add_u32 s{sXD}, s{sPV}, {5120*g}", None, 0)]
        for nt in range(5):
            if nt == 4: o.append((f"s_add_u32 m0, s{sWB}, {WOB[g] + 4096}", None, 0))
            o.append((f"buffer_load_dwordx4 v{vW+(nt>>2)}, {srdr(SWS)}, s{sXD} offen offset:{1024*(nt&3)} sc1 lds", f"WL{g}", 1))
        return o
    EX = [a(240,4), a(244,4), a(248,4), a(252,4), v(100,4), v(104,4), v(108,4), v(40,4), v(80,4), v(84,4)] + [v(44+4*i,4) for i in range(5)]
    def wo(j, nt):
        if j < 9: return a(slot(2 + j) + 4 * nt, 4)
        if j < 12: return EX[5 * (j - 9) + nt]
        if j < 15: return a(slot(j - 1) + 4 * nt, 4)
        return a(slot(j - 13) + 4 * nt, 4)
    def wrd(j, nt):
        g, w = j >> 2, j & 3
        b, off = (vW, 0) if g == 0 else (vWL + (g >= 3), WOB[g] - (61440 if g < 3 else 102400))
        return (f"ds_read_b128 {wo(j,nt)}, v{b} offset:{off + 5120*w + 1024*nt}", None, 1)
    def place(e, lst, gaps):
        k = 0
        for x in lst:
            e.setdefault(gaps[k], []).append(x)
            k += x[2]
        return e
    LW = OPT.get("lw", {-1: (0,), 2: (1,), 3: (2,), 4: (3, 4)})
    NP = OPT.get("na", 2) + OPT.get("nb", 2) - 1 + OPT.get("p2steps", 1)
    SG = NP + 1 + OPT.get("osig", 0)
    RS = {}
    EARLY = [g for n in LW for g in LW[n] if n < OPT.get("na", 2)]
    LS = {g: n for n in LW for g in LW[n]}
    LATE = [g for g in range(5) if LS[g] > NP]
    assert LS[0] <= NP and LS[1] <= NP and max(LW) <= 10
    def plan_reads():
        todo = [j for j in list(range(8)) + [9, 10, 11] if (j >> 2) not in LATE]
        q = [(j, nt) for j in todo for nt in range(5)]
        for n in range(NP + 1, 11):
            ok = [x for x in q if ((x[0] >> 2) in EARLY or n > SG) and (x[0] > 8 or x[0] + 2 < n)]
            cap = len(ok) if n == 10 else min(len(ok), -(-len(q) // (11 - n)) + OPT.get("rsx", 0))
            RS[n] = [wrd(*x) for x in ok[:cap]]
            q = [x for x in q if x not in ok[:cap]]
        assert not q
    plan_reads()
    XH = [32, 33, 34, 35, 20, 21, 22, 23, 98, 99]
    def step(M, n, extra, order=range(4)):
        if OWN:
            for gi, k in enumerate(order):
                for nt in range(5):
                    d = v(ACCO + 4 * (5 * k + nt), 4)
                    M(f"v_mfma_f32_16x16x32_bf16 {d}, {a(slot(n)+4*nt,4)}, {v(ACT + 16 * (n % 4) + 4 * k, 4)}, {'0' if n == 0 else d}")
                    emit(M, extra.get(5 * gi + nt, []))
                if n + 4 < 14: emit(M, act_load(n + 4, k))
            return
        for k in range(4):
            b = v(ACT + 16 * (n % 4) + 4 * k, 4) if n < 14 else a(aO + 16 * (n - 14) + 4 * k, 4)
            for nt in range(5):
                d = v(ACCO + 4 * (5 * k + nt), 4)
                M(f"v_mfma_f32_16x16x32_bf16 {d}, {a(slot(n)+4*nt,4)}, {b}, {'0' if n == 0 else d}")
                emit(M, extra.get(5 * k + nt, []))
            if n + 4 < 14: emit(M, act_load(n + 4, k))
    def wext(n):
        e = {}
        if 1 <= n and n + 11 <= (13 if OWN else 18):
            lst = w2p_loads(n + 11)
            k = 0
            for x in lst:
                e.setdefault(1 + 4 * k, []).append(x)
                k += x[2]
        if OWN:
            gs = LW.get(n, ())
            if gs: place(e, sum((wdma(g) for g in gs), []), [(20 * i) // (5 * len(gs)) + (2 if len(gs) == 1 else 0) for i in range(5 * len(gs))])
            rd = RS.get(n, [])
            if rd: place(e, rd, [(17 * i) // len(rd) for i in range(len(rd))])
            if n == 9:
                for i in range(10):
                    e.setdefault(2 * i, []).append((f"v_and_b32 v{XH[i]}, 0xffff0000, v{XRS+i}", None, 0))
                    e.setdefault(2 * i + 1, []).append((f"v_lshlrev_b32 v{XRS+i}, 16, v{XRS+i}", None, 0))
        return e
    A.wait(vm="fin"); A("s_barrier"); signal(A, 4)
    pt(A, "fin")
    poll_check(A, C, 3)
    F = Asm()
    poll_addr(F, "kvp", 1, 2)
    F(f"v_lshlrev_b32 v{vKA}, 4, v{vTID}")
    for j in range(1, 4): F(f"v_add_u32 v{vKA+j}, {4096*j}, v{vKA}")
    if OWN:
        F(f"s_mul_i32 s{sWB}, s{sWAVE}, 5120"); F(f"v_add_u32 v{vWL}, 61440, v{vW}"); F(f"v_add_u32 v{vWL+1}, 102400, v{vW}")
    spread(A, F, sum((act_load(n, k) for n in range(4) for k in range(4)), []), 2, first=2)
    if OWN: emit(A, sum((wdma(g) for g in LW.get(-1, ())), []))
    pt(A, "part1")
    NA = OPT.get("na", 2); NB = OPT.get("nb", 2)
    assert NA <= 3
    kq = OPT.get("kvpoll", 1)
    if kq == 0: poll_issue(A)
    for n in range(NA):
        step(A, n, wext(n))
        if kq == n + 1: poll_issue(A)
    poll_check(A, C, 4)
    pt(A, "kvchk")
    A(f"s_mul_i32 s{sP0}, s{sC}, {4*KVH}"); A(f"s_add_u32 s{sP0}, s{sP0}, {KV_OFF}"); A(f"s_add_u32 s{sP1}, s{sP0}, {KVC}")
    for j in range(4):
        A(f"buffer_load_dwordx4 {v(KVR+4*j,4)}, v{vKA+j}, {srdr(SWS)}, s{sP0} offen sc1")
        A(f"buffer_load_dwordx4 {v(NU+4*j,4)}, v{vKA+j}, {srdr(SWS)}, s{sP1} offen sc1")
    F = Asm()
    F(f"s_lshr_b32 s{sT0}, s{sC}, 1"); F(f"s_mul_i32 s{sT0}, s{sT0}, 5"); F(f"s_add_u32 s{sT0}, s{sT0}, 54"); F(f"s_lshl_b32 s{sT0}, s{sT0}, 10")
    F(f"s_mul_i32 s{sT1}, s{sWAVE}, {ACT_BLK}"); F(f"s_add_u32 s{sT0}, s{sT0}, s{sT1}"); F(f"s_add_u32 s{sT0}, s{sT0}, s{sAB}")
    F(f"s_and_b32 s{sT1}, s{sC}, 1"); F(f"s_lshl_b32 s{sT2}, s{sT1}, 11"); F(f"s_add_u32 s{sT2}, s{sT2}, s{sT0}")
    F(f"s_lshl_b32 s{sT1}, s{sT1}, 9"); F(f"s_add_u32 s{sT1}, s{sT1}, s{sT0}"); F(f"s_add_u32 s{sT1}, s{sT1}, 4096")
    F("v_lshrrev_b32 v3, 5, v0"); F("v_lshlrev_b32 v3, 8, v3"); F("v_and_b32 v4, 15, v0"); F("v_lshl_add_u32 v3, v4, 4, v3")
    F("v_bfe_u32 v4, v0, 4, 1"); F(f"v_lshl_add_u32 v{vOA}, v4, 3, v3")
    F(f"v_lshlrev_b32 v2, 3, v{vTID}"); F(f"v_add_u32 v2, {KVI}, v2")
    OPF = OPT.get("opf", 0)
    if OPF:
        F(f"v_min_u32 v{vQA}, 19, v0"); F(f"v_lshlrev_b32 v{vQA}, 7, v{vQA}")
        F(f"s_sub_u32 s{sT3}, s{sT1}, 2048"); F(f"v_mov_b32 v{vQA+1}, s{sT2}"); F(f"v_mov_b32 v{vQA+2}, s{sT3}")
        F("v_cmp_gt_u32 vcc, 16, v0"); F.g(f"v_cndmask_b32 v{vQA+1}, v{vQA+2}, v{vQA+1}, vcc")
        F(f"v_add_u32 v{vQA}, v{vQA}, v{vQA+1}")
    n0 = NA + NB - 1
    M = Asm()
    for n in range(NA, NA + NB): step(M, n, wext(n))
    ins, left = weave(M, F, per=2)
    KVW = OPT.get("kvw", 26)
    G = Asm()
    for j in range(4):
        if KVW:
            for c in range(4): G(f"v_add_f32 v{KVR+4*j+c}, v{KVR+4*j+c}, v{NU+4*j+c}")
        else:
            for h in range(2): G(f"v_pk_add_f32 {v(KVR+4*j+2*h,2)}, {v(KVR+4*j+2*h,2)}, {v(NU+4*j+2*h,2)}")
        G(f"v_cvt_pk_bf16_f32 v{KVR+4*j}, v{KVR+4*j}, v{KVR+4*j+1}")
        G(f"v_cvt_pk_bf16_f32 v{KVR+4*j+1}, v{KVR+4*j+2}, v{KVR+4*j+3}")
        G(f"ds_write_b64 v2, {v(KVR+4*j,2)} offset:{2048*j}")
    if KVW:
        assert not left
        ins, left = weave(ins, G, start=KVW, per=OPT.get("kvwp", 2)); A.extend(ins); A.extend(left)
    else:
        A.extend(ins); A.extend(left); A.extend(G)
    A.wait(lgkm="all")
    A("s_barrier")
    pt(A, "stage")
    F = Asm()
    seq2 = [(st, ch) for st in range(5) for ch in range(6)]
    def krd(n):
        st, ch = seq2[n]
        for rho in range(2):
            F(f"ds_read_b64_tr_b16 {reg(n,2*rho,2)}, v{vF2} offset:{(8*st+4*rho)*48+ch*8}")
    for n in range(7): krd(n)
    for n in range(30):
        st, ch = seq2[n]
        d = v(NU + 4 * ch, 4)
        F(f"v_mfma_f32_16x16x32_bf16 {d}, {reg(n,0,4)}, {v(PK2+4*st,4)}, {'0' if st == 0 else d}")
        if n + 7 < 30: krd(n + 7)
    F(f"v_add_f32 v1, 0x358637bd, v{NU+20}"); F("v_rcp_f32 v1, v1"); F(f"v_mul_f32 v1, {hex(LOG2E)}, v1")
    for i in range(10):
        F(f"v_mul_f32 v{NU+2*i}, v{NU+2*i}, v1"); F(f"v_mul_f32 v{NU+2*i+1}, v{NU+2*i+1}, v1")
        F(f"v_cvt_pk_bf16_f32 v{NU+i}, v{NU+2*i}, v{NU+2*i+1}")
    F(f"buffer_store_dwordx4 {v(NU,4)}, v{vW}, {srdr(SWS)}, s{sT2} offen sc1", "ost")
    F(f"buffer_store_dwordx4 {v(NU+4,4)}, v{vW}, {srdr(SWS)}, s{sT2} offen offset:1024 sc1", "ost")
    F(f"buffer_store_dwordx2 {v(NU+8,2)}, v{vOA}, {srdr(SWS)}, s{sT1} offen sc1", "ost")
    M = Asm()
    P2 = OPT.get("p2steps", 1)
    for n in range(n0 + 1, n0 + 1 + P2): step(M, n, wext(n))
    tot = sum((2 if x.cls == "mfma" else x.cost) for x in F.ins)
    if P2: ins, left = weave(M, F, per=tot / (20 * P2) + 0.05); A.extend(ins); A.extend(left)
    else: A.extend(F)
    pt(A, "part2")
    n1 = n0 + 1 + P2
    F = Asm()
    poll_addr(F, "o", 1, 2)
    F("v_and_b32 v1, 15, v0"); F(f"s_lshl_b32 s{sT0}, s{sWAVE}, 4"); F(f"v_add_u32 v1, s{sT0}, v1"); F("v_mul_u32_u24 v1, 1280, v1")
    F("v_lshrrev_b32 v2, 4, v0"); F(f"v_lshl_add_u32 v{vXO}, v2, 4, v1"); F(f"v_lshl_add_u32 v{vXO+1}, v2, 3, v1")
    F(f"s_mul_i32 s{sXO}, s{sR}, {64*1280}"); F(f"s_mul_i32 s{sT0}, s{sC}, 160"); F(f"s_add_u32 s{sXO}, s{sXO}, s{sT0}")
    for k in range(1, 4):
        F(f"s_add_u32 s{sT0}, s{sWAVE}, {k}"); F(f"s_and_b32 s{sT0}, s{sT0}, 3"); F(f"s_mul_i32 s{sT0}, s{sT0}, 15360")
        F(f"s_add_u32 s{sT0}, s{sT0}, {RED + (k-1)*5120}"); F(f"v_add_u32 v{vRW+k-1}, s{sT0}, v{vW}")
    F(f"s_mul_i32 s{sT0}, s{sWAVE}, 15360"); F(f"v_add_u32 v{vRR}, s{sT0}, v{vW}")
    F(f"buffer_load_dwordx4 {v(XRS,4)}, v{vXO}, {srdr(SX)}, s{sXO} offen")
    F(f"buffer_load_dwordx4 {v(XRS+4,4)}, v{vXO}, {srdr(SX)}, s{sXO} offen offset:64")
    F(f"buffer_load_dwordx2 {v(XRS+8,2)}, v{vXO+1}, {srdr(SX)}, s{sXO} offen offset:128")
    M = Asm()
    SIG = n1 + OPT.get("osig", 0); POLL = OPT.get("opoll", 10)
    ol = [(f"buffer_load_dwordx4 {a(aO+16*i+4*k,4)}, v{vA+k}, {srdr(SWS)}, s{sA if i < 4 else sP1} offen offset:{1024*(i&3)} sc1", None, 1)
          for i in range(5) for k in range(4)]
    KM = OPT.get("kmaj", 1)
    if KM: ol = [ol[4 * i + k] for k in (1, 2, 3, 0) for i in range(5)]
    osp = OPT.get("osp", 4); o0 = OPT.get("o0", 2)
    O13 = (1, 2, 3, 0)
    def oreg(j):
        if j < 4: return 64 + 4 * j
        if j < 8: return ACT + 32 + 4 * (j & 3)
        return ACT + 16 * ((11 + (j - 8) % 3) % 4) + 4 * O13[(j - 8) // 3]
    def ow(k, nt): return (f"ds_write_b128 v{vRW+k-1}, {v(ACCO+4*(5*k+nt),4)} offset:{1024*nt}", None, 1)
    rw = [ow(k, nt) for k in (1, 2, 3) for nt in range(5)]
    wsp = OPT.get("wsp", 3)
    wg = [int(17 + wsp * i) for i in range(15)]
    if OWN:
        assert POLL == 10 and n0 + P2 == NP and SIG == SG
        ol = [(f"buffer_load_dwordx4 {v(oreg(j),4)}, v{vA+(j&3)}, {srdr(SWS)}, s{sA if j < 16 else sP1} offen offset:{1024*((j>>2)&3)} sc1", None, 1)
              for j in range(20)]
        og = {}; g = osp - 1
        for j in range(o0, 20):
            g = max(g, 0 if j < 8 else 5 * (j - 8) + 4)
            og.setdefault(int(g), []).append(ol[j]); g += osp
        del ol[o0:]
    for n in range(n1, 14):
        e = wext(n)
        if OWN:
            if n > POLL:
                if n > 11: continue
                w8 = [wrd(8, nt) for nt in range(5)]
                for g in range(60):
                    k = O13[g // 15]; m = 11 + (g % 15) // 5; nt = g % 5
                    d = v(ACCO + 4 * (5 * k + nt), 4)
                    M(f"v_mfma_f32_16x16x32_bf16 {d}, {a(slot(m)+4*nt,4)}, {v(ACT + 16 * (m % 4) + 4 * k, 4)}, {d}")
                    emit(M, og.get(g, []))
                    if g < 15 and g % 3 == 0: emit1(M, w8.pop(0))
                    if g in wg: emit1(M, rw.pop(0))
                continue
            step(M, n, e)
            if n == SIG:
                M.wait(vm=["ost"] + [f"WL{g}" for g in range(5) if g not in LATE]); M("s_barrier"); signal(M, 5)
                pt(M, "osig")
            if n == OPT.get("opi", SG + 2): poll_issue(M)
            if n == POLL:
                M(f"s_add_u32 s{sA}, s{sAB}, {54*1024}")
                for k in range(1, 4): M(f"v_add_u32 v{vA+k}, {5120*k}, v{vA}")
                poll_check(M, C, 5)
                M(f"s_add_u32 s{sP1}, s{sA}, 4096")
                emit(M, ol); del ol[:]
                if 2 in LATE: M.wait(vm="WL2")
                M.wait(lgkm="all"); M("s_barrier")
                pt(M, "ochk")
            continue
        if n > POLL:
            for g in range(20):
                if (20 * (n - POLL - 1) + g) % osp == osp - 1 and ol: e.setdefault(g, []).append(ol.pop(0))
        step(M, n, e)
        if n == SIG:
            M.wait(vm="ost")
            if OPF == 1: M.g(f"buffer_load_dword v{vQA+1}, v{vQA}, {srdr(SWS)}, 0 offen sc1")
            M("s_barrier"); signal(M, 5)
            if OPF == 2: M(f"buffer_load_dword v{vQA+1}, v{vQA}, {srdr(SWS)}, 0 offen sc1")
            pt(M, "osig")
        if n == POLL - 1: poll_issue(M)
        if n == POLL:
            poll_check(M, C, 5)
            pt(M, "ochk")
            M(f"s_mul_i32 s{sA}, s{sWAVE}, 5120"); M(f"s_add_u32 s{sA}, s{sA}, s{sAB}"); M(f"s_add_u32 s{sA}, s{sA}, {54*1024}")
            M(f"s_add_u32 s{sP1}, s{sA}, 4096")
            emit(M, ol[:o0]); del ol[:o0]
    emit(M, ol)
    ins, left = weave(M, F, per=2); A.extend(ins); assert not left
    pt(A, "s13")
    if OWN:
        A(f"s_mov_b32 s{sT0}, {hex(LN2)}"); A(f"s_mov_b32 s{sT0+1}, {hex(LN2)}")
        RB = ACCO + 20
        rr = [(f"ds_read_b128 {v(RB+12*nt+4*sl,4)}, v{vRR} offset:{sl*5120+nt*1024}", None, 1) for nt in range(5) for sl in range(3)]
        post = rr + [wrd(j, nt) for j in range(9 if 2 in LATE else 12, 20) for nt in range(5)]
        fs = []
        for nt in range(5):
            b = RB + 12 * nt
            for c in range(4): fs.append(f"v_add_f32 v{b+c}, v{b+c}, v{b+4+c}")
            for c in range(4): fs.append(f"v_add_f32 v{b+c}, v{b+c}, v{b+8+c}")
            for c in range(4):
                x = XH[2 * nt + c // 2] if c & 1 else XRS + 2 * nt + c // 2
                fs.append(f"v_fma_f32 v{b+4+c}, v{b+c}, s{sT0}, v{x}")
        bar = max(wg[-1] - 59, 0) + OPT.get("bard", 2); fst = OPT.get("fst", 12); rend = OPT.get("rend", 84); np_ = len(post)
        for q in range(100):
            j, nt = divmod(q, 5)
            d = v(ACCO + 4 * nt, 4)
            A(f"v_mfma_f32_16x16x32_bf16 {d}, {wo(j,nt)}, {v(oreg(j),4)}, {d}")
            emit(A, og.get(60 + q, []))
            if 60 + q in wg: emit1(A, rw.pop(0))
            if q == bar: A.wait(vm=[f"WL{g}" for g in range(5)], lgkm="all"); A("s_barrier"); pt(A, "red")
            if q >= bar:
                while post and (q < bar + 15 and np_ - len(post) <= q - bar or np_ - len(post) - 15 <= (q - bar - 15) * (np_ - 15) / (rend - bar - 15) and q >= bar + 15):
                    emit1(A, post.pop(0))
                if q >= bar + fst and fs: A(fs.pop(0))
            if q == 49: pt(A, "b0a")
        assert not post and not fs and not rw
        pt(A, "b0")
        for nt in range(5):
            o = ACCO + 4 * nt
            for h in range(2):
                A(f"v_pk_fma_f32 {v(o+2*h,2)}, {v(o+2*h,2)}, s[{sT0}:{sT0+1}], {v(RB+12*nt+4+2*h,2)}")
            for h in range(2):
                A(f"v_cvt_pk_bf16_f32 v{64+2*nt+h}, v{o+2*h}, v{o+2*h+1}")
            if nt == 1: A(f"buffer_store_dwordx4 {v(64,4)}, v{vXO}, {srdr(SOUT)}, s{sXO} offen")
            if nt == 3: A(f"buffer_store_dwordx4 {v(68,4)}, v{vXO}, {srdr(SOUT)}, s{sXO} offen offset:64")
            if nt == 4: A(f"buffer_store_dwordx2 {v(72,2)}, v{vXO+1}, {srdr(SOUT)}, s{sXO} offen offset:128")
    elif KM:
        def om(k, n, nt):
            d = v(ACCO + 4 * (5 * k + nt), 4)
            A(f"v_mfma_f32_16x16x32_bf16 {d}, {a(slot(n)+4*nt,4)}, {a(aO+16*(n-14)+4*k,4)}, {d}")
        def ow(k, nt): A(f"ds_write_b128 v{vRW+k-1}, {v(ACCO+4*(5*k+nt),4)} offset:{1024*nt}")
        A(f"s_mov_b32 s{sT0}, {hex(LN2)}"); A(f"s_mov_b32 s{sT0+1}, {hex(LN2)}")
        xs = []
        for i in range(10):
            xs += [f"v_lshlrev_b32 v{44+2*i}, 16, v{XRS+i}", f"v_and_b32 v{45+2*i}, 0xffff0000, v{XRS+i}"]
        for k in (1, 2, 3):
            for n in range(14, 19):
                for nt in range(5):
                    om(k, n, nt)
                    if k > 1 and n == 14 and nt >= 2: ow(k - 1, nt - 2)
                    if k > 1 and n == 15 and nt < 2: ow(k - 1, nt + 3)
                    if n >= 16 and xs: A(xs.pop(0))
                if k == 1 and n == 14: pt(A, "b1a")
            pt(A, f"b{k}")
        NB0 = OPT.get("nb0", 0)
        for n in range(14, 14 + NB0):
            for nt in range(5):
                om(0, n, nt)
                if n == 14 and nt >= 2: ow(3, nt - 2)
        for nt in range(3 if NB0 else 0, 5): ow(3, nt)
        A.wait(lgkm="all")
        A("s_barrier")
        pt(A, "red")
        for nt in range(5):
            for sl in range(3):
                A(f"ds_read_b128 {v(ACT+12*nt+4*sl,4)}, v{vRR} offset:{sl*5120+nt*1024}")
        fs = []
        for nt in range(5):
            b = ACT + 12 * nt
            for h in range(2): fs.append(f"v_pk_add_f32 {v(b+2*h,2)}, {v(b+2*h,2)}, {v(b+4+2*h,2)}")
            for h in range(2): fs.append(f"v_pk_add_f32 {v(b+2*h,2)}, {v(b+2*h,2)}, {v(b+8+2*h,2)}")
            for h in range(2): fs.append(f"v_pk_fma_f32 {v(44+4*nt+2*h,2)}, {v(b+2*h,2)}, s[{sT0}:{sT0+1}], {v(44+4*nt+2*h,2)}")
        for n in range(14 + NB0, 18):
            for nt in range(5): om(0, n, nt)
        pt(A, "b0a")
        for x in fs: A(x)
        for nt in range(5): om(0, 18, nt)
        pt(A, "b0")
        for nt in range(5):
            o = ACCO + 4 * nt
            for h in range(2):
                A(f"v_pk_fma_f32 {v(o+2*h,2)}, {v(o+2*h,2)}, s[{sT0}:{sT0+1}], {v(44+4*nt+2*h,2)}")
            for h in range(2):
                A(f"v_cvt_pk_bf16_f32 v{64+2*nt+h}, v{o+2*h}, v{o+2*h+1}")
            if nt == 1: A(f"buffer_store_dwordx4 {v(64,4)}, v{vXO}, {srdr(SOUT)}, s{sXO} offen")
            if nt == 3: A(f"buffer_store_dwordx4 {v(68,4)}, v{vXO}, {srdr(SOUT)}, s{sXO} offen offset:64")
            if nt == 4: A(f"buffer_store_dwordx2 {v(72,2)}, v{vXO+1}, {srdr(SOUT)}, s{sXO} offen offset:128")
    else:
        for n in range(14, 18): step(A, n, {})
        n = 18
        order = [1, 2, 3, 0]
        for idx, k in enumerate(order):
            for nt in range(5):
                d = v(ACCO + 4 * (5 * k + nt), 4)
                A(f"v_mfma_f32_16x16x32_bf16 {d}, {a(slot(n)+4*nt,4)}, {a(aO+64+4*k,4)}, {d}")
                if idx >= 2 or (idx == 1 and nt >= 2):
                    j = 5 * (idx - 1) + nt - 2
                    kk = order[j // 5]
                    A(f"ds_write_b128 v{vRW+kk-1}, {v(ACCO+4*(5*kk+j%5),4)} offset:{1024*(j%5)}")
        for j in range(13, 15):
            A(f"ds_write_b128 v{vRW+2}, {v(ACCO+4*(15+j%5),4)} offset:{1024*(j%5)}")
        XF = 100
        A(f"s_mov_b32 s{sT0}, {hex(LN2)}"); A(f"s_mov_b32 s{sT0+1}, {hex(LN2)}")
        for i in range(10):
            A(f"v_lshlrev_b32 v{44+2*i}, 16, v{XRS+i}"); A(f"v_and_b32 v{45+2*i}, 0xffff0000, v{XRS+i}")
        A.wait(lgkm="all")
        A("s_barrier")
        pt(A, "red")
        for nt in range(5):
            for sl in range(3):
                A(f"ds_read_b128 {v(ACT+12*nt+4*sl,4)}, v{vRR} offset:{sl*5120+nt*1024}")
        for nt in range(5):
            b = ACT + 12 * nt; o = ACCO + 4 * nt
            for h in range(2):
                A(f"v_pk_add_f32 {v(o+2*h,2)}, {v(o+2*h,2)}, {v(b+2*h,2)}")
                A(f"v_pk_add_f32 {v(b+4+2*h,2)}, {v(b+4+2*h,2)}, {v(b+8+2*h,2)}")
            for h in range(2):
                A(f"v_pk_add_f32 {v(o+2*h,2)}, {v(o+2*h,2)}, {v(b+4+2*h,2)}")
            for h in range(2):
                A(f"v_pk_fma_f32 {v(o+2*h,2)}, {v(o+2*h,2)}, s[{sT0}:{sT0+1}], {v(44+4*nt+2*h,2)}")
            for h in range(2):
                A(f"v_cvt_pk_bf16_f32 v{64+2*nt+h}, v{o+2*h}, v{o+2*h+1}")
            if nt == 1: A(f"buffer_store_dwordx4 {v(64,4)}, v{vXO}, {srdr(SOUT)}, s{sXO} offen")
            if nt == 3: A(f"buffer_store_dwordx4 {v(68,4)}, v{vXO}, {srdr(SOUT)}, s{sXO} offen offset:64")
            if nt == 4: A(f"buffer_store_dwordx2 {v(72,2)}, v{vXO+1}, {srdr(SOUT)}, s{sXO} offen offset:128")
    A(f"s_add_u32 s{sP0}, s{sE}, 16"); A(f"v_mov_b32 v1, s{sP0}")
    A(f"s_cmp_eq_u32 s2, 0"); A(f"s_cselect_b32 s{sP1}, 0, {hex(OOB)}")
    A(f"v_subrev_u32 v2, {FLG_OFF}, v{vFL}")
    A(f"buffer_store_dword v1, v2, {srdr(SWS)}, s{sP1} offen sc1")
    prof_flush(A, 0, SWS, sWAVE)

OPT = {}
DEFST = ["p1end", "p2end", "first", "fin", "kvchk", "stage", "part2", "osig", "ochk", "s13"]
def pt(A, name):
    L = OPT.get("stamps", DEFST)
    if name in L: stamp(A, 2 + L.index(name))

def gen(name=MAIN, **opt):
    OPT.clear(); OPT.update(opt)
    C = Ctx("f")
    A = Asm()
    prologue(A, C)
    role_kv(A, C)
    role_p(A, C)
    phase2(A, C)
    A("s_endpgm")
    A.extend(C.spins)
    A.label(C.L("end"))
    A("s_endpgm")
    return dict(name=name, ins=render(finalize(A)), grid=256, block=256, lds=LDSZ, vgpr=512, accum=256)

if __name__ == "__main__":
    for P in range(320): assert (P * 3277) >> 16 == P // 20 and (P * 6554) >> 16 == P // 10
    for P in range(20): assert (P * 13108) >> 16 == P // 5 and (P * 52) >> 8 == P // 5
    for P in range(1024): assert (P * 10923) >> 16 == P // 6
    open("g_test.s", "w").write(build_file([gen()]))
    PROF["on"] = True
    st = sys.argv[1].split(",") if len(sys.argv) > 1 and sys.argv[1] != "-" else DEFST
    if st == ["C"]: st = [f"c{i}" for i in range(10)]
    opt = eval("dict(" + sys.argv[2] + ")") if len(sys.argv) > 2 else {}
    open(sys.argv[3] if len(sys.argv) > 3 else "g_prof.s", "w").write(build_file([gen(stamps=st, **opt)]))
    if len(sys.argv) > 4:
        PROF["on"] = False
        open(sys.argv[4], "w").write(build_file([gen(**opt)]))
```

```python
from common import *
import common, sys

E_OFF = 0; FLG_OFF = 0x1000; W2P_OFF = 0x20000; ACT_OFF = 0x320000; ACT_BLK = 94 * 1024
KV_OFF = 0xEE0000; ST_OFF = 0xF20000; CS_OFF = 0xF30000
KVH = 3840; KVC = 32 * KVH
common.PROF_OFF = 0xF80000
XW = 13312; WR = 4 * XW; XR = 86016; SPARE = 151552
HS = 16384
PHI2 = SPARE; PZERO = SPARE + 3840; PHI1 = SPARE + 5760; PKX = SPARE + 5760; CSR = SPARE + 10880
PHIK = XR; VIM = XR + 40960; KVI = 20480; RED = 0
LDSZ = 163840
sWAVE = 3
SX, SWA, SWB, SWS, SB1, SPH, SOUT, SPK, SCS = 24, 28, 32, 36, 40, 44, 48, 52, 56
sM, sU, sR, sC, sE, sXO, sXM, sWB = 60, 61, 62, 63, 64, 65, 66, 67
sT0, sT1, sT2, sT3 = 68, 69, 70, 71
sWO, sWS, sACT, sA, sW, sAB = 4, 5, 6, 7, 8, 9
sEX = 10
sPKO, sPKD, sQF, sCS3, sB3, sACT3, sP0, sP1 = 12, 13, 14, 15, 16, 17, 18, 19
sPC = 100
sX1, sXD = 20, 21
sWT = 22; sPV = 23
sF0, sF1 = 0, 1
sSTO, sCSO, sCSP, sPX0, sPX1, sWQ, sCSL = 7, 9, 15, 16, 17, 12, 22
vTID, vFL, vPOLL, vPA, vW = 8, 9, 10, 11, 12
vPT = 14
vXD = 16; vXRD = 20
vAD = 24; vPD = 29; vAR = 34; vPR = 36
vP1 = 24; vPX = 28; vPRP = 32; vCSA = 36
vSA = 15; vCL = 54
vAST = 44; vS1 = 45; vRS = 46; vCP = 47; vCB = 48; vST = 52; vEP = 55
vQC = 56
aX = 224; aW = 160; aF = 240

def srdr(n): return f"s[{n}:{n+3}]"
def slot(n): return 20 * ((n + 10) % 12)

def csel(A, dst, x, y):
    A(f"s_mov_b32 s{dst}, {y}"); A(f"s_cselect_b32 s{dst}, {x}, s{dst}")

class Ctx:
    def __init__(self, name):
        self.name = name; self.spins = Asm(); self.n = 0
    def L(self, x): return f"{self.name}_{x}"

def signal(A, level):
    A(f"s_add_u32 s{sP0}, s{sE}, {level}")
    A(f"v_mov_b32 v{vPT}, s{sP0}")
    A(f"buffer_store_dword v{vPT}, v{vFL}, {srdr(SWS)}, 0 offen sc1", "flag")

def poll_issue(A):
    A(f"buffer_load_dword v{vPOLL}, v{vPA}, {srdr(SWS)}, 0 offen sc1", "poll")

def poll_check(A, C, level):
    C.n += 1
    k = C.n
    A(f"s_add_u32 s{sP0}, s{sE}, {level}")
    A.g(f"v_subrev_u32 v{vPT}, s{sP0}, v{vPOLL}")
    A.g(f"v_cmp_gt_u32_e64 s[{sPC}:{sPC+1}], 8, v{vPT}")
    A.g(f"s_cmp_eq_u64 s[{sPC}:{sPC+1}], -1")
    A.g(f"s_cbranch_scc0 {C.L(f'spin{k}')}")
    A.label(C.L(f"back{k}")); A.ins[-1].glue = True
    S = C.spins
    S.label(C.L(f"spin{k}"))
    S(f"s_mov_b32 s{sP1}, 0")
    S.label(C.L(f"loop{k}"))
    poll_issue(S)
    S(f"s_add_u32 s{sP1}, s{sP1}, 1")
    S(f"s_cmp_gt_u32 s{sP1}, 0x8000")
    S(f"s_cbranch_scc1 {C.L(f'back{k}')}")
    S(f"v_subrev_u32 v{vPT}, s{sP0}, v{vPOLL}")
    S(f"v_cmp_gt_u32_e64 s[{sPC}:{sPC+1}], 8, v{vPT}")
    S(f"s_cmp_eq_u64 s[{sPC}:{sPC+1}], -1")
    S(f"s_cbranch_scc0 {C.L(f'loop{k}')}")
    S(f"s_branch {C.L(f'back{k}')}")

def poll_addr(A, kind, t0, t1):
    if kind == "all":
        A(f"v_and_b32 v{vPA}, 127, v{vTID}"); A(f"v_lshlrev_b32 v{vPA}, 8, v{vPA}")
        A(f"v_add_u32 v{vPA}, {FLG_OFF + 128*256}, v{vPA}")
        return
    if kind == "grp":
        A(f"s_lshr_b32 s{sF0}, s{sR}, 4"); A(f"s_lshl_b32 s{sF0}, s{sF0}, 2")
        A(f"s_bfe_u32 s{sF1}, s{sR}, 0x30001"); A(f"s_lshl_b32 s{sF1}, s{sF1}, 3")
        A(f"v_bfe_u32 v{t0}, v0, 2, 2"); A(f"v_and_b32 v{t1}, 3, v0")
        A(f"v_lshl_add_u32 v{t0}, v{t0}, 6, v{t1}")
    elif kind in ("pgrp", "q"):
        A(f"s_lshr_b32 s{sF0}, s{sR}, 4"); A(f"s_lshl_b32 s{sF0}, s{sF0}, 2")
        A(f"s_bfe_u32 s{sF1}, s{sR}, 0x30001"); A(f"s_lshl_b32 s{sF1}, s{sF1}, 3")
        A(f"s_add_u32 s{sF0}, s{sF0}, s{sF1}")
        if kind == "pgrp":
            A(f"s_mov_b32 s{sF1}, 128")
            A(f"v_bfe_u32 v{t0}, v0, 2, 1"); A(f"v_and_b32 v{t1}, 3, v0")
        else:
            A(f"s_mul_i32 s{sF1}, s{sC}, 5"); A(f"s_lshr_b32 s{sF1}, s{sF1}, 2")
            A(f"v_and_b32 v{t0}, 1, v0"); A(f"v_add_u32 v{t0}, s{sF1}, v{t0}")
            A(f"v_lshrrev_b32 v{vPA}, 3, v{t0}"); A(f"v_bfe_u32 v{t1}, v{t0}, 1, 2"); A(f"v_and_b32 v{t0}, 1, v{t0}")
            A(f"v_lshl_add_u32 v{t0}, v{vPA}, 1, v{t0}")
            A(f"s_mov_b32 s{sF1}, 0")
        A(f"v_lshl_add_u32 v{t0}, v{t0}, 6, v{t1}")
    elif kind == "kvp":
        A(f"s_and_b32 s{sF0}, s{sC}, 1"); A(f"s_lshl_b32 s{sF0}, s{sF0}, 6")
        A(f"s_lshr_b32 s{sF1}, s{sC}, 1")
        A(f"s_add_u32 s{sF0}, s{sF0}, s{sF1}"); A(f"s_lshl_b32 s{sF0}, s{sF0}, 8"); A(f"s_add_u32 s{sF0}, s{sF0}, {FLG_OFF}")
        A(f"v_and_b32 v{t0}, 15, v0")
        A(f"v_lshl_add_u32 v{t0}, v{t0}, 10, s{sF0}")
        A("v_cmp_gt_u32 vcc, 32, v0"); A.g(f"v_cndmask_b32 v{vPA}, v{vPA}, v{t0}, vcc")
        return
    elif kind == "o":
        A(f"s_and_b32 s{sF0}, s{sR}, 7"); A(f"s_lshl_b32 s{sF0}, s{sF0}, 5")
        A(f"s_lshr_b32 s{sF1}, s{sR}, 3"); A(f"s_lshl_b32 s{sF1}, s{sF1}, 1")
        A(f"v_bfe_u32 v{t0}, v0, 1, 2"); A(f"v_and_b32 v{t1}, 1, v0")
        A(f"v_lshl_add_u32 v{t0}, v{t0}, 3, v{t1}")
    A(f"s_add_u32 s{sF0}, s{sF0}, s{sF1}")
    A(f"s_lshl_b32 s{sF0}, s{sF0}, 8")
    A(f"s_add_u32 s{sF0}, s{sF0}, {FLG_OFF}")
    A(f"v_lshl_add_u32 v{vPA}, v{t0}, 8, s{sF0}")

def x_dma(j):
    if j >= 10 or (OPT.get("nodma") and j >= 2): return []
    o = [(f"s_add_u32 m0, s{sXM}, {(j % 3) * 4096}", None, 0), (f"s_add_u32 s{sXD}, s{sXO}, {0 if OPT.get('samedma') else j*128}", None, 0)]
    for i in range(4):
        o.append((f"buffer_load_dwordx4 v{vXD+i}, {srdr(SX)}, s{sXD} offen offset:{1024*i} lds", f"x{j}", 1))
    return o

def kv_dma(h):
    if h >= 20 or (OPT.get("nodma") and h >= 4): return []
    o = [(f"s_mov_b32 s{sWO}, {0 if OPT.get('samedma') else h*32*3840}", None, 0), (f"s_add_u32 m0, s{sWB}, {(h % 6) * HS}", None, 0)]
    for i in range(3):
        o.append((f"buffer_load_dwordx4 v{vAD+i}, {srdr(SWA)}, s{sWO} offen offset:{1024*i} lds", f"w{h}", 1))
    o.append((f"s_add_u32 m0, s{sWQ}, {(h % 6) * HS}", None, 0))
    o.append((f"buffer_load_dwordx4 v{vPD}, {srdr(SWA)}, s{sWO} offen lds", f"w{h}", 1))
    return o

def p_dma(h):
    if h >= 20 or (OPT.get("nodma") and h >= 4): return []
    o = [(f"s_add_u32 m0, s{sWB}, {(h % 6) * HS}", None, 0)]
    if h and not OPT.get("samedma"): o.append((f"s_add_u32 s{sWO}, s{sWO}, s{sWS}", None, 0))
    for i in range(4):
        o.append((f"buffer_load_dwordx4 v{vP1+i}, {srdr(SWA)}, s{sWO} offen offset:{1024*i} lds", f"w{h}", 1))
    return o

def w2p_loads(n):
    o = []
    so = sWT
    if n == 0: so = sW
    elif n == 13: so = sX1
    elif n == 14: so = sPV
    elif n < 13: o.append((f"s_add_u32 s{sWT}, s{sW}, {20480*n}", None, 0))
    else: o.append((f"s_add_u32 s{sWT}, s{sPV}, {5120*(n-14)}", None, 0))
    for nt in range(5):
        o.append((f"buffer_load_dwordx4 {a(slot(n)+4*nt,4)}, v{vW+(nt>>2)}, {srdr(SWS)}, s{so} offen offset:{1024*(nt&3)} sc1", f"W2{n}", 1))
    return o
def wl(*ns): return sum((w2p_loads(n) for n in ns), [])

def emit1(A, e):
    if e[0].startswith("WAIT:"):
        _, k, t = e[0].split(":")
        A.wait(**{k: t})
    elif len(e) > 3 and e[3]: A.g(e[0], e[1])
    else: A(e[0], e[1])

def emit(A, lst):
    for e in lst: emit1(A, e)

class DQ:
    def __init__(self): self.q = []; self.gap = 0
    def add(self, lst, front=False):
        if front:
            k = 0
            while k < len(self.q) and self.q[k][2] == 0: k += 1
            while k < len(self.q) and not (self.q[k][2] == 0 and "m0, m0" not in self.q[k][0] and "m0, m0" not in self.q[k-1][0]
                                           and "exec" not in self.q[k][0]): k += 1
            self.q[k:k] = list(lst)
        else: self.q += list(lst)
    def pop(self, A, n=1, ahead=True):
        while self.q and n > 0.01:
            e = self.q.pop(0)
            emit1(A, e); n -= e[2]
        while self.q and self.q[0][2] == 0 and self.q[0][0].startswith("s_") and (ahead or "exec" in self.q[0][0]) \
                and not self.q[0][0].startswith("s_mov_b64 exec, s"):
            emit1(A, self.q.pop(0))
    def count(self): return sum(e[2] for e in self.q)

def spread(A, code, lst, every, first=0):
    dq = DQ(); dq.add(lst)
    n = first
    scc_live = False
    for x in code.ins:
        if n >= every and dq.q and not x.glue and not (x.op.startswith(("s_cselect", "s_cbranch_scc", "s_addc")) or scc_live):
            dq.pop(A, 1); n = 0
        A.ins.append(x)
        if x.op.startswith("s_cmp"): scc_live = True
        elif x.cls == "salu" and not x.op.startswith(("s_cselect", "s_mov", "s_mul_i32")) : scc_live = False
        elif x.cls != "salu": scc_live = False if not scc_live else scc_live
        n += 1
    dq.pop(A, 99)

def gemm_steps(A, steps, D, dq, pre_barrier=None, post_barrier=None, every=2):
    n = len(steps)
    late = []
    for s in range(n + 1):
        rd = []
        bar = None
        if s < n:
            st = steps[s]
            if st["chunk"] is not None:
                def bar(st=st):
                    if pre_barrier and st["xj"] is not None: pre_barrier(A, st["xj"])
                    tags = [f"w{st['chunk']}"]
                    if st["xj"] is not None: tags.append(f"x{st['xj']}")
                    tags += st.get("tags", [])
                    nf = 0
                    while any(e[1] in tags for e in dq.q): dq.pop(A, 1); nf += 1
                    if nf and OPT.get("verbose"): print("forced", nf, "before chunk", st["chunk"])
                    A.wait(vm=tags, lgkm="all")
                    A("s_barrier")
                    if post_barrier and st["xj"] is not None: post_barrier(A, st["xj"], dq)
                    dq.add(st.get("queue", []))
            rd = [(t, f"r{s}_{i // (2 * OPT.get('wgrp', 2))}") for i, t in enumerate(st["reads"])]
            if st["xj"] is not None:
                j = st["xj"]
                xr = [(f"ds_read_b128 {a(aX + 16*(j&1) + 4*q, 4)}, v{vXRD+q} offset:{(j % 3) * 4096}", "xr") for q in range(4)]
                rd = xr[:1] + rd + xr[1:2]
                late = xr[2:]
            else:
                rd = rd + late; late = []
                if not bar: dq.add(st.get("queue", []))
        if s == 0:
            bar()
            for t, tag in rd: A(t, tag)
            continue
        m = steps[s - 1]
        nt = m["nt"]
        bd = OPT.get("bdelay", 3) if bar else 0
        if bar and bd == 0: bar()
        for t in range(nt):
            acc = m["acc"][t]
            cin = "0" if m["first"] else v(acc, 16)
            if t % OPT.get("wgrp", 2) == 0: A.wait(lgkm=f"r{s-1}_{t // OPT.get('wgrp', 2)}")
            A(f"v_mfma_f32_32x32x16_bf16 {v(acc,16)}, {a(m['frag']+4*t,4)}, {a(m['xreg'],4)}, {cin}")
            if bar and t == bd - 1: bar()
            if t >= bd - 1:
                per = -(-len(rd) // (nt - t))
                take = rd[:per]; rd = rd[per:]
                for tx, tag in take: A(tx, tag)
            dq.gap += 1
            ev = every[min((s - 1) // 4, len(every) - 1)] if isinstance(every, (list, tuple)) else every
            if dq.q and dq.gap >= ev - 0.01:
                dq.pop(A, 1); dq.gap = min(dq.gap - ev, 0.99)
        pt(A, f"g{s-1}")

def corr_frag(A, raw, tmp):
    A(f"v_add_f32 v{tmp}, v{raw}, v{raw+2}")
    A(f"v_lshrrev_b32 v{raw+2}, 16, v{raw+1}")
    A(f"v_cvt_pk_bf16_f32 v{raw}, v{tmp}, v{tmp}")
    A(f"v_and_b32 v{raw+3}, 0xffff0000, v{raw}")
    A(f"v_sub_f32 v{tmp}, v{tmp}, v{raw+3}")
    A(f"v_mov_b32 v{raw+3}, 0")
    A(f"v_cvt_pk_bf16_f32 v{raw+1}, v{tmp}, v{raw+1}")

def stats_frag(A, t):
    m, ve = vST, vST + 1
    A(f"v_rsq_f32 v{vRS}, v{ve}")
    A(f"v_sub_f32 v{t}, 0, v{m}")
    A(f"v_mul_f32 v{t+1}, v{ve}, v{vRS}")
    A(f"v_mul_f32 v{vS1}, {hex(LOG2E)}, v{vRS}")
    A(f"v_cvt_pk_bf16_f32 v{vCB+1}, v{t}, v{t+1}")
    A(f"v_lshlrev_b32 v{t+2}, 16, v{vCB+1}")
    A(f"v_and_b32 v{t+3}, 0xffff0000, v{vCB+1}")
    A(f"v_sub_f32 v{t+2}, v{t}, v{t+2}")
    A(f"v_sub_f32 v{t+3}, v{t+1}, v{t+3}")
    A(f"v_cvt_pk_bf16_f32 v{vCB}, v{t}, v{t+2}")
    A(f"v_cvt_pk_bf16_f32 v{vCB+2}, v{t+3}, 0")
    A(f"v_mov_b32 v{vCB+3}, 0")
    A(f"v_cmp_gt_u32 vcc, 32, v0")
    for i in range(3):
        A.g(f"v_cndmask_b32 v{vCB+i}, 0, v{vCB+i}, vcc")

def mish(A, acc, n, e, G=4):
    for g0 in range(0, n, G):
        t = acc + g0
        for i in range(G): A(f"v_mul_f32 v{t+i}, v{t+i}, v{vS1}")
        for i in range(G): A(f"v_exp_f32 v{e+i}, v{t+i}")
        for i in range(G): A(f"v_fma_f32 v{e+G+i}, v{e+i}, 0.5, 1.0")
        for i in range(G): A(f"v_fma_f32 v{e+i}, v{e+i}, v{e+G+i}, 1.0")
        for i in range(G): A(f"v_rcp_f32 v{e+i}, v{e+i}")
        for i in range(G): A(f"v_fma_f32 v{e+i}, -v{t+i}, v{e+i}, v{t+i}")
        o = acc + (g0 & ~7) + (g0 & 7) // 2
        for i in range(0, G, 2): A(f"v_cvt_pk_bf16_f32 v{o+i//2}, v{e+i}, v{e+i+1}")

def mish_pk(A, acc, n, e):
    G = 8
    s1 = f"v[{vS1-1}:{vS1}]"
    for g0 in range(0, n, G):
        t = acc + g0
        for i in range(0, G, 2): A(f"v_pk_mul_f32 {v(t+i,2)}, {v(t+i,2)}, {s1} op_sel:[0,1] op_sel_hi:[1,1]")
        for i in range(G): A(f"v_exp_f32 v{e+i}, v{t+i}")
        for i in range(0, G, 2): A(f"v_pk_fma_f32 {v(e+G+i,2)}, {v(e+i,2)}, 0.5, 1.0 op_sel_hi:[1,0,0]")
        for i in range(0, G, 2): A(f"v_pk_fma_f32 {v(e+i,2)}, {v(e+i,2)}, {v(e+G+i,2)}, 1.0 op_sel_hi:[1,1,0]")
        for i in range(G): A(f"v_rcp_f32 v{e+i}, v{e+i}")
        for i in range(0, G, 2): A(f"v_pk_fma_f32 {v(e+i,2)}, {v(t+i,2)}, {v(e+i,2)}, {v(t+i,2)} neg_lo:[1,0,0] neg_hi:[1,0,0]")
        for i in range(0, G, 2): A(f"v_cvt_pk_bf16_f32 v{t+i//2}, v{e+i}, v{e+i+1}")

def pair_store(A, acc, soff, tag, t, p):
    A(f"buffer_store_dwordx4 {v(acc+16*t+8*p,4)}, v{vAST}, {srdr(SWS)}, s{soff} offen offset:{1024*t+512*p} sc1", tag)

def softmax_pair(A, p, EP, EN, PK, s1, t0):
    a0, a1 = t0, t0 + 1
    A(f"v_max3_f32 v{a0}, v{p}, v{p+1}, v{p+2}")
    A(f"v_min3_f32 v{a1}, v{p}, v{p+1}, v{p+2}")
    for i in range(3, 19, 2):
        A(f"v_max3_f32 v{a0}, v{a0}, v{p+i}, v{p+i+1}")
        A(f"v_min3_f32 v{a1}, v{a1}, v{p+i}, v{p+i+1}")
    A(f"v_max_f32 v{a0}, v{a0}, v{p+19}")
    A(f"v_min_f32 v{a1}, v{a1}, v{p+19}")
    A(f"v_mul_f32 v{a0}, v{a0}, v{s1}")
    A(f"v_mul_f32 v{a1}, v{a1}, v{s1}")
    for i in range(20):
        A(f"v_fma_f32 v{EP+i}, v{p+i}, v{s1}, -v{a0}")
        A(f"v_fma_f32 v{EN+i}, -v{p+i}, v{s1}, v{a1}")
        A(f"v_exp_f32 v{EP+i}, v{EP+i}")
        A(f"v_exp_f32 v{EN+i}, v{EN+i}")
    A(f"v_add_f32 v{a0}, v{EP}, v{EP+1}")
    A(f"v_add_f32 v{a1}, v{EN}, v{EN+1}")
    for i in range(2, 20):
        A(f"v_add_f32 v{a0}, v{a0}, v{EP+i}")
        A(f"v_add_f32 v{a1}, v{a1}, v{EN+i}")
    A(f"v_rcp_f32 v{a0}, v{a0}")
    A(f"v_rcp_f32 v{a1}, v{a1}")
    for i in range(10):
        A(f"v_mul_f32 v{EP+2*i}, v{EP+2*i}, v{a0}")
        A(f"v_mul_f32 v{EP+2*i+1}, v{EP+2*i+1}, v{a0}")
        A(f"v_cvt_pk_bf16_f32 v{PK+i}, v{EP+2*i}, v{EP+2*i+1}")
    for i in range(10):
        A(f"v_mul_f32 v{EN+2*i}, v{EN+2*i}, v{a1}")
        A(f"v_mul_f32 v{EN+2*i+1}, v{EN+2*i+1}, v{a1}")
        A(f"v_cvt_pk_bf16_f32 v{PK+10+i}, v{EN+2*i}, v{EN+2*i+1}")

def softmax_pair_pk(A, p, EP, EN, PK, s1, t0):
    a0, a1 = t0, t0 + 1
    sp = v(s1 & ~1, 2); sh = s1 & 1
    A(f"v_max3_f32 v{a0}, v{p}, v{p+1}, v{p+2}")
    A(f"v_min3_f32 v{a1}, v{p}, v{p+1}, v{p+2}")
    for i in range(3, 19, 2):
        A(f"v_max3_f32 v{a0}, v{a0}, v{p+i}, v{p+i+1}")
        A(f"v_min3_f32 v{a1}, v{a1}, v{p+i}, v{p+i+1}")
    A(f"v_max_f32 v{a0}, v{a0}, v{p+19}")
    A(f"v_min_f32 v{a1}, v{a1}, v{p+19}")
    A(f"v_mul_f32 v{a0}, v{a0}, v{s1}")
    A(f"v_mul_f32 v{a1}, v{a1}, v{s1}")
    ap = v(a0, 2)
    for i in range(0, 20, 2):
        A(f"v_pk_fma_f32 {v(EP+i,2)}, {v(p+i,2)}, {sp}, {ap} op_sel:[0,{sh},0] op_sel_hi:[1,{sh},0] neg_lo:[0,0,1] neg_hi:[0,0,1]")
        A(f"v_pk_fma_f32 {v(EN+i,2)}, {v(p+i,2)}, {sp}, {ap} op_sel:[0,{sh},1] op_sel_hi:[1,{sh},1] neg_lo:[1,0,0] neg_hi:[1,0,0]")
        for k in range(2):
            A(f"v_exp_f32 v{EP+i+k}, v{EP+i+k}")
        for k in range(2):
            A(f"v_exp_f32 v{EN+i+k}, v{EN+i+k}")
    sP, sN = v(t0 + 2, 2), v(t0 + 4, 2)
    A(f"v_pk_add_f32 {sP}, {v(EP,2)}, {v(EP+2,2)}")
    A(f"v_pk_add_f32 {sN}, {v(EN,2)}, {v(EN+2,2)}")
    for i in range(4, 20, 2):
        A(f"v_pk_add_f32 {sP}, {sP}, {v(EP+i,2)}")
        A(f"v_pk_add_f32 {sN}, {sN}, {v(EN+i,2)}")
    A(f"v_add_f32 v{a0}, v{t0+2}, v{t0+3}")
    A(f"v_add_f32 v{a1}, v{t0+4}, v{t0+5}")
    A(f"v_rcp_f32 v{a0}, v{a0}")
    A(f"v_rcp_f32 v{a1}, v{a1}")
    A("s_nop 0")
    for i in range(10):
        A(f"v_pk_mul_f32 {v(EP+2*i,2)}, {v(EP+2*i,2)}, {ap} op_sel:[0,0] op_sel_hi:[1,0]")
        if i: A(f"v_cvt_pk_bf16_f32 v{PK+i-1}, v{EP+2*i-2}, v{EP+2*i-1}")
    for i in range(10):
        A(f"v_pk_mul_f32 {v(EN+2*i,2)}, {v(EN+2*i,2)}, {ap} op_sel:[0,1] op_sel_hi:[1,1]")
        if i == 0: A(f"v_cvt_pk_bf16_f32 v{PK+9}, v{EP+18}, v{EP+19}")
        else: A(f"v_cvt_pk_bf16_f32 v{PK+10+i-1}, v{EN+2*i-2}, v{EN+2*i-1}")
    A(f"v_cvt_pk_bf16_f32 v{PK+19}, v{EN+18}, v{EN+19}")

def weave32(main, fill, **kw):
    main = list(main.ins if isinstance(main, Asm) else main)
    small = [x for x in main if x.cls == "mfma" and "16x16" in x.op]
    for x in small: x.cls = "mfma16"
    r = weave(main, fill, **kw)
    for x in small: x.cls = "mfma"
    return r

def common_lane(A):
    A("v_lshrrev_b32 v1, 5, v0")
    A("v_bfe_u32 v2, v0, 2, 2")
    A("v_and_b32 v3, 1, v0")
    A("v_bfe_u32 v4, v0, 1, 1")
    A("v_bfe_u32 v5, v0, 4, 1")
    A("v_lshl_add_u32 v4, v5, 1, v4")
    A("v_lshl_add_u32 v6, v1, 3, v2")

PRS = 64; PRC = 84; PRT = 124
vBI = 63; aPK = 0; aPH = 28

def wo_rows(A, t, b, qs, hi, t0, t1):
    A(f"s_mul_i32 s{t1}, s{t}, 52"); A(f"s_lshr_b32 s{t1}, s{t1}, 8")
    A(f"s_mul_i32 s{b}, s{t1}, 5"); A(f"s_sub_u32 s{t0}, s{t}, s{b}")
    A(f"s_mul_i32 s{b}, s{t1}, 160")
    A(f"s_lshr_b32 s{t1}, s{t0}, 1"); A(f"s_mul_i32 s{t1}, s{t1}, 80")
    A(f"s_and_b32 s{qs}, s{t0}, 1"); A(f"s_lshl_b32 s{qs}, s{qs}, 3"); A(f"s_add_u32 s{t1}, s{t1}, s{qs}")
    A(f"s_cmp_eq_u32 s{t0}, 4")
    A(f"s_cselect_b32 s{t1}, 16, s{t1}")
    A(f"s_cselect_b32 s{qs}, 40, 20")
    A(f"s_cselect_b32 s{hi}, 20, 4")
    A(f"s_add_u32 s{b}, s{b}, s{t1}")

def pack_addr(A, dst, qs, hi):
    A("v_mul_u32_u24 v2, 6554, v1"); A("v_lshrrev_b32 v2, 16, v2")
    A("v_mul_u32_u24 v3, 10, v2"); A("v_sub_u32 v3, v1, v3")
    A("v_lshrrev_b32 v4, 3, v2"); A(f"v_mul_u32_u24 v4, s{qs}, v4")
    A("v_bfe_u32 v5, v2, 2, 1"); A(f"v_mad_u32_u24 v4, v5, s{hi}, v4")
    A("v_and_b32 v5, 3, v2"); A("v_add_u32 v4, v4, v5")
    A("v_mul_u32_u24 v4, 1280, v4")
    A(f"v_lshl_add_u32 v{dst}, v3, 4, v4")

def pack_T(A, T, t):
    A(f"s_bfe_u32 s{T}, s2, 0x10006"); A(f"s_and_b32 s{t}, s2, 7"); A(f"s_lshl_b32 s{t}, s{t}, 1"); A(f"s_add_u32 s{T}, s{T}, s{t}")
    A(f"s_lshl_b32 s{t}, s{sWAVE}, 4"); A(f"s_add_u32 s{T}, s{T}, s{t}")

def cs_line(A, Lr, t0, t1):
    A(f"s_and_b32 s{t0}, s2, 3"); A(f"s_lshl_b32 s{t0}, s{t0}, 1"); A(f"s_bfe_u32 s{t1}, s2, 0x10003"); A(f"s_add_u32 s{t0}, s{t0}, s{t1}")
    A(f"s_bfe_u32 s{t1}, s2, 0x30004"); A(f"s_lshl_b32 s{Lr}, s{t1}, 3"); A(f"s_add_u32 s{Lr}, s{Lr}, s{t0}")
    A(f"s_cmp_lt_u32 s{Lr}, 2"); A(f"s_cselect_b32 s{t1}, 8, 28"); A(f"s_add_u32 s{Lr}, s{Lr}, s{t1}")
    A(f"s_bfe_u32 s{t1}, s2, 0x40003")
    A(f"s_cmp_ge_u32 s{t1}, 8"); A(f"s_cselect_b32 s{Lr}, s{t0}, s{Lr}")
    A(f"s_cmp_ge_u32 s{t1}, 13"); A(f"s_cselect_b32 s{t0}, 7, 0"); A(f"s_add_u32 s{t0}, s{t0}, s{t1}")
    A(f"s_cmp_ge_u32 s{t1}, 10"); A(f"s_cselect_b32 s{Lr}, s{t0}, s{Lr}")
    A(f"s_cselect_b32 s{t1}, 1, 0")
    A(f"s_bfe_u32 s{t0}, s2, 0x10001"); A(f"s_mul_i32 s{t0}, s{t0}, 5"); A(f"s_mul_i32 s{t0}, s{t0}, s{t1}"); A(f"s_add_u32 s{Lr}, s{Lr}, s{t0}")
    A(f"s_and_b32 s{t0}, s2, s{t1}"); A(f"s_mul_i32 s{t0}, s{t0}, 3"); A(f"s_add_u32 s{Lr}, s{Lr}, s{t0}")
    A(f"s_bfe_u32 s{t1}, s2, 0x40003"); A(f"s_lshl_b32 s{t1}, 1, s{t1}"); A(f"s_and_b32 s{t1}, s{t1}, 0x9000")
    A(f"s_mul_i32 s{t1}, s{t1}, s{t0}"); A(f"s_add_u32 s{Lr}, s{Lr}, s{t1}")
    A(f"s_min_u32 s{Lr}, s{Lr}, 63")

def pack_setup(A):
    T, b, qs, hi = sT0, sT1, sT2, sT3
    pack_T(A, T, b)
    A(f"s_bfe_u32 s{sPX0}, s2, 0x30003")
    A(f"s_mul_i32 s{sPX1}, s{sPX0}, 74"); A(f"s_add_u32 s{sPKD}, s{sPX1}, s{T}")
    A(f"s_mul_i32 s{sPKD}, s{sPKD}, 5120"); A(f"s_add_u32 s{sPKD}, s{sPKD}, {W2P_OFF}")
    A(f"s_sub_u32 s{sPKO}, s{T}, 54")
    wo_rows(A, sPKO, b, qs, hi, sP0, sP1)
    A(f"s_lshl_b32 s{sP1}, s{T}, 5")
    A(f"s_cmp_lt_u32 s{T}, 54")
    A(f"s_cselect_b32 s{b}, s{sP1}, s{b}")
    A(f"s_cselect_b32 s{qs}, 8, s{qs}")
    A(f"s_cselect_b32 s{hi}, 4, s{hi}")
    A(f"s_mul_i32 s{b}, s{b}, 1280")
    A(f"s_mul_i32 s{sPX0}, s{sPX0}, 160"); A(f"s_add_u32 s{sPKO}, s{sPX0}, s{b}")
    for i in range(5):
        A(f"v_add_u32 v1, {64*i}, v0")
        pack_addr(A, vQC + i, qs, hi)
        if 0 < i < 4: A(f"v_subrev_u32 v{vQC+i}, {1024*i}, v{vQC+i}")
    A(f"s_bfe_u32 s{T}, s2, 0x10006"); A(f"s_lshl_b32 s{T}, s{T}, 3"); A(f"s_and_b32 s{b}, s2, 7"); A(f"s_add_u32 s{T}, s{T}, s{b}")
    A(f"s_add_u32 s{T}, s{T}, 10")
    A(f"s_add_u32 s{sPX1}, s{sPX1}, s{T}"); A(f"s_add_u32 s{sPX1}, s{sPX1}, 54")
    A(f"s_mul_i32 s{sPX1}, s{sPX1}, 5120"); A(f"s_add_u32 s{sPX1}, s{sPX1}, {W2P_OFF}")
    wo_rows(A, T, b, qs, hi, sP0, sP1)
    A(f"s_mul_i32 s{b}, s{b}, 1280"); A(f"s_add_u32 s{sPX0}, s{sPX0}, s{b}")
    A(f"s_cmp_lt_u32 s{T}, 20")
    A(f"s_cselect_b32 s{sPX1}, s{sPX1}, {hex(OOB)}")
    A(f"s_cselect_b32 s{sPX0}, s{sPX0}, {hex(OOB)}")
    A(f"s_cmp_eq_u32 s{sWAVE}, 0")
    A(f"s_cselect_b64 s[{sEX}:{sEX+1}], -1, 0")
    A(f"s_lshl_b32 s{sP0}, s{sWAVE}, 6"); A(f"v_add_u32 v1, s{sP0}, v0")
    pack_addr(A, vPX, qs, hi)
    A("v_add_u32 v1, 256, v0")
    pack_addr(A, vPX + 1, qs, hi)

def pack_dma():
    o = [(f"s_add_u32 m0, s{sXM}, 8192", None, 0)]
    for i in range(4):
        o.append((f"buffer_load_dwordx4 v{vQC+i}, {srdr(SPK)}, s{sPKO} offen offset:{1024*i} lds", "pk", 1))
    o.append(("s_add_u32 m0, m0, 4096", None, 0))
    o.append((f"buffer_load_dwordx4 v{vQC+4}, {srdr(SPK)}, s{sPKO} offen lds", "pk", 1))
    o.append((f"s_lshl_b32 m0, s{sWAVE}, 10", None, 0))
    o.append((f"s_add_u32 m0, m0, {PKX}", None, 0))
    o.append((f"buffer_load_dwordx4 v{vPX}, {srdr(SWB)}, s{sPX0} offen lds", "pkx", 1))
    o.append((f"s_mov_b32 m0, {PKX + 4096}", None, 0))
    o.append((f"s_mov_b64 exec, s[{sEX}:{sEX+1}]", None, 0))
    o.append((f"buffer_load_dwordx4 v{vPX+1}, {srdr(SWB)}, s{sPX0} offen lds", "pkx", 1))
    o.append(("s_mov_b64 exec, -1", None, 0))
    return o

def pack_read_addr(A):
    A("v_lshrrev_b32 v1, 4, v0"); A("v_bfe_u32 v2, v0, 2, 2"); A("v_lshl_add_u32 v1, v1, 3, v2")
    A("v_mul_u32_u24 v1, 160, v1")
    A("v_and_b32 v2, 3, v0")
    A(f"v_lshl_add_u32 v3, v2, 4, v1"); A(f"v_lshl_add_u32 v4, v2, 3, v1")
    A(f"s_add_u32 s{sT0}, s{sXM}, 8192")
    A(f"v_add_u32 v{vQC+5}, s{sT0}, v3"); A(f"v_add_u32 v{vQC+6}, s{sT0}, v4")
    A(f"s_lshr_b32 s{sT0}, s{sWAVE}, 1"); A(f"s_lshl_b32 s{sT0}, s{sT0}, 6")
    A(f"s_and_b32 s{sT1}, s{sWAVE}, 1"); A(f"s_lshl_b32 s{sT1}, s{sT1}, 3"); A(f"s_add_u32 s{sT0}, s{sT0}, s{sT1}")
    A(f"s_add_u32 s{sT0}, s{sT0}, {PKX}")
    A(f"v_add_u32 v{vPX+2}, s{sT0}, v3"); A(f"v_add_u32 v{vPX+3}, {PKX}, v4")

def pack_reads():
    o = [("WAIT:vm:pk", None, 0)]
    for nt in range(5):
        for rho in range(2):
            if nt < 4: t = f"ds_read_b64_tr_b16 {a(aPK+4*nt+2*rho,2)}, v{vQC+5} offset:{rho*640 + 64*(nt>>1) + 8*(nt&1)}"
            else: t = f"ds_read_b64_tr_b16 {a(aPK+4*nt+2*rho,2)}, v{vQC+6} offset:{rho*640 + 128}"
            o.append((t, "pkr", 0.34))
    return o

def pack_stores():
    return [(f"buffer_store_dwordx4 {a(aPK+4*nt,4)}, v{vW+(nt>>2)}, {srdr(SWS)}, s{sPKD} offen offset:{1024*(nt&3)} sc1", "prep", 1)
            for nt in range(5)]

def pack_shared():
    X = aPK + 20
    o = []
    for rho in range(2):
        o.append((f"ds_read_b64_tr_b16 {a(X+2*rho,2)}, v{vPX+2} offset:{rho*640}", None, 0.25))
        o.append((f"ds_read_b64_tr_b16 {a(X+4+2*rho,2)}, v{vPX+3} offset:{rho*640 + 128}", None, 0.25))
    o.append((f"s_lshl_b32 s{sP0}, s{sWAVE}, 10", None, 0)); o.append((f"s_add_u32 s{sP0}, s{sP0}, s{sPX1}", None, 0))
    o.append((f"s_cmp_eq_u32 s{sWAVE}, 0", None, 0)); o.append((f"s_cselect_b32 s{sP1}, s{sPX1}, {hex(OOB)}", None, 0, True))
    o.append((f"buffer_store_dwordx4 {a(X,4)}, v{vW}, {srdr(SWS)}, s{sP0} offen sc1", "prep", 1))
    o.append((f"buffer_store_dwordx4 {a(X+4,4)}, v{vW+1}, {srdr(SWS)}, s{sP1} offen sc1", "prep", 1))
    return o

def prep_setup(A):
    A(f"s_lshl_b32 s{sT0}, s{sM}, 7"); A(f"s_lshl_b32 s{sT1}, s{sU}, 4"); A(f"s_add_u32 s{sT0}, s{sT0}, s{sT1}")
    A(f"s_lshl_b32 s{sT1}, s{sWAVE}, 2"); A(f"s_add_u32 s{sT0}, s{sT0}, s{sT1}")
    A(f"s_mul_i32 s{sSTO}, s{sT0}, 1280")
    A("v_lshrrev_b32 v1, 4, v0"); A("v_and_b32 v2, 15, v0")
    A("v_mul_u32_u24 v1, 1280, v1"); A(f"v_lshl_add_u32 v{vSA}, v2, 4, v1")
    A(f"s_cmp_lt_u32 s{sCSL}, 30")
    csel(A, sT2, 3840, 3456)
    A(f"s_cselect_b32 s{sT3}, 0, 30")
    A(f"s_sub_u32 s{sT0}, s{sCSL}, s{sT3}")
    A(f"s_lshl_b32 s{sT0}, s{sT0}, 7")
    A(f"s_bfe_u32 s{sT1}, s2, 0x10002"); A(f"s_lshl_b32 s{sT3}, s{sWAVE}, 1"); A(f"s_add_u32 s{sT1}, s{sT1}, s{sT3}")
    A(f"s_mul_i32 s{sT1}, s{sT1}, 80"); A(f"s_mul_i32 s{sT1}, s{sT1}, s{sT2}")
    A(f"s_add_u32 s{sT0}, s{sT0}, s{sT1}")
    A(f"s_cmp_lt_u32 s{sCSL}, 57")
    A(f"s_cselect_b32 s{sCSO}, s{sT0}, {hex(OOB)}")
    A("v_lshrrev_b32 v1, 3, v0"); A("v_and_b32 v2, 7, v0")
    A(f"v_mul_u32_u24 v1, s{sT2}, v1")
    A(f"v_lshl_add_u32 v{vCL}, v2, 4, v1")
    A(f"s_lshl_b32 s{sCSP}, s{sT2}, 3")

def stats_loads():
    return [(f"buffer_load_dwordx4 {v(PRS+4*j,4)}, v{vSA}, {srdr(SX)}, s{sSTO} offen offset:{256*j}", None, 1) for j in range(5)]

def cs_loads():
    o = []
    for j in range(10):
        if j: o.append((f"s_add_u32 s{sCSO}, s{sCSO}, s{sCSP}", None, 0))
        o.append((f"buffer_load_dwordx4 {v(PRC+4*j,4)}, v{vCL}, {srdr(SCS)}, s{sCSO} offen", None, 1))
    o.append((f"s_sub_u32 s{sP0}, s{sCSL}, 30", None, 0))
    o.append((f"s_lshl_b32 s{sP0}, s{sP0}, 7", None, 0)); o.append((f"s_min_u32 s{sP0}, s{sP0}, {hex(OOB)}", None, 0))
    o.append((f"v_lshlrev_b32 v{vPT}, 1, v0", None, 0))
    o.append((f"buffer_load_ushort v{vBI}, v{vPT}, {srdr(SB1)}, s{sP0} offen", None, 1))
    return o

def rowsum(A, reg):
    for sh in (8, 4, 2, 1):
        A(f"v_add_f32_dpp v{reg}, v{reg}, v{reg} row_ror:{sh} row_mask:0xf bank_mask:0xf")

def zero_kv(A):
    for r in range(4): A(f"v_mov_b32 v{4+r}, 0")
    A(f"s_and_b32 s{sF0}, s2, 127"); A(f"s_lshl_b32 s{sF0}, s{sF0}, 2"); A(f"s_add_u32 s{sF0}, s{sF0}, s{sWAVE}")
    A(f"s_mul_i32 s{sF0}, s{sF0}, 480"); A(f"s_add_u32 s{sF0}, s{sF0}, {KV_OFF}")
    A(f"v_mov_b32 v1, {hex(OOB)}")
    A("v_cmp_gt_u32 vcc, 30, v0")
    A.g(f"v_cndmask_b32 v1, v1, v{vW}, vcc")
    A(f"buffer_store_dwordx4 v[4:7], v1, {srdr(SWS)}, s{sF0} offen sc1", "prep")

def stats_compute(A):
    U = PRC
    for r in range(20):
        A(f"v_lshlrev_b32 v{U+2*r}, 16, v{PRS+r}")
        A(f"v_and_b32 v{U+2*r+1}, 0xffff0000, v{PRS+r}")
        if r == 1: A(f"v_add_f32 v2, v{U}, v{U+1}")
        if r == 2: A(f"v_add_f32 v3, v{U+2}, v{U+3}")
        if r > 2: A(f"v_add_f32 v2, v2, v{U+2*r-2}"); A(f"v_add_f32 v3, v3, v{U+2*r-1}")
    A(f"v_add_f32 v2, v2, v{U+38}"); A(f"v_add_f32 v3, v3, v{U+39}")
    A(f"s_lshr_b32 s{sF0}, s{sSTO}, 5"); A(f"s_mul_hi_u32 s{sF0}, s{sF0}, 0x33333334")
    A("v_add_f32 v2, v2, v3")
    ad = Asm()
    ad("v_lshrrev_b32 v1, 4, v0"); ad("v_lshlrev_b32 v1, 3, v1")
    ad("v_and_b32 v6, 15, v0"); ad(f"v_mov_b32 v7, {hex(OOB)}")
    ad(f"s_add_u32 s{sF0}, s{sF0}, {ST_OFF}"); ad("v_mov_b32 v5, 0x3727c5ac")
    ad("v_cmp_eq_u32 vcc, 0, v6"); ad("s_nop 0")
    for k, sh in enumerate((8, 4, 2, 1)):
        A.extend(ad.ins[2*k:2*k+2])
        A(f"v_add_f32_dpp v2, v2, v2 row_ror:{sh} row_mask:0xf bank_mask:0xf")
    A("v_cndmask_b32 v1, v7, v1, vcc")
    A("v_mul_f32 v4, 0x3acccccd, v2")
    for r in range(40):
        A(f"v_sub_f32 v{U+r}, v{U+r}, v4")
        if r in (1, 2): A(f"v_mul_f32 v{2+(r&1)}, v{U+r-1}, v{U+r-1}")
        if r > 2: A(f"v_fmac_f32 v{2+(r&1)}, v{U+r-1}, v{U+r-1}")
    A(f"v_fmac_f32 v2, v{U+39}, v{U+39}")
    A("v_add_f32 v2, v2, v3")
    rowsum(A, 2)
    A("v_fmac_f32 v5, 0x3acccccd, v2")
    A(f"buffer_store_dwordx2 v[4:5], v1, {srdr(SWS)}, s{sF0} offen sc1", "prep")

def cs_setup(A):
    sel = vCSA; acc = vCSA + 4
    A("v_and_b32 v1, 15, v0"); A("v_lshrrev_b32 v2, 1, v1"); A("v_and_b32 v3, 1, v0")
    A("v_lshlrev_b32 v3, 4, v3"); A("v_mov_b32 v4, 0x3f80"); A("v_lshlrev_b32 v4, v3, v4")
    for r in range(4):
        A(f"v_cmp_eq_u32 vcc, {r}, v2"); A.g("s_nop 1"); A.g(f"v_cndmask_b32 v{sel+r}, 0, v4, vcc")
    A("v_and_b32 v2, 7, v0"); A("v_bfe_u32 v3, v0, 4, 1")
    A("v_lshlrev_b32 v2, 7, v2"); A("v_lshl_add_u32 v2, v3, 6, v2")
    A(f"s_lshl_b32 s{sF0}, s{sWAVE}, 2"); A(f"s_add_u32 s{sF0}, s{sF0}, {CSR}")
    A(f"v_add_u32 v{PRT}, s{sF0}, v2")

def cs_compute(A):
    sel = vCSA; acc = vCSA + 4
    for j in range(10):
        A(f"v_mfma_f32_16x16x32_bf16 {v(acc,4)}, {v(sel,4)}, {v(PRC+4*j,4)}, {'0' if j == 0 else v(acc,4)}")

def cs_write(A):
    acc = vCSA + 4
    for r in range(4):
        A(f"v_add_f32_dpp v{acc+r}, v{acc+r}, v{acc+r} row_ror:8 row_mask:0xf bank_mask:0xf")
    A("s_mov_b64 exec, 0xffffffff")
    for r in range(4):
        A.g(f"ds_write_b32 v{PRT}, v{acc+r} offset:{16*r}")
    A.g("s_mov_b64 exec, -1")

def cs_finish(A):
    R = vCSA; t0, t1 = sF1, sCSP
    A(f"v_add_u32 v{PRT}, {CSR}, v{vW}")
    A(f"ds_read_b128 {v(R,4)}, v{PRT}")
    A(f"s_lshl_b32 s{t0}, s{sCSL}, 10")
    A(f"s_bfe_u32 s{t1}, s2, 0x10002"); A(f"s_lshl_b32 s{t1}, s{t1}, 3")
    A(f"s_add_u32 s{t0}, s{t0}, s{t1}"); A(f"s_add_u32 s{t0}, s{t0}, {CS_OFF}")
    A(f"s_cmp_lt_u32 s{sCSL}, 57"); A.g(f"s_cselect_b32 s{t0}, s{t0}, {hex(OOB)}")
    A(f"s_cmp_eq_u32 s{sWAVE}, 0"); A.g(f"s_cselect_b32 s{t0}, s{t0}, {hex(OOB)}")
    A(f"v_lshlrev_b32 v{R+5}, 16, v{vBI}")
    A(f"v_add_f32 v{R}, v{R}, v{R+1}"); A(f"v_add_f32 v{R+2}, v{R+2}, v{R+3}")
    A(f"v_add_f32 v{R+4}, v{R}, v{R+2}")
    A(f"buffer_store_dwordx2 {v(R+4,2)}, v{vW}, {srdr(SWS)}, s{t0} offen sc1", "prep")

def phi_loads(A, kv, R, v=a):
    A(f"s_lshl_b32 s{sF0}, s{sC}, 2"); A(f"s_add_u32 s{sF0}, s{sF0}, s{sWAVE}"); A(f"s_mul_i32 s{sF0}, s{sF0}, 800")
    A(f"s_and_b32 s{sF1}, s{sWAVE}, 1"); A(f"s_mul_i32 s{sF1}, s{sF1}, 10")
    A(f"v_add_u32 v1, s{sF1}, v0"); A("v_subrev_u32 v2, 50, v1"); A("v_min_u32 v1, v1, v2")
    A("v_lshlrev_b32 v1, 4, v1")
    A(f"v_mov_b32 v2, {hex(OOB)}")
    A("v_cmp_gt_u32 vcc, 50, v0")
    A.g("v_cndmask_b32 v1, v2, v1, vcc")
    A.g(f"v_cndmask_b32 v3, v2, v{vW}, vcc")
    A(f"buffer_load_dwordx4 {v(R,4)}, v1, {srdr(SPH)}, s{sF0} offen")
    if kv:
        A(f"s_lshl_b32 s{sF0}, s{sU}, 2"); A(f"s_add_u32 s{sF0}, s{sF0}, s{sWAVE}"); A(f"s_mul_i32 s{sF0}, s{sF0}, 800")
        A(f"buffer_load_dwordx4 {v(R+4,4)}, v3, {srdr(SPH)}, s{sF0} offen")

def phi_writes(A, kv, R, v=a):
    A(f"s_mul_i32 s{sF0}, s{sWAVE}, 960"); A(f"s_add_u32 s{sF0}, s{sF0}, {PHI2}")
    A(f"v_add_u32 v1, s{sF0}, v{vW}")
    A(f"s_mul_i32 s{sF0}, s{sWAVE}, 480"); A(f"s_add_u32 s{sF0}, s{sF0}, {PZERO}")
    A(f"v_lshl_add_u32 v2, v0, 3, s{sF0}")
    A("v_mov_b32 v4, 0"); A("v_mov_b32 v5, 0")
    A(f"s_bfm_b64 exec, 60, 0")
    A.g(f"ds_write_b128 v1, {v(R,4)}")
    if kv: A.g(f"ds_write_b128 v1, {v(R+4,4)} offset:{PHI1 - PHI2}")
    A.g("ds_write_b64 v2, v[4:5]")
    A.g("s_mov_b64 exec, -1")

vA = 16; vQA = 20; vOA = 23; vF1 = 24; vF2 = 25; vXO = 26; vRW = 28; vRR = 31; vKA = 32
QR = 84; ST2 = 96; PA2 = 64; PK2 = 44; NU = 64; KVR = 88; XRS = 88
ACT = 112; ACCO = 176; aO = 100

def p2_addr_early(A):
    for k in range(4):
        A(f"s_add_u32 s{sF0}, s{sWAVE}, {k}"); A(f"s_and_b32 s{sF0}, s{sF0}, 3"); A(f"s_mul_i32 s{sF0}, s{sF0}, {ACT_BLK}")
        A(f"v_add_u32 v{vA+k}, s{sF0}, v{vW}")
    A("v_lshrrev_b32 v1, 4, v0")
    A("v_and_b32 v2, 1, v1")
    A("v_lshrrev_b32 v3, 1, v1"); A("v_mul_u32_u24 v3, 5, v3")
    A(f"s_mul_i32 s{sF0}, s{sC}, 10")
    A(f"v_add_u32 v3, s{sF0}, v3")
    A("v_and_b32 v4, 15, v0"); A("v_lshlrev_b32 v4, 4, v4")
    A("v_lshl_add_u32 v4, v3, 8, v4")
    A("v_mul_u32_u24 v5, 768, v2")
    A(f"v_add_u32 v{vQA}, v4, v5")
    A(f"v_lshl_add_u32 v{vQA+1}, v2, 3, v4")
    A("v_and_b32 v4, 15, v0"); A(f"v_lshlrev_b32 v{vQA+2}, 3, v4")
    A(f"s_mul_i32 s{sAB}, s{sR}, {4*ACT_BLK}"); A(f"s_add_u32 s{sAB}, s{sAB}, {ACT_OFF}")
    A(f"s_lshl_b32 s{sF0}, s{sWAVE}, 10"); A(f"s_add_u32 s{sA}, s{sAB}, s{sF0}")

def act_load(n, k):
    o = []
    if k == 0 and n > 0:
        o.append((f"s_add_u32 s{sA}, s{sA}, 4096", None, 0))
        if n == 13:
            o.append((f"s_cmp_lt_u32 s{sWAVE}, 2\ns_cselect_b32 s{sA}, s{sA}, {hex(OOB)}", None, 0))
    o.append((f"buffer_load_dwordx4 {v(ACT+16*(n%4)+4*k,4)}, v{vA+k}, {srdr(SWS)}, s{sA} offen sc1", f"A{n}", 1))
    return o

def p2_first_loads(A):
    A(f"s_mul_i32 s{sP0}, s{sWAVE}, {ACT_BLK}"); A(f"s_add_u32 s{sP0}, s{sP0}, s{sAB}")
    A(f"s_add_u32 s{sP0}, s{sP0}, {74*1024}")
    A(f"buffer_load_dwordx4 {v(QR,4)}, v{vQA}, {srdr(SWS)}, s{sP0} offen sc1")
    A(f"buffer_load_dwordx4 {v(QR+4,4)}, v{vQA}, {srdr(SWS)}, s{sP0} offen offset:256 sc1")
    A(f"buffer_load_dwordx2 {v(QR+8,2)}, v{vQA+1}, {srdr(SWS)}, s{sP0} offen offset:512 sc1")
    A(f"s_lshl_b32 s{sP0}, s{sR}, 2"); A(f"s_add_u32 s{sP0}, s{sP0}, s{sWAVE}"); A(f"s_lshl_b32 s{sP0}, s{sP0}, 7")
    A(f"s_add_u32 s{sP0}, s{sP0}, {ST_OFF}")
    A(f"buffer_load_dwordx2 {v(ST2,2)}, v{vQA+2}, {srdr(SWS)}, s{sP0} offen sc1", "q")

P2FB = [("a", 240), ("a", 244), ("a", 248), ("a", 252), ("v", 100), ("v", 104), ("v", 108)]
def reg(n, off, cnt):
    k, r = P2FB[n % 7]
    return R(k, r + off, cnt)
P1SEQ = [(st, ch) for st in range(3) for ch in range(5)]
def prd(F, n):
    st, ch = P1SEQ[n]
    for rho in range(2):
        F(f"ds_read_b64_tr_b16 {reg(n,2*rho,2)}, v{vF1} offset:{(8*st+4*rho)*40+ch*8}")

def part1_head(F):
    F("v_lshrrev_b32 v1, 4, v0"); F("v_and_b32 v2, 3, v0"); F("v_bfe_u32 v3, v0, 2, 2")
    F("v_mul_u32_u24 v4, 960, v1"); F(f"v_add_u32 v4, {PHI2}, v4")
    F("v_mul_u32_u24 v5, 1920, v1"); F(f"v_add_u32 v5, {KVI}, v5"); F(f"v_mov_b32 v6, {PZERO}")
    F("v_cmp_eq_u32 vcc, v1, v2"); F.g("v_cndmask_b32 v4, v6, v4, vcc"); F.g("v_cndmask_b32 v5, v6, v5, vcc")
    F(f"v_mad_u32_u24 v{vF1}, v3, 40, v4"); F(f"v_mad_u32_u24 v{vF2}, v3, 48, v5")
    F(f"v_mov_b32 v{QR+10}, 0"); F(f"v_mov_b32 v{QR+11}, 0")
    for n in range(7): prd(F, n)
    poll_addr(F, "pgrp", 1, 2)
    F.wait(vm="q")

def part1(A, wq, kf=None):
    F = Asm()
    for n in range(15):
        st, ch = P1SEQ[n]
        d = v(PA2 + 4 * ch, 4)
        F(f"v_mfma_f32_16x16x32_bf16 {d}, {reg(n,0,4)}, {v(QR+4*st,4)}, {'0' if st == 0 else d}")
        if n + 7 < 15: prd(F, n + 7)
    F(f"v_rsq_f32 v{ST2}, v{ST2+1}"); F("s_nop 0")
    F(f"v_mul_f32 v{ST2}, {hex(LOG2E)}, v{ST2}")
    G = Asm()
    softmax_pair_pk(G, PA2, PK2, PA2, PK2, ST2, 2)
    kp = OPT.get("p1poll", 110)
    H = Asm(); poll_issue(H)
    G.ins[kp:kp] = H.ins
    F.extend(G)
    if OPT.get("verbose"): print("part1", len(F.ins), len(G.ins))
    H = Asm(); H.wait(vm="fin"); H("s_barrier"); signal(H, 4)
    if kf is not None:
        while F.ins[kf].glue: kf += 1
        F.ins[kf:kf] = H.ins
    spread(A, F, wq, OPT.get("p1sp", 9), first=OPT.get("p1f", 0))
    pt(A, "sm")
    if kf is None: A.extend(H)

def prologue(A, C):
    L = C.L
    A.label(L("start"))
    A(f"s_getpc_b64 s[{sT0}:{sT0+1}]")
    A("s_cmp_ge_u32 s2, 256")
    A(f"s_cbranch_scc1 {L('end')}")
    if OPT.get("swap", 1): A("s_xor_b32 s2, s2, 128")
    A("s_load_dwordx16 s[4:19], s[0:1], 0")
    A("s_load_dwordx2 s[20:21], s[0:1], 80")
    A("s_load_dwordx2 s[22:23], s[0:1], 64")
    stamp(A, 0, True); stamp(A, 1)
    A(f"s_bfe_u32 s{sT2}, s2, 0x30003"); A(f"s_lshl_b32 s{sT2}, s{sT2}, 13")
    A("v_lshrrev_b32 v1, 6, v0"); A("v_and_b32 v2, 15, v0"); A("v_lshl_add_u32 v2, v1, 4, v2")
    A(f"v_lshl_add_u32 v2, v2, 7, s{sT2}")
    A(f"v_min_u32 v2, {L('end')}-{L('start')}-8, v2")
    A(f"v_mov_b32 v3, s{sT0+1}")
    A(f"v_add_co_u32 v2, vcc, s{sT0}, v2")
    A("v_addc_co_u32 v3, vcc, 0, v3, vcc")
    A("global_load_dword v255, v[2:3], off")
    A(f"v_readfirstlane_b32 s{sWAVE}, v1")
    A(f"v_mov_b32 v{vTID}, v0")
    A("v_and_b32 v0, 63, v0")
    A(f"s_and_b32 s{sT0}, s2, 7"); A(f"s_lshr_b32 s{sT1}, s2, 3")
    A(f"s_lshr_b32 s{sM}, s{sT0}, 2"); A(f"s_lshl_b32 s{sM}, s{sM}, 3"); A(f"s_and_b32 s{sT2}, s{sT1}, 7"); A(f"s_add_u32 s{sM}, s{sM}, s{sT2}")
    A(f"s_and_b32 s{sU}, s{sT0}, 3"); A(f"s_lshl_b32 s{sU}, s{sU}, 1"); A(f"s_bfe_u32 s{sT2}, s{sT1}, 0x10003"); A(f"s_add_u32 s{sU}, s{sU}, s{sT2}")
    A(f"s_lshr_b32 s{sR}, s{sT0}, 1"); A(f"s_lshl_b32 s{sR}, s{sR}, 3"); A(f"s_lshr_b32 s{sT2}, s{sT1}, 2"); A(f"s_add_u32 s{sR}, s{sR}, s{sT2}")
    A(f"s_and_b32 s{sC}, s{sT0}, 1"); A(f"s_lshl_b32 s{sC}, s{sC}, 2"); A(f"s_and_b32 s{sT2}, s{sT1}, 3"); A(f"s_add_u32 s{sC}, s{sC}, s{sT2}")
    A("v_lshrrev_b32 v1, 3, v0"); A("v_and_b32 v2, 7, v0")
    A(f"s_lshl_b32 s{sT0}, s{sWAVE}, 5")
    A("v_lshrrev_b32 v4, 4, v0"); A("v_xor_b32 v4, v4, v2")
    A(f"v_add_u32 v3, s{sT0}, v1"); A("v_mul_u32_u24 v3, 1280, v3")
    A(f"v_lshl_add_u32 v{vXD}, v4, 4, v3")
    A(f"v_xor_b32 v5, 64, v{vXD}")
    A(f"v_add_u32 v{vXD+1}, {8*1280-1024}, v5")
    A(f"v_add_u32 v{vXD+2}, {16*1280-2048}, v{vXD}")
    A(f"v_add_u32 v{vXD+3}, {24*1280-3072}, v5")
    A(f"s_mul_i32 s{sXO}, s{sM}, {128*1280}")
    A(f"s_mul_i32 s{sXM}, s{sWAVE}, {XW}")
    A(f"v_lshlrev_b32 v{vW}, 4, v0"); A(f"v_add_u32 v{vW+1}, 4096, v{vW}")
    A(f"s_cmp_ge_u32 s2, 128")
    A(f"s_cbranch_scc1 {L('prole')}")

def pair_lane(A):
    A("v_lshrrev_b32 v1, 3, v0"); A("v_and_b32 v2, 7, v0")
    A("v_bfe_u32 v3, v0, 4, 1"); A("v_lshlrev_b32 v3, 2, v3"); A("v_xor_b32 v3, v3, v2")

def build_srds(A, p):
    if p:
        srd(A, SOUT, 22, 2048 * 1280)
        cs_line(A, sCSL, sT0, sT1)
        A(f"s_cmp_lt_u32 s{sCSL}, 30")
        A(f"s_cselect_b64 s[{SCS}:{SCS+1}], s[6:7], s[14:15]")
        csel(A, SCS + 2, 640*3840, 640*3456)
        A(f"s_and_b32 s{SCS+1}, s{SCS+1}, 0xffff"); A(f"s_mov_b32 s{SCS+3}, 0x20000")
        pack_T(A, sT0, sT1)
        A(f"s_cmp_lt_u32 s{sT0}, 54")
        A(f"s_cselect_b64 s[{SPK}:{SPK+1}], s[18:19], s[10:11]")
        csel(A, SPK + 2, 1728*1280, 640*1280)
        A(f"s_and_b32 s{SPK+1}, s{SPK+1}, 0xffff"); A(f"s_mov_b32 s{SPK+3}, 0x20000")
        srd(A, SWB, 10, 640 * 1280)
        srd(A, SB1, 16, 1728 * 2)
    srd(A, SPH, 8, 32 * 800)
    if not p: srd(A, SOUT, 22, 2048 * 1280)

def common_addr(A):
    A("v_and_b32 v1, 31, v0"); A("v_lshrrev_b32 v2, 5, v0"); A("v_bfe_u32 v3, v0, 1, 3")
    A("v_lshlrev_b32 v4, 7, v1"); A(f"v_add_u32 v4, s{sXM}, v4")
    for q in range(4):
        A(f"v_add_u32 v5, {2*q}, v2"); A("v_xor_b32 v5, v5, v3")
        A(f"v_lshl_add_u32 v{vXRD+q}, v5, 4, v4")
    A("v_lshrrev_b32 v3, 4, v1"); A(f"v_mul_u32_u24 v3, {ACT_BLK}, v3"); A("v_lshl_add_u32 v3, v2, 8, v3")
    A("v_and_b32 v4, 15, v0"); A(f"v_lshl_add_u32 v{vAST}, v4, 4, v3")
    A(f"s_lshl_b32 s{sT0}, s{sM}, 3"); A(f"s_lshl_b32 s{sT1}, s{sWAVE}, 1"); A(f"s_add_u32 s{sT0}, s{sT0}, s{sT1}")
    A(f"s_mul_i32 s{sACT}, s{sT0}, {ACT_BLK}"); A(f"s_add_u32 s{sACT}, s{sACT}, {ACT_OFF}")
    A(f"s_lshl_b32 s{sT0}, s2, 8"); A(f"s_add_u32 s{sT0}, s{sT0}, {FLG_OFF}")
    A(f"v_mov_b32 v3, s{sT0}"); A(f"v_mov_b32 v4, {hex(OOB)}")
    A(f"v_cmp_eq_u32 vcc, 0, v{vTID}"); A(f"v_cndmask_b32 v{vFL}, v4, v3, vcc")
    poll_addr(A, "all", 3, 4)
    A(f"s_mul_i32 s{sW}, s{sC}, 74"); A(f"s_add_u32 s{sW}, s{sW}, s{sWAVE}"); A(f"s_mul_i32 s{sW}, s{sW}, 5120")
    A(f"s_add_u32 s{sW}, s{sW}, {W2P_OFF}")
    A(f"s_add_u32 s{sX1}, s{sW}, {13*20480}")
    A(f"s_cmp_lt_u32 s{sWAVE}, 2"); A(f"s_cselect_b32 s{sX1}, s{sX1}, {hex(OOB)}")
    A(f"s_mul_i32 s{sPV}, s{sWAVE}, {4*5120}"); A(f"s_add_u32 s{sPV}, s{sPV}, {6*5120 + 12*20480}")
    A(f"s_add_u32 s{sPV}, s{sPV}, s{sW}")
    A("v_and_b32 v1, 3, v0"); A("v_bfe_u32 v2, v0, 2, 1"); A("v_bfe_u32 v3, v0, 3, 2")
    A("v_lshrrev_b32 v4, 1, v3"); A("v_lshl_add_u32 v4, v4, 1, v2")
    A("v_and_b32 v5, 1, v3"); A("v_lshl_add_u32 v5, v5, 2, v1"); A("v_lshl_add_u32 v4, v4, 3, v5")
    A(f"v_lshlrev_b32 v{vCP}, 4, v4")

def pair_read_base(A, dst):
    A("v_lshrrev_b32 v7, 1, v4"); A("v_lshlrev_b32 v7, 2, v7"); A("v_lshl_add_u32 v7, v3, 1, v7")
    A("v_and_b32 v5, 1, v4"); A("v_add_u32 v7, v7, v5"); A("v_lshlrev_b32 v7, 3, v7")
    A("v_lshl_add_u32 v7, v6, 7, v7"); A("v_bfe_u32 v5, v0, 3, 1"); A(f"v_lshl_add_u32 v{dst}, v5, 6, v7")

def as_queue(B):
    return [(x.text, x.tag, 1 if x.cls == "vmem" else 0, x.glue) for x in B.ins]

def stats_load(A):
    A(f"s_lshl_b32 s{sP0}, s{sM}, 2"); A(f"s_add_u32 s{sP0}, s{sP0}, s{sWAVE}"); A(f"s_lshl_b32 s{sP0}, s{sP0}, 8")
    A(f"s_add_u32 s{sP0}, s{sP0}, {ST_OFF}")
    A(f"v_and_b32 v{vPT}, 31, v0"); A(f"v_lshlrev_b32 v{vPT}, 3, v{vPT}")
    A(f"buffer_load_dwordx2 {v(vST,2)}, v{vPT}, {srdr(SWS)}, s{sP0} offen sc1")

def epoch_load(A):
    A(f"v_mov_b32 v{vEP}, 0")
    A(f"buffer_load_dword v{vEP}, v{vEP}, {srdr(SWS)}, 0 offen sc1")

def role_kv(A, C):
    L = C.L
    ACC_A = 176; ACC_Q = 64; KP = 96; PAK = 120; VP = 184; EP = 216; PK = 184; KVA = 184; CR = 120
    A(f"s_lshl_b32 s{sT0}, s{sWAVE}, 3")
    A(f"s_mul_i32 s{sT1}, s{sU}, 160"); A(f"s_add_u32 s{sT1}, s{sT1}, 1280")
    for i in range(3):
        A(f"v_add_u32 v1, {64*i}, v0")
        A("v_mul_u32_u24 v2, 3277, v1"); A("v_lshrrev_b32 v2, 16, v2")
        A("v_mul_u32_u24 v3, 20, v2"); A("v_sub_u32 v3, v1, v3")
        A("v_mul_u32_u24 v4, 13108, v3"); A("v_lshrrev_b32 v4, 16, v4")
        A("v_and_b32 v5, 1, v4"); A("v_lshrrev_b32 v4, 1, v4")
        A("v_mul_u32_u24 v5, 1200, v5"); A("v_mul_u32_u24 v4, 80, v4")
        A(f"v_add_u32 v2, s{sT0}, v2"); A("v_mul_u32_u24 v2, 3840, v2"); A("v_lshl_add_u32 v2, v3, 4, v2")
        A("v_add_u32 v2, v2, v5"); A("v_sub_u32 v2, v2, v4")
        A(f"v_add_u32 v{vAD+i}, s{sT1}, v2")
        if i: A(f"v_subrev_u32 v{vAD+i}, {1024*i}, v{vAD+i}")
    A(f"v_mov_b32 v1, {hex(OOB)}"); A("v_cmp_gt_u32 vcc, 32, v0"); A(f"v_cndmask_b32 v{vAD+2}, v1, v{vAD+2}, vcc")
    A(f"s_mul_i32 s{sWB}, s{sWAVE}, 3072"); A(f"s_add_u32 s{sWB}, s{sWB}, {WR}")
    pair_lane(A)
    A(f"v_add_u32 v4, s{sT0}, v1"); A("v_mul_u32_u24 v4, 3840, v4")
    A(f"v_lshl_add_u32 v4, v3, 4, v4"); A(f"s_lshl_b32 s{sT1}, s{sU}, 7")
    A(f"v_add_u32 v{vPD}, s{sT1}, v4")
    A("s_waitcnt lgkmcnt(0)")
    srd(A, SX, 4, 2048 * 1280)
    srd(A, SWS, 20, WS_SIZE)
    A0 = A; A = Asm()
    srd(A, SWA, 6, 640 * 3840)
    A(f"s_lshl_b32 s{sWQ}, s{sWAVE}, 10"); A(f"s_add_u32 s{sWQ}, s{sWQ}, {WR + 12288}")
    build_srds(A, False)
    spread(A0, A, x_dma(0), 3, first=3)
    A = Asm()
    common_addr(A)
    vCA = 40
    A("v_mul_u32_u24 v4, 40, v2"); A("v_lshl_add_u32 v4, v3, 2, v4"); A("v_add_u32 v4, v4, v1")
    A(f"v_lshlrev_b32 v{vCA}, 4, v4"); A(f"v_add_u32 v{vCA+2}, {600*16}, v{vCA}")
    A("v_cmp_lt_u32 vcc, 1, v3"); A(f"v_cndmask_b32 v{vCA+1}, v{vCA}, v{vCA+2}, vcc")
    common_lane(A)
    A("v_mul_u32_u24 v7, 320, v6"); A(f"v_mul_u32_u24 v{vAR}, 160, v3"); A(f"v_add_u32 v{vAR}, v{vAR}, v7")
    A(f"v_lshl_add_u32 v{vAR}, v1, 9, v{vAR}")
    A(f"v_lshl_add_u32 v{vAR}, v4, 3, v{vAR}"); A(f"v_add_u32 v{vAR}, {WR}, v{vAR}"); A(f"v_add_u32 v{vAR+1}, 65536, v{vAR}")
    pair_read_base(A, vPR)
    A(f"v_add_u32 v{vPR}, {WR + 12288}, v{vPR}")
    A(f"v_xor_b32 v{vPR+1}, 64, v{vPR}")
    A(f"v_add_u32 v{vPR+2}, 65536, v{vPR}"); A(f"v_add_u32 v{vPR+3}, 65536, v{vPR+1}")
    spread(A0, A, kv_dma(0) + kv_dma(1), 10, first=10)
    A = A0
    epoch_load(A)
    phi_loads(A, True, aPH)
    emit(A, x_dma(1) + kv_dma(2) + kv_dma(3))
    pt(A, "pro")
    S1 = OPT.get("s1kv", 9); HB = OPT.get("hbkv", 1)
    KW = OPT.get("kw", ((5,), (6, 7, 0, 1), (2, 3, 4, 8, 9, 10, 11), ()))
    steps = []
    accs = [ACC_A + 16 * t for t in range(5)] + [ACC_Q, ACC_Q + 16]
    for s in range(40):
        c, sp = divmod(s, 4)
        h = s >> 1; sl = h % 6; hi = sl >= 4
        fr = aW + 28 * (s & 1)
        rd = []
        for t in range(5):
            for rho in range(2):
                off = (sl & 3 if hi else sl) * HS + (s & 1) * 6144 + rho * 1280 + t * 32
                rd.append(f"ds_read_b64_tr_b16 {a(fr + 4*t + 2*rho, 2)}, v{vAR + hi} offset:{off}")
        for t in range(2):
            for rho in range(2):
                off = (sl & 3 if hi else sl) * HS + (s & 1) * 2048 + rho * 512
                rd.append(f"ds_read_b64_tr_b16 {a(fr + 20 + 4*t + 2*rho, 2)}, v{vPR + t + 2*hi} offset:{off}")
        q = []
        if HB:
            if s == 0: q += kv_dma(4) + x_dma(2)
            if sp in (0, 2): q += kv_dma(h + 5)
            if sp == 2: q += x_dma(c + 3)
        elif sp == 0: q += x_dma(c + 2) + kv_dma(h + 4) + kv_dma(h + 5)
        steps.append(dict(nt=7, acc=accs, first=(s == 0), xreg=aX + 16 * (c & 1) + 4 * sp, frag=fr, reads=rd,
                          chunk=h if sp == 0 or (HB and sp == 2) else None, xj=c if sp == 0 else None, queue=q,
                          tags=[] if HB else [f"w{h+1}"]))
    def pre(A, c):
        if c == S1: poll_check(A, C, 1)
    def post(A, c, dq):
        pt(A, f"c{c}")
        if c == 1: A(f"v_readfirstlane_b32 s{sE}, v{vEP}")
        if c == S1 - 1: poll_issue(A)
        if c == S1:
            A = Asm()
            stats_load(A)
            A(f"s_mul_i32 s{sP0}, s{sU}, {80*16}"); A(f"s_add_u32 s{sP0}, s{sP0}, {CS_OFF + 640*16}")
            for t in range(5):
                A(f"buffer_load_dwordx4 {v(CR+4*t,4)}, v{vCA+[0,0,1,2,2][t]}, {srdr(SWS)}, s{sP0} offen offset:{256*t} sc1")
            A(f"s_lshl_b32 s{sP0}, s{sU}, 10"); A(f"s_add_u32 s{sP0}, s{sP0}, {CS_OFF}")
            for t in range(2):
                A(f"buffer_load_dwordx4 {v(vQC+4*t,4)}, v{vCP}, {srdr(SWS)}, s{sP0} offen offset:{512*t} sc1")
            dq.add(as_queue(A), front=True)
            dq.add(wl(*KW[0]))
    M = Asm(); dq = DQ()
    gemm_steps(M, steps, 1, dq, pre, post, every=OPT.get("kvevery", [2] * 9 + [1]))
    dq.pop(M, 99)
    F = Asm(); phi_writes(F, True, aPH)
    ins, left = weave(M, F, start=30, per=2); assert not left
    F = Asm()
    common_lane(F)
    F("v_mul_u32_u24 v7, 1920, v3"); F(f"v_add_u32 v7, {PHI1}, v7"); F(f"v_mov_b32 v5, {PZERO}")
    F("v_cmp_eq_u32 vcc, v1, v3"); F.g("v_cndmask_b32 v7, v5, v7, vcc")
    F("v_mul_u32_u24 v5, 40, v2"); F("v_add_u32 v7, v7, v5"); F("v_lshl_add_u32 v6, v4, 3, v7"); F("v_add_u32 v7, 32, v7")
    F(f"s_lshl_b32 s{sPKD}, s{sU}, 11"); F(f"s_add_u32 s{sPKD}, s{sPKD}, s{sACT}"); F(f"s_add_u32 s{sPKD}, s{sPKD}, {74*1024}")
    bufs = [0, 4, 8, 12, 16, 20, 24, 28, 32, 36, 40, 44]
    seq = [(sg, tau, st) for sg in range(2) for st in range(3) for tau in range(2)]
    for n in range(12):
        sg, tau, st = seq[n]
        for rho in range(2):
            F(f"ds_read_b64_tr_b16 {a(bufs[n]+2*rho,2)}, v{6+tau} offset:{sg*960+(8*st+4*rho)*40}")
    ins, left = weave(ins, F, start=200, per=1.5); assert not left
    FC = Asm()
    stats_frag(FC, 1)
    for t in range(5): corr_frag(FC, CR + 4 * t, 1 + (t & 1))
    for t in range(2): corr_frag(FC, vQC + 4 * t, 1 + (t & 1))
    if S1 < 9:
        ins, left = weave(ins, FC, start=256, per=3); FC.ins = left
    A.extend(ins)
    pt(A, "p1end")
    A0 = A; A = Asm()
    A.extend(FC)
    pt(A, "fc")
    for t in range(5):
        A(f"v_mfma_f32_32x32x16_bf16 {v(ACC_A+16*t,16)}, {v(CR+4*t,4)}, {v(vCB,4)}, {v(ACC_A+16*t,16)}")
    for t in range(2):
        A(f"v_mfma_f32_32x32x16_bf16 {v(ACC_Q+16*t,16)}, {v(vQC+4*t,4)}, {v(vCB,4)}, {v(ACC_Q+16*t,16)}")
    for i in range(20):
        A(f"v_cvt_pk_bf16_f32 v{KP+i}, v{ACC_A+2*i}, v{ACC_A+2*i+1}")
    A(f"v_mov_b32 v{KP+20}, 0"); A(f"v_mov_b32 v{KP+21}, 0")
    vs = Asm()
    for t in range(2):
        for p in range(2):
            for i in range(4):
                r = ACC_Q + 16 * t + 8 * p
                vs(f"v_cvt_pk_bf16_f32 v{r+i}, v{r+2*i}, v{r+2*i+1}")
            pair_store(vs, ACC_Q, sPKD, "qst", t, p)
    vs("v_and_b32 v1, 31, v0"); vs(f"s_lshl_b32 s{sF0}, s{sWAVE}, 5"); vs(f"v_add_u32 v1, s{sF0}, v1")
    vs("v_lshrrev_b32 v2, 5, v0")
    vs("v_mul_u32_u24 v3, 48, v1"); vs("v_mul_u32_u24 v5, 12288, v2"); vs("v_add_u32 v3, v3, v5"); vs(f"v_add_u32 v{vAR+1}, {VIM}, v3")
    vs("v_mul_u32_u24 v3, 80, v1"); vs("v_mul_u32_u24 v4, 20480, v2"); vs("v_add_u32 v3, v3, v4"); vs(f"v_add_u32 v{vAR}, {PHIK}, v3")
    for sg in range(2):
        for i in range(10):
            r = ACC_A + 40 + 20 * sg + 2 * i
            vs(f"v_mul_f32 v{r}, v{r}, v{vRS}"); vs(f"v_mul_f32 v{r+1}, v{r+1}, v{vRS}")
            vs(f"v_cvt_pk_bf16_f32 v{VP+12*sg+i}, v{r}, v{r+1}")
        vs(f"v_mov_b32 v{VP+12*sg+10}, 0x3f80"); vs(f"v_mov_b32 v{VP+12*sg+11}, 0")
        for i in range(3):
            vs(f"ds_write_b128 v{vAR+1}, {v(VP+12*sg+4*i,4)} offset:{6144*sg+16*i}")
    K = Asm()
    for n in range(12):
        sg, tau, st = seq[n]
        d = v(PAK + 32 * sg + 16 * tau, 16)
        K(f"v_mfma_f32_32x32x16_bf16 {d}, {a(bufs[n],4)}, {v(KP+10*sg+4*st,4)}, {'0' if st == 0 else d}")
    ins, left = weave(K, vs, per=5)
    A.extend(ins); A.extend(left)
    pt(A, "head")
    if OPT.get("verbose"): print("kv epilogue head", len(A.ins))
    spread(A0, A, wl(*KW[1]), OPT.get("kvsp0", 9), first=OPT.get("kvf0", 0))
    A = A0
    wq = wl(*KW[2])
    F = Asm()
    for sg in range(2):
        softmax_pair_pk(F, PAK + 32 * sg, EP, EP + 20, PK, vS1, 2)
        for i in range(5):
            F(f"ds_write_b128 v{vAR}, {v(PK+4*i,4)} offset:{10240*sg+16*i}")
        if sg == 0:
            F.wait(vm="qst"); F.g("s_barrier"); signal(F, 2)
    poll_addr(F, "q", 1, 2)
    F("v_lshrrev_b32 v1, 5, v0"); F("v_bfe_u32 v2, v0, 2, 2"); F("v_lshlrev_b32 v2, 2, v2"); F("v_lshl_add_u32 v2, v1, 1, v2")
    F("v_and_b32 v3, 3, v0"); F("v_bfe_u32 v4, v0, 4, 1"); F("v_lshl_add_u32 v3, v4, 2, v3")
    F(f"s_mul_i32 s{sF0}, s{sWAVE}, 10240"); F(f"s_add_u32 s{sF0}, s{sF0}, {PHIK}")
    F("v_mul_u32_u24 v4, 80, v2"); F(f"v_add_u32 v4, s{sF0}, v4"); F("v_lshl_add_u32 v5, v3, 3, v4")
    F("v_and_b32 v6, 1, v3"); F("v_lshl_add_u32 v6, v6, 3, v4"); F("v_add_u32 v6, 64, v6")
    F(f"s_mul_i32 s{sF0}, s{sWAVE}, 6144"); F(f"s_add_u32 s{sF0}, s{sF0}, {VIM}")
    F("v_mul_u32_u24 v4, 48, v2"); F(f"v_add_u32 v4, s{sF0}, v4"); F("v_min_u32 v7, 5, v3"); F("v_lshl_add_u32 v7, v7, 3, v4")
    if OPT.get("verbose"): print("kv epilogue F", len(F.ins))
    spread(A, F, wq, OPT.get("kvsp", 9))
    pt(A, "p2end")
    if OPT.get("kvqp", 0) == 0: poll_issue(A)
    A.wait(lgkm="all")
    A("s_barrier")
    fb = [120, 132, 144, 156]
    def krd(st):
        fr = fb[st % 4]
        for rho in range(2):
            A(f"ds_read_b64_tr_b16 {v(fr+2*rho,2)}, v5 offset:{(16*st+rho)*80}")
            A(f"ds_read_b64_tr_b16 {v(fr+8+2*rho,2)}, v7 offset:{(16*st+rho)*48}")
            A(f"ds_read_b64_tr_b16 {v(fr+4+2*rho,2)}, v6 offset:{(16*st+rho)*80}")
    for st in range(4): krd(st)
    if OPT.get("kvqp", 0) == 1: poll_issue(A)
    G = Asm()
    p2_addr_early(G)
    G(f"s_mul_i32 s{sT1}, s{sWAVE}, 10240"); G(f"s_add_u32 s{sT1}, s{sT1}, {PHIK}")
    G("v_and_b32 v1, 31, v0"); G("v_lshrrev_b32 v2, 5, v0"); G("v_mul_u32_u24 v2, 384, v2"); G("v_lshl_add_u32 v2, v1, 2, v2")
    G("v_add_u32 v3, 4096, v2"); G("v_cmp_gt_u32 vcc, 24, v1"); G.g("v_cndmask_b32 v2, v3, v2, vcc")
    G(f"v_add_u32 v{vKA+1}, s{sT1}, v2")
    G(f"v_lshlrev_b32 v{vKA}, 2, v0"); G(f"v_add_u32 v{vKA+2}, s{sT1}, v{vKA}")
    G(f"s_lshl_b32 s{sT0}, s{sU}, 2"); G(f"s_add_u32 s{sT0}, s{sT0}, s{sWAVE}"); G(f"s_mul_i32 s{sT0}, s{sT0}, {KVH}")
    G(f"s_and_b32 s{sT1}, s{sM}, 1"); G(f"s_mul_i32 s{sT1}, s{sT1}, {KVC}"); G(f"s_add_u32 s{sT0}, s{sT0}, s{sT1}")
    G(f"s_add_u32 s{sT0}, s{sT0}, {KV_OFF}")
    K = Asm()
    sv = A.ins; A.ins = K.ins
    for st in range(8):
        fr = fb[st % 4]
        for tau in range(2):
            d = v(KVA + 16 * tau, 16)
            A(f"v_mfma_f32_32x32x16_bf16 {d}, {v(fr+4*tau,4)}, {v(fr+8,4)}, {'0' if st == 0 else d}")
        if st + 4 < 8: krd(st + 4)
    A.ins = sv
    ins, left = weave(K, G, start=8, per=6)
    A.extend(ins); A.extend(left)
    DN = 120
    def relayout(A):
        for r in range(20):
            A(f"ds_write_b32 v{vKA+1}, v{KVA+r} offset:{(8 * (r >> 2) + (r & 3)) * 96}")
        for i in range(0, 14, 2):
            A(f"ds_read2st64_b32 {v(DN+i,2)}, v{vKA+2} offset0:{i} offset1:{i+1}")
        A(f"ds_read_b32 v{DN+14}, v{vKA+2} offset:{14*256}")
    pt(A, "kvm")
    if OPT.get("kvrl", 0): relayout(A)
    poll_check(A, C, 2)
    p2_first_loads(A)
    pt(A, "sig2")
    if not OPT.get("kvrl", 0): relayout(A)
    for r in range(15):
        A(f"buffer_atomic_add_f32 v{DN+r}, v{vKA}, {srdr(SWS)}, s{sT0} offen offset:{r*256} sc1", "fin")
    pt(A, "first")
    part1_head(A)
    part1(A, wl(*KW[3]), OPT.get("kkf"))
    A(f"s_branch {L('tail')}")

def pinfo(A, sl, J, qf):
    if isinstance(sl, int):
        if sl == 0:
            A(f"s_cmp_lt_u32 s{sU}, 2"); A.g(f"s_cselect_b32 s{J}, 8, -2"); A.g(f"s_cselect_b32 s{qf}, 1, 0")
        else:
            if sl == 3 and OPT.get("bal", 1):
                A(f"s_cmp_lt_u32 s{sU}, 5"); A.g(f"s_cselect_b32 s{J}, 22, 19")
            else: A(f"s_mov_b32 s{J}, {8*sl - 2}")
            A(f"s_mov_b32 s{qf}, 0")
        A(f"s_add_u32 s{J}, s{J}, s{sU}")

def role_p(A, C):
    L = C.L
    ACC = 128; CR = 64; MT = 64
    A.label(L("prole"))
    A(f"s_lshl_b32 s{sT0}, s{sWAVE}, 3"); A(f"s_add_u32 s{sT0}, s{sT0}, s{sU}")
    A(f"s_cmp_lt_u32 s{sT0}, 2"); A(f"s_cselect_b32 s{sT1}, 8, -2"); A(f"s_cselect_b32 s{sT2}, 1, 0")
    csel(A, sT3, 3840, 3456)
    BAL = OPT.get("bal", 1)
    if BAL:
        A(f"s_add_u32 s{sT0}, s{sT0}, s{sT1}")
        A(f"s_cmp_lt_u32 s{sT0}, 27"); A(f"s_cselect_b32 s{sT1}, 0, 3"); A(f"s_sub_u32 s{sT0}, s{sT0}, s{sT1}")
        A(f"s_lshl_b32 s{sT1}, s{sT0}, 7")
    else:
        A(f"s_add_u32 s{sT0}, s{sT0}, s{sT1}"); A(f"s_lshl_b32 s{sT1}, s{sT0}, 7")
        A(f"s_cmp_lt_u32 s{sT0}, 27"); A(f"s_cselect_b32 s{sT1}, s{sT1}, {hex(OOB)}")
    pair_lane(A)
    A(f"v_mul_u32_u24 v5, s{sT3}, v1"); A(f"v_lshl_add_u32 v{vP1}, v3, 4, v5")
    A(f"s_lshl_b32 s{sT0}, s{sT3}, 3"); A(f"s_sub_u32 s{sT0}, s{sT0}, 1024")
    for i in range(1, 4):
        A(f"v_add_u32 v{vP1+i}, s{sT0}, v{vP1+i-1}")
    A(f"s_lshl_b32 s{sWB}, s{sWAVE}, 12"); A(f"s_add_u32 s{sWB}, s{sWB}, {WR}")
    A("s_waitcnt lgkmcnt(0)")
    srd(A, SX, 4, 2048 * 1280)
    srd(A, SWS, 20, WS_SIZE)
    A(f"s_cmp_eq_u32 s{sT2}, 1")
    A(f"s_cselect_b64 s[{SWA}:{SWA+1}], s[6:7], s[14:15]")
    csel(A, SWA + 2, 640*3840, 640*3456)
    A(f"s_and_b32 s{SWA+1}, s{SWA+1}, 0xffff"); A(f"s_mov_b32 s{SWA+3}, 0x20000")
    A(f"s_mov_b32 s{sWO}, s{sT1}"); A(f"s_lshl_b32 s{sWS}, s{sT3}, 5")
    A0 = A; A = Asm()
    build_srds(A, True)
    spread(A0, A, x_dma(0), 8, first=8)
    A = Asm(); pack_setup(A)
    spread(A0, A, p_dma(0) + p_dma(1), 16, first=16)
    epoch_load(A0)
    A = Asm()
    common_addr(A)
    common_lane(A)
    pair_read_base(A, vPRP)
    A(f"v_add_u32 v{vPRP}, {WR}, v{vPRP}")
    A(f"v_xor_b32 v{vPRP+1}, 64, v{vPRP}")
    A(f"v_add_u32 v{vPRP+2}, 65536, v{vPRP}"); A(f"v_add_u32 v{vPRP+3}, 65536, v{vPRP+1}")
    pack_read_addr(A)
    prep_setup(A)
    phi_loads(A, False, aPH)
    spread(A0, A, pack_dma() + x_dma(1) + p_dma(2) + p_dma(3), 7, first=7)
    A = A0
    pt(A, "pro")
    S1 = OPT.get("s1p", 8); SG = OPT.get("sig1", 5); HB = OPT.get("hbp", 1)
    PW = OPT.get("pw", ((2, 3, 4, 5), (0, 1, 6), (7, 8), (9,), (10, 11)))
    steps = []
    for s in range(40):
        g, sp = divmod(s, 4)
        h = s >> 1; sl = h % 6; hi = sl >= 4
        fr = aW + 32 * (s & 1)
        rd = []
        for t in range(8):
            for rho in range(2):
                off = (sl & 3 if hi else sl) * HS + (t >> 1) * 4096 + (s & 1) * 2048 + rho * 512
                rd.append(f"ds_read_b64_tr_b16 {a(fr + 4*t + 2*rho, 2)}, v{vPRP + (t & 1) + 2*hi} offset:{off}")
        q = []
        NP = OPT.get("noprep")
        if s == 0: q += ([] if NP else cs_loads()) + p_dma(4) + pack_reads() + ([] if NP else stats_loads()) + [("WAIT:lgkm:pkr", None, 0)] + x_dma(2) + p_dma(5)
        elif HB:
            if sp in (0, 2): q += p_dma(h + 5)
            if sp == 2: q += x_dma(g + 3)
        elif sp == 0: q += x_dma(g + 2) + p_dma(h + 4) + p_dma(h + 5)
        if s == 4 and not NP: q += pack_stores() + pack_shared()
        steps.append(dict(nt=8, acc=[ACC + 16 * t for t in range(8)], first=(s == 0), xreg=aX + 16 * (g & 1) + 4 * sp, frag=fr,
                          reads=rd, chunk=h if sp == 0 or (HB and sp == 2) else None, xj=g if sp == 0 else None, queue=q,
                          tags=(["prep"] if s == 4 * SG else (["pkx"] if s == 4 else [])) + ([] if HB else [f"w{h+1}"])))
    def pre(A, c):
        if c == S1: poll_check(A, C, 1)
    def post(A, c, dq):
        pt(A, f"c{c}")
        if c == 1: A(f"v_readfirstlane_b32 s{sE}, v{vEP}")
        if c == SG: signal(A, 1)
        if c == S1 - 1: poll_issue(A)
        if c == S1:
            A = Asm()
            stats_load(A)
            for sl in range(4):
                pinfo(A, sl, sT0, sT1)
                A(f"s_lshl_b32 s{sT0}, s{sT0}, 10"); A(f"s_mul_i32 s{sT1}, s{sT1}, {-1920*16}")
                A(f"s_add_u32 s{sT0}, s{sT0}, s{sT1}"); A(f"s_add_u32 s{sT0}, s{sT0}, {CS_OFF + 1920*16}")
                for t in range(2):
                    A(f"buffer_load_dwordx4 {v(CR+8*sl+4*t,4)}, v{vCP}, {srdr(SWS)}, s{sT0} offen offset:{512*t} sc1")
            dq.add(as_queue(A), front=True)
            dq.add(wl(*PW[0]))
    M = Asm(); dq = DQ()
    gemm_steps(M, steps, 1, dq, pre, post, every=OPT.get("pevery", [1.4, 1.4, 1.6, 2]))
    dq.pop(M, 99)
    g0 = OPT.get("pw0", 30); cb = OPT.get("csbar", 5 if HB else 6)
    F = Asm(); cs_setup(F); zero_kv(F)
    ins, left = weave32(M, F, start=2, stop=25, budget=5.5); assert not left, len(left)
    FS = Asm(); stats_compute(FS)
    k = OPT.get("stk", 40)
    F = Asm(); phi_writes(F, False, aPH); cs_compute(F); F.extend(FS.ins[:k]); cs_write(F)
    ins, left = weave32(ins, F, start=g0, stop=16 * cb - 6, budget=OPT.get("pbud", 5.5)); assert not left, len(left)
    F = Asm(); cs_finish(F); F.extend(FS.ins[k:])
    ins, left = weave32(ins, F, start=16 * cb - 5, stop=32 * SG - 6, budget=OPT.get("pbud", 5.5)); assert not left
    F = Asm()
    stats_frag(F, 1)
    for t in range(8): corr_frag(F, CR + 4 * t, 1 + (t & 1))
    for sl, d in enumerate((sPKO, sPKD, sPX0, sPX1)):
        pinfo(F, sl, d, sF0)
        if sl == 0: F(f"s_mov_b32 s{sQF}, s{sF0}"); F(f"s_mul_i32 s{sF0}, s{sF0}, {74*1024}")
        F(f"s_lshl_b32 s{d}, s{d}, 11"); F(f"s_add_u32 s{d}, s{d}, s{sACT}")
        if sl == 0: F(f"s_add_u32 s{d}, s{d}, s{sF0}")
    ins, left = weave32(ins, F, start=32 * (S1 + 1) - 4, budget=5.5)
    A.extend(ins)
    pt(A, "p1end")
    A.extend(left)
    for t in range(8):
        A(f"v_mfma_f32_32x32x16_bf16 {v(ACC+16*t,16)}, {v(CR+4*t,4)}, {v(vCB,4)}, {v(ACC+16*t,16)}")
    poll_addr(A, "q", 1, 2)
    p2_addr_early(A)
    def mslot(A, sl, so, tag, ts=(0, 1)):
        for t in ts:
            for p in range(2):
                mish_pk(A, ACC + 32 * sl + 16 * t + 8 * p, 8, MT)
                pair_store(A, ACC + 32 * sl, so, tag, t, p)
    sp = OPT.get("psp", 14)
    A(f"s_cmp_eq_u32 s{sQF}, 1")
    A(f"s_cbranch_scc0 {L('noq')}")
    for t in range(2):
        for p in range(2):
            r = ACC + 16 * t + 8 * p
            for i in range(4): A(f"v_cvt_pk_bf16_f32 v{r+i}, v{r+2*i}, v{r+2*i+1}")
            pair_store(A, ACC, sPKO, "qst", t, p)
    F = Asm(); mslot(F, 1, sPKD, "stA", (0,))
    spread(A, F, wl(*PW[1][:1]), sp)
    A.wait(vm="qst"); A.g("s_barrier"); signal(A, 2)
    emit(A, wl(*PW[1][1:]))
    A(f"s_branch {L('q9')}")
    A.label(L("noq"))
    F = Asm(); mslot(F, 0, sPKO, "stA"); mslot(F, 1, sPKD, "stA", (0,))
    spread(A, F, wl(*PW[1]), sp)
    A.label(L("q9"))
    F = Asm(); mslot(F, 1, sPKD, "stA", (1,))
    poll_issue(F)
    mslot(F, 2, sPX0, "fin", (0,))
    spread(A, F, wl(*PW[2]), sp)
    A.wait(vm="stA"); A.g("s_barrier"); signal(A, 3)
    pt(A, "p2end")
    F = Asm(); mslot(F, 2, sPX0, "fin", (1,))
    spread(A, F, wl(*PW[3]), sp)
    poll_check(A, C, 2)
    p2_first_loads(A)
    pt(A, "sig2")
    if BAL:
        A(f"s_cmp_lt_u32 s{sU}, 2")
        A(f"s_cbranch_scc1 {L('h3')}")
        A(f"s_cmp_lt_u32 s{sU}, 5")
        A(f"s_cbranch_scc1 {L('h4')}")
        for t in (1, 0):
            F = Asm(); mslot(F, 3, sPX1, "fin", (t,))
            spread(A, F, wl(*PW[4]), OPT.get("psp3", 7))
            A(f"s_branch {L('h9')}")
            if t: A.label(L("h4"))
    else:
        A(f"s_cmp_lt_u32 s{sU}, 5")
        A(f"s_cbranch_scc1 {L('h3')}")
        emit(A, wl(*PW[4]))
        A(f"s_branch {L('h9')}")
    A.label(L("h3"))
    F = Asm(); mslot(F, 3, sPX1, "fin")
    spread(A, F, wl(*PW[4]), sp)
    A.label(L("h9"))
    pt(A, "first")
    part1_head(A)
    part1(A, [], OPT.get("pkf"))

def phase2(A, C):
    L = C.L
    A.label(L("tail"))
    OWN = OPT.get("own", 1)
    vWL = 36
    WOB = [0, 61440, 81920, 102400, 122880]
    def wdma(g):
        o = [(f"s_add_u32 m0, s{sWB}, {WOB[g]}", None, 0), (f"s_add_u32 s{sXD}, s{sPV}, {5120*g}", None, 0)]
        for nt in range(5):
            if nt == 4: o.append((f"s_add_u32 m0, s{sWB}, {WOB[g] + 4096}", None, 0))
            o.append((f"buffer_load_dwordx4 v{vW+(nt>>2)}, {srdr(SWS)}, s{sXD} offen offset:{1024*(nt&3)} sc1 lds", f"WL{g}", 1))
        return o
    EX = [a(240,4), a(244,4), a(248,4), a(252,4), v(100,4), v(104,4), v(108,4), v(40,4), v(80,4), v(84,4)] + [v(44+4*i,4) for i in range(5)]
    def wo(j, nt):
        if j < 9: return a(slot(2 + j) + 4 * nt, 4)
        if j < 12: return EX[5 * (j - 9) + nt]
        if j < 15: return a(slot(j - 1) + 4 * nt, 4)
        return a(slot(j - 13) + 4 * nt, 4)
    def wrd(j, nt):
        g, w = j >> 2, j & 3
        b, off = (vW, 0) if g == 0 else (vWL + (g >= 3), WOB[g] - (61440 if g < 3 else 102400))
        return (f"ds_read_b128 {wo(j,nt)}, v{b} offset:{off + 5120*w + 1024*nt}", None, 1)
    def place(e, lst, gaps):
        k = 0
        for x in lst:
            e.setdefault(gaps[k], []).append(x)
            k += x[2]
        return e
    LW = OPT.get("lw", {-1: (0,), 2: (1,), 3: (2,), 4: (3, 4)})
    NP = OPT.get("na", 2) + OPT.get("nb", 2) - 1 + OPT.get("p2steps", 1)
    SG = NP + 1 + OPT.get("osig", 0)
    RS = {}
    EARLY = [g for n in LW for g in LW[n] if n < OPT.get("na", 2)]
    LS = {g: n for n in LW for g in LW[n]}
    LATE = [g for g in range(5) if LS[g] > NP]
    assert LS[0] <= NP and LS[1] <= NP and max(LW) <= 10
    def plan_reads():
        todo = [j for j in list(range(8)) + [9, 10, 11] if (j >> 2) not in LATE]
        q = [(j, nt) for j in todo for nt in range(5)]
        for n in range(NP + 1, 11):
            ok = [x for x in q if ((x[0] >> 2) in EARLY or n > SG) and (x[0] > 8 or x[0] + 2 < n)]
            cap = len(ok) if n == 10 else min(len(ok), -(-len(q) // (11 - n)) + OPT.get("rsx", 0))
            RS[n] = [wrd(*x) for x in ok[:cap]]
            q = [x for x in q if x not in ok[:cap]]
        assert not q
    plan_reads()
    XH = [32, 33, 34, 35, 20, 21, 22, 23, 98, 99]
    def step(M, n, extra, order=range(4)):
        if OWN:
            for gi, k in enumerate(order):
                for nt in range(5):
                    d = v(ACCO + 4 * (5 * k + nt), 4)
                    M(f"v_mfma_f32_16x16x32_bf16 {d}, {a(slot(n)+4*nt,4)}, {v(ACT + 16 * (n % 4) + 4 * k, 4)}, {'0' if n == 0 else d}")
                    emit(M, extra.get(5 * gi + nt, []))
                if n + 4 < 14: emit(M, act_load(n + 4, k))
            return
        for k in range(4):
            b = v(ACT + 16 * (n % 4) + 4 * k, 4) if n < 14 else a(aO + 16 * (n - 14) + 4 * k, 4)
            for nt in range(5):
                d = v(ACCO + 4 * (5 * k + nt), 4)
                M(f"v_mfma_f32_16x16x32_bf16 {d}, {a(slot(n)+4*nt,4)}, {b}, {'0' if n == 0 else d}")
                emit(M, extra.get(5 * k + nt, []))
            if n + 4 < 14: emit(M, act_load(n + 4, k))
    def wext(n):
        e = {}
        if 1 <= n and n + 11 <= (13 if OWN else 18):
            lst = w2p_loads(n + 11)
            k = 0
            for x in lst:
                e.setdefault(1 + 4 * k, []).append(x)
                k += x[2]
        if OWN:
            gs = LW.get(n, ())
            if gs: place(e, sum((wdma(g) for g in gs), []), [(20 * i) // (5 * len(gs)) + (2 if len(gs) == 1 else 0) for i in range(5 * len(gs))])
            rd = RS.get(n, [])
            if rd: place(e, rd, [(17 * i) // len(rd) for i in range(len(rd))])
            if n == 9:
                for i in range(10):
                    e.setdefault(2 * i, []).append((f"v_and_b32 v{XH[i]}, 0xffff0000, v{XRS+i}", None, 0))
                    e.setdefault(2 * i + 1, []).append((f"v_lshlrev_b32 v{XRS+i}, 16, v{XRS+i}", None, 0))
        return e
    pt(A, "fin")
    poll_check(A, C, 3)
    F = Asm()
    poll_addr(F, "kvp", 1, 2)
    F(f"v_lshlrev_b32 v{vKA}, 4, v{vTID}")
    for j in range(1, 4): F(f"v_add_u32 v{vKA+j}, {4096*j}, v{vKA}")
    if OWN:
        F(f"s_mul_i32 s{sWB}, s{sWAVE}, 5120"); F(f"v_add_u32 v{vWL}, 61440, v{vW}"); F(f"v_add_u32 v{vWL+1}, 102400, v{vW}")
    spread(A, F, sum((act_load(n, k) for n in range(4) for k in range(4)), []), 2, first=2)
    if OWN: emit(A, sum((wdma(g) for g in LW.get(-1, ())), []))
    pt(A, "part1")
    NA = OPT.get("na", 2); NB = OPT.get("nb", 2)
    assert NA <= 3
    kq = OPT.get("kvpoll", 1)
    if kq == 0: poll_issue(A)
    for n in range(NA):
        step(A, n, wext(n))
        if kq == n + 1: poll_issue(A)
    poll_check(A, C, 4)
    pt(A, "kvchk")
    A(f"s_mul_i32 s{sP0}, s{sC}, {4*KVH}"); A(f"s_add_u32 s{sP0}, s{sP0}, {KV_OFF}"); A(f"s_add_u32 s{sP1}, s{sP0}, {KVC}")
    for j in range(4):
        A(f"buffer_load_dwordx4 {v(KVR+4*j,4)}, v{vKA+j}, {srdr(SWS)}, s{sP0} offen sc1")
        A(f"buffer_load_dwordx4 {v(NU+4*j,4)}, v{vKA+j}, {srdr(SWS)}, s{sP1} offen sc1")
    F = Asm()
    F(f"s_lshr_b32 s{sT0}, s{sC}, 1"); F(f"s_mul_i32 s{sT0}, s{sT0}, 5"); F(f"s_add_u32 s{sT0}, s{sT0}, 54"); F(f"s_lshl_b32 s{sT0}, s{sT0}, 10")
    F(f"s_mul_i32 s{sT1}, s{sWAVE}, {ACT_BLK}"); F(f"s_add_u32 s{sT0}, s{sT0}, s{sT1}"); F(f"s_add_u32 s{sT0}, s{sT0}, s{sAB}")
    F(f"s_and_b32 s{sT1}, s{sC}, 1"); F(f"s_lshl_b32 s{sT2}, s{sT1}, 11"); F(f"s_add_u32 s{sT2}, s{sT2}, s{sT0}")
    F(f"s_lshl_b32 s{sT1}, s{sT1}, 9"); F(f"s_add_u32 s{sT1}, s{sT1}, s{sT0}"); F(f"s_add_u32 s{sT1}, s{sT1}, 4096")
    F("v_lshrrev_b32 v3, 5, v0"); F("v_lshlrev_b32 v3, 8, v3"); F("v_and_b32 v4, 15, v0"); F("v_lshl_add_u32 v3, v4, 4, v3")
    F("v_bfe_u32 v4, v0, 4, 1"); F(f"v_lshl_add_u32 v{vOA}, v4, 3, v3")
    F(f"v_lshlrev_b32 v2, 3, v{vTID}"); F(f"v_add_u32 v2, {KVI}, v2")
    OPF = OPT.get("opf", 0)
    if OPF:
        F(f"v_min_u32 v{vQA}, 19, v0"); F(f"v_lshlrev_b32 v{vQA}, 7, v{vQA}")
        F(f"s_sub_u32 s{sT3}, s{sT1}, 2048"); F(f"v_mov_b32 v{vQA+1}, s{sT2}"); F(f"v_mov_b32 v{vQA+2}, s{sT3}")
        F("v_cmp_gt_u32 vcc, 16, v0"); F.g(f"v_cndmask_b32 v{vQA+1}, v{vQA+2}, v{vQA+1}, vcc")
        F(f"v_add_u32 v{vQA}, v{vQA}, v{vQA+1}")
    n0 = NA + NB - 1
    M = Asm()
    for n in range(NA, NA + NB): step(M, n, wext(n))
    ins, left = weave(M, F, per=2)
    KVW = OPT.get("kvw", 26)
    G = Asm()
    for j in range(4):
        if KVW:
            for c in range(4): G(f"v_add_f32 v{KVR+4*j+c}, v{KVR+4*j+c}, v{NU+4*j+c}")
        else:
            for h in range(2): G(f"v_pk_add_f32 {v(KVR+4*j+2*h,2)}, {v(KVR+4*j+2*h,2)}, {v(NU+4*j+2*h,2)}")
        G(f"v_cvt_pk_bf16_f32 v{KVR+4*j}, v{KVR+4*j}, v{KVR+4*j+1}")
        G(f"v_cvt_pk_bf16_f32 v{KVR+4*j+1}, v{KVR+4*j+2}, v{KVR+4*j+3}")
        G(f"ds_write_b64 v2, {v(KVR+4*j,2)} offset:{2048*j}")
    if KVW:
        assert not left
        ins, left = weave(ins, G, start=KVW, per=OPT.get("kvwp", 2)); A.extend(ins); A.extend(left)
    else:
        A.extend(ins); A.extend(left); A.extend(G)
    A.wait(lgkm="all")
    A("s_barrier")
    pt(A, "stage")
    F = Asm()
    seq2 = [(st, ch) for st in range(5) for ch in range(6)]
    def krd(n):
        st, ch = seq2[n]
        for rho in range(2):
            F(f"ds_read_b64_tr_b16 {reg(n,2*rho,2)}, v{vF2} offset:{(8*st+4*rho)*48+ch*8}")
    for n in range(7): krd(n)
    for n in range(30):
        st, ch = seq2[n]
        d = v(NU + 4 * ch, 4)
        F(f"v_mfma_f32_16x16x32_bf16 {d}, {reg(n,0,4)}, {v(PK2+4*st,4)}, {'0' if st == 0 else d}")
        if n + 7 < 30: krd(n + 7)
    F(f"v_add_f32 v1, 0x358637bd, v{NU+20}"); F("v_rcp_f32 v1, v1"); F(f"v_mul_f32 v1, {hex(LOG2E)}, v1")
    for i in range(10):
        F(f"v_mul_f32 v{NU+2*i}, v{NU+2*i}, v1"); F(f"v_mul_f32 v{NU+2*i+1}, v{NU+2*i+1}, v1")
        F(f"v_cvt_pk_bf16_f32 v{NU+i}, v{NU+2*i}, v{NU+2*i+1}")
    F(f"buffer_store_dwordx4 {v(NU,4)}, v{vW}, {srdr(SWS)}, s{sT2} offen sc1", "ost")
    F(f"buffer_store_dwordx4 {v(NU+4,4)}, v{vW}, {srdr(SWS)}, s{sT2} offen offset:1024 sc1", "ost")
    F(f"buffer_store_dwordx2 {v(NU+8,2)}, v{vOA}, {srdr(SWS)}, s{sT1} offen sc1", "ost")
    M = Asm()
    P2 = OPT.get("p2steps", 1)
    for n in range(n0 + 1, n0 + 1 + P2): step(M, n, wext(n))
    tot = sum((2 if x.cls == "mfma" else x.cost) for x in F.ins)
    if P2: ins, left = weave(M, F, per=tot / (20 * P2) + 0.05); A.extend(ins); A.extend(left)
    else: A.extend(F)
    pt(A, "part2")
    n1 = n0 + 1 + P2
    F = Asm()
    poll_addr(F, "o", 1, 2)
    F("v_and_b32 v1, 15, v0"); F(f"s_lshl_b32 s{sT0}, s{sWAVE}, 4"); F(f"v_add_u32 v1, s{sT0}, v1"); F("v_mul_u32_u24 v1, 1280, v1")
    F("v_lshrrev_b32 v2, 4, v0"); F(f"v_lshl_add_u32 v{vXO}, v2, 4, v1"); F(f"v_lshl_add_u32 v{vXO+1}, v2, 3, v1")
    F(f"s_mul_i32 s{sXO}, s{sR}, {64*1280}"); F(f"s_mul_i32 s{sT0}, s{sC}, 160"); F(f"s_add_u32 s{sXO}, s{sXO}, s{sT0}")
    for k in range(1, 4):
        F(f"s_add_u32 s{sT0}, s{sWAVE}, {k}"); F(f"s_and_b32 s{sT0}, s{sT0}, 3"); F(f"s_mul_i32 s{sT0}, s{sT0}, 15360")
        F(f"s_add_u32 s{sT0}, s{sT0}, {RED + (k-1)*5120}"); F(f"v_add_u32 v{vRW+k-1}, s{sT0}, v{vW}")
    F(f"s_mul_i32 s{sT0}, s{sWAVE}, 15360"); F(f"v_add_u32 v{vRR}, s{sT0}, v{vW}")
    F(f"buffer_load_dwordx4 {v(XRS,4)}, v{vXO}, {srdr(SX)}, s{sXO} offen")
    F(f"buffer_load_dwordx4 {v(XRS+4,4)}, v{vXO}, {srdr(SX)}, s{sXO} offen offset:64")
    F(f"buffer_load_dwordx2 {v(XRS+8,2)}, v{vXO+1}, {srdr(SX)}, s{sXO} offen offset:128")
    M = Asm()
    SIG = n1 + OPT.get("osig", 0); POLL = OPT.get("opoll", 10)
    ol = [(f"buffer_load_dwordx4 {a(aO+16*i+4*k,4)}, v{vA+k}, {srdr(SWS)}, s{sA if i < 4 else sP1} offen offset:{1024*(i&3)} sc1", None, 1)
          for i in range(5) for k in range(4)]
    KM = OPT.get("kmaj", 1)
    if KM: ol = [ol[4 * i + k] for k in (1, 2, 3, 0) for i in range(5)]
    osp = OPT.get("osp", 4); o0 = OPT.get("o0", 2)
    O13 = (1, 2, 3, 0)
    def oreg(j):
        if j < 4: return 64 + 4 * j
        if j < 8: return ACT + 32 + 4 * (j & 3)
        return ACT + 16 * ((11 + (j - 8) % 3) % 4) + 4 * O13[(j - 8) // 3]
    def ow(k, nt): return (f"ds_write_b128 v{vRW+k-1}, {v(ACCO+4*(5*k+nt),4)} offset:{1024*nt}", None, 1)
    rw = [ow(k, nt) for k in (1, 2, 3) for nt in range(5)]
    wsp = OPT.get("wsp", 3)
    wg = [int(17 + wsp * i) for i in range(15)]
    if OWN:
        assert POLL == 10 and n0 + P2 == NP and SIG == SG
        ol = [(f"buffer_load_dwordx4 {v(oreg(j),4)}, v{vA+(j&3)}, {srdr(SWS)}, s{sA if j < 16 else sP1} offen offset:{1024*((j>>2)&3)} sc1", None, 1)
              for j in range(20)]
        og = {}; g = osp - 1
        for j in range(o0, 20):
            g = max(g, 0 if j < 8 else 5 * (j - 8) + 4)
            og.setdefault(int(g), []).append(ol[j]); g += osp
        del ol[o0:]
    for n in range(n1, 14):
        e = wext(n)
        if OWN:
            if n > POLL:
                if n > 11: continue
                w8 = [wrd(8, nt) for nt in range(5)]
                for g in range(60):
                    k = O13[g // 15]; m = 11 + (g % 15) // 5; nt = g % 5
                    d = v(ACCO + 4 * (5 * k + nt), 4)
                    M(f"v_mfma_f32_16x16x32_bf16 {d}, {a(slot(m)+4*nt,4)}, {v(ACT + 16 * (m % 4) + 4 * k, 4)}, {d}")
                    emit(M, og.get(g, []))
                    if g < 15 and g % 3 == 0: emit1(M, w8.pop(0))
                    if g in wg: emit1(M, rw.pop(0))
                continue
            step(M, n, e)
            if n == SIG:
                M.wait(vm=["ost"] + [f"WL{g}" for g in range(5) if g not in LATE]); M("s_barrier"); signal(M, 5)
                pt(M, "osig")
            if n == OPT.get("opi", SG + 2): poll_issue(M)
            if n == POLL:
                M(f"s_add_u32 s{sA}, s{sAB}, {54*1024}")
                for k in range(1, 4): M(f"v_add_u32 v{vA+k}, {5120*k}, v{vA}")
                poll_check(M, C, 5)
                M(f"s_add_u32 s{sP1}, s{sA}, 4096")
                emit(M, ol); del ol[:]
                if 2 in LATE: M.wait(vm="WL2")
                M.wait(lgkm="all"); M("s_barrier")
                pt(M, "ochk")
            continue
        if n > POLL:
            for g in range(20):
                if (20 * (n - POLL - 1) + g) % osp == osp - 1 and ol: e.setdefault(g, []).append(ol.pop(0))
        step(M, n, e)
        if n == SIG:
            M.wait(vm="ost")
            if OPF == 1: M.g(f"buffer_load_dword v{vQA+1}, v{vQA}, {srdr(SWS)}, 0 offen sc1")
            M("s_barrier"); signal(M, 5)
            if OPF == 2: M(f"buffer_load_dword v{vQA+1}, v{vQA}, {srdr(SWS)}, 0 offen sc1")
            pt(M, "osig")
        if n == POLL - 1: poll_issue(M)
        if n == POLL:
            poll_check(M, C, 5)
            pt(M, "ochk")
            M(f"s_mul_i32 s{sA}, s{sWAVE}, 5120"); M(f"s_add_u32 s{sA}, s{sA}, s{sAB}"); M(f"s_add_u32 s{sA}, s{sA}, {54*1024}")
            M(f"s_add_u32 s{sP1}, s{sA}, 4096")
            emit(M, ol[:o0]); del ol[:o0]
    emit(M, ol)
    ins, left = weave(M, F, per=2); A.extend(ins); assert not left
    pt(A, "s13")
    if OWN:
        A(f"s_mov_b32 s{sT0}, {hex(LN2)}"); A(f"s_mov_b32 s{sT0+1}, {hex(LN2)}")
        RB = ACCO + 20
        rr = [(f"ds_read_b128 {v(RB+12*nt+4*sl,4)}, v{vRR} offset:{sl*5120+nt*1024}", None, 1) for nt in range(5) for sl in range(3)]
        post = rr + [wrd(j, nt) for j in range(9 if 2 in LATE else 12, 20) for nt in range(5)]
        fs = []
        for nt in range(5):
            b = RB + 12 * nt
            for c in range(4): fs.append(f"v_add_f32 v{b+c}, v{b+c}, v{b+4+c}")
            for c in range(4): fs.append(f"v_add_f32 v{b+c}, v{b+c}, v{b+8+c}")
            for c in range(4):
                x = XH[2 * nt + c // 2] if c & 1 else XRS + 2 * nt + c // 2
                fs.append(f"v_fma_f32 v{b+4+c}, v{b+c}, s{sT0}, v{x}")
        bar = max(wg[-1] - 59, 0) + OPT.get("bard", 2); fst = OPT.get("fst", 12); rend = OPT.get("rend", 84); np_ = len(post)
        for q in range(100):
            j, nt = divmod(q, 5)
            d = v(ACCO + 4 * nt, 4)
            A(f"v_mfma_f32_16x16x32_bf16 {d}, {wo(j,nt)}, {v(oreg(j),4)}, {d}")
            emit(A, og.get(60 + q, []))
            if 60 + q in wg: emit1(A, rw.pop(0))
            if q == bar: A.wait(vm=[f"WL{g}" for g in range(5)], lgkm="all"); A("s_barrier"); pt(A, "red")
            if q >= bar:
                while post and (q < bar + 15 and np_ - len(post) <= q - bar or np_ - len(post) - 15 <= (q - bar - 15) * (np_ - 15) / (rend - bar - 15) and q >= bar + 15):
                    emit1(A, post.pop(0))
                if q >= bar + fst and fs: A(fs.pop(0))
            if q == 49: pt(A, "b0a")
        assert not post and not fs and not rw
        pt(A, "b0")
        for nt in range(5):
            o = ACCO + 4 * nt
            for h in range(2):
                A(f"v_pk_fma_f32 {v(o+2*h,2)}, {v(o+2*h,2)}, s[{sT0}:{sT0+1}], {v(RB+12*nt+4+2*h,2)}")
            for h in range(2):
                A(f"v_cvt_pk_bf16_f32 v{64+2*nt+h}, v{o+2*h}, v{o+2*h+1}")
            if nt == 1: A(f"buffer_store_dwordx4 {v(64,4)}, v{vXO}, {srdr(SOUT)}, s{sXO} offen")
            if nt == 3: A(f"buffer_store_dwordx4 {v(68,4)}, v{vXO}, {srdr(SOUT)}, s{sXO} offen offset:64")
            if nt == 4: A(f"buffer_store_dwordx2 {v(72,2)}, v{vXO+1}, {srdr(SOUT)}, s{sXO} offen offset:128")
    elif KM:
        def om(k, n, nt):
            d = v(ACCO + 4 * (5 * k + nt), 4)
            A(f"v_mfma_f32_16x16x32_bf16 {d}, {a(slot(n)+4*nt,4)}, {a(aO+16*(n-14)+4*k,4)}, {d}")
        def ow(k, nt): A(f"ds_write_b128 v{vRW+k-1}, {v(ACCO+4*(5*k+nt),4)} offset:{1024*nt}")
        A(f"s_mov_b32 s{sT0}, {hex(LN2)}"); A(f"s_mov_b32 s{sT0+1}, {hex(LN2)}")
        xs = []
        for i in range(10):
            xs += [f"v_lshlrev_b32 v{44+2*i}, 16, v{XRS+i}", f"v_and_b32 v{45+2*i}, 0xffff0000, v{XRS+i}"]
        for k in (1, 2, 3):
            for n in range(14, 19):
                for nt in range(5):
                    om(k, n, nt)
                    if k > 1 and n == 14 and nt >= 2: ow(k - 1, nt - 2)
                    if k > 1 and n == 15 and nt < 2: ow(k - 1, nt + 3)
                    if n >= 16 and xs: A(xs.pop(0))
                if k == 1 and n == 14: pt(A, "b1a")
            pt(A, f"b{k}")
        NB0 = OPT.get("nb0", 0)
        for n in range(14, 14 + NB0):
            for nt in range(5):
                om(0, n, nt)
                if n == 14 and nt >= 2: ow(3, nt - 2)
        for nt in range(3 if NB0 else 0, 5): ow(3, nt)
        A.wait(lgkm="all")
        A("s_barrier")
        pt(A, "red")
        for nt in range(5):
            for sl in range(3):
                A(f"ds_read_b128 {v(ACT+12*nt+4*sl,4)}, v{vRR} offset:{sl*5120+nt*1024}")
        fs = []
        for nt in range(5):
            b = ACT + 12 * nt
            for h in range(2): fs.append(f"v_pk_add_f32 {v(b+2*h,2)}, {v(b+2*h,2)}, {v(b+4+2*h,2)}")
            for h in range(2): fs.append(f"v_pk_add_f32 {v(b+2*h,2)}, {v(b+2*h,2)}, {v(b+8+2*h,2)}")
            for h in range(2): fs.append(f"v_pk_fma_f32 {v(44+4*nt+2*h,2)}, {v(b+2*h,2)}, s[{sT0}:{sT0+1}], {v(44+4*nt+2*h,2)}")
        for n in range(14 + NB0, 18):
            for nt in range(5): om(0, n, nt)
        pt(A, "b0a")
        for x in fs: A(x)
        for nt in range(5): om(0, 18, nt)
        pt(A, "b0")
        for nt in range(5):
            o = ACCO + 4 * nt
            for h in range(2):
                A(f"v_pk_fma_f32 {v(o+2*h,2)}, {v(o+2*h,2)}, s[{sT0}:{sT0+1}], {v(44+4*nt+2*h,2)}")
            for h in range(2):
                A(f"v_cvt_pk_bf16_f32 v{64+2*nt+h}, v{o+2*h}, v{o+2*h+1}")
            if nt == 1: A(f"buffer_store_dwordx4 {v(64,4)}, v{vXO}, {srdr(SOUT)}, s{sXO} offen")
            if nt == 3: A(f"buffer_store_dwordx4 {v(68,4)}, v{vXO}, {srdr(SOUT)}, s{sXO} offen offset:64")
            if nt == 4: A(f"buffer_store_dwordx2 {v(72,2)}, v{vXO+1}, {srdr(SOUT)}, s{sXO} offen offset:128")
    else:
        for n in range(14, 18): step(A, n, {})
        n = 18
        order = [1, 2, 3, 0]
        for idx, k in enumerate(order):
            for nt in range(5):
                d = v(ACCO + 4 * (5 * k + nt), 4)
                A(f"v_mfma_f32_16x16x32_bf16 {d}, {a(slot(n)+4*nt,4)}, {a(aO+64+4*k,4)}, {d}")
                if idx >= 2 or (idx == 1 and nt >= 2):
                    j = 5 * (idx - 1) + nt - 2
                    kk = order[j // 5]
                    A(f"ds_write_b128 v{vRW+kk-1}, {v(ACCO+4*(5*kk+j%5),4)} offset:{1024*(j%5)}")
        for j in range(13, 15):
            A(f"ds_write_b128 v{vRW+2}, {v(ACCO+4*(15+j%5),4)} offset:{1024*(j%5)}")
        XF = 100
        A(f"s_mov_b32 s{sT0}, {hex(LN2)}"); A(f"s_mov_b32 s{sT0+1}, {hex(LN2)}")
        for i in range(10):
            A(f"v_lshlrev_b32 v{44+2*i}, 16, v{XRS+i}"); A(f"v_and_b32 v{45+2*i}, 0xffff0000, v{XRS+i}")
        A.wait(lgkm="all")
        A("s_barrier")
        pt(A, "red")
        for nt in range(5):
            for sl in range(3):
                A(f"ds_read_b128 {v(ACT+12*nt+4*sl,4)}, v{vRR} offset:{sl*5120+nt*1024}")
        for nt in range(5):
            b = ACT + 12 * nt; o = ACCO + 4 * nt
            for h in range(2):
                A(f"v_pk_add_f32 {v(o+2*h,2)}, {v(o+2*h,2)}, {v(b+2*h,2)}")
                A(f"v_pk_add_f32 {v(b+4+2*h,2)}, {v(b+4+2*h,2)}, {v(b+8+2*h,2)}")
            for h in range(2):
                A(f"v_pk_add_f32 {v(o+2*h,2)}, {v(o+2*h,2)}, {v(b+4+2*h,2)}")
            for h in range(2):
                A(f"v_pk_fma_f32 {v(o+2*h,2)}, {v(o+2*h,2)}, s[{sT0}:{sT0+1}], {v(44+4*nt+2*h,2)}")
            for h in range(2):
                A(f"v_cvt_pk_bf16_f32 v{64+2*nt+h}, v{o+2*h}, v{o+2*h+1}")
            if nt == 1: A(f"buffer_store_dwordx4 {v(64,4)}, v{vXO}, {srdr(SOUT)}, s{sXO} offen")
            if nt == 3: A(f"buffer_store_dwordx4 {v(68,4)}, v{vXO}, {srdr(SOUT)}, s{sXO} offen offset:64")
            if nt == 4: A(f"buffer_store_dwordx2 {v(72,2)}, v{vXO+1}, {srdr(SOUT)}, s{sXO} offen offset:128")
    A(f"s_add_u32 s{sP0}, s{sE}, 16"); A(f"v_mov_b32 v1, s{sP0}")
    A(f"s_cmp_eq_u32 s2, 0"); A(f"s_cselect_b32 s{sP1}, 0, {hex(OOB)}")
    A(f"v_subrev_u32 v2, {FLG_OFF}, v{vFL}")
    A(f"buffer_store_dword v1, v2, {srdr(SWS)}, s{sP1} offen sc1")
    prof_flush(A, 0, SWS, sWAVE)

OPT = {}
DEFST = ["p1end", "p2end", "first", "fin", "kvchk", "stage", "part2", "osig", "ochk", "s13"]
def pt(A, name):
    L = OPT.get("stamps", DEFST)
    if name in L: stamp(A, 2 + L.index(name))

def gen(name=MAIN, **opt):
    OPT.clear(); OPT.update(opt)
    C = Ctx("f")
    A = Asm()
    prologue(A, C)
    role_kv(A, C)
    role_p(A, C)
    phase2(A, C)
    A("s_endpgm")
    A.extend(C.spins)
    A.label(C.L("end"))
    A("s_endpgm")
    return dict(name=name, ins=render(finalize(A)), grid=256, block=256, lds=LDSZ, vgpr=512, accum=256)

if __name__ == "__main__":
    for P in range(320): assert (P * 3277) >> 16 == P // 20 and (P * 6554) >> 16 == P // 10
    for P in range(20): assert (P * 13108) >> 16 == P // 5 and (P * 52) >> 8 == P // 5
    for P in range(1024): assert (P * 10923) >> 16 == P // 6
    open("g_test.s", "w").write(build_file([gen()]))
    PROF["on"] = True
    st = sys.argv[1].split(",") if len(sys.argv) > 1 and sys.argv[1] != "-" else DEFST
    if st == ["C"]: st = [f"c{i}" for i in range(10)]
    opt = eval("dict(" + sys.argv[2] + ")") if len(sys.argv) > 2 else {}
    open(sys.argv[3] if len(sys.argv) > 3 else "g_prof.s", "w").write(build_file([gen(stamps=st, **opt)]))
    if len(sys.argv) > 4:
        PROF["on"] = False
        open(sys.argv[4], "w").write(build_file([gen(**opt)]))
```
